```python
import torch

def _softmax(x, axis=-1):
    return torch.softmax(x, dim=axis)
def _gelu(x):
    return torch.nn.functional.gelu(x, approximate="tanh")
def _silu(x):
    return torch.nn.functional.silu(x)
def _sigmoid(x):
    return torch.sigmoid(x)
def _layernorm(x, axis=-1, eps=1e-5):
    m = x.mean(dim=axis, keepdim=True)
    v = x.var(dim=axis, keepdim=True, unbiased=False)
    return (x - m) / torch.sqrt(v + eps)
def _scatter_add(tgt, idx, src, axis=0):
    return tgt.clone().index_add_(axis, idx, src)
def _segment_sum(src, seg, n):
    out = torch.zeros((n,) + src.shape[1:], dtype=src.dtype)
    return out.index_add_(0, seg, src)
def _pad(x, pw):
    flat = tuple(v for pair in reversed(pw) for v in pair)
    return torch.nn.functional.pad(x, flat)

kernel_name = 'sequential_preLN__compressed_kv_cla__swiglu_ffn__decode'

def setup_inputs():

    _w = (lambda a: (lambda t: t.to(torch.bfloat16) if t.is_floating_point() else t)(torch.as_tensor(a)))
    def _A_setup():
        B, H, Sq, Sk, D, M = 2, 32, 1, 16384, 128, 576
        Dc = 4 * D
        return {
            "x": _w((lambda *s: torch.randn(*s, dtype=torch.bfloat16) * 0.05)(B, Sq, M)),
            "c_kv": _w((lambda *s: torch.randn(*s, dtype=torch.bfloat16) * 0.4)(B, Sk, Dc)),
            "w_q": _w((lambda *s: torch.randn(*s, dtype=torch.bfloat16) * 3.2)(M, H, D) * (M ** -0.5)),
            "w_uk": _w((lambda *s: torch.randn(*s, dtype=torch.bfloat16) * 3.2)(Dc, H, D) * (Dc ** -0.5)),
            "w_uv": _w((lambda *s: torch.randn(*s, dtype=torch.bfloat16) * 0.4)(Dc, H, D) * (Dc ** -0.5)),
            "w_o": _w((lambda *s: torch.randn(*s, dtype=torch.bfloat16) * 0.4)(H, D, M) * ((H * D) ** -0.5)),
        }
    _A_in = _A_setup()

    def _B_setup():
        B, S, D, F = 2, 1, 576, 4608
        return {
            "x": _w((lambda *s: torch.randn(*s, dtype=torch.bfloat16) * 0.05)(B, S, D)),
            "w_gate": _w((lambda *s: torch.randn(*s, dtype=torch.bfloat16) * 0.05)(D, F)),
            "w_up": _w((lambda *s: torch.randn(*s, dtype=torch.bfloat16) * 0.05)(D, F)),
            "w_down": _w((lambda *s: torch.randn(*s, dtype=torch.bfloat16) * 0.05)(F, D)),
        }
    _B_in = _B_setup()

    return {
        "A_x": _A_in["x"],
        "A_c_kv": _A_in["c_kv"],
        "A_w_q": _A_in["w_q"],
        "A_w_uk": _A_in["w_uk"],
        "A_w_uv": _A_in["w_uv"],
        "A_w_o": _A_in["w_o"],
        "B_x": _B_in["x"],
        "B_w_gate": _B_in["w_gate"],
        "B_w_up": _B_in["w_up"],
        "B_w_down": _B_in["w_down"],
    }

def reference(A_x, A_c_kv, A_w_q, A_w_uk, A_w_uv, A_w_o, B_x, B_w_gate, B_w_up, B_w_down):
    def _A_ref(x, c_kv, w_q, w_uk, w_uv, w_o):
        B, Sq, M = x.shape[0], x.shape[1], x.shape[2]
        Sk = c_kv.shape[1]
        H, D = w_q.shape[1], w_q.shape[2]
        q = torch.einsum("bqm,mhd->bhqd", x, w_q)
        k = torch.einsum("bkc,chd->bhkd", c_kv, w_uk)
        v = torch.einsum("bkc,chd->bhkd", c_kv, w_uv)
        scores = torch.einsum("bhqd,bhkd->bhqk", q, k) * (D ** -0.5)
        off = Sk - Sq
        qi = torch.arange(Sq)[:, None]
        kj = torch.arange(Sk)[None, :]
        cmask = kj <= (qi + off)
        scores = torch.where(cmask[None, None], scores, -1e9)
        p = _softmax(scores, axis=-1)
        ctx = torch.einsum("bhqk,bhkd->bhqd", p, v)
        return torch.einsum("bhqd,hdm->bqm", ctx, w_o)

    def _B_ref(x, w_gate, w_up, w_down):
        g = _silu(x @ w_gate)
        u = x @ w_up
        return (g * u) @ w_down

    x = A_x
    h = x + _A_ref(_layernorm(x, axis=-1), A_c_kv, A_w_q, A_w_uk, A_w_uv, A_w_o)
    h2 = h + _B_ref(_layernorm(h, axis=-1), B_w_gate, B_w_up, B_w_down)
    return h2
```

```python
import sys

HEADER = open("sequential_preLN__compressed_kv_cla__swiglu_ffn__decode.s.ref").read().split("; Override launch")[0]

WS_QA   = 0x000000
WS_ML   = 0x010000
WS_CTX  = 0x020000
WS_OUTP = 0x060000
WS_H    = 0x070000
WS_DNP  = 0x080000
WS_OP   = 0x200000

KA = dict(x=0, ckv=8, wq=16, wuk=24, wuv=32, wo=40, bx=48, wg=56, wu=64, wd=72, out=80, dbg=88, ws=96)
SZ = dict(x=2304, ckv=33554432, wq=4718592, wuk=4194304, wuv=4194304, wo=4718592, wg=5308416, wu=5308416,
          wd=5308416, out=2304)

LOG2E = 1.4426950408889634
import struct
def f2u(f): return struct.unpack("<I", struct.pack("<f", f))[0]

class Kern:
    def __init__(self, name, grid, block, lds, vgpr, sgpr=96):
        self.name, self.grid, self.block, self.lds, self.vgpr, self.sgpr = name, grid, block, lds, vgpr, sgpr
        self.lines = []
    def e(self, s):
        for l in s.strip("\n").split("\n"):
            self.lines.append("    " + l.strip())
    def lab(self, s): self.lines.append(s + ":")
    def c(self, s): self.lines.append("    ; " + s)
    def ldptr(self, d, key): self.e(f"s_load_dwordx2 s[{d}:{d+1}], s[0:1], {KA[key]}")
    def srd(self, d, p, n, off=0):
        if off:
            self.e(f"s_add_u32 s{d}, s{p}, {off}\ns_addc_u32 s{d+1}, s{p+1}, 0")
        else:
            self.e(f"s_mov_b32 s{d}, s{p}\ns_mov_b32 s{d+1}, s{p+1}")
        self.e(f"s_mov_b32 s{d+2}, {n}\ns_mov_b32 s{d+3}, 0x00020000")
    def allreduce(self, op, x, t):
        for ctl in ("quad_perm:[1,0,3,2]", "quad_perm:[2,3,0,1]", "row_half_mirror", "row_mirror"):
            self.e(f"s_nop 1\nv_{op}_f32_dpp v{x}, v{x}, v{x} {ctl} row_mask:0xf bank_mask:0xf")
        for sw in ("v_permlane16_swap_b32", "v_permlane32_swap_b32"):
            self.e(f"v_mov_b32 v{t}, v{x}\ns_nop 1\n{sw} v{x}, v{t}\ns_nop 0\nv_{op}_f32 v{x}, v{x}, v{t}")
    def hilo(self, x, hi, lo, t):
        self.e(f"""v_cvt_pk_bf16_f32 v{hi}, v{x}, v{x}
                   v_lshlrev_b32 v{t}, 16, v{hi}
                   v_sub_f32 v{t}, v{x}, v{t}
                   v_cvt_pk_bf16_f32 v{lo}, v{t}, v{t}""")
    def text(self):
        acc = (self.vgpr + 3) // 4 * 4
        return "\n".join([
            f".globl {self.name}", ".p2align 8", f".type {self.name},@function", f"{self.name}:"] + self.lines + [
            "    s_endpgm",
            '.section .rodata,"a"', ".p2align 6", f".amdhsa_kernel {self.name}",
            f"  .amdhsa_next_free_vgpr {self.vgpr}", f"  .amdhsa_next_free_sgpr {self.sgpr}",
            f"  .amdhsa_accum_offset {acc}", "  .amdhsa_group_segment_fixed_size 0", "  .amdhsa_kernarg_size 104",
            "  .amdhsa_user_sgpr_count 2", "  .amdhsa_user_sgpr_kernarg_segment_ptr 1",
            "  .amdhsa_system_sgpr_workgroup_id_x 1", ".end_amdhsa_kernel", ".text", ""])

def guard(k, n):
    k.e(f"s_cmp_ge_u32 s2, {n}\ns_cbranch_scc1 {k.name}_end")

def wave_id(k, sdst, vt):
    k.e(f"v_lshrrev_b32 v{vt}, 6, v0\ns_nop 0\nv_readfirstlane_b32 s{sdst}, v{vt}")

def k1_qabs():
    A_LDS, Q_LDS, W_LDS = 0, 4608, 6144
    k = Kern("k1_qabs_kernel", 256, 256, 6144 + 147456, 172)
    guard(k, 256)
    k.ldptr(4, "x"); k.ldptr(6, "wq"); k.ldptr(8, "wuk"); k.ldptr(10, "ws")
    wave_id(k, 20, 1)
    k.e("s_and_b32 s21, s2, 31\ns_lshr_b32 s22, s2, 5")
    k.e("s_waitcnt lgkmcnt(0)")
    k.srd(24, 4, SZ["x"]); k.srd(28, 6, SZ["wq"]); k.srd(32, 8, SZ["wuk"]); k.srd(36, 10, 65536, WS_QA)
    k.e("v_and_b32 v1, 63, v0")
    k.e("s_and_b32 s23, s20, 1\ns_mul_i32 s23, s23, 1152\nv_lshlrev_b32 v2, 1, v1")
    for i in range(9):
        k.e(f"buffer_load_ushort v{10+i}, v2, s[24:27], s23 offen offset:{128*i}")
    k.e("""v_and_b32 v3, 15, v1
           v_lshrrev_b32 v4, 4, v1
           s_lshl_b32 s40, s22, 6
           s_lshl_b32 s41, s20, 4
           s_add_u32 s40, s40, s41
           v_add_u32 v5, s40, v3
           v_lshlrev_b32 v5, 13, v5
           v_lshl_add_u32 v5, v4, 4, v5
           s_lshl_b32 s41, s21, 8""")
    for t in range(4):
        k.e(f"buffer_load_dwordx4 v[{148+4*t}:{151+4*t}], v5, s[32:35], s41 offen offset:{64*t}")
    k.e("""v_lshlrev_b32 v6, 1, v4
           v_xor_b32 v6, v6, v3
           v_lshlrev_b32 v6, 4, v6
           v_lshl_add_u32 v6, v4, 13, v6
           v_xor_b32 v7, 0x80, v6
           s_mul_i32 s42, s20, 36
           s_lshl_b32 s43, s42, 10
           s_add_u32 s43, s43, 6144
           s_lshl_b32 s44, s42, 15
           s_add_u32 s44, s44, s41""")
    for mi in range(36):
        k.e(f"""s_mov_b32 m0, s43
                s_add_u32 s43, s43, 1024
                buffer_load_dwordx4 v{7 if mi & 2 else 6}, s[28:31], s44 offen lds
                s_add_u32 s44, s44, 32768""")
    k.e("s_waitcnt vmcnt(40)")
    for i in range(9):
        k.e(f"v_lshlrev_b32 v{10+i}, 16, v{10+i}")
    k.e("v_add_f32 v20, v10, v11")
    for i in range(2, 9):
        k.e(f"v_add_f32 v20, v20, v{10+i}")
    k.allreduce("add", 20, 21)
    k.e(f"v_mul_f32 v20, {f2u(1.0/576)}, v20")
    for i in range(9):
        k.e(f"v_sub_f32 v{10+i}, v{10+i}, v20")
    k.e("v_mul_f32 v22, v10, v10")
    for i in range(1, 9):
        k.e(f"v_fmac_f32 v22, v{10+i}, v{10+i}")
    k.allreduce("add", 22, 21)
    k.e(f"""v_mov_b32 v23, {f2u(1e-5)}
            v_fmac_f32 v23, {f2u(1.0/576)}, v22
            v_rsq_f32 v23, v23
            s_mul_i32 s45, s23, 1
            v_add_u32 v24, s45, v2""")
    for i in range(9):
        k.e(f"v_mul_f32 v{10+i}, v{10+i}, v23")
        k.hilo(10+i, 25, 26, 27)
        k.e(f"""ds_write_b16 v24, v25 offset:{A_LDS + 128*i}
                ds_write_b16 v24, v26 offset:{A_LDS + 2304 + 128*i}""")
    k.e("s_waitcnt vmcnt(0) lgkmcnt(0)\ns_barrier")
    k.e(f"""v_and_b32 v8, 3, v1
            v_mul_u32_u24 v8, 1152, v8
            v_lshl_add_u32 v8, v4, 4, v8""")
    for t in range(18):
        k.e(f"ds_read_b128 v[{28+4*t}:{31+4*t}], v8 offset:{A_LDS + 64*t}")
    k.e("""s_mov_b32 s47, 6144
           v_lshrrev_b32 v9, 2, v3
           v_lshl_add_u32 v10, v4, 3, v9
           v_lshlrev_b32 v10, 8, v10
           v_and_b32 v11, 1, v4
           v_lshlrev_b32 v11, 3, v11
           v_lshl_or_b32 v11, v9, 1, v11
           v_bfe_u32 v12, v3, 1, 1
           s_lshl_b32 s46, s20, 2
           v_add_u32 v12, s46, v12
           v_and_b32 v13, 1, v3
           v_lshlrev_b32 v13, 3, v13
           v_add3_u32 v10, v10, v13, s47""")
    for nt in range(2):
        k.e(f"""v_add_u32 v14, {2*nt}, v12
                v_xor_b32 v14, v14, v11
                v_lshl_add_u32 v{15+3*nt}, v14, 4, v10""")
        k.e(f"""v_add_u32 v{16+3*nt}, 0x10000, v{15+3*nt}
                v_add_u32 v{17+3*nt}, 0x20000, v{15+3*nt}""")
    def trread(dst, nt, t):
        base = 15 + 3*nt + t // 8
        off = (t % 8) * 8192
        k.e(f"ds_read_b64_tr_b16 v[{dst}:{dst+1}], v{base} offset:{off}")
        k.e(f"ds_read_b64_tr_b16 v[{dst+2}:{dst+3}], v{base} offset:{off+1024}")
    seq = [(nt, t) for nt in range(2) for t in range(18)]
    CH = 6
    chunks = [seq[i:i+CH] for i in range(0, len(seq), CH)]
    bufs = [100, 124]
    for i, (nt, t) in enumerate(chunks[0]):
        trread(bufs[0] + 4*i, nt, t)
    for ci, ch in enumerate(chunks):
        if ci + 1 < len(chunks):
            for i, (nt, t) in enumerate(chunks[ci+1]):
                trread(bufs[(ci+1) % 2] + 4*i, nt, t)
            k.e(f"s_waitcnt lgkmcnt({2*CH})")
        else:
            k.e("s_waitcnt lgkmcnt(0)")
        for i, (nt, t) in enumerate(ch):
            acc = 168 if nt else 164
            b = bufs[ci % 2] + 4*i
            cin = "0" if t == 0 else f"v[{acc}:{acc+3}]"
            k.e(f"v_mfma_f32_16x16x32_bf16 v[{acc}:{acc+3}], v[{28+4*t}:{31+4*t}], v[{b}:{b+3}], {cin}")
    k.e("s_nop 7\ns_nop 1")
    k.e(f"""s_lshl_b32 s46, s20, 6
            v_lshl_add_u32 v24, v3, 1, s46""")
    for nt in range(2):
        acc = 168 if nt else 164
        for b in range(2):
            k.e(f"v_add_f32 v10, v{acc+b}, v{acc+b+2}")
            k.hilo(10, 25, 26, 27)
            k.e(f"""ds_write_b16 v24, v25 offset:{Q_LDS + 256*b + 32*nt}
                    ds_write_b16 v24, v26 offset:{Q_LDS + 512 + 256*b + 32*nt}""")
    k.e("s_waitcnt lgkmcnt(0)\ns_barrier")
    k.e(f"""v_and_b32 v8, 3, v1
            v_lshlrev_b32 v8, 8, v8
            v_lshl_add_u32 v8, v4, 4, v8""")
    for t in range(4):
        k.e(f"ds_read_b128 v[{28+4*t}:{31+4*t}], v8 offset:{Q_LDS + 64*t}")
    k.e("s_waitcnt lgkmcnt(0)")
    for t in range(4):
        cin = "0" if t == 0 else "v[164:167]"
        k.e(f"v_mfma_f32_16x16x32_bf16 v[164:167], v[{28+4*t}:{31+4*t}], v[{148+4*t}:{151+4*t}], {cin}")
    k.e("s_nop 7\ns_nop 1")
    sc = f2u((128 ** -0.5) * LOG2E)
    k.e(f"""v_add_f32 v10, v164, v166
            v_add_f32 v11, v165, v167
            v_mul_f32 v10, {sc}, v10
            v_mul_f32 v11, {sc}, v11
            v_cvt_pk_bf16_f32 v10, v10, v11
            s_lshl_b32 s46, s21, 10
            s_lshl_b32 s47, s40, 1
            s_add_u32 s46, s46, s47
            v_lshl_add_u32 v12, v3, 1, s46
            s_mov_b32 s47, 32768
            v_cmp_gt_u32 vcc, 16, v1
            s_and_saveexec_b64 s[48:49], vcc
            buffer_store_short v10, v12, s[36:39], 0 offen
            buffer_store_short_d16_hi v10, v12, s[36:39], s47 offen""")
    k.lab(f"{k.name}_end")
    return k

def k2_attn():
    RS = 1040
    PX, MX, SX, CT = 0, 8192, 8704, 9216
    k = Kern("k2_attn_kernel", 256, 256, CT + 128*RS, 224)
    guard(k, 256)
    k.ldptr(4, "ckv"); k.ldptr(10, "ws")
    wave_id(k, 20, 1)
    k.e("s_waitcnt lgkmcnt(0)")
    k.srd(24, 4, SZ["ckv"]); k.srd(28, 10, 65536, WS_QA); k.srd(32, 10, 8388608, WS_OP); k.srd(36, 10, 65536, WS_ML)
    k.e("""v_and_b32 v1, 63, v0
           v_and_b32 v2, 31, v1
           v_lshrrev_b32 v3, 5, v1
           s_lshr_b32 s21, s2, 7
           s_lshl_b32 s22, s21, 15
           v_lshlrev_b32 v4, 10, v2
           v_lshl_add_u32 v4, v3, 4, v4""")
    QF = 96
    for t in range(32):
        k.e(f"buffer_load_dwordx4 v[{QF+4*t}:{QF+3+4*t}], v4, s[28:31], s22 offen offset:{32*t}")
    k.e(f"""v_lshlrev_b32 v5, 4, v1
            s_lshl_b32 s40, s2, 7
            s_lshl_b32 s41, s20, 5
            s_add_u32 s40, s40, s41
            s_lshl_b32 s40, s40, 10
            s_mul_i32 s42, s41, {RS}
            s_add_u32 s42, s42, {CT}""")
    for r in range(32):
        k.e(f"""s_mov_b32 m0, s42
                s_add_u32 s42, s42, {RS}
                buffer_load_dwordx4 v5, s[24:27], s40 offen lds
                s_add_u32 s40, s40, 1024""")
    k.e(f"""v_and_b32 v6, 16, v2
            v_and_b32 v7, 3, v2
            v_lshl_add_u32 v6, v7, 2, v6
            v_bfe_u32 v7, v2, 2, 1
            v_lshl_add_u32 v6, v7, 1, v6
            v_bfe_u32 v7, v2, 3, 1
            v_add_u32 v6, v6, v7
            v_add_u32 v6, s41, v6
            v_mul_u32_u24 v6, {RS}, v6
            v_lshl_add_u32 v6, v3, 4, v6
            v_add_u32 v6, {CT}, v6""")
    k.e("s_waitcnt vmcnt(0)")
    ACC = 16
    bufs = [32, 64]
    for i in range(8):
        k.e(f"ds_read_b128 v[{bufs[0]+4*i}:{bufs[0]+3+4*i}], v6 offset:{32*i}")
    for ci in range(4):
        if ci < 3:
            for i in range(8):
                b = bufs[(ci+1) % 2] + 4*i
                k.e(f"ds_read_b128 v[{b}:{b+3}], v6 offset:{32*(8*(ci+1)+i)}")
            k.e("s_waitcnt lgkmcnt(8)")
        else:
            k.e("s_waitcnt lgkmcnt(0)")
        for i in range(8):
            t = 8*ci + i
            b = bufs[ci % 2] + 4*i
            cin = "0" if t == 0 else f"v[{ACC}:{ACC+15}]"
            k.e(f"v_mfma_f32_32x32x16_bf16 v[{ACC}:{ACC+15}], v[{b}:{b+3}], v[{QF+4*t}:{QF+3+4*t}], {cin}")
    k.e("s_nop 15")
    k.e(f"v_max3_f32 v8, v{ACC}, v{ACC+1}, v{ACC+2}")
    for i in range(3, 15, 2):
        k.e(f"v_max3_f32 v8, v8, v{ACC+i}, v{ACC+i+1}")
    k.e(f"""v_max_f32 v8, v8, v{ACC+15}
            v_mov_b32 v9, v8
            s_nop 1
            v_permlane32_swap_b32 v8, v9
            s_nop 0
            v_max_f32 v8, v8, v9
            s_lshl_b32 s43, s20, 2
            v_lshl_add_u32 v10, v2, 4, s43
            v_lshlrev_b32 v11, 4, v2
            ds_write_b32 v10, v8 offset:{MX}
            s_waitcnt lgkmcnt(0)
            s_barrier
            ds_read_b128 v[12:15], v11 offset:{MX}
            s_waitcnt lgkmcnt(0)
            v_max3_f32 v8, v12, v13, v14
            v_max_f32 v8, v8, v15""")
    for i in range(16):
        k.e(f"v_sub_f32 v{ACC+i}, v{ACC+i}, v8")
    for i in range(16):
        k.e(f"v_exp_f32 v{ACC+i}, v{ACC+i}")
    k.e(f"s_nop 0\nv_add_f32 v9, v{ACC}, v{ACC+1}")
    for i in range(2, 16):
        k.e(f"v_add_f32 v9, v9, v{ACC+i}")
    for i in range(8):
        k.e(f"v_cvt_pk_bf16_f32 v{32+i}, v{ACC+2*i}, v{ACC+2*i+1}")
    k.e(f"""v_mov_b32 v12, v9
            s_lshl_b32 s44, s20, 11
            v_lshl_add_u32 v13, v1, 4, s44
            v_permlane32_swap_b32 v9, v12
            s_nop 0
            v_add_f32 v9, v9, v12
            ds_write_b128 v13, v[32:35] offset:{PX}
            ds_write_b128 v13, v[36:39] offset:{PX+1024}
            ds_write_b32 v10, v9 offset:{SX}
            s_waitcnt lgkmcnt(0)
            s_barrier""")
    PF = 32
    k.e("v_lshlrev_b32 v13, 4, v1")
    for s in range(8):
        k.e(f"ds_read_b128 v[{PF+4*s}:{PF+3+4*s}], v13 offset:{PX + 1024*s}")
    k.e(f"ds_read_b128 v[12:15], v11 offset:{SX}")
    k.e(f"""v_bfe_u32 v66, v1, 2, 2
            v_lshlrev_b32 v66, 2, v66
            v_lshl_add_u32 v66, v3, 1, v66
            v_mul_u32_u24 v66, {RS}, v66
            v_bfe_u32 v67, v1, 4, 1
            v_lshlrev_b32 v67, 5, v67
            v_and_b32 v7, 3, v1
            v_lshl_add_u32 v67, v7, 3, v67
            s_lshl_b32 s45, s20, 8
            s_add_u32 s45, s45, {CT}
            v_add3_u32 v64, v66, v67, s45
            v_add_u32 v65, {64*RS}, v64""")
    OACC = 96
    VB = [160, 192]
    steps = [(T, s) for s in range(8) for T in range(4)]
    def trread(dst, T, s):
        wq, u = s >> 1, s & 1
        base = 64 if wq < 2 else 65
        off = (32*(wq & 1) + 16*u) * RS + 64*T
        k.e(f"ds_read_b64_tr_b16 v[{dst}:{dst+1}], v{base} offset:{off}")
        k.e(f"ds_read_b64_tr_b16 v[{dst+2}:{dst+3}], v{base} offset:{off+RS}")
    CH = 4
    chunks = [steps[i:i+CH] for i in range(0, 32, CH)]
    for i, (T, s) in enumerate(chunks[0]):
        trread(VB[0] + 4*i, T, s)
    for ci, ch in enumerate(chunks):
        if ci + 1 < len(chunks):
            for i, (T, s) in enumerate(chunks[ci+1]):
                trread(VB[(ci+1) % 2] + 4*i, T, s)
            k.e(f"s_waitcnt lgkmcnt({2*CH})")
        else:
            k.e("s_waitcnt lgkmcnt(0)")
        for i, (T, s) in enumerate(ch):
            a = VB[ci % 2] + 4*i
            o = OACC + 16*T
            cin = "0" if s == 0 else f"v[{o}:{o+15}]"
            k.e(f"v_mfma_f32_32x32x16_bf16 v[{o}:{o+15}], v[{a}:{a+3}], v[{PF+4*s}:{PF+3+4*s}], {cin}")
    k.e(f"""v_add_f32 v12, v12, v13
            v_add_f32 v14, v14, v15
            v_add_f32 v9, v12, v14
            s_and_b32 s46, s2, 127
            s_lshl_b32 s47, s21, 12
            s_add_u32 s46, s46, s47
            s_lshl_b32 s46, s46, 3
            v_lshl_add_u32 v10, v2, 10, s46
            s_cmp_lg_u32 s20, 0
            s_cbranch_scc1 k2_skipml
            v_cmp_gt_u32 vcc, 32, v1
            s_and_saveexec_b64 s[48:49], vcc
            buffer_store_dwordx2 v[8:9], v10, s[36:39], 0 offen
            s_mov_b64 exec, s[48:49]""")
    k.lab("k2_skipml")
    k.e(f"""s_lshl_b32 s46, s2, 15
            s_lshl_b32 s47, s20, 8
            s_add_u32 s46, s46, s47
            v_lshlrev_b32 v10, 10, v2
            v_lshl_add_u32 v10, v3, 4, v10
            s_nop 7""")
    for T in range(4):
        o = OACC + 16*T
        for a in range(0, 4, 2):
            d = 32 + 4*((2*T + a//2) % 8)
            k.e(f"""v_cvt_pk_bf16_f32 v{d}, v{o+4*a}, v{o+4*a+1}
                    v_cvt_pk_bf16_f32 v{d+1}, v{o+4*a+2}, v{o+4*a+3}
                    v_cvt_pk_bf16_f32 v{d+2}, v{o+4*a+4}, v{o+4*a+5}
                    v_cvt_pk_bf16_f32 v{d+3}, v{o+4*a+6}, v{o+4*a+7}
                    s_nop 1
                    v_permlane32_swap_b32 v{d}, v{d+2}
                    v_permlane32_swap_b32 v{d+1}, v{d+3}
                    buffer_store_dwordx4 v[{d}:{d+3}], v10, s[32:35], s46 offen offset:{64*T + 16*a}""")
    k.lab(f"{k.name}_end")
    return k

def k3_comb():
    O_LDS, W_LDS, A_LDS, A2_LDS, R_LDS = 0, 32768, 49152, 49152 + 1024, 49152 + 2048
    k = Kern("k3_comb_kernel", 256, 256, R_LDS + 64, 64)
    guard(k, 256)
    k.ldptr(4, "wuv"); k.ldptr(10, "ws")
    wave_id(k, 20, 1)
    k.e("s_and_b32 s21, s2, 31\ns_lshr_b32 s22, s2, 5")
    k.e("s_waitcnt lgkmcnt(0)")
    k.srd(24, 4, SZ["wuv"]); k.srd(28, 10, 65536, WS_ML); k.srd(32, 10, 8388608, WS_OP); k.srd(36, 10, 262144, WS_CTX)
    k.e("""v_and_b32 v1, 63, v0
           v_and_b32 v3, 15, v1
           v_lshrrev_b32 v4, 4, v1""")
    k.e("""v_lshrrev_b32 v5, 7, v0
           v_and_b32 v6, 127, v0
           v_lshlrev_b32 v5, 12, v5
           v_add_u32 v5, v5, v6
           s_lshl_b32 s40, s21, 7
           v_add_u32 v5, s40, v5
           v_lshlrev_b32 v5, 3, v5
           buffer_load_dwordx2 v[8:9], v5, s[28:31], 0 offen""")
    k.e("""v_lshrrev_b32 v10, 3, v1
           v_and_b32 v11, 7, v1
           v_and_b32 v12, 2, v10
           v_xor_b32 v11, v11, v12
           v_lshlrev_b32 v11, 4, v11
           v_lshl_add_u32 v11, v10, 15, v11
           v_xor_b32 v12, 64, v11
           s_lshl_b32 s41, s21, 10
           s_lshl_b32 s42, s22, 7
           s_add_u32 s41, s41, s42
           s_lshl_b32 s42, s20, 21
           s_add_u32 s41, s41, s42
           s_lshl_b32 s43, s20, 13""")
    for mi in range(8):
        k.e(f"""s_mov_b32 m0, s43
                s_add_u32 s43, s43, 1024
                buffer_load_dwordx4 v{12 if mi & 1 else 11}, s[32:35], s41 offen lds
                s_add_u32 s41, s41, 262144""")
    k.e(f"""v_lshlrev_b32 v13, 1, v4
           v_xor_b32 v13, v13, v3
           v_lshlrev_b32 v13, 4, v13
           v_lshl_add_u32 v13, v4, 13, v13
           v_xor_b32 v14, 0x80, v13
           s_lshl_b32 s44, s22, 6
           s_lshl_b32 s45, s20, 4
           s_add_u32 s44, s44, s45
           s_lshl_b32 s44, s44, 13
           s_lshl_b32 s45, s21, 8
           s_add_u32 s44, s44, s45
           s_lshl_b32 s43, s20, 12
           s_add_u32 s43, s43, {W_LDS}""")
    for mi in range(4):
        k.e(f"""s_mov_b32 m0, s43
                s_add_u32 s43, s43, 1024
                buffer_load_dwordx4 v{14 if mi & 2 else 13}, s[24:27], s44 offen lds
                s_add_u32 s44, s44, 32768""")
    k.e("s_waitcnt vmcnt(12)\nv_mov_b32 v15, v8")
    k.allreduce("max", 15, 16)
    k.e(f"""s_lshl_b32 s46, s20, 2
            v_mov_b32 v17, s46
            ds_write_b32 v17, v15 offset:{R_LDS}
            s_waitcnt lgkmcnt(0)
            s_barrier
            s_and_b32 s47, s20, 2
            s_lshl_b32 s47, s47, 2
            v_mov_b32 v18, s47
            ds_read_b64 v[20:21], v18 offset:{R_LDS}
            s_waitcnt lgkmcnt(0)
            v_max_f32 v15, v20, v21
            v_sub_f32 v8, v8, v15
            v_exp_f32 v8, v8
            s_nop 0
            v_mul_f32 v19, v8, v9""")
    k.allreduce("add", 19, 16)
    k.e(f"""ds_write_b32 v17, v19 offset:{R_LDS+16}
            s_waitcnt lgkmcnt(0)
            s_barrier
            ds_read_b64 v[20:21], v18 offset:{R_LDS+16}
            s_waitcnt lgkmcnt(0)
            v_add_f32 v19, v20, v21
            v_rcp_f32 v19, v19
            s_nop 0
            v_mul_f32 v8, v8, v19""")
    k.hilo(8, 22, 23, 24)
    k.e(f"""v_lshrrev_b32 v25, 7, v0
            v_lshlrev_b32 v25, 9, v25
            v_lshl_add_u32 v25, v6, 1, v25
            ds_write_b16 v25, v22 offset:{A_LDS}
            ds_write_b16 v25, v23 offset:{A_LDS+256}
            s_waitcnt vmcnt(0) lgkmcnt(0)
            s_barrier""")
    k.e(f"""v_and_b32 v26, 1, v1
            v_lshlrev_b32 v26, 8, v26
            v_lshl_add_u32 v26, v4, 4, v26
            s_lshr_b32 s46, s20, 1
            s_lshl_b32 s47, s46, 9
            v_add_u32 v26, s47, v26""")
    for t in range(4):
        k.e(f"ds_read_b128 v[{28+4*t}:{31+4*t}], v26 offset:{A_LDS + 64*t}")
    k.e("""v_lshrrev_b32 v9, 2, v3
           v_lshl_add_u32 v10, v4, 3, v9
           v_lshlrev_b32 v10, 7, v10
           v_and_b32 v11, 2, v9
           v_and_b32 v12, 1, v4
           v_lshl_or_b32 v11, v12, 2, v11
           v_bfe_u32 v12, v3, 1, 1
           s_and_b32 s47, s20, 1
           s_lshl_b32 s47, s47, 2
           v_add_u32 v12, s47, v12
           v_and_b32 v13, 1, v3
           v_lshl_add_u32 v10, v13, 3, v10
           s_lshl_b32 s47, s46, 14
           v_add_u32 v10, s47, v10""")
    for nt in range(2):
        k.e(f"""v_add_u32 v14, {2*nt}, v12
                v_xor_b32 v14, v14, v11
                v_lshl_add_u32 v{15+nt}, v14, 4, v10""")
    for nt in range(2):
        for t in range(4):
            d = 44 + 4*(t % 4)
            k.e(f"""ds_read_b64_tr_b16 v[{d}:{d+1}], v{15+nt} offset:{O_LDS + 4096*t}
                    ds_read_b64_tr_b16 v[{d+2}:{d+3}], v{15+nt} offset:{O_LDS + 4096*t + 512}""")
        k.e("s_waitcnt lgkmcnt(0)")
        for t in range(4):
            d = 44 + 4*t
            acc = 60 if False else (20 if nt == 0 else 60)
            cin = "0" if t == 0 else f"v[{acc}:{acc+3}]"
            k.e(f"v_mfma_f32_16x16x32_bf16 v[{acc}:{acc+3}], v[{28+4*t}:{31+4*t}], v[{d}:{d+3}], {cin}")
        k.e("s_nop 7")
    k.e("s_nop 1")
    k.e(f"""s_and_b32 s47, s20, 1
            s_lshl_b32 s47, s47, 6
            s_lshl_b32 s48, s46, 7
            s_add_u32 s47, s47, s48
            v_lshl_add_u32 v27, v3, 1, s47""")
    for nt in range(2):
        acc = 20 if nt == 0 else 60
        k.e(f"v_add_f32 v8, v{acc}, v{acc+1}")
        k.hilo(8, 9, 24, 25)
        k.e(f"""ds_write_b16 v27, v9 offset:{A2_LDS + 32*nt}
                ds_write_b16 v27, v24 offset:{A2_LDS + 256 + 32*nt}""")
    k.e("s_waitcnt lgkmcnt(0)\ns_barrier")
    k.e(f"""v_and_b32 v8, 3, v1
            v_lshlrev_b32 v8, 7, v8
            v_lshl_add_u32 v8, v4, 4, v8
            ds_read_b128 v[28:31], v8 offset:{A2_LDS}
            ds_read_b128 v[32:35], v8 offset:{A2_LDS+64}""")
    k.e("""v_lshrrev_b32 v9, 2, v3
           v_lshl_add_u32 v10, v4, 3, v9
           v_lshlrev_b32 v10, 8, v10
           v_and_b32 v11, 1, v4
           v_lshlrev_b32 v11, 3, v11
           v_lshl_or_b32 v11, v9, 1, v11
           v_bfe_u32 v12, v3, 1, 1
           s_lshl_b32 s47, s20, 2
           v_add_u32 v12, s47, v12
           v_and_b32 v13, 1, v3
           v_lshl_add_u32 v10, v13, 3, v10""")
    for nt in range(2):
        k.e(f"""v_add_u32 v14, {2*nt}, v12
                v_xor_b32 v14, v14, v11
                v_lshl_add_u32 v{15+nt}, v14, 4, v10""")
    for nt in range(2):
        for t in range(2):
            d = 44 + 8*nt + 4*t
            k.e(f"""ds_read_b64_tr_b16 v[{d}:{d+1}], v{15+nt} offset:{W_LDS + 8192*t}
                    ds_read_b64_tr_b16 v[{d+2}:{d+3}], v{15+nt} offset:{W_LDS + 8192*t + 1024}""")
    k.e("s_waitcnt lgkmcnt(0)")
    for nt in range(2):
        acc = 20 if nt == 0 else 60
        for t in range(2):
            d = 44 + 8*nt + 4*t
            cin = "0" if t == 0 else f"v[{acc}:{acc+3}]"
            k.e(f"v_mfma_f32_16x16x32_bf16 v[{acc}:{acc+3}], v[{28+4*t}:{31+4*t}], v[{d}:{d+3}], {cin}")
    k.e("s_nop 7\ns_nop 1")
    k.e(f"""s_lshl_b32 s47, s22, 15
            s_lshl_b32 s48, s21, 9
            s_add_u32 s47, s47, s48
            s_lshl_b32 s48, s20, 7
            s_add_u32 s47, s47, s48
            v_lshl_add_u32 v27, v3, 2, s47
            v_add_f32 v8, v20, v22
            v_add_f32 v9, v21, v23
            v_add_f32 v10, v60, v62
            v_add_f32 v11, v61, v63
            s_mov_b32 s47, 16384
            v_cmp_gt_u32 vcc, 16, v1
            s_and_saveexec_b64 s[50:51], vcc
            buffer_store_dword v8, v27, s[36:39], 0 offen
            buffer_store_dword v9, v27, s[36:39], s47 offen
            buffer_store_dword v10, v27, s[36:39], 0 offen offset:64
            buffer_store_dword v11, v27, s[36:39], s47 offen offset:64""")
    k.lab(f"{k.name}_end")
    return k

def dma64(k, vA, vB, lane, t1, t2, rowstride):
    k.e(f"""v_lshrrev_b32 v{t1}, 2, v{lane}
            v_and_b32 v{t2}, 3, v{lane}
            v_bfe_u32 v{vB}, v{lane}, 5, 1
            v_lshlrev_b32 v{vB}, 1, v{vB}
            v_xor_b32 v{t2}, v{t2}, v{vB}
            v_mul_u32_u24 v{vA}, {rowstride}, v{t1}
            v_lshl_add_u32 v{vA}, v{t2}, 4, v{vA}""")

def tr64_base(k, dst, v3, v4, nt_sreg, t1, t2):
    k.e(f"""v_lshrrev_b32 v{t1}, 2, v{v3}
            v_lshl_add_u32 v{t1}, v{v4}, 3, v{t1}
            v_lshlrev_b32 v{t1}, 6, v{t1}
            v_bfe_u32 v{t2}, v{v3}, 1, 1
            v_add_u32 v{t2}, s{nt_sreg}, v{t2}
            v_and_b32 v{dst}, 1, v{v4}
            v_lshlrev_b32 v{dst}, 1, v{dst}
            v_xor_b32 v{t2}, v{t2}, v{dst}
            v_lshl_add_u32 v{t1}, v{t2}, 4, v{t1}
            v_and_b32 v{dst}, 1, v{v3}
            v_lshl_add_u32 v{dst}, v{dst}, 3, v{t1}""")

def k4_oproj():
    W_LDS, A_LDS = 0, 32768
    k = Kern("k4_oproj_kernel", 144, 256, 32768 + 4096, 112)
    guard(k, 144)
    k.ldptr(4, "wo"); k.ldptr(10, "ws")
    wave_id(k, 20, 1)
    k.e("""s_mul_i32 s22, s2, 3641
           s_lshr_b32 s22, s22, 16
           s_mul_i32 s23, s22, 18
           s_sub_u32 s21, s2, s23""")
    k.e("s_waitcnt lgkmcnt(0)")
    k.srd(24, 4, SZ["wo"]); k.srd(28, 10, 262144, WS_CTX); k.srd(32, 10, 36864, WS_OUTP)
    k.e("""v_and_b32 v1, 63, v0
           v_and_b32 v3, 15, v1
           v_lshrrev_b32 v4, 4, v1""")
    k.e("""v_lshrrev_b32 v5, 7, v0
           v_and_b32 v6, 127, v0
           v_lshlrev_b32 v7, 14, v5
           v_lshl_add_u32 v7, v6, 4, v7
           s_lshl_b32 s40, s22, 11""")
    for j in range(8):
        k.e(f"buffer_load_dwordx4 v[{20+4*j}:{23+4*j}], v7, s[28:31], s40 offen\ns_add_u32 s40, s40, 32768")
    dma64(k, 8, 9, 1, 10, 11, 1152)
    k.e("""s_lshl_b32 s41, s22, 9
           s_lshl_b32 s42, s20, 7
           s_add_u32 s41, s41, s42
           s_mul_i32 s41, s41, 1152
           s_lshl_b32 s42, s21, 6
           s_add_u32 s41, s41, s42
           s_lshl_b32 s43, s20, 13""")
    for mi in range(8):
        k.e(f"""s_mov_b32 m0, s43
                s_add_u32 s43, s43, 1024
                buffer_load_dwordx4 v8, s[24:27], s41 offen lds
                s_add_u32 s41, s41, {16*1152}""")
    k.e("s_waitcnt vmcnt(8)")
    for j in range(1, 8):
        for e in range(4):
            k.e(f"v_add_f32 v{20+e}, v{20+e}, v{20+4*j+e}")
    k.e("""v_cvt_pk_bf16_f32 v24, v20, v21
           v_cvt_pk_bf16_f32 v25, v22, v23
           v_lshlrev_b32 v26, 16, v24
           v_and_b32 v27, 0xffff0000, v24
           v_lshlrev_b32 v28, 16, v25
           v_and_b32 v29, 0xffff0000, v25
           v_sub_f32 v20, v20, v26
           v_sub_f32 v21, v21, v27
           v_sub_f32 v22, v22, v28
           v_sub_f32 v23, v23, v29
           v_cvt_pk_bf16_f32 v26, v20, v21
           v_cvt_pk_bf16_f32 v27, v22, v23
           v_lshlrev_b32 v12, 10, v5
           v_lshl_add_u32 v12, v6, 3, v12""")
    k.e(f"""ds_write_b64 v12, v[24:25] offset:{A_LDS}
            ds_write_b64 v12, v[26:27] offset:{A_LDS+2048}
            s_waitcnt vmcnt(0) lgkmcnt(0)
            s_barrier
            s_cmp_ge_u32 s20, 2
            s_cbranch_scc1 {k.name}_end""")
    k.e("""v_and_b32 v8, 3, v1
           v_lshlrev_b32 v8, 10, v8
           v_lshl_add_u32 v8, v4, 4, v8
           s_lshl_b32 s44, s20, 1""")
    for t in range(16):
        k.e(f"ds_read_b128 v[{20+4*t}:{23+4*t}], v8 offset:{A_LDS + 64*t}")
    tr64_base(k, 15, 3, 4, 44, 10, 11)
    for half in range(2):
        for i in range(6):
            pass
    for c in range(4):
        for i in range(4):
            t = 4*c + i
            d = 88 + 4*i
            k.e(f"""ds_read_b64_tr_b16 v[{d}:{d+1}], v15 offset:{W_LDS + 2048*t}
                    ds_read_b64_tr_b16 v[{d+2}:{d+3}], v15 offset:{W_LDS + 2048*t + 256}""")
        k.e("s_waitcnt lgkmcnt(0)")
        for i in range(4):
            t = 4*c + i
            d = 88 + 4*i
            cin = "0" if t == 0 else "v[104:107]"
            k.e(f"v_mfma_f32_16x16x32_bf16 v[104:107], v[{20+4*t}:{23+4*t}], v[{d}:{d+3}], {cin}")
        k.e("s_nop 3")
    k.e("s_nop 7")
    k.e(f"""s_mul_i32 s45, s22, 4608
            s_lshl_b32 s46, s21, 7
            s_add_u32 s45, s45, s46
            s_lshl_b32 s46, s20, 6
            s_add_u32 s45, s45, s46
            v_lshl_add_u32 v12, v3, 2, s45
            v_add_f32 v8, v104, v106
            v_add_f32 v9, v105, v107
            v_cmp_gt_u32 vcc, 16, v1
            s_and_saveexec_b64 s[50:51], vcc
            buffer_store_dword v8, v12, s[32:35], 0 offen
            buffer_store_dword v9, v12, s[32:35], 0 offen offset:2304""")
    k.lab(f"{k.name}_end")
    return k

def k5_ffn():
    A_LDS, R_LDS, GU_LDS, A2_LDS, G_LDS, U_LDS, D_LDS = 0, 4608, 4672, 5184, 6144, 6144 + 36864, 6144 + 73728
    k = Kern("k5_ffn_kernel", 144, 256, 6144 + 110592, 128)
    guard(k, 144)
    k.ldptr(4, "x"); k.ldptr(6, "wg"); k.ldptr(8, "wu"); k.ldptr(10, "ws"); k.ldptr(12, "wd")
    wave_id(k, 20, 1)
    k.e("s_waitcnt lgkmcnt(0)")
    k.srd(24, 4, SZ["x"]); k.srd(28, 6, SZ["wg"]); k.srd(32, 8, SZ["wu"]); k.srd(36, 12, SZ["wd"])
    k.srd(52, 10, 36864, WS_OUTP); k.srd(56, 10, 4608, WS_H); k.srd(60, 10, 663552, WS_DNP)
    k.e("""v_and_b32 v1, 63, v0
           v_and_b32 v3, 15, v1
           v_lshrrev_b32 v4, 4, v1""")
    k.e("""v_lshlrev_b32 v5, 4, v0
           v_mov_b32 v6, 0x7fffffff
           v_cmp_gt_u32 vcc, 144, v0
           s_nop 1
           v_cndmask_b32 v5, v6, v5, vcc
           v_lshrrev_b32 v7, 1, v5
           v_cndmask_b32 v7, v6, v7, vcc
           s_mov_b64 s[64:65], vcc
           s_mov_b32 s40, 0""")
    k.e("""buffer_load_dwordx2 v[84:85], v7, s[24:27], 0 offen
           buffer_load_dwordx2 v[86:87], v7, s[24:27], 0 offen offset:1152""")
    for ks in range(8):
        for b in range(2):
            r = 20 + 8*ks + 4*b
            k.e(f"buffer_load_dwordx4 v[{r}:{r+3}], v5, s[52:55], s40 offen offset:{2304*b}")
        k.e("s_add_u32 s40, s40, 4608")
    dma64(k, 8, 9, 1, 10, 11, 9216)
    k.e("""s_mul_i32 s41, s20, 9*16*9216
           s_lshl_b32 s42, s2, 6
           s_add_u32 s41, s41, s42
           s_mul_i32 s43, s20, 9216
           s_add_u32 s43, s43, 6144
           s_add_u32 s44, s43, 36864""")
    for mi in range(9):
        k.e(f"""s_mov_b32 m0, s43
                s_add_u32 s43, s43, 1024
                buffer_load_dwordx4 v8, s[28:31], s41 offen lds
                s_mov_b32 m0, s44
                s_add_u32 s44, s44, 1024
                buffer_load_dwordx4 v8, s[32:35], s41 offen lds
                s_add_u32 s41, s41, {16*9216}""")
    k.e(f"""v_lshlrev_b32 v9, 4, v1
            s_mul_i32 s41, s2, 36864
            s_mul_i32 s42, s20, 9216
            s_add_u32 s41, s41, s42
            s_add_u32 s43, s42, {D_LDS}""")
    for mi in range(9):
        k.e(f"""s_mov_b32 m0, s43
                s_add_u32 s43, s43, 1024
                buffer_load_dwordx4 v9, s[36:39], s41 offen lds
                s_add_u32 s41, s41, 1024""")
    k.e("s_waitcnt vmcnt(27)")
    for ks in range(1, 8):
        for e in range(8):
            k.e(f"v_add_f32 v{20+e}, v{20+e}, v{20+8*ks+e}")
    for b in range(2):
        k.e(f"""v_lshlrev_b32 v12, 16, v{84+2*b}
                v_and_b32 v13, 0xffff0000, v{84+2*b}
                v_lshlrev_b32 v14, 16, v{85+2*b}
                v_and_b32 v15, 0xffff0000, v{85+2*b}
                v_add_f32 v{20+4*b}, v{20+4*b}, v12
                v_add_f32 v{21+4*b}, v{21+4*b}, v13
                v_add_f32 v{22+4*b}, v{22+4*b}, v14
                v_add_f32 v{23+4*b}, v{23+4*b}, v15""")
    k.e(f"""s_cmp_lg_u32 s2, 0
            s_cbranch_scc1 k5_noh
            buffer_store_dwordx4 v[20:23], v5, s[56:59], 0 offen
            buffer_store_dwordx4 v[24:27], v5, s[56:59], 0 offen offset:2304""")
    k.lab("k5_noh")
    k.e("""v_add_f32 v28, v20, v21
           v_add_f32 v29, v22, v23
           v_add_f32 v28, v28, v29
           v_add_f32 v29, v24, v25
           v_add_f32 v30, v26, v27
           v_add_f32 v29, v29, v30""")
    k.allreduce("add", 28, 31)
    k.allreduce("add", 29, 31)
    k.e(f"""s_lshl_b32 s46, s20, 3
            v_mov_b32 v32, s46
            v_mov_b32 v33, 0
            ds_write_b64 v32, v[28:29] offset:{R_LDS}
            s_waitcnt lgkmcnt(0)
            s_barrier
            ds_read_b128 v[36:39], v33 offset:{R_LDS}
            ds_read_b64 v[40:41], v33 offset:{R_LDS+16}
            s_waitcnt lgkmcnt(0)
            v_add_f32 v28, v36, v38
            v_add_f32 v28, v28, v40
            v_add_f32 v29, v37, v39
            v_add_f32 v29, v29, v41
            v_mul_f32 v28, {f2u(1.0/576)}, v28
            v_mul_f32 v29, {f2u(1.0/576)}, v29""")
    for b in range(2):
        for e in range(4):
            k.e(f"v_sub_f32 v{20+4*b+e}, v{20+4*b+e}, v{28+b}")
    for b in range(2):
        k.e(f"""v_mul_f32 v{30+b}, v{20+4*b}, v{20+4*b}
                v_fmac_f32 v{30+b}, v{21+4*b}, v{21+4*b}
                v_fmac_f32 v{30+b}, v{22+4*b}, v{22+4*b}
                v_fmac_f32 v{30+b}, v{23+4*b}, v{23+4*b}
                v_cndmask_b32 v{30+b}, 0, v{30+b}, s[64:65]""")
    k.allreduce("add", 30, 34)
    k.allreduce("add", 31, 34)
    k.e(f"""ds_write_b64 v32, v[30:31] offset:{R_LDS+32}
            s_waitcnt lgkmcnt(0)
            s_barrier
            ds_read_b128 v[36:39], v33 offset:{R_LDS+32}
            ds_read_b64 v[40:41], v33 offset:{R_LDS+48}
            s_waitcnt lgkmcnt(0)
            v_add_f32 v30, v36, v38
            v_add_f32 v30, v30, v40
            v_add_f32 v31, v37, v39
            v_add_f32 v31, v31, v41
            v_mov_b32 v34, {f2u(1e-5)}
            v_mov_b32 v35, {f2u(1e-5)}
            v_fmac_f32 v34, {f2u(1.0/576)}, v30
            v_fmac_f32 v35, {f2u(1.0/576)}, v31
            v_rsq_f32 v34, v34
            v_rsq_f32 v35, v35
            v_lshlrev_b32 v12, 3, v0""")
    for b in range(2):
        o = 20 + 4*b
        for e in range(4):
            k.e(f"v_mul_f32 v{o+e}, v{o+e}, v{34+b}")
        k.e(f"""v_cvt_pk_bf16_f32 v36, v{o}, v{o+1}
                v_cvt_pk_bf16_f32 v37, v{o+2}, v{o+3}
                v_lshlrev_b32 v38, 16, v36
                v_and_b32 v39, 0xffff0000, v36
                v_lshlrev_b32 v40, 16, v37
                v_and_b32 v41, 0xffff0000, v37
                v_sub_f32 v{o}, v{o}, v38
                v_sub_f32 v{o+1}, v{o+1}, v39
                v_sub_f32 v{o+2}, v{o+2}, v40
                v_sub_f32 v{o+3}, v{o+3}, v41
                v_cvt_pk_bf16_f32 v38, v{o}, v{o+1}
                v_cvt_pk_bf16_f32 v39, v{o+2}, v{o+3}
                s_mov_b64 s[66:67], exec
                s_mov_b64 exec, s[64:65]
                ds_write_b64 v12, v[36:37] offset:{A_LDS + 1152*b}
                ds_write_b64 v12, v[38:39] offset:{A_LDS + 2304 + 1152*b}
                s_mov_b64 exec, s[66:67]""")
    k.e("s_waitcnt vmcnt(0) lgkmcnt(0)\ns_barrier")
    k.e("""v_and_b32 v8, 3, v1
           v_mul_u32_u24 v8, 1152, v8
           v_lshl_add_u32 v8, v4, 4, v8
           s_and_b32 s44, s20, 1
           s_lshl_b32 s44, s44, 1
           s_lshr_b32 s45, s20, 1
           s_mul_i32 s45, s45, 36864
           s_add_u32 s45, s45, 6144""")
    for t in range(18):
        k.e(f"ds_read_b128 v[{20+4*t}:{23+4*t}], v8 offset:{A_LDS + 64*t}")
    tr64_base(k, 15, 3, 4, 44, 10, 11)
    k.e("v_add_u32 v15, s45, v15")
    for c in range(3):
        for i in range(6):
            t = 6*c + i
            d = 96 + 4*i
            k.e(f"""ds_read_b64_tr_b16 v[{d}:{d+1}], v15 offset:{2048*t}
                    ds_read_b64_tr_b16 v[{d+2}:{d+3}], v15 offset:{2048*t + 256}""")
        k.e("s_waitcnt lgkmcnt(0)")
        for i in range(6):
            t = 6*c + i
            d = 96 + 4*i
            cin = "0" if t == 0 else "v[120:123]"
            k.e(f"v_mfma_f32_16x16x32_bf16 v[120:123], v[{20+4*t}:{23+4*t}], v[{d}:{d+3}], {cin}")
        k.e("s_nop 3")
    k.e("s_nop 7")
    k.e(f"""s_lshr_b32 s45, s20, 1
            s_lshl_b32 s45, s45, 8
            s_and_b32 s46, s20, 1
            s_lshl_b32 s46, s46, 6
            s_add_u32 s45, s45, s46
            v_lshl_add_u32 v12, v3, 2, s45
            v_add_f32 v8, v120, v122
            v_add_f32 v9, v121, v123
            ds_write_b32 v12, v8 offset:{GU_LDS}
            ds_write_b32 v12, v9 offset:{GU_LDS+128}
            s_waitcnt lgkmcnt(0)
            s_barrier
            v_lshlrev_b32 v12, 2, v1
            ds_read_b32 v8, v12 offset:{GU_LDS}
            ds_read_b32 v9, v12 offset:{GU_LDS+256}
            s_waitcnt lgkmcnt(0)
            v_mul_f32 v10, {f2u(-LOG2E)}, v8
            v_exp_f32 v10, v10
            s_nop 0
            v_add_f32 v10, 1.0, v10
            v_rcp_f32 v10, v10
            s_nop 0
            v_mul_f32 v8, v8, v10
            v_mul_f32 v8, v8, v9""")
    k.hilo(8, 9, 10, 11)
    k.e(f"""v_lshlrev_b32 v12, 1, v1
            ds_write_b16 v12, v9 offset:{A2_LDS}
            ds_write_b16 v12, v10 offset:{A2_LDS+128}
            s_waitcnt lgkmcnt(0)
            s_barrier
            v_and_b32 v8, 3, v1
            v_lshlrev_b32 v8, 6, v8
            v_lshl_add_u32 v8, v4, 4, v8
            ds_read_b128 v[20:23], v8 offset:{A2_LDS}""")
    k.e(f"""v_lshrrev_b32 v10, 2, v3
            v_lshl_add_u32 v10, v4, 3, v10
            v_mul_u32_u24 v10, 1152, v10
            v_and_b32 v11, 3, v3
            v_lshl_add_u32 v10, v11, 3, v10
            s_mul_i32 s45, s20, 288
            s_add_u32 s45, s45, {D_LDS}
            v_add_u32 v10, s45, v10""")
    for n in range(9):
        d = 24 + 4*n
        k.e(f"""ds_read_b64_tr_b16 v[{d}:{d+1}], v10 offset:{32*n}
                ds_read_b64_tr_b16 v[{d+2}:{d+3}], v10 offset:{32*n + 4608}""")
    k.e("s_waitcnt lgkmcnt(0)")
    for n in range(9):
        d = 24 + 4*n
        k.e(f"v_mfma_f32_16x16x32_bf16 v[{64+4*n}:{67+4*n}], v[20:23], v[{d}:{d+3}], 0")
    k.e("s_nop 7\ns_nop 1")
    k.e(f"""s_mul_i32 s45, s2, 4608
            s_mul_i32 s46, s20, 576
            s_add_u32 s45, s45, s46
            v_lshl_add_u32 v12, v3, 2, s45
            v_cmp_gt_u32 vcc, 16, v1
            s_and_saveexec_b64 s[50:51], vcc""")
    for n in range(9):
        a = 64 + 4*n
        k.e(f"""v_add_f32 v{a}, v{a}, v{a+2}
                v_add_f32 v{a+1}, v{a+1}, v{a+3}
                buffer_store_dword v{a}, v12, s[60:63], 0 offen offset:{64*n}
                buffer_store_dword v{a+1}, v12, s[60:63], 0 offen offset:{2304 + 64*n}""")
    k.lab(f"{k.name}_end")
    return k

def k6_final():
    k = Kern("k6_final_kernel", 18, 256, 4096, 64)
    guard(k, 18)
    k.ldptr(4, "out"); k.ldptr(10, "ws")
    k.e("s_waitcnt lgkmcnt(0)")
    k.srd(24, 4, SZ["out"]); k.srd(28, 10, 663552, WS_DNP); k.srd(32, 10, 4608, WS_H)
    k.e("""v_lshrrev_b32 v1, 4, v0
           v_and_b32 v2, 15, v0
           v_mul_u32_u24 v3, 4608, v1
           v_lshl_add_u32 v3, v2, 4, v3
           s_lshl_b32 s40, s2, 8""")
    for i in range(9):
        k.e(f"buffer_load_dwordx4 v[{8+4*i}:{11+4*i}], v3, s[28:31], s40 offen\ns_add_u32 s40, s40, {16*4608}")
    k.e("""s_lshl_b32 s41, s2, 8
           v_lshlrev_b32 v4, 2, v0
           buffer_load_dword v48, v4, s[32:35], s41 offen""")
    k.e("s_waitcnt vmcnt(1)")
    for i in range(1, 9):
        for e in range(4):
            k.e(f"v_add_f32 v{8+e}, v{8+e}, v{8+4*i+e}")
    k.e("""v_lshlrev_b32 v5, 4, v0
           ds_write_b128 v5, v[8:11]
           s_waitcnt lgkmcnt(0)
           s_barrier
           v_cmp_gt_u32 vcc, 64, v0
           s_and_saveexec_b64 s[50:51], vcc
           s_cbranch_execz k6_final_kernel_end""")
    for i in range(16):
        k.e(f"ds_read_b32 v{8+i}, v4 offset:{256*i}")
    k.e("s_waitcnt vmcnt(0) lgkmcnt(0)")
    for i in range(1, 16):
        k.e(f"v_add_f32 v8, v8, v{8+i}")
    k.e("""v_add_f32 v8, v8, v48
           v_cvt_pk_bf16_f32 v8, v8, v8
           v_lshlrev_b32 v4, 1, v0
           s_lshl_b32 s41, s2, 7
           buffer_store_short v8, v4, s[24:27], s41 offen""")
    k.lab(f"{k.name}_end")
    return k

def main():
    ks = [k1_qabs(), k2_attn(), k3_comb(), k4_oproj(), k5_ffn(), k6_final()]
    out = [HEADER.rstrip("\n")]
    for k in ks:
        out.append(f"; @launch kernel={k.name} grid=({k.grid},1,1) block=({k.block},1,1) lds={k.lds}")
    out.append('.amdgcn_target "amdgcn-amd-amdhsa--gfx950"\n.text')
    for k in ks:
        out.append(k.text())
    open(sys.argv[1] if len(sys.argv) > 1 else "sequential_preLN__compressed_kv_cla__swiglu_ffn__decode.s", "w").write("\n".join(out))
main()
```

```python
import sys, struct

HEADER = open("sequential_preLN__compressed_kv_cla__swiglu_ffn__decode.s.ref").read().split("; Override launch")[0]

WS_QA   = 0x000000
WS_ML   = 0x010000
WS_INIT = 0x020000
WS_CTX  = 0x020000
WS_OUTP = 0x060000
WS_FLAG = 0x070000
WS_DNP  = 0x080000
WS_OP   = 0x200000
INIT_BYTES = 0x110000
SENT = 0xFFFFFFFF
SPIN_MAX = 40000

KA = dict(x=0, ckv=8, wq=16, wuk=24, wuv=32, wo=40, bx=48, wg=56, wu=64, wd=72, out=80, dbg=88, ws=96)
SZ = dict(x=2304, ckv=33554432, wq=4718592, wuk=4194304, wuv=4194304, wo=4718592, wg=5308416, wu=5308416,
          wd=5308416, out=2304)
LOG2E = 1.4426950408889634
def f2u(f): return struct.unpack("<I", struct.pack("<f", f))[0]

class Kern:
    def __init__(self, name, grid, block, lds, vgpr, sgpr=100):
        self.name, self.grid, self.block, self.lds, self.vgpr, self.sgpr = name, grid, block, lds, vgpr, sgpr
        self.lines = []
        self.nlab = 0
    def e(self, s):
        for l in s.strip("\n").split("\n"):
            if l.strip(): self.lines.append("    " + l.strip())
    def lab(self, s): self.lines.append(s + ":")
    def newlab(self, p):
        self.nlab += 1
        return f"{self.name}_{p}{self.nlab}"
    def ldptr(self, d, key): self.e(f"s_load_dwordx2 s[{d}:{d+1}], s[0:1], {KA[key]}")
    def srd(self, d, p, n, off=0):
        if off:
            self.e(f"s_add_u32 s{d}, s{p}, {off}\ns_addc_u32 s{d+1}, s{p+1}, 0")
        else:
            self.e(f"s_mov_b32 s{d}, s{p}\ns_mov_b32 s{d+1}, s{p+1}")
        self.e(f"s_mov_b32 s{d+2}, {n}\ns_mov_b32 s{d+3}, 0x00020000")
    def allreduce(self, op, x, t):
        for ctl in ("quad_perm:[1,0,3,2]", "quad_perm:[2,3,0,1]", "row_half_mirror", "row_mirror"):
            self.e(f"s_nop 1\nv_{op}_f32_dpp v{x}, v{x}, v{x} {ctl} row_mask:0xf bank_mask:0xf")
        for sw in ("v_permlane16_swap_b32", "v_permlane32_swap_b32"):
            self.e(f"v_mov_b32 v{t}, v{x}\ns_nop 1\n{sw} v{x}, v{t}\ns_nop 0\nv_{op}_f32 v{x}, v{x}, v{t}")
    def hilo(self, x, hi, lo, t):
        self.e(f"""v_cvt_pk_bf16_f32 v{hi}, v{x}, v{x}
                   v_lshlrev_b32 v{t}, 16, v{hi}
                   v_sub_f32 v{t}, v{x}, v{t}
                   v_cvt_pk_bf16_f32 v{lo}, v{t}, v{t}""")
    def sanitize(self, regs, tmp):
        self.e(f"v_mov_b32 v{tmp}, 0x7fc00000")
        for r in regs:
            self.e(f"v_cmp_eq_u32 vcc, -1, v{r}\ns_nop 1\nv_cndmask_b32 v{r}, v{r}, v{tmp}, vcc")
    def text(self):
        acc = (self.vgpr + 3) // 4 * 4
        return "\n".join([
            f".globl {self.name}", ".p2align 8", f".type {self.name},@function", f"{self.name}:"] + self.lines + [
            "    s_endpgm",
            '.section .rodata,"a"', ".p2align 6", f".amdhsa_kernel {self.name}",
            f"  .amdhsa_next_free_vgpr {self.vgpr}", f"  .amdhsa_next_free_sgpr {self.sgpr}",
            f"  .amdhsa_accum_offset {acc}", "  .amdhsa_group_segment_fixed_size 0", "  .amdhsa_kernarg_size 104",
            "  .amdhsa_user_sgpr_count 2", "  .amdhsa_user_sgpr_kernarg_segment_ptr 1",
            "  .amdhsa_system_sgpr_workgroup_id_x 1", ".end_amdhsa_kernel", ".text", ""])

def guard(k, n):
    k.e(f"s_cmp_ge_u32 s2, {n}\ns_cbranch_scc1 {k.name}_end")

def wave_id(k, sdst, vt):
    k.e(f"v_lshrrev_b32 v{vt}, 6, v0\ns_nop 0\nv_readfirstlane_b32 s{sdst}, v{vt}")

def k1_qabs():
    A_LDS, Q_LDS, W_LDS = 0, 4608, 6144
    k = Kern("k1_qabs_kernel", 256, 256, 6144 + 147456, 172)
    guard(k, 256)
    k.ldptr(4, "x"); k.ldptr(6, "wq"); k.ldptr(8, "wuk"); k.ldptr(10, "ws")
    wave_id(k, 20, 1)
    k.e("s_and_b32 s21, s2, 31\ns_lshr_b32 s22, s2, 5")
    k.e("s_waitcnt lgkmcnt(0)")
    k.srd(24, 4, SZ["x"]); k.srd(28, 6, SZ["wq"]); k.srd(32, 8, SZ["wuk"]); k.srd(36, 10, 65536, WS_QA)
    k.srd(52, 10, INIT_BYTES, WS_INIT)
    k.e("v_and_b32 v1, 63, v0")
    k.e("s_and_b32 s23, s20, 1\ns_mul_i32 s23, s23, 1152\nv_lshlrev_b32 v2, 1, v1")
    for i in range(9):
        k.e(f"buffer_load_ushort v{10+i}, v2, s[24:27], s23 offen offset:{128*i}")
    k.e("""v_and_b32 v3, 15, v1
           v_lshrrev_b32 v4, 4, v1
           s_lshl_b32 s40, s22, 6
           s_lshl_b32 s41, s20, 4
           s_add_u32 s40, s40, s41
           v_add_u32 v5, s40, v3
           v_lshlrev_b32 v5, 13, v5
           v_lshl_add_u32 v5, v4, 4, v5
           s_lshl_b32 s41, s21, 8""")
    for t in range(4):
        k.e(f"buffer_load_dwordx4 v[{148+4*t}:{151+4*t}], v5, s[32:35], s41 offen offset:{64*t} nt")
    k.e("""v_lshlrev_b32 v6, 1, v4
           v_xor_b32 v6, v6, v3
           v_lshlrev_b32 v6, 4, v6
           v_lshl_add_u32 v6, v4, 13, v6
           v_xor_b32 v7, 0x80, v6
           s_mul_i32 s42, s20, 36
           s_lshl_b32 s43, s42, 10
           s_add_u32 s43, s43, 6144
           s_lshl_b32 s44, s42, 15
           s_add_u32 s44, s44, s41""")
    for mi in range(36):
        k.e(f"""s_mov_b32 m0, s43
                s_add_u32 s43, s43, 1024
                buffer_load_dwordx4 v{7 if mi & 2 else 6}, s[28:31], s44 offen nt lds
                s_add_u32 s44, s44, 32768""")
    k.e(f"""v_mov_b32 v28, -1
            v_mov_b32 v29, -1
            v_mov_b32 v30, -1
            v_mov_b32 v31, -1
            v_lshlrev_b32 v9, 4, v0
            s_lshl_b32 s45, s2, 12
            s_add_u32 s46, s45, 0x100000
            s_lshr_b32 s46, s2, 4
            s_lshl_b32 s46, s46, 12
            s_add_u32 s46, s46, 0x100000
            buffer_store_dwordx4 v[28:31], v9, s[52:55], s45 offen
            buffer_store_dwordx4 v[28:31], v9, s[52:55], s46 offen""")
    k.e("s_waitcnt vmcnt(42)")
    for i in range(9):
        k.e(f"v_lshlrev_b32 v{10+i}, 16, v{10+i}")
    k.e("v_add_f32 v20, v10, v11")
    for i in range(2, 9):
        k.e(f"v_add_f32 v20, v20, v{10+i}")
    k.allreduce("add", 20, 21)
    k.e(f"v_mul_f32 v20, {f2u(1.0/576)}, v20")
    for i in range(9):
        k.e(f"v_sub_f32 v{10+i}, v{10+i}, v20")
    k.e("v_mul_f32 v22, v10, v10")
    for i in range(1, 9):
        k.e(f"v_fmac_f32 v22, v{10+i}, v{10+i}")
    k.allreduce("add", 22, 21)
    k.e(f"""v_mov_b32 v23, {f2u(1e-5)}
            v_fmac_f32 v23, {f2u(1.0/576)}, v22
            v_rsq_f32 v23, v23
            v_add_u32 v24, s23, v2""")
    for i in range(9):
        k.e(f"v_mul_f32 v{10+i}, v{10+i}, v23")
        k.hilo(10+i, 25, 26, 27)
        k.e(f"""ds_write_b16 v24, v25 offset:{A_LDS + 128*i}
                ds_write_b16 v24, v26 offset:{A_LDS + 2304 + 128*i}""")
    k.e("s_waitcnt vmcnt(0) lgkmcnt(0)\ns_barrier")
    k.e(f"""v_and_b32 v8, 3, v1
            v_mul_u32_u24 v8, 1152, v8
            v_lshl_add_u32 v8, v4, 4, v8""")
    for t in range(18):
        k.e(f"ds_read_b128 v[{28+4*t}:{31+4*t}], v8 offset:{A_LDS + 64*t}")
    k.e("""s_mov_b32 s47, 6144
           v_lshrrev_b32 v9, 2, v3
           v_lshl_add_u32 v10, v4, 3, v9
           v_lshlrev_b32 v10, 8, v10
           v_and_b32 v11, 1, v4
           v_lshlrev_b32 v11, 3, v11
           v_lshl_or_b32 v11, v9, 1, v11
           v_bfe_u32 v12, v3, 1, 1
           s_lshl_b32 s46, s20, 2
           v_add_u32 v12, s46, v12
           v_and_b32 v13, 1, v3
           v_lshlrev_b32 v13, 3, v13
           v_add3_u32 v10, v10, v13, s47""")
    for nt in range(2):
        k.e(f"""v_add_u32 v14, {2*nt}, v12
                v_xor_b32 v14, v14, v11
                v_lshl_add_u32 v{15+3*nt}, v14, 4, v10""")
        k.e(f"""v_add_u32 v{16+3*nt}, 0x10000, v{15+3*nt}
                v_add_u32 v{17+3*nt}, 0x20000, v{15+3*nt}""")
    def trread(dst, nt, t):
        base = 15 + 3*nt + t // 8
        off = (t % 8) * 8192
        k.e(f"ds_read_b64_tr_b16 v[{dst}:{dst+1}], v{base} offset:{off}")
        k.e(f"ds_read_b64_tr_b16 v[{dst+2}:{dst+3}], v{base} offset:{off+1024}")
    seq = [(nt, t) for nt in range(2) for t in range(18)]
    CH = 6
    chunks = [seq[i:i+CH] for i in range(0, len(seq), CH)]
    bufs = [100, 124]
    for i, (nt, t) in enumerate(chunks[0]):
        trread(bufs[0] + 4*i, nt, t)
    for ci, ch in enumerate(chunks):
        if ci + 1 < len(chunks):
            for i, (nt, t) in enumerate(chunks[ci+1]):
                trread(bufs[(ci+1) % 2] + 4*i, nt, t)
            k.e(f"s_waitcnt lgkmcnt({2*CH})")
        else:
            k.e("s_waitcnt lgkmcnt(0)")
        for i, (nt, t) in enumerate(ch):
            acc = 168 if nt else 164
            b = bufs[ci % 2] + 4*i
            cin = "0" if t == 0 else f"v[{acc}:{acc+3}]"
            k.e(f"v_mfma_f32_16x16x32_bf16 v[{acc}:{acc+3}], v[{28+4*t}:{31+4*t}], v[{b}:{b+3}], {cin}")
    k.e("s_nop 7\ns_nop 1")
    k.e(f"""s_lshl_b32 s46, s20, 6
            v_lshl_add_u32 v24, v3, 1, s46""")
    for nt in range(2):
        acc = 168 if nt else 164
        for b in range(2):
            k.e(f"v_add_f32 v10, v{acc+b}, v{acc+b+2}")
            k.hilo(10, 25, 26, 27)
            k.e(f"""ds_write_b16 v24, v25 offset:{Q_LDS + 256*b + 32*nt}
                    ds_write_b16 v24, v26 offset:{Q_LDS + 512 + 256*b + 32*nt}""")
    k.e("s_waitcnt lgkmcnt(0)\ns_barrier")
    k.e(f"""v_and_b32 v8, 3, v1
            v_lshlrev_b32 v8, 8, v8
            v_lshl_add_u32 v8, v4, 4, v8""")
    for t in range(4):
        k.e(f"ds_read_b128 v[{28+4*t}:{31+4*t}], v8 offset:{Q_LDS + 64*t}")
    k.e("s_waitcnt lgkmcnt(0)")
    for t in range(4):
        cin = "0" if t == 0 else "v[164:167]"
        k.e(f"v_mfma_f32_16x16x32_bf16 v[164:167], v[{28+4*t}:{31+4*t}], v[{148+4*t}:{151+4*t}], {cin}")
    k.e("s_nop 7\ns_nop 1")
    sc = f2u((128 ** -0.5) * LOG2E)
    k.e(f"""v_add_f32 v10, v164, v166
            v_add_f32 v11, v165, v167
            v_mul_f32 v10, {sc}, v10
            v_mul_f32 v11, {sc}, v11
            v_cvt_pk_bf16_f32 v10, v10, v11
            s_lshl_b32 s46, s22, 2
            s_add_u32 s46, s46, s20
            s_lshl_b32 s46, s46, 10
            s_lshl_b32 s47, s21, 4
            s_add_u32 s46, s46, s47
            v_lshrrev_b32 v12, 3, v3
            v_lshlrev_b32 v12, 9, v12
            v_and_b32 v13, 7, v3
            v_lshl_add_u32 v12, v13, 1, v12
            v_add_u32 v12, s46, v12
            s_mov_b32 s47, 32768
            v_cmp_gt_u32 vcc, 16, v1
            s_and_saveexec_b64 s[48:49], vcc
            buffer_store_short v10, v12, s[36:39], 0 offen
            buffer_store_short_d16_hi v10, v12, s[36:39], s47 offen""")
    k.lab(f"{k.name}_end")
    return k

RS = 1040
PX, MX, SX, SYNC, CT = 0, 8192, 8704, 9216, 9280
LDS_TOTAL = CT + 128 * RS
D_A, D_A2, D_R = 0, 1024, 2048
T_A = 2304
WUV_L, OST_L, BIG_L = 9728, 26112, 63488

def lds_sync(k, word, target, vz, vone, vt, st):
    L = k.newlab("spin")
    k.e(f"""s_mov_b64 exec, 1
            ds_add_u32 v{vz}, v{vone} offset:{SYNC + 4*word}
            s_mov_b64 exec, -1""")
    k.lab(L)
    k.e(f"""ds_read_b32 v{vt}, v{vz} offset:{SYNC + 4*word}
            s_waitcnt lgkmcnt(0)
            v_readfirstlane_b32 s{st}, v{vt}
            s_cmp_lt_u32 s{st}, {target}
            s_cbranch_scc1 {L}""")

def team_a(k):
    k.srd(24, 4, SZ["ckv"]); k.srd(28, 10, 65536, WS_QA); k.srd(32, 10, 8388608, WS_OP); k.srd(36, 10, 65536, WS_ML)
    k.srd(52, 10, 1024, WS_FLAG)
    k.e("""v_and_b32 v2, 31, v1
           v_lshrrev_b32 v3, 5, v1
           s_lshr_b32 s21, s2, 7
           s_lshl_b32 s22, s21, 15
           v_lshlrev_b32 v5, 4, v1""")
    QF = 96
    for t in range(32):
        if t % 4 == 0 and t: k.e("s_add_u32 s22, s22, 4096")
        k.e(f"buffer_load_dwordx4 v[{QF+4*t}:{QF+3+4*t}], v5, s[28:31], s22 offen offset:{1024*(t%4)}")
    k.e(f"""s_lshl_b32 s40, s2, 7
            s_lshl_b32 s41, s20, 5
            s_add_u32 s40, s40, s41
            s_lshl_b32 s40, s40, 10
            s_mul_i32 s42, s41, {RS}
            s_add_u32 s42, s42, {CT}""")
    for r in range(32):
        k.e(f"""s_mov_b32 m0, s42
                s_add_u32 s42, s42, {RS}
                buffer_load_dwordx4 v5, s[24:27], s40 offen nt lds
                s_add_u32 s40, s40, 1024""")
    k.e(f"""v_and_b32 v6, 16, v2
            v_and_b32 v7, 3, v2
            v_lshl_add_u32 v6, v7, 2, v6
            v_bfe_u32 v7, v2, 2, 1
            v_lshl_add_u32 v6, v7, 1, v6
            v_bfe_u32 v7, v2, 3, 1
            v_add_u32 v6, v6, v7
            v_add_u32 v6, s41, v6
            v_mul_u32_u24 v6, {RS}, v6
            v_lshl_add_u32 v6, v3, 4, v6
            v_add_u32 v6, {CT}, v6
            v_mov_b32 v224, 0
            v_mov_b32 v225, 1""")
    k.e(f"""s_waitcnt vmcnt(0)
            s_mov_b64 exec, 1
            ds_add_u32 v224, v225 offset:{SYNC}
            s_mov_b64 exec, -1""")
    ACC = 16
    bufs = [32, 64]
    for i in range(8):
        k.e(f"ds_read_b128 v[{bufs[0]+4*i}:{bufs[0]+3+4*i}], v6 offset:{32*i}")
    for ci in range(4):
        if ci < 3:
            for i in range(8):
                b = bufs[(ci+1) % 2] + 4*i
                if b + 3 >= QF: raise Exception("reg overlap")
                k.e(f"ds_read_b128 v[{b}:{b+3}], v6 offset:{32*(8*(ci+1)+i)}")
            k.e("s_waitcnt lgkmcnt(8)")
        else:
            k.e("s_waitcnt lgkmcnt(0)")
        for i in range(8):
            t = 8*ci + i
            b = bufs[ci % 2] + 4*i
            cin = "0" if t == 0 else f"v[{ACC}:{ACC+15}]"
            k.e(f"v_mfma_f32_32x32x16_bf16 v[{ACC}:{ACC+15}], v[{b}:{b+3}], v[{QF+4*t}:{QF+3+4*t}], {cin}")
    k.e("s_nop 15")
    k.e(f"v_max3_f32 v8, v{ACC}, v{ACC+1}, v{ACC+2}")
    for i in range(3, 15, 2):
        k.e(f"v_max3_f32 v8, v8, v{ACC+i}, v{ACC+i+1}")
    k.e(f"""v_max_f32 v8, v8, v{ACC+15}
            v_mov_b32 v9, v8
            s_nop 1
            v_permlane32_swap_b32 v8, v9
            s_nop 0
            v_max_f32 v8, v8, v9
            s_lshl_b32 s43, s20, 2
            v_lshl_add_u32 v10, v2, 4, s43
            v_lshlrev_b32 v11, 4, v2
            ds_write_b32 v10, v8 offset:{MX}""")
    lds_sync(k, 1, 4, 224, 225, 226, 44)
    k.e(f"""ds_read_b128 v[12:15], v11 offset:{MX}
            s_waitcnt lgkmcnt(0)
            v_max3_f32 v8, v12, v13, v14
            v_max_f32 v8, v8, v15""")
    for i in range(16):
        k.e(f"v_sub_f32 v{ACC+i}, v{ACC+i}, v8")
    for i in range(16):
        k.e(f"v_exp_f32 v{ACC+i}, v{ACC+i}")
    k.e(f"s_nop 0\nv_add_f32 v9, v{ACC}, v{ACC+1}")
    for i in range(2, 16):
        k.e(f"v_add_f32 v9, v9, v{ACC+i}")
    for i in range(8):
        k.e(f"v_cvt_pk_bf16_f32 v{32+i}, v{ACC+2*i}, v{ACC+2*i+1}")
    k.e(f"""v_mov_b32 v12, v9
            s_lshl_b32 s44, s20, 11
            v_lshl_add_u32 v13, v1, 4, s44
            v_permlane32_swap_b32 v9, v12
            s_nop 0
            v_add_f32 v9, v9, v12
            ds_write_b128 v13, v[32:35] offset:{PX}
            ds_write_b128 v13, v[36:39] offset:{PX+1024}
            ds_write_b32 v10, v9 offset:{SX}""")
    lds_sync(k, 2, 4, 224, 225, 226, 44)
    PF = 32
    for s in range(8):
        k.e(f"ds_read_b128 v[{PF+4*s}:{PF+3+4*s}], v5 offset:{PX + 1024*s}")
    k.e(f"ds_read_b128 v[12:15], v11 offset:{SX}")
    k.e(f"""v_bfe_u32 v66, v1, 2, 2
            v_lshlrev_b32 v66, 2, v66
            v_lshl_add_u32 v66, v3, 1, v66
            v_mul_u32_u24 v66, {RS}, v66
            v_bfe_u32 v67, v1, 4, 1
            v_lshlrev_b32 v67, 5, v67
            v_and_b32 v7, 3, v1
            v_lshl_add_u32 v67, v7, 3, v67
            s_lshl_b32 s45, s20, 8
            s_add_u32 s45, s45, {CT}
            v_add3_u32 v64, v66, v67, s45
            v_add_u32 v65, {64*RS}, v64""")
    OACC = 96
    VB = [160, 192]
    steps = [(T, s) for s in range(8) for T in range(4)]
    def trread(dst, T, s):
        wq, u = s >> 1, s & 1
        base = 64 if wq < 2 else 65
        off = (32*(wq & 1) + 16*u) * RS + 64*T
        k.e(f"ds_read_b64_tr_b16 v[{dst}:{dst+1}], v{base} offset:{off}")
        k.e(f"ds_read_b64_tr_b16 v[{dst+2}:{dst+3}], v{base} offset:{off+RS}")
    CH = 4
    chunks = [steps[i:i+CH] for i in range(0, 32, CH)]
    for i, (T, s) in enumerate(chunks[0]):
        trread(VB[0] + 4*i, T, s)
    for ci, ch in enumerate(chunks):
        if ci + 1 < len(chunks):
            for i, (T, s) in enumerate(chunks[ci+1]):
                trread(VB[(ci+1) % 2] + 4*i, T, s)
            k.e(f"s_waitcnt lgkmcnt({2*CH})")
        else:
            k.e("s_waitcnt lgkmcnt(0)")
        for i, (T, s) in enumerate(ch):
            a = VB[ci % 2] + 4*i
            o = OACC + 16*T
            cin = "0" if s == 0 else f"v[{o}:{o+15}]"
            k.e(f"v_mfma_f32_32x32x16_bf16 v[{o}:{o+15}], v[{a}:{a+3}], v[{PF+4*s}:{PF+3+4*s}], {cin}")
    Lk = k.newlab("skipml")
    k.e(f"""v_add_f32 v12, v12, v13
            v_add_f32 v14, v14, v15
            v_add_f32 v9, v12, v14
            s_and_b32 s46, s2, 127
            s_lshl_b32 s47, s21, 12
            s_add_u32 s46, s46, s47
            s_lshl_b32 s46, s46, 3
            v_lshl_add_u32 v10, v2, 10, s46
            s_cmp_lg_u32 s20, 0
            s_cbranch_scc1 {Lk}
            v_cmp_gt_u32 vcc, 32, v1
            s_and_saveexec_b64 s[48:49], vcc
            buffer_store_dwordx2 v[8:9], v10, s[36:39], 0 offen sc1
            s_mov_b64 exec, s[48:49]""")
    k.lab(Lk)
    k.e(f"""s_lshl_b32 s46, s2, 15
            s_lshl_b32 s47, s20, 8
            s_add_u32 s46, s46, s47
            v_lshlrev_b32 v10, 10, v2
            v_lshl_add_u32 v10, v3, 4, v10
            s_nop 7""")
    for T in range(4):
        o = OACC + 16*T
        for a in range(0, 4, 2):
            d = 32 + 4*((2*T + a//2) % 8)
            k.e(f"""v_cvt_pk_bf16_f32 v{d}, v{o+4*a}, v{o+4*a+1}
                    v_cvt_pk_bf16_f32 v{d+1}, v{o+4*a+2}, v{o+4*a+3}
                    v_cvt_pk_bf16_f32 v{d+2}, v{o+4*a+4}, v{o+4*a+5}
                    v_cvt_pk_bf16_f32 v{d+3}, v{o+4*a+6}, v{o+4*a+7}
                    s_nop 1
                    v_permlane32_swap_b32 v{d}, v{d+2}
                    v_permlane32_swap_b32 v{d+1}, v{d+3}
                    buffer_store_dwordx4 v[{d}:{d+3}], v10, s[32:35], s46 offen offset:{64*T + 16*a} sc1""")
    k.e(f"""s_waitcnt vmcnt(0)
            s_mov_b64 exec, 1
            ds_add_rtn_u32 v226, v224, v225 offset:{SYNC + 12}
            s_waitcnt lgkmcnt(0)
            v_readfirstlane_b32 s44, v226
            s_cmp_lg_u32 s44, 3
            s_cbranch_scc1 {k.name}_end
            s_lshl_b32 s45, s2, 2
            v_mov_b32 v227, s45
            buffer_store_dword v225, v227, s[52:55], 0 offen sc1
            s_branch {k.name}_end""")

def dma64_off(k, vA, lane, t1, t2, t3, rowstride):
    k.e(f"""v_lshrrev_b32 v{t1}, 2, v{lane}
            v_and_b32 v{t2}, 3, v{lane}
            v_bfe_u32 v{t3}, v{lane}, 5, 1
            v_lshlrev_b32 v{t3}, 1, v{t3}
            v_xor_b32 v{t2}, v{t2}, v{t3}
            v_mul_u32_u24 v{vA}, {rowstride}, v{t1}
            v_lshl_add_u32 v{vA}, v{t2}, 4, v{vA}""")

def tr64_base(k, dst, v3, v4, nt_sreg, t1, t2):
    k.e(f"""v_lshrrev_b32 v{t1}, 2, v{v3}
            v_lshl_add_u32 v{t1}, v{v4}, 3, v{t1}
            v_lshlrev_b32 v{t1}, 6, v{t1}
            v_bfe_u32 v{t2}, v{v3}, 1, 1
            v_add_u32 v{t2}, s{nt_sreg}, v{t2}
            v_and_b32 v{dst}, 1, v{v4}
            v_lshlrev_b32 v{dst}, 1, v{dst}
            v_xor_b32 v{t2}, v{t2}, v{dst}
            v_lshl_add_u32 v{t1}, v{t2}, 4, v{t1}
            v_and_b32 v{dst}, 1, v{v3}
            v_lshl_add_u32 v{dst}, v{dst}, 3, v{t1}""")

def poll_gather(k, loads, regs, scnt, mask_s=None):
    L = k.newlab("poll"); Ld = k.newlab("pdone")
    k.e(f"s_mov_b32 s{scnt}, 0")
    k.lab(L)
    for l in loads: k.e(l)
    k.e("s_waitcnt vmcnt(0)")
    k.e(f"v_max_u32 v7, v{regs[0]}, v{regs[1]}")
    for i in range(2, len(regs) - 1, 2):
        k.e(f"v_max3_u32 v7, v7, v{regs[i]}, v{regs[i+1]}")
    if len(regs) % 2: k.e(f"v_max_u32 v7, v7, v{regs[-1]}")
    k.e(f"""v_cmp_eq_u32 vcc, -1, v7
            s_add_u32 s{scnt}, s{scnt}, 1
            s_cmp_gt_u32 s{scnt}, {SPIN_MAX}
            s_cbranch_scc1 {Ld}
            s_cbranch_vccnz {L}""")
    k.lab(Ld)

def team_b(k):
    k.e("""v_subrev_u32 v0, 0x100, v0
           s_sub_u32 s20, s20, 4
           v_and_b32 v3, 15, v1
           v_lshrrev_b32 v4, 4, v1
           s_and_b32 s21, s2, 31
           s_lshr_b32 s22, s2, 5
           v_mov_b32 v68, 0""")
    k.ldptr(12, "wuv"); k.ldptr(14, "wo"); k.ldptr(16, "wg"); k.ldptr(18, "wu"); k.ldptr(64, "wd"); k.ldptr(66, "x"); k.ldptr(68, "out")
    k.e("s_waitcnt lgkmcnt(0)")
    k.srd(24, 12, SZ["wuv"]); k.srd(28, 10, 65536, WS_ML); k.srd(32, 10, 8388608, WS_OP); k.srd(36, 10, 262144, WS_CTX)
    k.srd(52, 10, 1024, WS_FLAG); k.srd(56, 10, 36864, WS_OUTP); k.srd(60, 10, 663552, WS_DNP)
    k.srd(72, 14, SZ["wo"]); k.srd(76, 16, SZ["wg"]); k.srd(80, 18, SZ["wu"]); k.srd(84, 64, SZ["wd"])
    k.srd(88, 66, SZ["x"]); k.srd(92, 68, SZ["out"])
    k.e(f"""v_lshlrev_b32 v13, 1, v4
            v_xor_b32 v13, v13, v3
            v_lshlrev_b32 v13, 4, v13
            v_lshl_add_u32 v13, v4, 13, v13
            v_xor_b32 v14, 0x80, v13
            s_lshl_b32 s44, s22, 6
            s_lshl_b32 s45, s20, 4
            s_add_u32 s44, s44, s45
            s_lshl_b32 s44, s44, 13
            s_lshl_b32 s45, s21, 8
            s_add_u32 s44, s44, s45""")
    L = k.newlab("land")
    k.lab(L)
    k.e(f"""s_sleep 4
            ds_read_b32 v70, v68 offset:{SYNC}
            s_waitcnt lgkmcnt(0)
            v_readfirstlane_b32 s46, v70
            s_cmp_lt_u32 s46, 4
            s_cbranch_scc1 {L}""")
    for mi in range(4):
        k.e(f"""buffer_load_dwordx4 v[{128+4*mi}:{131+4*mi}], v{14 if mi & 2 else 13}, s[24:27], s44 offen nt
                s_add_u32 s44, s44, 32768""")
    LE, LG, LW = k.newlab("ldE"), k.newlab("ldG"), k.newlab("ldW")
    k.e(f"s_cmp_ge_u32 s2, 144\ns_cbranch_scc1 {LE}")
    dma64_off(k, 8, 1, 10, 11, 9, 9216)
    k.e("""s_mul_i32 s41, s20, 9*16*9216
           s_lshl_b32 s42, s2, 6
           s_add_u32 s41, s41, s42""")
    for mi in range(9):
        k.e(f"""buffer_load_dwordx4 v[{144+4*mi}:{147+4*mi}], v8, s[76:79], s41 offen nt
                buffer_load_dwordx4 v[{180+4*mi}:{183+4*mi}], v8, s[80:83], s41 offen nt
                s_add_u32 s41, s41, {16*9216}""")
    k.e(f"""v_lshlrev_b32 v9, 4, v1
            s_mul_i32 s41, s2, 36864
            s_mul_i32 s42, s20, 9216
            s_add_u32 s41, s41, s42""")
    for mi in range(9):
        k.e(f"""buffer_load_dwordx4 v[{216+4*mi}:{219+4*mi}], v9, s[84:87], s41 offen nt
                s_add_u32 s41, s41, 1024""")
    k.e(f"s_branch {LW}")
    k.lab(LE)
    k.e(f"""s_cmp_ge_u32 s2, 216
            s_cbranch_scc1 {LW}
            s_sub_u32 s47, s2, 144
            s_mul_i32 s48, s47, 7282
            s_lshr_b32 s48, s48, 16
            s_mul_i32 s49, s48, 9
            s_sub_u32 s49, s47, s49""")
    k.e("""v_lshrrev_b32 v10, 3, v1
           v_and_b32 v11, 7, v1
           v_and_b32 v12, 2, v10
           v_xor_b32 v11, v11, v12
           v_mul_u32_u24 v8, 1152, v10
           v_lshl_add_u32 v8, v11, 4, v8
           v_xor_b32 v11, 4, v11
           v_mul_u32_u24 v9, 1152, v10
           v_lshl_add_u32 v9, v11, 4, v9
           s_lshl_b32 s41, s48, 9
           s_lshl_b32 s42, s20, 7
           s_add_u32 s41, s41, s42
           s_mul_i32 s41, s41, 1152
           s_lshl_b32 s42, s49, 7
           s_add_u32 s41, s41, s42""")
    for mi in range(16):
        k.e(f"""buffer_load_dwordx4 v[{144+4*mi}:{147+4*mi}], v{9 if mi & 1 else 8}, s[72:75], s41 offen nt
                s_add_u32 s41, s41, {8*1152}""")
    k.lab(LW)
    k.e(f"""s_barrier
            s_waitcnt vmcnt(0)
            v_lshlrev_b32 v9, 4, v1
            s_lshl_b32 s41, s20, 12
            s_add_u32 s41, s41, {WUV_L}
            v_add_u32 v10, s41, v9""")
    for mi in range(4):
        k.e(f"ds_write_b128 v10, v[{128+4*mi}:{131+4*mi}] offset:{1024*mi}")
    LE2, LW2 = k.newlab("stE"), k.newlab("stW")
    k.e(f"""s_cmp_ge_u32 s2, 144
            s_cbranch_scc1 {LE2}
            s_mul_i32 s41, s20, 9216
            s_add_u32 s41, s41, {BIG_L}
            v_add_u32 v10, s41, v9""")
    for mi in range(9):
        k.e(f"""ds_write_b128 v10, v[{144+4*mi}:{147+4*mi}] offset:{1024*mi}
                ds_write_b128 v10, v[{180+4*mi}:{183+4*mi}] offset:{36864 + 1024*mi}""")
    k.e(f"s_branch {LW2}")
    k.lab(LE2)
    k.e(f"""s_cmp_ge_u32 s2, 216
            s_cbranch_scc1 {LW2}
            s_lshl_b32 s41, s20, 14
            s_add_u32 s41, s41, {BIG_L}
            v_add_u32 v10, s41, v9""")
    for mi in range(16):
        k.e(f"ds_write_b128 v10, v[{144+4*mi}:{147+4*mi}] offset:{1024*mi}")
    k.lab(LW2)
    poll_gather(k, ["buffer_load_dwordx4 v[20:23], v9, s[52:55], 0 offen sc1"], [20, 21, 22, 23], 46)
    k.e("""v_lshrrev_b32 v5, 7, v0
           v_and_b32 v6, 127, v0
           v_lshlrev_b32 v5, 12, v5
           v_add_u32 v5, v5, v6
           s_lshl_b32 s40, s21, 7
           v_add_u32 v5, s40, v5
           v_lshlrev_b32 v5, 3, v5
           buffer_load_dwordx2 v[8:9], v5, s[28:31], 0 offen sc1""")
    k.e(f"""v_lshrrev_b32 v10, 3, v1
            v_and_b32 v11, 7, v1
            v_and_b32 v12, 2, v10
            v_xor_b32 v11, v11, v12
            v_lshlrev_b32 v11, 4, v11
            v_lshl_add_u32 v11, v10, 15, v11
            v_xor_b32 v12, 64, v11
            s_lshl_b32 s41, s21, 10
            s_lshl_b32 s42, s22, 7
            s_add_u32 s41, s41, s42
            s_lshl_b32 s42, s20, 21
            s_add_u32 s41, s41, s42
            s_lshl_b32 s43, s20, 13
            s_add_u32 s43, s43, {OST_L}""")
    for mi in range(8):
        k.e(f"""s_mov_b32 m0, s43
                s_add_u32 s43, s43, 1024
                buffer_load_dwordx4 v{12 if mi & 1 else 11}, s[32:35], s41 offen sc1 lds
                s_add_u32 s41, s41, 262144""")
    k.e("s_waitcnt vmcnt(8)\nv_mov_b32 v15, v8")
    k.allreduce("max", 15, 16)
    k.e(f"""s_lshl_b32 s46, s20, 2
            v_mov_b32 v17, s46
            ds_write_b32 v17, v15 offset:{D_R}
            s_waitcnt lgkmcnt(0)
            s_barrier
            s_and_b32 s47, s20, 2
            s_lshl_b32 s47, s47, 2
            v_mov_b32 v18, s47
            ds_read_b64 v[20:21], v18 offset:{D_R}
            s_waitcnt lgkmcnt(0)
            v_max_f32 v15, v20, v21
            v_sub_f32 v8, v8, v15
            v_exp_f32 v8, v8
            s_nop 0
            v_mul_f32 v19, v8, v9""")
    k.allreduce("add", 19, 16)
    k.e(f"""ds_write_b32 v17, v19 offset:{D_R+16}
            s_waitcnt lgkmcnt(0)
            s_barrier
            ds_read_b64 v[20:21], v18 offset:{D_R+16}
            s_waitcnt lgkmcnt(0)
            v_add_f32 v19, v20, v21
            v_rcp_f32 v19, v19
            s_nop 0
            v_mul_f32 v8, v8, v19""")
    k.hilo(8, 22, 23, 24)
    k.e(f"""v_lshrrev_b32 v25, 7, v0
            v_lshlrev_b32 v25, 9, v25
            v_lshl_add_u32 v25, v6, 1, v25
            ds_write_b16 v25, v22 offset:{D_A}
            ds_write_b16 v25, v23 offset:{D_A+256}
            s_waitcnt vmcnt(0) lgkmcnt(0)
            s_barrier""")
    k.e(f"""v_and_b32 v26, 1, v1
            v_lshlrev_b32 v26, 8, v26
            v_lshl_add_u32 v26, v4, 4, v26
            s_lshr_b32 s46, s20, 1
            s_lshl_b32 s47, s46, 9
            v_add_u32 v26, s47, v26""")
    for t in range(4):
        k.e(f"ds_read_b128 v[{28+4*t}:{31+4*t}], v26 offset:{D_A + 64*t}")
    k.e(f"""v_lshrrev_b32 v9, 2, v3
            v_lshl_add_u32 v10, v4, 3, v9
            v_lshlrev_b32 v10, 7, v10
            v_and_b32 v11, 2, v9
            v_and_b32 v12, 1, v4
            v_lshl_or_b32 v11, v12, 2, v11
            v_bfe_u32 v12, v3, 1, 1
            s_and_b32 s47, s20, 1
            s_lshl_b32 s47, s47, 2
            v_add_u32 v12, s47, v12
            v_and_b32 v13, 1, v3
            v_lshl_add_u32 v10, v13, 3, v10
            s_lshl_b32 s47, s46, 14
            s_add_u32 s47, s47, {OST_L}
            v_add_u32 v10, s47, v10""")
    for nt in range(2):
        k.e(f"""v_add_u32 v14, {2*nt}, v12
                v_xor_b32 v14, v14, v11
                v_lshl_add_u32 v{15+nt}, v14, 4, v10""")
    for nt in range(2):
        for t in range(4):
            d = 44 + 16*nt + 4*t
            k.e(f"""ds_read_b64_tr_b16 v[{d}:{d+1}], v{15+nt} offset:{4096*t}
                    ds_read_b64_tr_b16 v[{d+2}:{d+3}], v{15+nt} offset:{4096*t + 512}""")
    k.e("s_waitcnt lgkmcnt(0)")
    for nt in range(2):
        for t in range(4):
            d = 44 + 16*nt + 4*t
            acc = 20 if nt == 0 else 76
            cin = "0" if t == 0 else f"v[{acc}:{acc+3}]"
            k.e(f"v_mfma_f32_16x16x32_bf16 v[{acc}:{acc+3}], v[{28+4*t}:{31+4*t}], v[{d}:{d+3}], {cin}")
    k.e(f"""s_and_b32 s47, s20, 1
            s_lshl_b32 s47, s47, 6
            s_lshl_b32 s50, s46, 7
            s_add_u32 s47, s47, s50
            v_lshl_add_u32 v27, v3, 1, s47
            s_nop 7""")
    for nt in range(2):
        acc = 20 if nt == 0 else 76
        k.e(f"v_add_f32 v8, v{acc}, v{acc+1}")
        k.hilo(8, 9, 24, 25)
        k.e(f"""ds_write_b16 v27, v9 offset:{D_A2 + 32*nt}
                ds_write_b16 v27, v24 offset:{D_A2 + 256 + 32*nt}""")
    k.e("s_waitcnt lgkmcnt(0)\ns_barrier")
    k.e(f"""v_and_b32 v8, 3, v1
            v_lshlrev_b32 v8, 7, v8
            v_lshl_add_u32 v8, v4, 4, v8
            ds_read_b128 v[28:31], v8 offset:{D_A2}
            ds_read_b128 v[32:35], v8 offset:{D_A2+64}""")
    k.e(f"""v_lshrrev_b32 v9, 2, v3
            v_lshl_add_u32 v10, v4, 3, v9
            v_lshlrev_b32 v10, 8, v10
            v_and_b32 v11, 1, v4
            v_lshlrev_b32 v11, 3, v11
            v_lshl_or_b32 v11, v9, 1, v11
            v_bfe_u32 v12, v3, 1, 1
            s_lshl_b32 s47, s20, 2
            v_add_u32 v12, s47, v12
            v_and_b32 v13, 1, v3
            v_lshl_add_u32 v10, v13, 3, v10""")
    for nt in range(2):
        k.e(f"""v_add_u32 v14, {2*nt}, v12
                v_xor_b32 v14, v14, v11
                v_lshl_add_u32 v{15+nt}, v14, 4, v10""")
    for nt in range(2):
        for t in range(2):
            d = 44 + 8*nt + 4*t
            k.e(f"""ds_read_b64_tr_b16 v[{d}:{d+1}], v{15+nt} offset:{WUV_L + 8192*t}
                    ds_read_b64_tr_b16 v[{d+2}:{d+3}], v{15+nt} offset:{WUV_L + 8192*t + 1024}""")
    k.e("s_waitcnt lgkmcnt(0)")
    for nt in range(2):
        acc = 20 if nt == 0 else 76
        for t in range(2):
            d = 44 + 8*nt + 4*t
            cin = "0" if t == 0 else f"v[{acc}:{acc+3}]"
            k.e(f"v_mfma_f32_16x16x32_bf16 v[{acc}:{acc+3}], v[{28+4*t}:{31+4*t}], v[{d}:{d+3}], {cin}")
    k.e(f"""s_lshl_b32 s47, s22, 15
            s_lshl_b32 s50, s21, 9
            s_add_u32 s47, s47, s50
            s_lshl_b32 s50, s20, 7
            s_add_u32 s47, s47, s50
            v_lshl_add_u32 v27, v3, 2, s47
            s_nop 7
            v_add_f32 v8, v20, v22
            v_add_f32 v9, v21, v23
            v_add_f32 v10, v76, v78
            v_add_f32 v11, v77, v79""")
    k.sanitize([8, 9, 10, 11], 12)
    k.e(f"""s_mov_b32 s47, 16384
            v_cmp_gt_u32 vcc, 16, v1
            s_and_saveexec_b64 s[50:51], vcc
            buffer_store_dword v8, v27, s[36:39], 0 offen sc1
            buffer_store_dword v9, v27, s[36:39], s47 offen sc1
            buffer_store_dword v10, v27, s[36:39], 0 offen offset:64 sc1
            buffer_store_dword v11, v27, s[36:39], s47 offen offset:64 sc1
            s_mov_b64 exec, s[50:51]""")
    LPE, LPG = k.newlab("phE"), k.newlab("phG")
    k.e(f"s_cmp_ge_u32 s2, 144\ns_cbranch_scc1 {LPE}")
    phase_f(k)
    k.e(f"s_branch {k.name}_end")
    k.lab(LPE)
    k.e(f"s_cmp_ge_u32 s2, 216\ns_cbranch_scc1 {LPG}")
    phase_e(k)
    k.e(f"s_branch {k.name}_end")
    k.lab(LPG)
    k.e(f"s_cmp_ge_u32 s2, 234\ns_cbranch_scc1 {k.name}_end")
    phase_g(k)

def phase_e(k):
    A_LDS = T_A
    k.e("""v_lshrrev_b32 v5, 7, v0
           v_and_b32 v6, 127, v0
           v_lshlrev_b32 v8, 14, v5
           v_lshl_add_u32 v8, v6, 4, v8
           s_lshl_b32 s40, s48, 11""")
    loads = []
    for j in range(8):
        loads.append(f"s_add_u32 s41, s40, {32768*j}\nbuffer_load_dwordx4 v[{20+4*j}:{23+4*j}], v8, s[36:39], s41 offen sc1")
    poll_gather(k, loads, list(range(20, 52)), 46)
    for j in range(1, 8):
        for e in range(4):
            k.e(f"v_add_f32 v{20+e}, v{20+e}, v{20+4*j+e}")
    k.e("""v_cvt_pk_bf16_f32 v24, v20, v21
           v_cvt_pk_bf16_f32 v25, v22, v23
           v_lshlrev_b32 v26, 16, v24
           v_and_b32 v27, 0xffff0000, v24
           v_lshlrev_b32 v28, 16, v25
           v_and_b32 v29, 0xffff0000, v25
           v_sub_f32 v20, v20, v26
           v_sub_f32 v21, v21, v27
           v_sub_f32 v22, v22, v28
           v_sub_f32 v23, v23, v29
           v_cvt_pk_bf16_f32 v26, v20, v21
           v_cvt_pk_bf16_f32 v27, v22, v23
           v_lshlrev_b32 v12, 10, v5
           v_lshl_add_u32 v12, v6, 3, v12""")
    k.e(f"""ds_write_b64 v12, v[24:25] offset:{A_LDS}
            ds_write_b64 v12, v[26:27] offset:{A_LDS+2048}
            s_waitcnt lgkmcnt(0)
            s_barrier""")
    k.e("""v_and_b32 v8, 3, v1
           v_lshlrev_b32 v8, 10, v8
           v_lshl_add_u32 v8, v4, 4, v8""")
    for t in range(16):
        k.e(f"ds_read_b128 v[{20+4*t}:{23+4*t}], v8 offset:{A_LDS + 64*t}")
    k.e(f"""v_lshrrev_b32 v9, 2, v3
            v_lshl_add_u32 v10, v4, 3, v9
            v_lshlrev_b32 v10, 7, v10
            v_and_b32 v11, 2, v9
            v_and_b32 v12, 1, v4
            v_lshl_or_b32 v11, v12, 2, v11
            v_bfe_u32 v12, v3, 1, 1
            s_lshl_b32 s47, s20, 1
            v_add_u32 v12, s47, v12
            v_and_b32 v13, 1, v3
            v_lshl_add_u32 v10, v13, 3, v10
            v_xor_b32 v12, v12, v11
            v_lshl_add_u32 v15, v12, 4, v10
            v_add_u32 v15, {BIG_L}, v15""")
    for c in range(2):
        for i in range(8):
            t = 8*c + i
            d = 88 + 4*i
            k.e(f"""ds_read_b64_tr_b16 v[{d}:{d+1}], v15 offset:{4096*t}
                    ds_read_b64_tr_b16 v[{d+2}:{d+3}], v15 offset:{4096*t + 512}""")
        k.e("s_waitcnt lgkmcnt(0)")
        for i in range(8):
            t = 8*c + i
            d = 88 + 4*i
            cin = "0" if t == 0 else "v[120:123]"
            k.e(f"v_mfma_f32_16x16x32_bf16 v[120:123], v[{20+4*t}:{23+4*t}], v[{d}:{d+3}], {cin}")
        k.e("s_nop 3")
    k.e(f"""s_mul_i32 s45, s48, 4608
            s_lshl_b32 s46, s49, 8
            s_add_u32 s45, s45, s46
            s_lshl_b32 s46, s20, 6
            s_add_u32 s45, s45, s46
            v_lshl_add_u32 v12, v3, 2, s45
            s_nop 7
            v_add_f32 v8, v120, v122
            v_add_f32 v9, v121, v123""")
    k.sanitize([8, 9], 10)
    k.e(f"""v_cmp_gt_u32 vcc, 16, v1
            s_and_saveexec_b64 s[50:51], vcc
            buffer_store_dword v8, v12, s[56:59], 0 offen sc1
            buffer_store_dword v9, v12, s[56:59], 0 offen offset:2304 sc1""")

def phase_f(k):
    A_LDS, R_LDS, GU_LDS, A2_LDS = T_A, T_A + 4608, T_A + 4672, T_A + 5184
    D_LDS = OST_L
    k.e(f"""s_barrier
            v_lshlrev_b32 v9, 4, v1
            s_mul_i32 s41, s20, 9216
            s_add_u32 s41, s41, {D_LDS}
            v_add_u32 v10, s41, v9""")
    for mi in range(9):
        k.e(f"ds_write_b128 v10, v[{216+4*mi}:{219+4*mi}] offset:{1024*mi}")
    k.e("""v_lshlrev_b32 v5, 4, v0
           v_mov_b32 v6, 0x7fffffff
           v_cmp_gt_u32 vcc, 144, v0
           s_nop 1
           v_cndmask_b32 v5, v6, v5, vcc
           v_lshrrev_b32 v8, 1, v5
           v_cndmask_b32 v8, v6, v8, vcc
           s_mov_b64 s[64:65], vcc""")
    k.e("""buffer_load_dwordx2 v[84:85], v8, s[88:91], 0 offen
           buffer_load_dwordx2 v[86:87], v8, s[88:91], 0 offen offset:1152""")
    loads = []
    for ks in range(8):
        for b in range(2):
            r = 20 + 8*ks + 4*b
            loads.append(f"s_mov_b32 s40, {4608*ks}\nbuffer_load_dwordx4 v[{r}:{r+3}], v5, s[56:59], s40 offen offset:{2304*b} sc1")
    poll_gather(k, loads, list(range(20, 84)), 46)
    for ks in range(1, 8):
        for e in range(8):
            k.e(f"v_add_f32 v{20+e}, v{20+e}, v{20+8*ks+e}")
    for b in range(2):
        k.e(f"""v_lshlrev_b32 v12, 16, v{84+2*b}
                v_and_b32 v13, 0xffff0000, v{84+2*b}
                v_lshlrev_b32 v14, 16, v{85+2*b}
                v_and_b32 v15, 0xffff0000, v{85+2*b}
                v_add_f32 v{20+4*b}, v{20+4*b}, v12
                v_add_f32 v{21+4*b}, v{21+4*b}, v13
                v_add_f32 v{22+4*b}, v{22+4*b}, v14
                v_add_f32 v{23+4*b}, v{23+4*b}, v15""")
    k.e(f"""v_add_u32 v16, {BIG_L + 73728}, v5
            s_mov_b64 s[66:67], exec
            s_mov_b64 exec, s[64:65]
            ds_write_b128 v16, v[20:23]
            ds_write_b128 v16, v[24:27] offset:2304
            s_mov_b64 exec, s[66:67]""")
    k.e("""v_add_f32 v28, v20, v21
           v_add_f32 v29, v22, v23
           v_add_f32 v28, v28, v29
           v_add_f32 v29, v24, v25
           v_add_f32 v30, v26, v27
           v_add_f32 v29, v29, v30""")
    k.allreduce("add", 28, 31)
    k.allreduce("add", 29, 31)
    k.e(f"""s_lshl_b32 s46, s20, 3
            v_mov_b32 v32, s46
            v_mov_b32 v33, 0
            ds_write_b64 v32, v[28:29] offset:{R_LDS}
            s_waitcnt lgkmcnt(0)
            s_barrier
            ds_read_b128 v[36:39], v33 offset:{R_LDS}
            ds_read_b64 v[40:41], v33 offset:{R_LDS+16}
            s_waitcnt lgkmcnt(0)
            v_add_f32 v28, v36, v38
            v_add_f32 v28, v28, v40
            v_add_f32 v29, v37, v39
            v_add_f32 v29, v29, v41
            v_mul_f32 v28, {f2u(1.0/576)}, v28
            v_mul_f32 v29, {f2u(1.0/576)}, v29""")
    for b in range(2):
        for e in range(4):
            k.e(f"v_sub_f32 v{20+4*b+e}, v{20+4*b+e}, v{28+b}")
    for b in range(2):
        k.e(f"""v_mul_f32 v{30+b}, v{20+4*b}, v{20+4*b}
                v_fmac_f32 v{30+b}, v{21+4*b}, v{21+4*b}
                v_fmac_f32 v{30+b}, v{22+4*b}, v{22+4*b}
                v_fmac_f32 v{30+b}, v{23+4*b}, v{23+4*b}
                v_cndmask_b32 v{30+b}, 0, v{30+b}, s[64:65]""")
    k.allreduce("add", 30, 34)
    k.allreduce("add", 31, 34)
    k.e(f"""ds_write_b64 v32, v[30:31] offset:{R_LDS+32}
            s_waitcnt lgkmcnt(0)
            s_barrier
            ds_read_b128 v[36:39], v33 offset:{R_LDS+32}
            ds_read_b64 v[40:41], v33 offset:{R_LDS+48}
            s_waitcnt lgkmcnt(0)
            v_add_f32 v30, v36, v38
            v_add_f32 v30, v30, v40
            v_add_f32 v31, v37, v39
            v_add_f32 v31, v31, v41
            v_mov_b32 v34, {f2u(1e-5)}
            v_mov_b32 v35, {f2u(1e-5)}
            v_fmac_f32 v34, {f2u(1.0/576)}, v30
            v_fmac_f32 v35, {f2u(1.0/576)}, v31
            v_rsq_f32 v34, v34
            v_rsq_f32 v35, v35
            v_lshlrev_b32 v12, 3, v0""")
    for b in range(2):
        o = 20 + 4*b
        for e in range(4):
            k.e(f"v_mul_f32 v{o+e}, v{o+e}, v{34+b}")
        k.e(f"""v_cvt_pk_bf16_f32 v36, v{o}, v{o+1}
                v_cvt_pk_bf16_f32 v37, v{o+2}, v{o+3}
                v_lshlrev_b32 v38, 16, v36
                v_and_b32 v39, 0xffff0000, v36
                v_lshlrev_b32 v40, 16, v37
                v_and_b32 v41, 0xffff0000, v37
                v_sub_f32 v{o}, v{o}, v38
                v_sub_f32 v{o+1}, v{o+1}, v39
                v_sub_f32 v{o+2}, v{o+2}, v40
                v_sub_f32 v{o+3}, v{o+3}, v41
                v_cvt_pk_bf16_f32 v38, v{o}, v{o+1}
                v_cvt_pk_bf16_f32 v39, v{o+2}, v{o+3}
                s_mov_b64 s[66:67], exec
                s_mov_b64 exec, s[64:65]
                ds_write_b64 v12, v[36:37] offset:{A_LDS + 1152*b}
                ds_write_b64 v12, v[38:39] offset:{A_LDS + 2304 + 1152*b}
                s_mov_b64 exec, s[66:67]""")
    k.e("s_waitcnt lgkmcnt(0)\ns_barrier")
    k.e(f"""v_and_b32 v8, 3, v1
            v_mul_u32_u24 v8, 1152, v8
            v_lshl_add_u32 v8, v4, 4, v8
            s_and_b32 s44, s20, 1
            s_lshl_b32 s44, s44, 1
            s_lshr_b32 s45, s20, 1
            s_mul_i32 s45, s45, 36864
            s_add_u32 s45, s45, {BIG_L}""")
    for t in range(18):
        k.e(f"ds_read_b128 v[{20+4*t}:{23+4*t}], v8 offset:{A_LDS + 64*t}")
    tr64_base(k, 15, 3, 4, 44, 10, 11)
    k.e("v_add_u32 v15, s45, v15")
    for c in range(3):
        for i in range(6):
            t = 6*c + i
            d = 96 + 4*i
            k.e(f"""ds_read_b64_tr_b16 v[{d}:{d+1}], v15 offset:{2048*t}
                    ds_read_b64_tr_b16 v[{d+2}:{d+3}], v15 offset:{2048*t + 256}""")
        k.e("s_waitcnt lgkmcnt(0)")
        for i in range(6):
            t = 6*c + i
            d = 96 + 4*i
            cin = "0" if t == 0 else "v[120:123]"
            k.e(f"v_mfma_f32_16x16x32_bf16 v[120:123], v[{20+4*t}:{23+4*t}], v[{d}:{d+3}], {cin}")
        k.e("s_nop 3")
    k.e("s_nop 7")
    k.e(f"""s_lshr_b32 s45, s20, 1
            s_lshl_b32 s45, s45, 8
            s_and_b32 s46, s20, 1
            s_lshl_b32 s46, s46, 6
            s_add_u32 s45, s45, s46
            v_lshl_add_u32 v12, v3, 2, s45
            v_add_f32 v8, v120, v122
            v_add_f32 v9, v121, v123
            ds_write_b32 v12, v8 offset:{GU_LDS}
            ds_write_b32 v12, v9 offset:{GU_LDS+128}
            s_waitcnt lgkmcnt(0)
            s_barrier
            v_lshlrev_b32 v12, 2, v1
            ds_read_b32 v8, v12 offset:{GU_LDS}
            ds_read_b32 v9, v12 offset:{GU_LDS+256}
            s_waitcnt lgkmcnt(0)
            v_mul_f32 v10, {f2u(-LOG2E)}, v8
            v_exp_f32 v10, v10
            s_nop 0
            v_add_f32 v10, 1.0, v10
            v_rcp_f32 v10, v10
            s_nop 0
            v_mul_f32 v8, v8, v10
            v_mul_f32 v8, v8, v9""")
    k.hilo(8, 9, 10, 11)
    k.e(f"""v_lshlrev_b32 v12, 1, v1
            ds_write_b16 v12, v9 offset:{A2_LDS}
            ds_write_b16 v12, v10 offset:{A2_LDS+128}
            s_waitcnt lgkmcnt(0)
            s_barrier
            v_and_b32 v8, 3, v1
            v_lshlrev_b32 v8, 6, v8
            v_lshl_add_u32 v8, v4, 4, v8
            ds_read_b128 v[20:23], v8 offset:{A2_LDS}""")
    k.e(f"""v_lshrrev_b32 v10, 2, v3
            v_lshl_add_u32 v10, v4, 3, v10
            v_mul_u32_u24 v10, 1152, v10
            v_and_b32 v11, 3, v3
            v_lshl_add_u32 v10, v11, 3, v10
            s_mul_i32 s45, s20, 288
            s_add_u32 s45, s45, {D_LDS}
            v_add_u32 v10, s45, v10""")
    for n in range(9):
        d = 24 + 4*n
        k.e(f"""ds_read_b64_tr_b16 v[{d}:{d+1}], v10 offset:{32*n}
                ds_read_b64_tr_b16 v[{d+2}:{d+3}], v10 offset:{32*n + 4608}""")
    k.e(f"""s_mul_i32 s46, s20, 576
            s_add_u32 s46, s46, {BIG_L + 73728}
            v_lshl_add_u32 v13, v3, 2, s46""")
    for n in range(9):
        k.e(f"""ds_read_b32 v{100+2*n}, v13 offset:{64*n}
                ds_read_b32 v{101+2*n}, v13 offset:{2304 + 64*n}""")
    k.e("s_waitcnt lgkmcnt(0)")
    for n in range(9):
        d = 24 + 4*n
        k.e(f"v_mfma_f32_16x16x32_bf16 v[{64+4*n}:{67+4*n}], v[20:23], v[{d}:{d+3}], 0")
    k.e(f"""s_mul_i32 s45, s2, 4608
            s_mul_i32 s46, s20, 576
            s_add_u32 s45, s45, s46
            v_lshl_add_u32 v12, v3, 2, s45
            s_cmp_eq_u32 s2, 0
            s_cselect_b32 s47, 1.0, 0
            v_mov_b32 v14, 0x7fc00000
            s_nop 4""")
    for n in range(9):
        a = 64 + 4*n
        k.e(f"""v_add_f32 v{a}, v{a}, v{a+2}
                v_add_f32 v{a+1}, v{a+1}, v{a+3}""")
    Lh = k.newlab("noh")
    k.e(f"s_cbranch_scc0 {Lh}")
    for n in range(9):
        a = 64 + 4*n
        k.e(f"""v_add_f32 v{a}, v{a}, v{100+2*n}
                v_add_f32 v{a+1}, v{a+1}, v{101+2*n}""")
    k.lab(Lh)
    for n in range(9):
        a = 64 + 4*n
        k.e(f"""v_cmp_eq_u32 vcc, -1, v{a}
                v_cmp_eq_u32 s[66:67], -1, v{a+1}
                s_nop 1
                v_cndmask_b32 v{a}, v{a}, v14, vcc
                v_cndmask_b32 v{a+1}, v{a+1}, v14, s[66:67]""")
    k.e("""v_cmp_gt_u32 vcc, 16, v1
           s_and_saveexec_b64 s[50:51], vcc""")
    for n in range(9):
        a = 64 + 4*n
        k.e(f"""buffer_store_dword v{a}, v12, s[60:63], 0 offen offset:{64*n} sc1
                buffer_store_dword v{a+1}, v12, s[60:63], 0 offen offset:{2304 + 64*n} sc1""")

def phase_g(k):
    k.e("""s_sub_u32 s48, s2, 216
           v_lshrrev_b32 v5, 4, v0
           v_and_b32 v6, 15, v0
           v_mul_u32_u24 v8, 4608, v5
           v_lshl_add_u32 v8, v6, 4, v8
           s_lshl_b32 s40, s48, 8""")
    loads = []
    for i in range(9):
        loads.append(f"s_add_u32 s41, s40, {16*4608*i}\nbuffer_load_dwordx4 v[{20+4*i}:{23+4*i}], v8, s[60:63], s41 offen sc1")
    poll_gather(k, loads, list(range(20, 56)), 46)
    for i in range(1, 9):
        for e in range(4):
            k.e(f"v_add_f32 v{20+e}, v{20+e}, v{20+4*i+e}")
    k.e(f"""v_lshlrev_b32 v9, 4, v0
            v_lshlrev_b32 v10, 2, v0
            ds_write_b128 v9, v[20:23] offset:{T_A}
            s_waitcnt lgkmcnt(0)
            s_barrier
            s_cmp_lg_u32 s20, 0
            s_cbranch_scc1 {k.name}_end""")
    for i in range(16):
        k.e(f"ds_read_b32 v{20+i}, v10 offset:{T_A + 256*i}")
    k.e("s_waitcnt lgkmcnt(0)")
    for i in range(1, 16):
        k.e(f"v_add_f32 v20, v20, v{20+i}")
    k.e("""v_cvt_pk_bf16_f32 v20, v20, v20
           v_lshlrev_b32 v10, 1, v0
           s_lshl_b32 s41, s48, 7
           buffer_store_short v20, v10, s[92:95], s41 offen""")

def k2_main():
    k = Kern("k2_main_kernel", 256, 512, LDS_TOTAL, 256)
    guard(k, 256)
    k.ldptr(4, "ckv"); k.ldptr(10, "ws")
    wave_id(k, 20, 1)
    k.e(f"""v_and_b32 v1, 63, v0
            v_mov_b32 v2, 0
            v_lshlrev_b32 v3, 2, v1
            v_cmp_gt_u32 vcc, 8, v0
            s_and_saveexec_b64 s[48:49], vcc
            ds_write_b32 v3, v2 offset:{SYNC}
            s_mov_b64 exec, s[48:49]
            s_waitcnt lgkmcnt(0)
            s_barrier""")
    LB = k.newlab("teamB")
    k.e(f"s_cmp_ge_u32 s20, 4\ns_cbranch_scc1 {LB}")
    team_a(k)
    k.lab(LB)
    team_b(k)
    k.lab(f"{k.name}_end")
    return k

def main():
    ks = [k1_qabs(), k2_main()]
    out = [HEADER.rstrip("\n")]
    for k in ks:
        out.append(f"; @launch kernel={k.name} grid=({k.grid},1,1) block=({k.block},1,1) lds={k.lds}")
    out.append('.amdgcn_target "amdgcn-amd-amdhsa--gfx950"\n.text')
    for k in ks:
        out.append(k.text())
    open(sys.argv[1] if len(sys.argv) > 1 else "p.s", "w").write("\n".join(out))
main()
```

```python
import sys, struct

HEADER = open("sequential_preLN__compressed_kv_cla__swiglu_ffn__decode.s.ref").read().split("; Override launch")[0]

WS_QA   = 0x000000
WS_ML   = 0x010000
WS_INIT = 0x020000
WS_CTX  = 0x020000
WS_OUTP = 0x060000
WS_FLAG = 0x070000
WS_DNP  = 0x080000
WS_OP   = 0x200000
INIT_BYTES = 0x110000
SENT = 0xFFFFFFFF
SPIN_MAX = 40000
import os
STAMP = bool(os.environ.get('STAMP'))

KA = dict(x=0, ckv=8, wq=16, wuk=24, wuv=32, wo=40, bx=48, wg=56, wu=64, wd=72, out=80, dbg=88, ws=96)
SZ = dict(x=2304, ckv=33554432, wq=4718592, wuk=4194304, wuv=4194304, wo=4718592, wg=5308416, wu=5308416,
          wd=5308416, out=2304)
LOG2E = 1.4426950408889634
def f2u(f): return struct.unpack("<I", struct.pack("<f", f))[0]

class Kern:
    def __init__(self, name, grid, block, lds, vgpr, sgpr=100):
        self.name, self.grid, self.block, self.lds, self.vgpr, self.sgpr = name, grid, block, lds, vgpr, sgpr
        self.lines = []
        self.nlab = 0
    def e(self, s):
        for l in s.strip("\n").split("\n"):
            if l.strip(): self.lines.append("    " + l.strip())
    def lab(self, s): self.lines.append(s + ":")
    def newlab(self, p):
        self.nlab += 1
        return f"{self.name}_{p}{self.nlab}"
    def ldptr(self, d, key): self.e(f"s_load_dwordx2 s[{d}:{d+1}], s[0:1], {KA[key]}")
    def srd(self, d, p, n, off=0):
        if off:
            self.e(f"s_add_u32 s{d}, s{p}, {off}\ns_addc_u32 s{d+1}, s{p+1}, 0")
        else:
            self.e(f"s_mov_b32 s{d}, s{p}\ns_mov_b32 s{d+1}, s{p+1}")
        self.e(f"s_mov_b32 s{d+2}, {n}\ns_mov_b32 s{d+3}, 0x00020000")
    def allreduce(self, op, x, t):
        for ctl in ("quad_perm:[1,0,3,2]", "quad_perm:[2,3,0,1]", "row_half_mirror", "row_mirror"):
            self.e(f"s_nop 1\nv_{op}_f32_dpp v{x}, v{x}, v{x} {ctl} row_mask:0xf bank_mask:0xf")
        for sw in ("v_permlane16_swap_b32", "v_permlane32_swap_b32"):
            self.e(f"v_mov_b32 v{t}, v{x}\ns_nop 1\n{sw} v{x}, v{t}\ns_nop 0\nv_{op}_f32 v{x}, v{x}, v{t}")
    def hilo(self, x, hi, lo, t):
        self.e(f"""v_cvt_pk_bf16_f32 v{hi}, v{x}, v{x}
                   v_lshlrev_b32 v{t}, 16, v{hi}
                   v_sub_f32 v{t}, v{x}, v{t}
                   v_cvt_pk_bf16_f32 v{lo}, v{t}, v{t}""")
    def sanitize(self, regs, tmp):
        self.e(f"v_mov_b32 v{tmp}, 0x7fc00000")
        for r in regs:
            self.e(f"v_cmp_eq_u32 vcc, -1, v{r}\ns_nop 1\nv_cndmask_b32 v{r}, v{r}, v{tmp}, vcc")
    def stamp(self, idx):
        if not STAMP: return
        self.e(f"s_memrealtime s[96:97]\ns_waitcnt lgkmcnt(0)\nv_writelane_b32 v255, s96, {idx}")
    def stamp_out(self):
        if not STAMP: return
        self.e(f"""s_mov_b64 exec, -1
                   s_waitcnt vmcnt(0)
                   s_memrealtime s[96:97]
                   s_waitcnt lgkmcnt(0)
                   v_writelane_b32 v255, s96, 15
                   s_add_u32 s96, s10, 0x1000000
                   s_addc_u32 s97, s11, 0
                   s_mov_b32 s98, 0x1000000
                   s_mov_b32 s99, 0x00020000
                   v_mbcnt_lo_u32_b32 v254, -1, 0
                   v_mbcnt_hi_u32_b32 v254, -1, v254
                   s_lshl_b32 s100, s2, 3
                   s_add_u32 s100, s100, s101
                   s_lshl_b32 s100, s100, 8
                   v_lshl_add_u32 v254, v254, 2, s100
                   buffer_store_dword v255, v254, s[96:99], 0 offen""")
    def text(self):
        acc = (self.vgpr + 3) // 4 * 4
        return "\n".join([
            f".globl {self.name}", ".p2align 8", f".type {self.name},@function", f"{self.name}:"] + self.lines + [
            "    s_endpgm",
            '.section .rodata,"a"', ".p2align 6", f".amdhsa_kernel {self.name}",
            f"  .amdhsa_next_free_vgpr {self.vgpr}", f"  .amdhsa_next_free_sgpr {self.sgpr}",
            f"  .amdhsa_accum_offset {acc}", "  .amdhsa_group_segment_fixed_size 0", "  .amdhsa_kernarg_size 104",
            "  .amdhsa_user_sgpr_count 2", "  .amdhsa_user_sgpr_kernarg_segment_ptr 1",
            "  .amdhsa_system_sgpr_workgroup_id_x 1", ".end_amdhsa_kernel", ".text", ""])

def guard(k, n):
    k.e(f"s_cmp_ge_u32 s2, {n}\ns_cbranch_scc1 {k.name}_end")

def wave_id(k, sdst, vt):
    k.e(f"v_lshrrev_b32 v{vt}, 6, v0\ns_nop 0\nv_readfirstlane_b32 s{sdst}, v{vt}")

def k1_qabs():
    A_LDS, Q_LDS, W_LDS = 0, 4608, 6144
    k = Kern("k1_qabs_kernel", 256, 256, 6144 + 147456, 172)
    guard(k, 256)
    k.ldptr(4, "x"); k.ldptr(6, "wq"); k.ldptr(8, "wuk"); k.ldptr(10, "ws")
    wave_id(k, 20, 1)
    k.e("s_and_b32 s21, s2, 31\ns_lshr_b32 s22, s2, 5")
    k.e("s_waitcnt lgkmcnt(0)")
    k.srd(24, 4, SZ["x"]); k.srd(28, 6, SZ["wq"]); k.srd(32, 8, SZ["wuk"]); k.srd(36, 10, 65536, WS_QA)
    k.srd(52, 10, INIT_BYTES, WS_INIT)
    k.e("v_and_b32 v1, 63, v0")
    k.e("s_and_b32 s23, s20, 1\ns_mul_i32 s23, s23, 1152\nv_lshlrev_b32 v2, 1, v1")
    for i in range(9):
        k.e(f"buffer_load_ushort v{10+i}, v2, s[24:27], s23 offen offset:{128*i}")
    k.e("""v_and_b32 v3, 15, v1
           v_lshrrev_b32 v4, 4, v1
           s_lshl_b32 s40, s22, 6
           s_lshl_b32 s41, s20, 4
           s_add_u32 s40, s40, s41
           v_add_u32 v5, s40, v3
           v_lshlrev_b32 v5, 13, v5
           v_lshl_add_u32 v5, v4, 4, v5
           s_lshl_b32 s41, s21, 8""")
    for t in range(4):
        k.e(f"buffer_load_dwordx4 v[{148+4*t}:{151+4*t}], v5, s[32:35], s41 offen offset:{64*t} nt")
    k.e("""v_lshlrev_b32 v6, 1, v4
           v_xor_b32 v6, v6, v3
           v_lshlrev_b32 v6, 4, v6
           v_lshl_add_u32 v6, v4, 13, v6
           v_xor_b32 v7, 0x80, v6
           s_mul_i32 s42, s20, 36
           s_lshl_b32 s43, s42, 10
           s_add_u32 s43, s43, 6144
           s_lshl_b32 s44, s42, 15
           s_add_u32 s44, s44, s41""")
    for mi in range(36):
        k.e(f"""s_mov_b32 m0, s43
                s_add_u32 s43, s43, 1024
                buffer_load_dwordx4 v{7 if mi & 2 else 6}, s[28:31], s44 offen nt lds
                s_add_u32 s44, s44, 32768""")
    k.e(f"""v_mov_b32 v28, -1
            v_mov_b32 v29, -1
            v_mov_b32 v30, -1
            v_mov_b32 v31, -1
            v_lshlrev_b32 v9, 4, v0
            s_lshl_b32 s45, s2, 12
            s_add_u32 s46, s45, 0x100000
            s_lshr_b32 s46, s2, 4
            s_lshl_b32 s46, s46, 12
            s_add_u32 s46, s46, 0x100000
            buffer_store_dwordx4 v[28:31], v9, s[52:55], s45 offen
            buffer_store_dwordx4 v[28:31], v9, s[52:55], s46 offen""")
    k.e("s_waitcnt vmcnt(42)")
    for i in range(9):
        k.e(f"v_lshlrev_b32 v{10+i}, 16, v{10+i}")
    k.e("v_add_f32 v20, v10, v11")
    for i in range(2, 9):
        k.e(f"v_add_f32 v20, v20, v{10+i}")
    k.allreduce("add", 20, 21)
    k.e(f"v_mul_f32 v20, {f2u(1.0/576)}, v20")
    for i in range(9):
        k.e(f"v_sub_f32 v{10+i}, v{10+i}, v20")
    k.e("v_mul_f32 v22, v10, v10")
    for i in range(1, 9):
        k.e(f"v_fmac_f32 v22, v{10+i}, v{10+i}")
    k.allreduce("add", 22, 21)
    k.e(f"""v_mov_b32 v23, {f2u(1e-5)}
            v_fmac_f32 v23, {f2u(1.0/576)}, v22
            v_rsq_f32 v23, v23
            v_add_u32 v24, s23, v2""")
    for i in range(9):
        k.e(f"v_mul_f32 v{10+i}, v{10+i}, v23")
        k.hilo(10+i, 25, 26, 27)
        k.e(f"""ds_write_b16 v24, v25 offset:{A_LDS + 128*i}
                ds_write_b16 v24, v26 offset:{A_LDS + 2304 + 128*i}""")
    k.e("s_waitcnt vmcnt(0) lgkmcnt(0)\ns_barrier")
    k.e(f"""v_and_b32 v8, 3, v1
            v_mul_u32_u24 v8, 1152, v8
            v_lshl_add_u32 v8, v4, 4, v8""")
    for t in range(18):
        k.e(f"ds_read_b128 v[{28+4*t}:{31+4*t}], v8 offset:{A_LDS + 64*t}")
    k.e("""s_mov_b32 s47, 6144
           v_lshrrev_b32 v9, 2, v3
           v_lshl_add_u32 v10, v4, 3, v9
           v_lshlrev_b32 v10, 8, v10
           v_and_b32 v11, 1, v4
           v_lshlrev_b32 v11, 3, v11
           v_lshl_or_b32 v11, v9, 1, v11
           v_bfe_u32 v12, v3, 1, 1
           s_lshl_b32 s46, s20, 2
           v_add_u32 v12, s46, v12
           v_and_b32 v13, 1, v3
           v_lshlrev_b32 v13, 3, v13
           v_add3_u32 v10, v10, v13, s47""")
    for nt in range(2):
        k.e(f"""v_add_u32 v14, {2*nt}, v12
                v_xor_b32 v14, v14, v11
                v_lshl_add_u32 v{15+3*nt}, v14, 4, v10""")
        k.e(f"""v_add_u32 v{16+3*nt}, 0x10000, v{15+3*nt}
                v_add_u32 v{17+3*nt}, 0x20000, v{15+3*nt}""")
    def trread(dst, nt, t):
        base = 15 + 3*nt + t // 8
        off = (t % 8) * 8192
        k.e(f"ds_read_b64_tr_b16 v[{dst}:{dst+1}], v{base} offset:{off}")
        k.e(f"ds_read_b64_tr_b16 v[{dst+2}:{dst+3}], v{base} offset:{off+1024}")
    seq = [(nt, t) for nt in range(2) for t in range(18)]
    CH = 6
    chunks = [seq[i:i+CH] for i in range(0, len(seq), CH)]
    bufs = [100, 124]
    for i, (nt, t) in enumerate(chunks[0]):
        trread(bufs[0] + 4*i, nt, t)
    for ci, ch in enumerate(chunks):
        if ci + 1 < len(chunks):
            for i, (nt, t) in enumerate(chunks[ci+1]):
                trread(bufs[(ci+1) % 2] + 4*i, nt, t)
            k.e(f"s_waitcnt lgkmcnt({2*CH})")
        else:
            k.e("s_waitcnt lgkmcnt(0)")
        for i, (nt, t) in enumerate(ch):
            acc = 168 if nt else 164
            b = bufs[ci % 2] + 4*i
            cin = "0" if t == 0 else f"v[{acc}:{acc+3}]"
            k.e(f"v_mfma_f32_16x16x32_bf16 v[{acc}:{acc+3}], v[{28+4*t}:{31+4*t}], v[{b}:{b+3}], {cin}")
    k.e("s_nop 7\ns_nop 1")
    k.e(f"""s_lshl_b32 s46, s20, 6
            v_lshl_add_u32 v24, v3, 1, s46""")
    for nt in range(2):
        acc = 168 if nt else 164
        for b in range(2):
            k.e(f"v_add_f32 v10, v{acc+b}, v{acc+b+2}")
            k.hilo(10, 25, 26, 27)
            k.e(f"""ds_write_b16 v24, v25 offset:{Q_LDS + 256*b + 32*nt}
                    ds_write_b16 v24, v26 offset:{Q_LDS + 512 + 256*b + 32*nt}""")
    k.e("s_waitcnt lgkmcnt(0)\ns_barrier")
    k.e(f"""v_and_b32 v8, 3, v1
            v_lshlrev_b32 v8, 8, v8
            v_lshl_add_u32 v8, v4, 4, v8""")
    for t in range(4):
        k.e(f"ds_read_b128 v[{28+4*t}:{31+4*t}], v8 offset:{Q_LDS + 64*t}")
    k.e("s_waitcnt lgkmcnt(0)")
    for t in range(4):
        cin = "0" if t == 0 else "v[164:167]"
        k.e(f"v_mfma_f32_16x16x32_bf16 v[164:167], v[{28+4*t}:{31+4*t}], v[{148+4*t}:{151+4*t}], {cin}")
    k.e("s_nop 7\ns_nop 1")
    sc = f2u((128 ** -0.5) * LOG2E)
    k.e(f"""v_add_f32 v10, v164, v166
            v_add_f32 v11, v165, v167
            v_mul_f32 v10, {sc}, v10
            v_mul_f32 v11, {sc}, v11
            v_cvt_pk_bf16_f32 v10, v10, v11
            s_lshl_b32 s46, s22, 2
            s_add_u32 s46, s46, s20
            s_lshl_b32 s46, s46, 10
            s_lshl_b32 s47, s21, 4
            s_add_u32 s46, s46, s47
            v_lshrrev_b32 v12, 3, v3
            v_lshlrev_b32 v12, 9, v12
            v_and_b32 v13, 7, v3
            v_lshl_add_u32 v12, v13, 1, v12
            v_add_u32 v12, s46, v12
            s_mov_b32 s47, 32768
            v_cmp_gt_u32 vcc, 16, v1
            s_and_saveexec_b64 s[48:49], vcc
            buffer_store_short v10, v12, s[36:39], 0 offen
            buffer_store_short_d16_hi v10, v12, s[36:39], s47 offen""")
    k.lab(f"{k.name}_end")
    return k

RS = 1040
PX, MX, SX, SYNC, CT = 0, 8192, 8704, 9216, 9280
LDS_TOTAL = CT + 128 * RS
D_A, D_A2, D_R = 0, 1024, 2048
T_A = 2304
WUV_L, OST_L, BIG_L = 9728, 26112, 63488

def lds_sync(k, word, target, vz, vone, vt, st):
    L = k.newlab("spin")
    k.e(f"""s_mov_b64 exec, 1
            ds_add_u32 v{vz}, v{vone} offset:{SYNC + 4*word}
            s_mov_b64 exec, -1""")
    k.lab(L)
    k.e(f"""ds_read_b32 v{vt}, v{vz} offset:{SYNC + 4*word}
            s_waitcnt lgkmcnt(0)
            v_readfirstlane_b32 s{st}, v{vt}
            s_cmp_lt_u32 s{st}, {target}
            s_cbranch_scc1 {L}""")

def team_a(k):
    k.srd(24, 4, SZ["ckv"]); k.srd(28, 10, 65536, WS_QA); k.srd(32, 10, 8388608, WS_OP); k.srd(36, 10, 65536, WS_ML)
    k.srd(52, 10, 1024, WS_FLAG)
    k.e("""v_and_b32 v2, 31, v1
           v_lshrrev_b32 v3, 5, v1
           s_lshr_b32 s21, s2, 7
           s_lshl_b32 s22, s21, 15
           v_lshlrev_b32 v5, 4, v1""")
    QF = 96
    for t in range(32):
        if t % 4 == 0 and t: k.e("s_add_u32 s22, s22, 4096")
        k.e(f"buffer_load_dwordx4 v[{QF+4*t}:{QF+3+4*t}], v5, s[28:31], s22 offen offset:{1024*(t%4)}")
    k.e(f"""s_lshl_b32 s40, s2, 7
            s_lshl_b32 s41, s20, 5
            s_add_u32 s40, s40, s41
            s_lshl_b32 s40, s40, 10
            s_mul_i32 s42, s41, {RS}
            s_add_u32 s42, s42, {CT}""")
    for r in range(32):
        k.e(f"""s_mov_b32 m0, s42
                s_add_u32 s42, s42, {RS}
                buffer_load_dwordx4 v5, s[24:27], s40 offen nt lds
                s_add_u32 s40, s40, 1024""")
    k.e(f"""v_and_b32 v6, 16, v2
            v_and_b32 v7, 3, v2
            v_lshl_add_u32 v6, v7, 2, v6
            v_bfe_u32 v7, v2, 2, 1
            v_lshl_add_u32 v6, v7, 1, v6
            v_bfe_u32 v7, v2, 3, 1
            v_add_u32 v6, v6, v7
            v_add_u32 v6, s41, v6
            v_mul_u32_u24 v6, {RS}, v6
            v_lshl_add_u32 v6, v3, 4, v6
            v_add_u32 v6, {CT}, v6
            v_mov_b32 v224, 0
            v_mov_b32 v225, 1""")
    k.stamp(1)
    k.e(f"""s_waitcnt vmcnt(0)
            s_mov_b64 exec, 1
            ds_add_u32 v224, v225 offset:{SYNC}
            s_mov_b64 exec, -1""")
    k.stamp(2)
    ACC = 16
    bufs = [32, 64]
    for i in range(8):
        k.e(f"ds_read_b128 v[{bufs[0]+4*i}:{bufs[0]+3+4*i}], v6 offset:{32*i}")
    for ci in range(4):
        if ci < 3:
            for i in range(8):
                b = bufs[(ci+1) % 2] + 4*i
                if b + 3 >= QF: raise Exception("reg overlap")
                k.e(f"ds_read_b128 v[{b}:{b+3}], v6 offset:{32*(8*(ci+1)+i)}")
            k.e("s_waitcnt lgkmcnt(8)")
        else:
            k.e("s_waitcnt lgkmcnt(0)")
        for i in range(8):
            t = 8*ci + i
            b = bufs[ci % 2] + 4*i
            cin = "0" if t == 0 else f"v[{ACC}:{ACC+15}]"
            k.e(f"v_mfma_f32_32x32x16_bf16 v[{ACC}:{ACC+15}], v[{b}:{b+3}], v[{QF+4*t}:{QF+3+4*t}], {cin}")
    k.e("s_nop 15")
    k.e(f"v_max3_f32 v8, v{ACC}, v{ACC+1}, v{ACC+2}")
    for i in range(3, 15, 2):
        k.e(f"v_max3_f32 v8, v8, v{ACC+i}, v{ACC+i+1}")
    k.e(f"""v_max_f32 v8, v8, v{ACC+15}
            v_mov_b32 v9, v8
            s_nop 1
            v_permlane32_swap_b32 v8, v9
            s_nop 0
            v_max_f32 v8, v8, v9
            s_lshl_b32 s43, s20, 2
            v_lshl_add_u32 v10, v2, 4, s43
            v_lshlrev_b32 v11, 4, v2
            ds_write_b32 v10, v8 offset:{MX}""")
    lds_sync(k, 1, 4, 224, 225, 226, 44)
    k.e(f"""ds_read_b128 v[12:15], v11 offset:{MX}
            s_waitcnt lgkmcnt(0)
            v_max3_f32 v8, v12, v13, v14
            v_max_f32 v8, v8, v15""")
    for i in range(16):
        k.e(f"v_sub_f32 v{ACC+i}, v{ACC+i}, v8")
    for i in range(16):
        k.e(f"v_exp_f32 v{ACC+i}, v{ACC+i}")
    k.e(f"s_nop 0\nv_add_f32 v9, v{ACC}, v{ACC+1}")
    for i in range(2, 16):
        k.e(f"v_add_f32 v9, v9, v{ACC+i}")
    for i in range(8):
        k.e(f"v_cvt_pk_bf16_f32 v{32+i}, v{ACC+2*i}, v{ACC+2*i+1}")
    k.e(f"""v_mov_b32 v12, v9
            s_lshl_b32 s44, s20, 11
            v_lshl_add_u32 v13, v1, 4, s44
            v_permlane32_swap_b32 v9, v12
            s_nop 0
            v_add_f32 v9, v9, v12
            ds_write_b128 v13, v[32:35] offset:{PX}
            ds_write_b128 v13, v[36:39] offset:{PX+1024}
            ds_write_b32 v10, v9 offset:{SX}""")
    lds_sync(k, 2, 4, 224, 225, 226, 44)
    k.stamp(3)
    PF = 32
    for s in range(8):
        k.e(f"ds_read_b128 v[{PF+4*s}:{PF+3+4*s}], v5 offset:{PX + 1024*s}")
    k.e(f"ds_read_b128 v[12:15], v11 offset:{SX}")
    k.e(f"""v_bfe_u32 v66, v1, 2, 2
            v_lshlrev_b32 v66, 2, v66
            v_lshl_add_u32 v66, v3, 1, v66
            v_mul_u32_u24 v66, {RS}, v66
            v_bfe_u32 v67, v1, 4, 1
            v_lshlrev_b32 v67, 5, v67
            v_and_b32 v7, 3, v1
            v_lshl_add_u32 v67, v7, 3, v67
            s_lshl_b32 s45, s20, 8
            s_add_u32 s45, s45, {CT}
            v_add3_u32 v64, v66, v67, s45
            v_add_u32 v65, {64*RS}, v64""")
    OACC = 96
    VB = [160, 192]
    steps = [(T, s) for s in range(8) for T in range(4)]
    def trread(dst, T, s):
        wq, u = s >> 1, s & 1
        base = 64 if wq < 2 else 65
        off = (32*(wq & 1) + 16*u) * RS + 64*T
        k.e(f"ds_read_b64_tr_b16 v[{dst}:{dst+1}], v{base} offset:{off}")
        k.e(f"ds_read_b64_tr_b16 v[{dst+2}:{dst+3}], v{base} offset:{off+RS}")
    CH = 4
    chunks = [steps[i:i+CH] for i in range(0, 32, CH)]
    for i, (T, s) in enumerate(chunks[0]):
        trread(VB[0] + 4*i, T, s)
    for ci, ch in enumerate(chunks):
        if ci + 1 < len(chunks):
            for i, (T, s) in enumerate(chunks[ci+1]):
                trread(VB[(ci+1) % 2] + 4*i, T, s)
            k.e(f"s_waitcnt lgkmcnt({2*CH})")
        else:
            k.e("s_waitcnt lgkmcnt(0)")
        for i, (T, s) in enumerate(ch):
            a = VB[ci % 2] + 4*i
            o = OACC + 16*T
            cin = "0" if s == 0 else f"v[{o}:{o+15}]"
            k.e(f"v_mfma_f32_32x32x16_bf16 v[{o}:{o+15}], v[{a}:{a+3}], v[{PF+4*s}:{PF+3+4*s}], {cin}")
    k.stamp(4)
    Lk = k.newlab("skipml")
    k.e(f"""v_add_f32 v12, v12, v13
            v_add_f32 v14, v14, v15
            v_add_f32 v9, v12, v14
            s_and_b32 s46, s2, 127
            s_lshl_b32 s47, s21, 12
            s_add_u32 s46, s46, s47
            s_lshl_b32 s46, s46, 3
            v_lshl_add_u32 v10, v2, 10, s46
            s_cmp_lg_u32 s20, 0
            s_cbranch_scc1 {Lk}
            v_cmp_gt_u32 vcc, 32, v1
            s_and_saveexec_b64 s[48:49], vcc
            buffer_store_dwordx2 v[8:9], v10, s[36:39], 0 offen sc1
            s_mov_b64 exec, s[48:49]""")
    k.lab(Lk)
    k.e(f"""s_lshl_b32 s46, s2, 15
            s_lshl_b32 s47, s20, 8
            s_add_u32 s46, s46, s47
            v_mul_u32_u24 v10, {RS}, v2
            v_lshl_add_u32 v10, v3, 3, v10
            v_add_u32 v10, s45, v10
            v_lshrrev_b32 v11, 4, v1
            v_and_b32 v12, 15, v1
            v_mul_u32_u24 v13, {RS}, v11
            v_lshl_add_u32 v13, v12, 4, v13
            v_add_u32 v13, s45, v13
            v_lshlrev_b32 v14, 10, v11
            v_lshl_add_u32 v14, v12, 4, v14""")
    for T in range(4):
        o = OACC + 16*T
        for a in range(4):
            d = 32 + 2*(4*T + a)
            k.e(f"""v_cvt_pk_bf16_f32 v{d}, v{o+4*a}, v{o+4*a+1}
                    v_cvt_pk_bf16_f32 v{d+1}, v{o+4*a+2}, v{o+4*a+3}
                    ds_write_b64 v10, v[{d}:{d+1}] offset:{64*T + 16*a}""")
    for n in range(8):
        k.e(f"ds_read_b128 v[{160+4*n}:{163+4*n}], v13 offset:{4*RS*n}")
    for n in range(8):
        k.e(f"""s_waitcnt lgkmcnt({7-n})
                buffer_store_dwordx4 v[{160+4*n}:{163+4*n}], v14, s[32:35], s46 offen sc1
                s_add_u32 s46, s46, 4096""")
    k.e("s_waitcnt vmcnt(0)")
    k.stamp(5)
    k.e(f"""s_waitcnt vmcnt(0)
            s_mov_b64 exec, 1
            ds_add_rtn_u32 v226, v224, v225 offset:{SYNC + 12}
            s_waitcnt lgkmcnt(0)
            v_readfirstlane_b32 s44, v226
            s_cmp_lg_u32 s44, 3
            s_cbranch_scc1 {k.name}_end
            s_lshl_b32 s45, s2, 2
            v_mov_b32 v227, s45
            buffer_store_dword v225, v227, s[52:55], 0 offen sc1
            s_branch {k.name}_end""")

def dma64_off(k, vA, lane, t1, t2, t3, rowstride):
    k.e(f"""v_lshrrev_b32 v{t1}, 2, v{lane}
            v_and_b32 v{t2}, 3, v{lane}
            v_bfe_u32 v{t3}, v{lane}, 5, 1
            v_lshlrev_b32 v{t3}, 1, v{t3}
            v_xor_b32 v{t2}, v{t2}, v{t3}
            v_mul_u32_u24 v{vA}, {rowstride}, v{t1}
            v_lshl_add_u32 v{vA}, v{t2}, 4, v{vA}""")

def tr64_base(k, dst, v3, v4, nt_sreg, t1, t2):
    k.e(f"""v_lshrrev_b32 v{t1}, 2, v{v3}
            v_lshl_add_u32 v{t1}, v{v4}, 3, v{t1}
            v_lshlrev_b32 v{t1}, 6, v{t1}
            v_bfe_u32 v{t2}, v{v3}, 1, 1
            v_add_u32 v{t2}, s{nt_sreg}, v{t2}
            v_and_b32 v{dst}, 1, v{v4}
            v_lshlrev_b32 v{dst}, 1, v{dst}
            v_xor_b32 v{t2}, v{t2}, v{dst}
            v_lshl_add_u32 v{t1}, v{t2}, 4, v{t1}
            v_and_b32 v{dst}, 1, v{v3}
            v_lshl_add_u32 v{dst}, v{dst}, 3, v{t1}""")

def poll_gather(k, loads, regs, scnt, mask_s=None):
    L = k.newlab("poll"); Ld = k.newlab("pdone")
    k.e(f"s_mov_b32 s{scnt}, 0")
    k.lab(L)
    for l in loads: k.e(l)
    k.e("s_waitcnt vmcnt(0)")
    k.e(f"v_max_u32 v7, v{regs[0]}, v{regs[1]}")
    for i in range(2, len(regs) - 1, 2):
        k.e(f"v_max3_u32 v7, v7, v{regs[i]}, v{regs[i+1]}")
    if len(regs) % 2: k.e(f"v_max_u32 v7, v7, v{regs[-1]}")
    k.e(f"""v_cmp_eq_u32 vcc, -1, v7
            s_add_u32 s{scnt}, s{scnt}, 1
            s_cmp_gt_u32 s{scnt}, {SPIN_MAX}
            s_cbranch_scc1 {Ld}
            s_cbranch_vccnz {L}""")
    k.lab(Ld)

def team_b(k):
    k.e("""v_subrev_u32 v0, 0x100, v0
           s_sub_u32 s20, s20, 4
           v_and_b32 v3, 15, v1
           v_lshrrev_b32 v4, 4, v1
           s_and_b32 s21, s2, 31
           s_lshr_b32 s22, s2, 5
           v_mov_b32 v68, 0""")
    k.ldptr(12, "wuv"); k.ldptr(14, "wo"); k.ldptr(16, "wg"); k.ldptr(18, "wu"); k.ldptr(64, "wd"); k.ldptr(66, "x"); k.ldptr(68, "out")
    k.e("s_waitcnt lgkmcnt(0)")
    k.srd(24, 12, SZ["wuv"]); k.srd(28, 10, 65536, WS_ML); k.srd(32, 10, 8388608, WS_OP); k.srd(36, 10, 262144, WS_CTX)
    k.srd(52, 10, 1024, WS_FLAG); k.srd(56, 10, 36864, WS_OUTP); k.srd(60, 10, 663552, WS_DNP)
    k.srd(72, 14, SZ["wo"]); k.srd(76, 16, SZ["wg"]); k.srd(80, 18, SZ["wu"]); k.srd(84, 64, SZ["wd"])
    k.srd(88, 66, SZ["x"]); k.srd(92, 68, SZ["out"])
    k.e(f"""v_lshlrev_b32 v13, 1, v4
            v_xor_b32 v13, v13, v3
            v_lshlrev_b32 v13, 4, v13
            v_lshl_add_u32 v13, v4, 13, v13
            v_xor_b32 v14, 0x80, v13
            s_lshl_b32 s44, s22, 6
            s_lshl_b32 s45, s20, 4
            s_add_u32 s44, s44, s45
            s_lshl_b32 s44, s44, 13
            s_lshl_b32 s45, s21, 8
            s_add_u32 s44, s44, s45""")
    L = k.newlab("land")
    k.lab(L)
    k.e(f"""s_sleep 4
            ds_read_b32 v70, v68 offset:{SYNC}
            s_waitcnt lgkmcnt(0)
            v_readfirstlane_b32 s46, v70
            s_cmp_lt_u32 s46, 4
            s_cbranch_scc1 {L}""")
    k.stamp(1)
    for mi in range(4):
        k.e(f"""buffer_load_dwordx4 v[{128+4*mi}:{131+4*mi}], v{14 if mi & 2 else 13}, s[24:27], s44 offen nt
                s_add_u32 s44, s44, 32768""")
    LE, LG, LW = k.newlab("ldE"), k.newlab("ldG"), k.newlab("ldW")
    k.e(f"s_cmp_ge_u32 s2, 144\ns_cbranch_scc1 {LE}")
    k.e(f"s_branch {LW}")
    k.lab(LE)
    k.e(f"""s_cmp_ge_u32 s2, 216
            s_cbranch_scc1 {LW}
            s_sub_u32 s47, s2, 144
            s_mul_i32 s48, s47, 7282
            s_lshr_b32 s48, s48, 16
            s_mul_i32 s49, s48, 9
            s_sub_u32 s49, s47, s49""")
    k.e("""v_lshrrev_b32 v10, 3, v1
           v_and_b32 v11, 7, v1
           v_and_b32 v12, 2, v10
           v_xor_b32 v11, v11, v12
           v_mul_u32_u24 v8, 1152, v10
           v_lshl_add_u32 v8, v11, 4, v8
           v_xor_b32 v11, 4, v11
           v_mul_u32_u24 v9, 1152, v10
           v_lshl_add_u32 v9, v11, 4, v9
           s_lshl_b32 s41, s48, 9
           s_lshl_b32 s42, s20, 7
           s_add_u32 s41, s41, s42
           s_mul_i32 s41, s41, 1152
           s_lshl_b32 s42, s49, 7
           s_add_u32 s41, s41, s42""")
    for mi in range(16):
        k.e(f"""buffer_load_dwordx4 v[{144+4*mi}:{147+4*mi}], v{9 if mi & 1 else 8}, s[72:75], s41 offen nt
                s_add_u32 s41, s41, {8*1152}""")
    k.lab(LW)
    k.stamp(2)
    k.e("s_barrier")
    k.stamp(3)
    k.e("s_waitcnt vmcnt(0)")
    k.stamp(4)
    k.e(f"""s_waitcnt vmcnt(0)
            v_lshlrev_b32 v9, 4, v1
            s_lshl_b32 s41, s20, 12
            s_add_u32 s41, s41, {WUV_L}
            v_add_u32 v10, s41, v9""")
    for mi in range(4):
        k.e(f"ds_write_b128 v10, v[{128+4*mi}:{131+4*mi}] offset:{1024*mi}")
    LE2, LW2 = k.newlab("stE"), k.newlab("stW")
    k.e(f"""s_cmp_ge_u32 s2, 144
            s_cbranch_scc1 {LE2}""")
    k.e(f"s_branch {LW2}")
    k.lab(LE2)
    k.e(f"""s_cmp_ge_u32 s2, 216
            s_cbranch_scc1 {LW2}
            s_lshl_b32 s41, s20, 14
            s_add_u32 s41, s41, {BIG_L}
            v_add_u32 v10, s41, v9""")
    for mi in range(16):
        k.e(f"ds_write_b128 v10, v[{144+4*mi}:{147+4*mi}] offset:{1024*mi}")
    k.lab(LW2)
    k.stamp(5)
    poll_gather(k, ["buffer_load_dwordx4 v[20:23], v9, s[52:55], 0 offen sc1"], [20, 21, 22, 23], 46)
    k.stamp(6)
    k.e("""v_lshrrev_b32 v5, 7, v0
           v_and_b32 v6, 127, v0
           v_lshlrev_b32 v5, 12, v5
           v_add_u32 v5, v5, v6
           s_lshl_b32 s40, s21, 7
           v_add_u32 v5, s40, v5
           v_lshlrev_b32 v5, 3, v5
           buffer_load_dwordx2 v[8:9], v5, s[28:31], 0 offen sc1""")
    k.e(f"""v_lshrrev_b32 v10, 3, v1
            v_and_b32 v11, 7, v1
            v_and_b32 v12, 2, v10
            v_xor_b32 v11, v11, v12
            v_lshlrev_b32 v11, 4, v11
            v_lshl_add_u32 v11, v10, 15, v11
            v_xor_b32 v12, 64, v11
            s_lshl_b32 s41, s21, 10
            s_lshl_b32 s42, s22, 7
            s_add_u32 s41, s41, s42
            s_lshl_b32 s42, s20, 21
            s_add_u32 s41, s41, s42
            s_lshl_b32 s43, s20, 13
            s_add_u32 s43, s43, {OST_L}""")
    for mi in range(8):
        k.e(f"""s_mov_b32 m0, s43
                s_add_u32 s43, s43, 1024
                buffer_load_dwordx4 v{12 if mi & 1 else 11}, s[32:35], s41 offen sc1 lds
                s_add_u32 s41, s41, 262144""")
    k.e("s_waitcnt vmcnt(8)\nv_mov_b32 v15, v8")
    k.allreduce("max", 15, 16)
    k.e(f"""s_lshl_b32 s46, s20, 2
            v_mov_b32 v17, s46
            ds_write_b32 v17, v15 offset:{D_R}
            s_waitcnt lgkmcnt(0)
            s_barrier
            s_and_b32 s47, s20, 2
            s_lshl_b32 s47, s47, 2
            v_mov_b32 v18, s47
            ds_read_b64 v[20:21], v18 offset:{D_R}
            s_waitcnt lgkmcnt(0)
            v_max_f32 v15, v20, v21
            v_sub_f32 v8, v8, v15
            v_exp_f32 v8, v8
            s_nop 0
            v_mul_f32 v19, v8, v9""")
    k.allreduce("add", 19, 16)
    k.e(f"""ds_write_b32 v17, v19 offset:{D_R+16}
            s_waitcnt lgkmcnt(0)
            s_barrier
            ds_read_b64 v[20:21], v18 offset:{D_R+16}
            s_waitcnt lgkmcnt(0)
            v_add_f32 v19, v20, v21
            v_rcp_f32 v19, v19
            s_nop 0
            v_mul_f32 v8, v8, v19""")
    k.hilo(8, 22, 23, 24)
    k.e(f"""v_lshrrev_b32 v25, 7, v0
            v_lshlrev_b32 v25, 9, v25
            v_lshl_add_u32 v25, v6, 1, v25
            ds_write_b16 v25, v22 offset:{D_A}
            ds_write_b16 v25, v23 offset:{D_A+256}
            s_waitcnt vmcnt(0) lgkmcnt(0)
            s_barrier""")
    k.stamp(7)
    k.e(f"""v_and_b32 v26, 1, v1
            v_lshlrev_b32 v26, 8, v26
            v_lshl_add_u32 v26, v4, 4, v26
            s_lshr_b32 s46, s20, 1
            s_lshl_b32 s47, s46, 9
            v_add_u32 v26, s47, v26""")
    for t in range(4):
        k.e(f"ds_read_b128 v[{28+4*t}:{31+4*t}], v26 offset:{D_A + 64*t}")
    k.e(f"""v_lshrrev_b32 v9, 2, v3
            v_lshl_add_u32 v10, v4, 3, v9
            v_lshlrev_b32 v10, 7, v10
            v_and_b32 v11, 2, v9
            v_and_b32 v12, 1, v4
            v_lshl_or_b32 v11, v12, 2, v11
            v_bfe_u32 v12, v3, 1, 1
            s_and_b32 s47, s20, 1
            s_lshl_b32 s47, s47, 2
            v_add_u32 v12, s47, v12
            v_and_b32 v13, 1, v3
            v_lshl_add_u32 v10, v13, 3, v10
            s_lshl_b32 s47, s46, 14
            s_add_u32 s47, s47, {OST_L}
            v_add_u32 v10, s47, v10""")
    for nt in range(2):
        k.e(f"""v_add_u32 v14, {2*nt}, v12
                v_xor_b32 v14, v14, v11
                v_lshl_add_u32 v{15+nt}, v14, 4, v10""")
    for nt in range(2):
        for t in range(4):
            d = 44 + 16*nt + 4*t
            k.e(f"""ds_read_b64_tr_b16 v[{d}:{d+1}], v{15+nt} offset:{4096*t}
                    ds_read_b64_tr_b16 v[{d+2}:{d+3}], v{15+nt} offset:{4096*t + 512}""")
    k.e("s_waitcnt lgkmcnt(0)")
    for nt in range(2):
        for t in range(4):
            d = 44 + 16*nt + 4*t
            acc = 20 if nt == 0 else 76
            cin = "0" if t == 0 else f"v[{acc}:{acc+3}]"
            k.e(f"v_mfma_f32_16x16x32_bf16 v[{acc}:{acc+3}], v[{28+4*t}:{31+4*t}], v[{d}:{d+3}], {cin}")
    k.e(f"""s_and_b32 s47, s20, 1
            s_lshl_b32 s47, s47, 6
            s_lshl_b32 s50, s46, 7
            s_add_u32 s47, s47, s50
            v_lshl_add_u32 v27, v3, 1, s47
            s_nop 7""")
    for nt in range(2):
        acc = 20 if nt == 0 else 76
        k.e(f"v_add_f32 v8, v{acc}, v{acc+1}")
        k.hilo(8, 9, 24, 25)
        k.e(f"""ds_write_b16 v27, v9 offset:{D_A2 + 32*nt}
                ds_write_b16 v27, v24 offset:{D_A2 + 256 + 32*nt}""")
    k.e("s_waitcnt lgkmcnt(0)\ns_barrier")
    k.e(f"""v_and_b32 v8, 3, v1
            v_lshlrev_b32 v8, 7, v8
            v_lshl_add_u32 v8, v4, 4, v8
            ds_read_b128 v[28:31], v8 offset:{D_A2}
            ds_read_b128 v[32:35], v8 offset:{D_A2+64}""")
    k.e(f"""v_lshrrev_b32 v9, 2, v3
            v_lshl_add_u32 v10, v4, 3, v9
            v_lshlrev_b32 v10, 8, v10
            v_and_b32 v11, 1, v4
            v_lshlrev_b32 v11, 3, v11
            v_lshl_or_b32 v11, v9, 1, v11
            v_bfe_u32 v12, v3, 1, 1
            s_lshl_b32 s47, s20, 2
            v_add_u32 v12, s47, v12
            v_and_b32 v13, 1, v3
            v_lshl_add_u32 v10, v13, 3, v10""")
    for nt in range(2):
        k.e(f"""v_add_u32 v14, {2*nt}, v12
                v_xor_b32 v14, v14, v11
                v_lshl_add_u32 v{15+nt}, v14, 4, v10""")
    for nt in range(2):
        for t in range(2):
            d = 44 + 8*nt + 4*t
            k.e(f"""ds_read_b64_tr_b16 v[{d}:{d+1}], v{15+nt} offset:{WUV_L + 8192*t}
                    ds_read_b64_tr_b16 v[{d+2}:{d+3}], v{15+nt} offset:{WUV_L + 8192*t + 1024}""")
    k.e("s_waitcnt lgkmcnt(0)")
    for nt in range(2):
        acc = 20 if nt == 0 else 76
        for t in range(2):
            d = 44 + 8*nt + 4*t
            cin = "0" if t == 0 else f"v[{acc}:{acc+3}]"
            k.e(f"v_mfma_f32_16x16x32_bf16 v[{acc}:{acc+3}], v[{28+4*t}:{31+4*t}], v[{d}:{d+3}], {cin}")
    k.e(f"""s_lshl_b32 s47, s22, 15
            s_lshl_b32 s50, s21, 9
            s_add_u32 s47, s47, s50
            s_lshl_b32 s50, s20, 7
            s_add_u32 s47, s47, s50
            v_lshl_add_u32 v27, v3, 2, s47
            s_nop 7
            v_add_f32 v8, v20, v22
            v_add_f32 v9, v21, v23
            v_add_f32 v10, v76, v78
            v_add_f32 v11, v77, v79""")
    k.sanitize([8, 9, 10, 11], 12)
    k.e(f"""s_mov_b32 s47, 16384
            v_cmp_gt_u32 vcc, 16, v1
            s_and_saveexec_b64 s[50:51], vcc
            buffer_store_dword v8, v27, s[36:39], 0 offen sc1
            buffer_store_dword v9, v27, s[36:39], s47 offen sc1
            buffer_store_dword v10, v27, s[36:39], 0 offen offset:64 sc1
            buffer_store_dword v11, v27, s[36:39], s47 offen offset:64 sc1
            s_mov_b64 exec, s[50:51]""")
    k.stamp(8)
    LPE, LPG = k.newlab("phE"), k.newlab("phG")
    k.e(f"s_cmp_ge_u32 s2, 144\ns_cbranch_scc1 {LPE}")
    phase_f(k)
    k.e(f"s_branch {k.name}_end")
    k.lab(LPE)
    k.e(f"s_cmp_ge_u32 s2, 216\ns_cbranch_scc1 {LPG}")
    phase_e(k)
    k.e(f"s_branch {k.name}_end")
    k.lab(LPG)
    k.e(f"s_cmp_ge_u32 s2, 234\ns_cbranch_scc1 {k.name}_end")
    phase_g(k)

def phase_e(k):
    A_LDS = T_A
    k.e("""v_lshrrev_b32 v5, 7, v0
           v_and_b32 v6, 127, v0
           v_lshlrev_b32 v8, 14, v5
           v_lshl_add_u32 v8, v6, 4, v8
           s_lshl_b32 s40, s48, 11""")
    loads = []
    for j in range(8):
        loads.append(f"s_add_u32 s41, s40, {32768*j}\nbuffer_load_dwordx4 v[{20+4*j}:{23+4*j}], v8, s[36:39], s41 offen sc1")
    poll_gather(k, loads, list(range(20, 52)), 46)
    k.stamp(9)
    for j in range(1, 8):
        for e in range(4):
            k.e(f"v_add_f32 v{20+e}, v{20+e}, v{20+4*j+e}")
    k.e("""v_cvt_pk_bf16_f32 v24, v20, v21
           v_cvt_pk_bf16_f32 v25, v22, v23
           v_lshlrev_b32 v26, 16, v24
           v_and_b32 v27, 0xffff0000, v24
           v_lshlrev_b32 v28, 16, v25
           v_and_b32 v29, 0xffff0000, v25
           v_sub_f32 v20, v20, v26
           v_sub_f32 v21, v21, v27
           v_sub_f32 v22, v22, v28
           v_sub_f32 v23, v23, v29
           v_cvt_pk_bf16_f32 v26, v20, v21
           v_cvt_pk_bf16_f32 v27, v22, v23
           v_lshlrev_b32 v12, 10, v5
           v_lshl_add_u32 v12, v6, 3, v12""")
    k.e(f"""ds_write_b64 v12, v[24:25] offset:{A_LDS}
            ds_write_b64 v12, v[26:27] offset:{A_LDS+2048}
            s_waitcnt lgkmcnt(0)
            s_barrier""")
    k.e("""v_and_b32 v8, 3, v1
           v_lshlrev_b32 v8, 10, v8
           v_lshl_add_u32 v8, v4, 4, v8""")
    for t in range(16):
        k.e(f"ds_read_b128 v[{20+4*t}:{23+4*t}], v8 offset:{A_LDS + 64*t}")
    k.e(f"""v_lshrrev_b32 v9, 2, v3
            v_lshl_add_u32 v10, v4, 3, v9
            v_lshlrev_b32 v10, 7, v10
            v_and_b32 v11, 2, v9
            v_and_b32 v12, 1, v4
            v_lshl_or_b32 v11, v12, 2, v11
            v_bfe_u32 v12, v3, 1, 1
            s_lshl_b32 s47, s20, 1
            v_add_u32 v12, s47, v12
            v_and_b32 v13, 1, v3
            v_lshl_add_u32 v10, v13, 3, v10
            v_xor_b32 v12, v12, v11
            v_lshl_add_u32 v15, v12, 4, v10
            v_add_u32 v15, {BIG_L}, v15""")
    for c in range(2):
        for i in range(8):
            t = 8*c + i
            d = 88 + 4*i
            k.e(f"""ds_read_b64_tr_b16 v[{d}:{d+1}], v15 offset:{4096*t}
                    ds_read_b64_tr_b16 v[{d+2}:{d+3}], v15 offset:{4096*t + 512}""")
        k.e("s_waitcnt lgkmcnt(0)")
        for i in range(8):
            t = 8*c + i
            d = 88 + 4*i
            cin = "0" if t == 0 else "v[120:123]"
            k.e(f"v_mfma_f32_16x16x32_bf16 v[120:123], v[{20+4*t}:{23+4*t}], v[{d}:{d+3}], {cin}")
        k.e("s_nop 3")
    k.e(f"""s_mul_i32 s45, s48, 4608
            s_lshl_b32 s46, s49, 8
            s_add_u32 s45, s45, s46
            s_lshl_b32 s46, s20, 6
            s_add_u32 s45, s45, s46
            v_lshl_add_u32 v12, v3, 2, s45
            s_nop 7
            v_add_f32 v8, v120, v122
            v_add_f32 v9, v121, v123""")
    k.sanitize([8, 9], 10)
    k.e(f"""v_cmp_gt_u32 vcc, 16, v1
            s_and_saveexec_b64 s[50:51], vcc
            buffer_store_dword v8, v12, s[56:59], 0 offen sc1
            buffer_store_dword v9, v12, s[56:59], 0 offen offset:2304 sc1""")

def phase_f(k):
    A_LDS, R_LDS, GU_LDS, A2_LDS = T_A, T_A + 4608, T_A + 4672, T_A + 5184
    D_LDS = OST_L
    k.e("s_barrier")
    dma64_off(k, 8, 1, 10, 11, 9, 9216)
    k.e(f"""s_mul_i32 s41, s20, 9*16*9216
            s_lshl_b32 s42, s2, 6
            s_add_u32 s41, s41, s42
            s_mul_i32 s43, s20, 9216
            s_add_u32 s43, s43, {BIG_L}
            s_add_u32 s44, s43, 36864""")
    for mi in range(9):
        k.e(f"""s_mov_b32 m0, s43
                s_add_u32 s43, s43, 1024
                buffer_load_dwordx4 v8, s[76:79], s41 offen nt lds
                s_mov_b32 m0, s44
                s_add_u32 s44, s44, 1024
                buffer_load_dwordx4 v8, s[80:83], s41 offen nt lds
                s_add_u32 s41, s41, {16*9216}""")
    k.e(f"""v_lshlrev_b32 v9, 4, v1
            s_mul_i32 s41, s2, 36864
            s_mul_i32 s42, s20, 9216
            s_add_u32 s41, s41, s42
            s_add_u32 s43, s42, {D_LDS}""")
    for mi in range(9):
        k.e(f"""s_mov_b32 m0, s43
                s_add_u32 s43, s43, 1024
                buffer_load_dwordx4 v9, s[84:87], s41 offen nt lds
                s_add_u32 s41, s41, 1024""")
    k.stamp(10)
    k.e("""v_lshlrev_b32 v5, 4, v0
           v_mov_b32 v6, 0x7fffffff
           v_cmp_gt_u32 vcc, 144, v0
           s_nop 1
           v_cndmask_b32 v5, v6, v5, vcc
           v_lshrrev_b32 v8, 1, v5
           v_cndmask_b32 v8, v6, v8, vcc
           s_mov_b64 s[64:65], vcc""")
    k.e("""buffer_load_dwordx2 v[84:85], v8, s[88:91], 0 offen
           buffer_load_dwordx2 v[86:87], v8, s[88:91], 0 offen offset:1152""")
    loads = []
    for ks in range(8):
        for b in range(2):
            r = 20 + 8*ks + 4*b
            loads.append(f"s_mov_b32 s40, {4608*ks}\nbuffer_load_dwordx4 v[{r}:{r+3}], v5, s[56:59], s40 offen offset:{2304*b} sc1")
    poll_gather(k, loads, list(range(20, 84)), 46)
    k.stamp(9)
    for ks in range(1, 8):
        for e in range(8):
            k.e(f"v_add_f32 v{20+e}, v{20+e}, v{20+8*ks+e}")
    for b in range(2):
        k.e(f"""v_lshlrev_b32 v12, 16, v{84+2*b}
                v_and_b32 v13, 0xffff0000, v{84+2*b}
                v_lshlrev_b32 v14, 16, v{85+2*b}
                v_and_b32 v15, 0xffff0000, v{85+2*b}
                v_add_f32 v{20+4*b}, v{20+4*b}, v12
                v_add_f32 v{21+4*b}, v{21+4*b}, v13
                v_add_f32 v{22+4*b}, v{22+4*b}, v14
                v_add_f32 v{23+4*b}, v{23+4*b}, v15""")
    k.e(f"""v_add_u32 v16, {BIG_L + 73728}, v5
            s_mov_b64 s[66:67], exec
            s_mov_b64 exec, s[64:65]
            ds_write_b128 v16, v[20:23]
            ds_write_b128 v16, v[24:27] offset:2304
            s_mov_b64 exec, s[66:67]""")
    k.e("""v_add_f32 v28, v20, v21
           v_add_f32 v29, v22, v23
           v_add_f32 v28, v28, v29
           v_add_f32 v29, v24, v25
           v_add_f32 v30, v26, v27
           v_add_f32 v29, v29, v30""")
    k.allreduce("add", 28, 31)
    k.allreduce("add", 29, 31)
    k.e(f"""s_lshl_b32 s46, s20, 3
            v_mov_b32 v32, s46
            v_mov_b32 v33, 0
            ds_write_b64 v32, v[28:29] offset:{R_LDS}
            s_waitcnt lgkmcnt(0)
            s_barrier
            ds_read_b128 v[36:39], v33 offset:{R_LDS}
            ds_read_b64 v[40:41], v33 offset:{R_LDS+16}
            s_waitcnt lgkmcnt(0)
            v_add_f32 v28, v36, v38
            v_add_f32 v28, v28, v40
            v_add_f32 v29, v37, v39
            v_add_f32 v29, v29, v41
            v_mul_f32 v28, {f2u(1.0/576)}, v28
            v_mul_f32 v29, {f2u(1.0/576)}, v29""")
    for b in range(2):
        for e in range(4):
            k.e(f"v_sub_f32 v{20+4*b+e}, v{20+4*b+e}, v{28+b}")
    for b in range(2):
        k.e(f"""v_mul_f32 v{30+b}, v{20+4*b}, v{20+4*b}
                v_fmac_f32 v{30+b}, v{21+4*b}, v{21+4*b}
                v_fmac_f32 v{30+b}, v{22+4*b}, v{22+4*b}
                v_fmac_f32 v{30+b}, v{23+4*b}, v{23+4*b}
                v_cndmask_b32 v{30+b}, 0, v{30+b}, s[64:65]""")
    k.allreduce("add", 30, 34)
    k.allreduce("add", 31, 34)
    k.e(f"""ds_write_b64 v32, v[30:31] offset:{R_LDS+32}
            s_waitcnt lgkmcnt(0)
            s_barrier
            ds_read_b128 v[36:39], v33 offset:{R_LDS+32}
            ds_read_b64 v[40:41], v33 offset:{R_LDS+48}
            s_waitcnt lgkmcnt(0)
            v_add_f32 v30, v36, v38
            v_add_f32 v30, v30, v40
            v_add_f32 v31, v37, v39
            v_add_f32 v31, v31, v41
            v_mov_b32 v34, {f2u(1e-5)}
            v_mov_b32 v35, {f2u(1e-5)}
            v_fmac_f32 v34, {f2u(1.0/576)}, v30
            v_fmac_f32 v35, {f2u(1.0/576)}, v31
            v_rsq_f32 v34, v34
            v_rsq_f32 v35, v35
            v_lshlrev_b32 v12, 3, v0""")
    for b in range(2):
        o = 20 + 4*b
        for e in range(4):
            k.e(f"v_mul_f32 v{o+e}, v{o+e}, v{34+b}")
        k.e(f"""v_cvt_pk_bf16_f32 v36, v{o}, v{o+1}
                v_cvt_pk_bf16_f32 v37, v{o+2}, v{o+3}
                v_lshlrev_b32 v38, 16, v36
                v_and_b32 v39, 0xffff0000, v36
                v_lshlrev_b32 v40, 16, v37
                v_and_b32 v41, 0xffff0000, v37
                v_sub_f32 v{o}, v{o}, v38
                v_sub_f32 v{o+1}, v{o+1}, v39
                v_sub_f32 v{o+2}, v{o+2}, v40
                v_sub_f32 v{o+3}, v{o+3}, v41
                v_cvt_pk_bf16_f32 v38, v{o}, v{o+1}
                v_cvt_pk_bf16_f32 v39, v{o+2}, v{o+3}
                s_mov_b64 s[66:67], exec
                s_mov_b64 exec, s[64:65]
                ds_write_b64 v12, v[36:37] offset:{A_LDS + 1152*b}
                ds_write_b64 v12, v[38:39] offset:{A_LDS + 2304 + 1152*b}
                s_mov_b64 exec, s[66:67]""")
    k.e("s_waitcnt lgkmcnt(0)\ns_barrier")
    k.e(f"""v_and_b32 v8, 3, v1
            v_mul_u32_u24 v8, 1152, v8
            v_lshl_add_u32 v8, v4, 4, v8
            s_and_b32 s44, s20, 1
            s_lshl_b32 s44, s44, 1
            s_lshr_b32 s45, s20, 1
            s_mul_i32 s45, s45, 36864
            s_add_u32 s45, s45, {BIG_L}""")
    for t in range(18):
        k.e(f"ds_read_b128 v[{20+4*t}:{23+4*t}], v8 offset:{A_LDS + 64*t}")
    tr64_base(k, 15, 3, 4, 44, 10, 11)
    k.e("v_add_u32 v15, s45, v15")
    for c in range(3):
        for i in range(6):
            t = 6*c + i
            d = 96 + 4*i
            k.e(f"""ds_read_b64_tr_b16 v[{d}:{d+1}], v15 offset:{2048*t}
                    ds_read_b64_tr_b16 v[{d+2}:{d+3}], v15 offset:{2048*t + 256}""")
        k.e("s_waitcnt lgkmcnt(0)")
        for i in range(6):
            t = 6*c + i
            d = 96 + 4*i
            cin = "0" if t == 0 else "v[120:123]"
            k.e(f"v_mfma_f32_16x16x32_bf16 v[120:123], v[{20+4*t}:{23+4*t}], v[{d}:{d+3}], {cin}")
        k.e("s_nop 3")
    k.e("s_nop 7")
    k.e(f"""s_lshr_b32 s45, s20, 1
            s_lshl_b32 s45, s45, 8
            s_and_b32 s46, s20, 1
            s_lshl_b32 s46, s46, 6
            s_add_u32 s45, s45, s46
            v_lshl_add_u32 v12, v3, 2, s45
            v_add_f32 v8, v120, v122
            v_add_f32 v9, v121, v123
            ds_write_b32 v12, v8 offset:{GU_LDS}
            ds_write_b32 v12, v9 offset:{GU_LDS+128}
            s_waitcnt lgkmcnt(0)
            s_barrier
            v_lshlrev_b32 v12, 2, v1
            ds_read_b32 v8, v12 offset:{GU_LDS}
            ds_read_b32 v9, v12 offset:{GU_LDS+256}
            s_waitcnt lgkmcnt(0)
            v_mul_f32 v10, {f2u(-LOG2E)}, v8
            v_exp_f32 v10, v10
            s_nop 0
            v_add_f32 v10, 1.0, v10
            v_rcp_f32 v10, v10
            s_nop 0
            v_mul_f32 v8, v8, v10
            v_mul_f32 v8, v8, v9""")
    k.hilo(8, 9, 10, 11)
    k.e(f"""v_lshlrev_b32 v12, 1, v1
            ds_write_b16 v12, v9 offset:{A2_LDS}
            ds_write_b16 v12, v10 offset:{A2_LDS+128}
            s_waitcnt lgkmcnt(0)
            s_barrier
            v_and_b32 v8, 3, v1
            v_lshlrev_b32 v8, 6, v8
            v_lshl_add_u32 v8, v4, 4, v8
            ds_read_b128 v[20:23], v8 offset:{A2_LDS}""")
    k.e(f"""v_lshrrev_b32 v10, 2, v3
            v_lshl_add_u32 v10, v4, 3, v10
            v_mul_u32_u24 v10, 1152, v10
            v_and_b32 v11, 3, v3
            v_lshl_add_u32 v10, v11, 3, v10
            s_mul_i32 s45, s20, 288
            s_add_u32 s45, s45, {D_LDS}
            v_add_u32 v10, s45, v10""")
    for n in range(9):
        d = 24 + 4*n
        k.e(f"""ds_read_b64_tr_b16 v[{d}:{d+1}], v10 offset:{32*n}
                ds_read_b64_tr_b16 v[{d+2}:{d+3}], v10 offset:{32*n + 4608}""")
    k.e(f"""s_mul_i32 s46, s20, 576
            s_add_u32 s46, s46, {BIG_L + 73728}
            v_lshl_add_u32 v13, v3, 2, s46""")
    for n in range(9):
        k.e(f"""ds_read_b32 v{100+2*n}, v13 offset:{64*n}
                ds_read_b32 v{101+2*n}, v13 offset:{2304 + 64*n}""")
    k.e("s_waitcnt lgkmcnt(0)")
    for n in range(9):
        d = 24 + 4*n
        k.e(f"v_mfma_f32_16x16x32_bf16 v[{64+4*n}:{67+4*n}], v[20:23], v[{d}:{d+3}], 0")
    k.e(f"""s_mul_i32 s45, s2, 4608
            s_mul_i32 s46, s20, 576
            s_add_u32 s45, s45, s46
            v_lshl_add_u32 v12, v3, 2, s45
            s_cmp_eq_u32 s2, 0
            s_cselect_b32 s47, 1.0, 0
            v_mov_b32 v14, 0x7fc00000
            s_nop 4""")
    for n in range(9):
        a = 64 + 4*n
        k.e(f"""v_add_f32 v{a}, v{a}, v{a+2}
                v_add_f32 v{a+1}, v{a+1}, v{a+3}""")
    Lh = k.newlab("noh")
    k.e(f"s_cbranch_scc0 {Lh}")
    for n in range(9):
        a = 64 + 4*n
        k.e(f"""v_add_f32 v{a}, v{a}, v{100+2*n}
                v_add_f32 v{a+1}, v{a+1}, v{101+2*n}""")
    k.lab(Lh)
    for n in range(9):
        a = 64 + 4*n
        k.e(f"""v_cmp_eq_u32 vcc, -1, v{a}
                v_cmp_eq_u32 s[66:67], -1, v{a+1}
                s_nop 1
                v_cndmask_b32 v{a}, v{a}, v14, vcc
                v_cndmask_b32 v{a+1}, v{a+1}, v14, s[66:67]""")
    k.e("""v_cmp_gt_u32 vcc, 16, v1
           s_and_saveexec_b64 s[50:51], vcc""")
    for n in range(9):
        a = 64 + 4*n
        k.e(f"""buffer_store_dword v{a}, v12, s[60:63], 0 offen offset:{64*n} sc1
                buffer_store_dword v{a+1}, v12, s[60:63], 0 offen offset:{2304 + 64*n} sc1""")

def phase_g(k):
    k.e("""s_sub_u32 s48, s2, 216
           v_lshrrev_b32 v5, 4, v0
           v_and_b32 v6, 15, v0
           v_mul_u32_u24 v8, 4608, v5
           v_lshl_add_u32 v8, v6, 4, v8
           s_lshl_b32 s40, s48, 8""")
    loads = []
    for i in range(9):
        loads.append(f"s_add_u32 s41, s40, {16*4608*i}\nbuffer_load_dwordx4 v[{20+4*i}:{23+4*i}], v8, s[60:63], s41 offen sc1")
    poll_gather(k, loads, list(range(20, 56)), 46)
    k.stamp(9)
    for i in range(1, 9):
        for e in range(4):
            k.e(f"v_add_f32 v{20+e}, v{20+e}, v{20+4*i+e}")
    k.e(f"""v_lshlrev_b32 v9, 4, v0
            v_lshlrev_b32 v10, 2, v0
            ds_write_b128 v9, v[20:23] offset:{T_A}
            s_waitcnt lgkmcnt(0)
            s_barrier
            s_cmp_lg_u32 s20, 0
            s_cbranch_scc1 {k.name}_end""")
    for i in range(16):
        k.e(f"ds_read_b32 v{20+i}, v10 offset:{T_A + 256*i}")
    k.e("s_waitcnt lgkmcnt(0)")
    for i in range(1, 16):
        k.e(f"v_add_f32 v20, v20, v{20+i}")
    k.e("""v_cvt_pk_bf16_f32 v20, v20, v20
           v_lshlrev_b32 v10, 1, v0
           s_lshl_b32 s41, s48, 7
           buffer_store_short v20, v10, s[92:95], s41 offen""")

def k2_main():
    k = Kern("k2_main_kernel", 256, 512, LDS_TOTAL, 256)
    guard(k, 256)
    k.ldptr(4, "ckv"); k.ldptr(10, "ws")
    wave_id(k, 20, 1)
    k.e(f"""v_and_b32 v1, 63, v0
            v_mov_b32 v2, 0
            v_lshlrev_b32 v3, 2, v1
            v_cmp_gt_u32 vcc, 8, v0
            s_and_saveexec_b64 s[48:49], vcc
            ds_write_b32 v3, v2 offset:{SYNC}
            s_mov_b64 exec, s[48:49]
            s_waitcnt lgkmcnt(0)
            s_barrier""")
    LB = k.newlab("teamB")
    if STAMP:
        k.sgpr = 102
        k.e("s_mov_b32 s101, s20\nv_mov_b32 v255, 0")
        k.stamp(0)
    k.e(f"s_cmp_ge_u32 s20, 4\ns_cbranch_scc1 {LB}")
    team_a(k)
    k.lab(LB)
    team_b(k)
    k.lab(f"{k.name}_end")
    if STAMP:
        k.e(f"s_cmp_ge_u32 s2, 256\ns_cbranch_scc1 {k.name}_end2")
        k.stamp_out()
        k.lab(f"{k.name}_end2")
    return k

def main():
    ks = [k1_qabs(), k2_main()]
    out = [HEADER.rstrip("\n")]
    for k in ks:
        out.append(f"; @launch kernel={k.name} grid=({k.grid},1,1) block=({k.block},1,1) lds={k.lds}")
    out.append('.amdgcn_target "amdgcn-amd-amdhsa--gfx950"\n.text')
    for k in ks:
        out.append(k.text())
    open(sys.argv[1] if len(sys.argv) > 1 else "p.s", "w").write("\n".join(out))
main()
```

```python
import sys, struct

HEADER = open("sequential_preLN__compressed_kv_cla__swiglu_ffn__decode.s.ref").read().split("; Override launch")[0]

WS_QA   = 0x000000
WS_ML   = 0x010000
WS_QP   = 0x020000
WS_INIT = 0x080000
WS_CTX  = 0x080000
WS_DNP  = 0x0C0000
WS_OUTP = 0x170000
WS_FL   = 0x1C0000
WS_OP   = 0x200000
INIT_BYTES = 0x180000
SENT = 0xFFFFFFFF
SPIN_MAX = 40000
import os
STAMP = bool(os.environ.get('STAMP'))

KA = dict(x=0, ckv=8, wq=16, wuk=24, wuv=32, wo=40, bx=48, wg=56, wu=64, wd=72, out=80, dbg=88, ws=96)
SZ = dict(x=2304, ckv=33554432, wq=4718592, wuk=4194304, wuv=4194304, wo=4718592, wg=5308416, wu=5308416,
          wd=5308416, out=2304)
LOG2E = 1.4426950408889634
def f2u(f): return struct.unpack("<I", struct.pack("<f", f))[0]

class Kern:
    def __init__(self, name, grid, block, lds, vgpr, sgpr=100):
        self.name, self.grid, self.block, self.lds, self.vgpr, self.sgpr = name, grid, block, lds, vgpr, sgpr
        self.lines = []
        self.nlab = 0
    def e(self, s):
        for l in s.strip("\n").split("\n"):
            if l.strip(): self.lines.append("    " + l.strip())
    def lab(self, s): self.lines.append(s + ":")
    def newlab(self, p):
        self.nlab += 1
        return f"{self.name}_{p}{self.nlab}"
    def ldptr(self, d, key): self.e(f"s_load_dwordx2 s[{d}:{d+1}], s[0:1], {KA[key]}")
    def srd(self, d, p, n, off=0):
        if off:
            self.e(f"s_add_u32 s{d}, s{p}, {off}\ns_addc_u32 s{d+1}, s{p+1}, 0")
        else:
            self.e(f"s_mov_b32 s{d}, s{p}\ns_mov_b32 s{d+1}, s{p+1}")
        self.e(f"s_mov_b32 s{d+2}, {n}\ns_mov_b32 s{d+3}, 0x00020000")
    def allreduce(self, op, x, t):
        for ctl in ("quad_perm:[1,0,3,2]", "quad_perm:[2,3,0,1]", "row_half_mirror", "row_mirror"):
            self.e(f"s_nop 1\nv_{op}_f32_dpp v{x}, v{x}, v{x} {ctl} row_mask:0xf bank_mask:0xf")
        for sw in ("v_permlane16_swap_b32", "v_permlane32_swap_b32"):
            self.e(f"v_mov_b32 v{t}, v{x}\ns_nop 1\n{sw} v{x}, v{t}\ns_nop 0\nv_{op}_f32 v{x}, v{x}, v{t}")
    def hilo(self, x, hi, lo, t):
        self.e(f"""v_cvt_pk_bf16_f32 v{hi}, v{x}, v{x}
                   v_lshlrev_b32 v{t}, 16, v{hi}
                   v_sub_f32 v{t}, v{x}, v{t}
                   v_cvt_pk_bf16_f32 v{lo}, v{t}, v{t}""")
    def sanitize(self, regs, tmp):
        self.e(f"v_mov_b32 v{tmp}, 0x7fc00000")
        for r in regs:
            self.e(f"v_cmp_eq_u32 vcc, -1, v{r}\ns_nop 1\nv_cndmask_b32 v{r}, v{r}, v{tmp}, vcc")
    def stamp(self, idx):
        if not STAMP: return
        self.e(f"s_memrealtime s[96:97]\ns_waitcnt lgkmcnt(0)\nv_writelane_b32 v255, s96, {idx}")
    def stamp_out(self):
        if not STAMP: return
        self.e(f"""s_mov_b64 exec, -1
                   s_waitcnt vmcnt(0)
                   s_memrealtime s[96:97]
                   s_waitcnt lgkmcnt(0)
                   v_writelane_b32 v255, s96, 15
                   s_add_u32 s96, s10, 0x1000000
                   s_addc_u32 s97, s11, 0
                   s_mov_b32 s98, 0x1000000
                   s_mov_b32 s99, 0x00020000
                   v_mbcnt_lo_u32_b32 v254, -1, 0
                   v_mbcnt_hi_u32_b32 v254, -1, v254
                   s_lshl_b32 s100, s2, 3
                   s_add_u32 s100, s100, s101
                   s_lshl_b32 s100, s100, 8
                   v_lshl_add_u32 v254, v254, 2, s100
                   buffer_store_dword v255, v254, s[96:99], 0 offen""")
    def text(self):
        acc = (self.vgpr + 3) // 4 * 4
        return "\n".join([
            f".globl {self.name}", ".p2align 8", f".type {self.name},@function", f"{self.name}:"] + self.lines + [
            "    s_endpgm",
            '.section .rodata,"a"', ".p2align 6", f".amdhsa_kernel {self.name}",
            f"  .amdhsa_next_free_vgpr {self.vgpr}", f"  .amdhsa_next_free_sgpr {self.sgpr}",
            f"  .amdhsa_accum_offset {acc}", "  .amdhsa_group_segment_fixed_size 0", "  .amdhsa_kernarg_size 104",
            "  .amdhsa_user_sgpr_count 2", "  .amdhsa_user_sgpr_kernarg_segment_ptr 1",
            "  .amdhsa_system_sgpr_workgroup_id_x 1", ".end_amdhsa_kernel", ".text", ""])

def guard(k, n):
    k.e(f"s_cmp_ge_u32 s2, {n}\ns_cbranch_scc1 {k.name}_end")

def wave_id(k, sdst, vt):
    k.e(f"v_lshrrev_b32 v{vt}, 6, v0\ns_nop 0\nv_readfirstlane_b32 s{sdst}, v{vt}")

RS = 1040
PX, MX, SX, SYNC, CT = 0, 8192, 8704, 9216, 9296
NONCE_L = SYNC + 64
WQ_L = CT + 128 * RS
LDS_TOTAL = WQ_L
LN_L, QQ_L = 0, 4608
D_A, D_A2, D_R = 0, 1024, 2048
T_A = 2304
WUV_L, OST_L, BIG_L = 9728, 26112, 63488

def lds_sync(k, word, target, vz, vone, vt, st):
    L = k.newlab("spin")
    k.e(f"""s_mov_b64 exec, 1
            ds_add_u32 v{vz}, v{vone} offset:{SYNC + 4*word}
            s_mov_b64 exec, -1""")
    k.lab(L)
    k.e(f"""ds_read_b32 v{vt}, v{vz} offset:{SYNC + 4*word}
            s_waitcnt lgkmcnt(0)
            v_readfirstlane_b32 s{st}, v{vt}
            s_cmp_lt_u32 s{st}, {target}
            s_cbranch_scc1 {L}""")

def poll_flags(k, vmask, vt, scnt, srd):
    L = k.newlab("pf"); Ld = k.newlab("pfd")
    k.e(f"s_mov_b32 s{scnt}, 0")
    k.lab(L)
    k.e(f"""buffer_load_dword v{vt}, v{vt+2}, s[{srd}:{srd+3}], 0 offen sc1
            s_waitcnt vmcnt(0)
            v_and_b32 v{vt}, v{vt}, v{vmask}
            v_cmp_ne_u32 vcc, v{vt}, v{vmask}
            s_add_u32 s{scnt}, s{scnt}, 1
            s_cmp_gt_u32 s{scnt}, {SPIN_MAX}
            s_cbranch_scc1 {Ld}
            s_cbranch_vccnz {L}""")
    k.lab(Ld)

def single_poll(k, word, vz, vone, vt, st, srd, soff, slp=3):
    L, Ld, Lo, Le = k.newlab("sp"), k.newlab("spd"), k.newlab("spo"), k.newlab("spe")
    k.e(f"s_cmp_lg_u32 s20, 0\ns_cbranch_scc1 {Lo}\ns_mov_b32 s{st}, 0")
    k.lab(L)
    k.e(f"""buffer_load_dwordx4 v[{vt}:{vt+3}], v{vt+4}, s[{srd}:{srd+3}], s{soff} offen sc1
            s_waitcnt vmcnt(0)
            v_max_u32 v{vt}, v{vt}, v{vt+1}
            v_max3_u32 v{vt}, v{vt}, v{vt+2}, v{vt+3}
            v_cmp_eq_u32 vcc, -1, v{vt}
            s_add_u32 s{st}, s{st}, 1
            s_cmp_gt_u32 s{st}, {SPIN_MAX}
            s_cbranch_scc1 {Ld}
            s_cbranch_vccz {Ld}
            s_sleep {slp}
            s_branch {L}""")
    k.lab(Ld)
    k.e(f"""ds_write_b32 v{vz}, v{vone} offset:{SYNC + 4*word}
            s_branch {Le}""")
    k.lab(Lo)
    lds_wait(k, word, 1, vz, vt, st, sleep=1)
    k.lab(Le)

def publish_rep(k, word, srd, hop, vz, vone, vt, st):
    L = k.newlab("pub")
    k.e(f"""s_waitcnt vmcnt(0)
            s_mov_b64 exec, 1
            ds_add_rtn_u32 v{vt}, v{vz}, v{vone} offset:{SYNC + 4*word}
            s_waitcnt lgkmcnt(0)
            v_readfirstlane_b32 s{st}, v{vt}
            s_mov_b64 exec, 0xff
            s_cmp_lg_u32 s{st}, 3
            s_cbranch_scc1 {L}
            s_lshl_b32 s{st}, s2, 2
            s_add_u32 s{st}, s{st}, {8192*hop}
            v_lshlrev_b32 v{vt}, 10, v1
            buffer_store_dword v{vone}, v{vt}, s[{srd}:{srd+3}], s{st} offen sc1""")
    k.lab(L)
    k.e("s_mov_b64 exec, -1")

def publish_flag(k, word, val, srd, vz, vone, vt, st):
    L = k.newlab("pub")
    k.e(f"""s_waitcnt vmcnt(0)
            s_mov_b64 exec, 1
            ds_add_rtn_u32 v{vt}, v{vz}, v{vone} offset:{SYNC + 4*word}
            s_waitcnt lgkmcnt(0)
            v_readfirstlane_b32 s{st}, v{vt}
            s_cmp_lg_u32 s{st}, 3
            s_cbranch_scc1 {L}
            v_mov_b32 v{vt}, s2
            v_mov_b32 v{vt+1}, {val}
            buffer_store_byte v{vt+1}, v{vt}, s[{srd}:{srd+3}], 0 offen sc1""")
    k.lab(L)
    k.e("s_mov_b64 exec, -1")

def lds_wait(k, word, target, vz, vt, st, sleep=0):
    L = k.newlab("lw")
    k.lab(L)
    if sleep: k.e(f"s_sleep {sleep}")
    k.e(f"""ds_read_b32 v{vt}, v{vz} offset:{SYNC + 4*word}
            s_waitcnt lgkmcnt(0)
            v_readfirstlane_b32 s{st}, v{vt}
            s_cmp_lt_u32 s{st}, {target}
            s_cbranch_scc1 {L}""")

def k1_qpart():
    WQ1, LN1 = 5120, 0
    k = Kern("k1_qpart_kernel", 256, 256, WQ1 + 18432, 80)
    guard(k, 256)
    k.ldptr(12, "x"); k.ldptr(14, "wq"); k.ldptr(10, "ws")
    wave_id(k, 20, 1)
    k.e("""v_and_b32 v1, 63, v0
           s_and_b32 s21, s2, 31
           s_lshr_b32 s22, s2, 5
           v_and_b32 v3, 15, v1
           v_lshrrev_b32 v4, 4, v1
           s_waitcnt lgkmcnt(0)""")
    k.srd(24, 12, SZ["x"]); k.srd(28, 14, SZ["wq"]); k.srd(36, 10, 262144, WS_QP); k.srd(52, 10, INIT_BYTES, WS_INIT)
    k.e("s_and_b32 s23, s20, 1\ns_mul_i32 s23, s23, 1152\nv_lshlrev_b32 v2, 1, v1")
    for i in range(9):
        k.e(f"buffer_load_ushort v{10+i}, v2, s[24:27], s23 offen offset:{128*i}")
    k.e(f"""v_lshlrev_b32 v6, 1, v4
            v_xor_b32 v6, v6, v3
            v_lshlrev_b32 v6, 4, v6
            v_lshl_add_u32 v6, v4, 13, v6
            s_and_b32 s40, s20, 2
            s_lshl_b32 s40, s40, 6
            v_xor_b32 v6, s40, v6
            s_mul_i32 s41, s22, 72
            s_lshl_b32 s42, s20, 2
            s_add_u32 s41, s41, s42
            s_lshl_b32 s41, s41, 13
            s_lshl_b32 s42, s21, 8
            s_add_u32 s41, s41, s42
            s_lshl_b32 s43, s20, 10
            s_add_u32 s43, s43, {WQ1}""")
    Lq = k.newlab("wq4")
    for i in range(5):
        if i == 4: k.e(f"s_cmp_ge_u32 s20, 2\ns_cbranch_scc1 {Lq}")
        k.e(f"""s_mov_b32 m0, s43
                s_add_u32 s43, s43, 4096
                buffer_load_dwordx4 v6, s[28:31], s41 offen nt lds
                s_add_u32 s41, s41, {16*8192}""")
    k.lab(Lq)
    k.e("""v_mov_b32 v28, -1
           v_mov_b32 v29, -1
           v_mov_b32 v30, -1
           v_mov_b32 v31, -1
           v_lshlrev_b32 v9, 4, v0
           s_mul_i32 s45, s2, 6144
           buffer_store_dwordx4 v[28:31], v9, s[52:55], s45 offen
           s_add_u32 s45, s45, 4096
           v_cmp_gt_u32 vcc, 128, v0
           s_and_saveexec_b64 s[48:49], vcc
           buffer_store_dwordx4 v[28:31], v9, s[52:55], s45 offen
           s_mov_b64 exec, s[48:49]
           s_waitcnt vmcnt(5)""")
    for i in range(9):
        k.e(f"v_lshlrev_b32 v{10+i}, 16, v{10+i}")
    k.e("v_add_f32 v20, v10, v11")
    for i in range(2, 9):
        k.e(f"v_add_f32 v20, v20, v{10+i}")
    k.allreduce("add", 20, 21)
    k.e(f"v_mul_f32 v20, {f2u(1.0/576)}, v20")
    for i in range(9):
        k.e(f"v_sub_f32 v{10+i}, v{10+i}, v20")
    k.e("v_mul_f32 v22, v10, v10")
    for i in range(1, 9):
        k.e(f"v_fmac_f32 v22, v{10+i}, v{10+i}")
    k.allreduce("add", 22, 21)
    k.e(f"""v_mov_b32 v23, {f2u(1e-5)}
            v_fmac_f32 v23, {f2u(1.0/576)}, v22
            v_rsq_f32 v23, v23
            v_add_u32 v24, s23, v2""")
    for i in range(9):
        k.e(f"v_mul_f32 v{10+i}, v{10+i}, v23")
        k.hilo(10+i, 25, 26, 27)
        k.e(f"""ds_write_b16 v24, v25 offset:{LN1 + 128*i}
                ds_write_b16 v24, v26 offset:{LN1 + 2304 + 128*i}""")
    k.e("s_waitcnt vmcnt(1) lgkmcnt(0)\ns_barrier")
    k.e(f"""v_and_b32 v8, 3, v1
            v_mul_u32_u24 v8, 1152, v8
            v_lshl_add_u32 v8, v4, 4, v8
            s_mul_i32 s40, s22, 144
            v_add_u32 v8, s40, v8""")
    for t in range(3):
        k.e(f"ds_read_b128 v[{28+4*t}:{31+4*t}], v8 offset:{LN1 + 64*t}")
    k.e(f"""v_lshrrev_b32 v9, 2, v3
            v_lshl_add_u32 v10, v4, 3, v9
            v_lshlrev_b32 v10, 8, v10
            v_and_b32 v11, 1, v4
            v_lshlrev_b32 v11, 3, v11
            v_lshl_or_b32 v11, v9, 1, v11
            v_bfe_u32 v12, v3, 1, 1
            s_lshl_b32 s46, s20, 2
            v_add_u32 v12, s46, v12
            v_and_b32 v13, 1, v3
            v_lshlrev_b32 v13, 3, v13
            s_mov_b32 s47, {WQ1}
            v_add3_u32 v10, v10, v13, s47
            v_lshlrev_b32 v19, 8, v9
            s_mov_b32 s47, {WQ1 + 16384}
            v_add3_u32 v19, v19, v13, s47
            v_lshlrev_b32 v18, 1, v9""")
    for nt in range(2):
        k.e(f"""v_add_u32 v14, {2*nt}, v12
                v_xor_b32 v15, v14, v11
                v_lshl_add_u32 v15, v15, 4, v10
                v_xor_b32 v16, v14, v18
                v_lshl_add_u32 v16, v16, 4, v19""")
        for t in range(2):
            d = 40 + 12*nt + 4*t
            k.e(f"""ds_read_b64_tr_b16 v[{d}:{d+1}], v15 offset:{8192*t}
                    ds_read_b64_tr_b16 v[{d+2}:{d+3}], v15 offset:{8192*t + 1024}""")
        d = 40 + 12*nt + 8
        k.e(f"""ds_read_b64_tr_b16 v[{d}:{d+1}], v16
                ds_read_b64_tr_b16 v[{d+2}:{d+3}], v16 offset:1024""")
    k.e("""v_cmp_gt_u32 vcc, 16, v1
           s_waitcnt lgkmcnt(0)
           v_cndmask_b32 v36, 0, v36, vcc
           v_cndmask_b32 v37, 0, v37, vcc
           v_cndmask_b32 v38, 0, v38, vcc
           v_cndmask_b32 v39, 0, v39, vcc
           s_nop 1""")
    for nt in range(2):
        acc = 64 + 4*nt
        for t in range(3):
            d = 40 + 12*nt + 4*t
            cin = "0" if t == 0 else f"v[{acc}:{acc+3}]"
            k.e(f"v_mfma_f32_16x16x32_bf16 v[{acc}:{acc+3}], v[{28+4*t}:{31+4*t}], v[{d}:{d+3}], {cin}")
    k.e(f"""s_lshl_b32 s46, s22, 15
            s_lshl_b32 s47, s21, 9
            s_add_u32 s46, s46, s47
            s_lshl_b32 s47, s20, 7
            s_add_u32 s46, s46, s47
            v_lshl_add_u32 v27, v3, 2, s46
            s_mov_b32 s47, 16384
            s_nop 4
            v_add_f32 v8, v64, v66
            v_add_f32 v9, v65, v67
            v_add_f32 v10, v68, v70
            v_add_f32 v11, v69, v71
            s_and_saveexec_b64 s[48:49], vcc
            buffer_store_dword v8, v27, s[36:39], 0 offen
            buffer_store_dword v9, v27, s[36:39], s47 offen
            buffer_store_dword v10, v27, s[36:39], 0 offen offset:64
            buffer_store_dword v11, v27, s[36:39], s47 offen offset:64""")
    k.lab(f"{k.name}_end")
    return k

def team_a(k):
    k.ldptr(16, "wuk"); k.ldptr(68, "wg"); k.ldptr(70, "wu")
    k.e("""s_and_b32 s21, s2, 31
           s_lshr_b32 s22, s2, 5
           v_and_b32 v3, 15, v1
           v_lshrrev_b32 v4, 4, v1
           v_mov_b32 v224, 0
           v_mov_b32 v225, 1
           s_waitcnt lgkmcnt(0)""")
    k.srd(32, 16, SZ["wuk"]); k.srd(36, 10, 262144, WS_QP)
    k.srd(56, 10, 65536, WS_QA); k.srd(60, 10, 8388608, WS_OP); k.srd(64, 10, 65536, WS_ML)
    k.srd(72, 68, SZ["wg"]); k.srd(76, 70, SZ["wu"]); k.srd(80, 10, 16384, WS_FL)
    if os.environ.get("EXP") == "1": lds_wait(k, 0, 4, 224, 226, 44, sleep=8)
    k.e("""v_lshlrev_b32 v252, 4, v1
           s_and_b32 s84, s2, 7
           s_lshl_b32 s84, s84, 10
           v_lshrrev_b32 v5, 7, v0
           v_and_b32 v6, 127, v0
           v_lshlrev_b32 v8, 14, v5
           v_lshl_add_u32 v8, v6, 2, v8
           s_lshl_b32 s46, s21, 9""")
    for j in range(8):
        k.e(f"buffer_load_dword v{10+j}, v8, s[36:39], s46 offen\ns_add_u32 s46, s46, 32768")
    k.e("""s_lshl_b32 s40, s22, 6
           s_lshl_b32 s41, s20, 4
           s_add_u32 s40, s40, s41
           v_add_u32 v7, s40, v3
           v_lshlrev_b32 v7, 13, v7
           v_lshl_add_u32 v7, v4, 4, v7
           s_lshl_b32 s41, s21, 8""")
    for t in range(4):
        k.e(f"buffer_load_dwordx4 v[{232+4*t}:{235+4*t}], v7, s[32:35], s41 offen offset:{64*t} {os.environ.get('UKNT', 'nt')}")
    k.e("""v_lshlrev_b32 v24, 8, v5
           v_lshl_add_u32 v24, v6, 1, v24
           s_waitcnt vmcnt(4)""")
    for j in range(1, 8):
        k.e(f"v_add_f32 v10, v10, v{10+j}")
    k.hilo(10, 25, 26, 27)
    k.e(f"""ds_write_b16 v24, v25 offset:{QQ_L}
            ds_write_b16 v24, v26 offset:{QQ_L + 512}""")
    lds_sync(k, 3, 4, 224, 225, 226, 44)
    k.e(f"""v_and_b32 v8, 3, v1
            v_lshlrev_b32 v8, 8, v8
            v_lshl_add_u32 v8, v4, 4, v8""")
    for t in range(4):
        k.e(f"ds_read_b128 v[{28+4*t}:{31+4*t}], v8 offset:{QQ_L + 64*t}")
    k.e("s_waitcnt vmcnt(0) lgkmcnt(0)")
    k.stamp(8)
    for t in range(4):
        cin = "0" if t == 0 else "v[64:67]"
        k.e(f"v_mfma_f32_16x16x32_bf16 v[64:67], v[{28+4*t}:{31+4*t}], v[{232+4*t}:{235+4*t}], {cin}")
    sc = f2u((128 ** -0.5) * LOG2E)
    k.e(f"""s_lshl_b32 s46, s22, 2
            s_add_u32 s46, s46, s20
            s_lshl_b32 s46, s46, 10
            s_lshl_b32 s47, s21, 4
            s_add_u32 s46, s46, s47
            v_lshrrev_b32 v12, 1, v1
            v_lshlrev_b32 v12, 15, v12
            v_and_b32 v13, 1, v1
            v_lshl_add_u32 v12, v13, 9, v12
            s_lshl_b32 s47, s20, 6
            v_lshl_add_u32 v13, v3, 1, s47
            v_lshl_add_u32 v14, v1, 4, s47
            v_add_f32 v10, v64, v66
            v_add_f32 v11, v65, v67
            v_mul_f32 v10, {sc}, v10
            v_mul_f32 v11, {sc}, v11
            v_cvt_pk_bf16_f32 v10, v10, v11
            ds_write_b16 v13, v10 offset:{QQ_L + 1024}
            ds_write_b16_d16_hi v13, v10 offset:{QQ_L + 1024 + 32}
            s_mov_b64 exec, 0xf
            ds_read_b128 v[16:19], v14 offset:{QQ_L + 1024}
            s_waitcnt lgkmcnt(0)
            buffer_store_dwordx4 v[16:19], v12, s[56:59], s46 offen sc1
            s_mov_b64 exec, -1""")
    publish_rep(k, 4, 80, 0, 224, 225, 226, 44)
    k.stamp(9)
    k.e(f"""v_and_b32 v2, 31, v1
            v_lshrrev_b32 v3, 5, v1
            s_lshr_b32 s21, s2, 7
            s_lshl_b32 s22, s21, 15
            v_lshlrev_b32 v5, 4, v1
            s_lshl_b32 s41, s20, 5
            v_and_b32 v6, 16, v2
            v_and_b32 v7, 3, v2
            v_lshl_add_u32 v6, v7, 2, v6
            v_bfe_u32 v7, v2, 2, 1
            v_lshl_add_u32 v6, v7, 1, v6
            v_bfe_u32 v7, v2, 3, 1
            v_add_u32 v6, v6, v7
            v_add_u32 v6, s41, v6
            v_mul_u32_u24 v6, {RS}, v6
            v_lshl_add_u32 v6, v3, 4, v6
            v_add_u32 v6, {CT}, v6
            """)
    single_poll(k, 13, 224, 225, 248, 44, 80, 84, slp=int(os.environ.get('SLP1', '3')))
    k.stamp(1)
    QF = 96
    for t in range(32):
        if t % 4 == 0 and t: k.e("s_add_u32 s22, s22, 4096")
        k.e(f"buffer_load_dwordx4 v[{QF+4*t}:{QF+3+4*t}], v5, s[56:59], s22 offen offset:{1024*(t%4)} sc1")
    lds_wait(k, 0, 4, 224, 226, 44)
    k.e("s_waitcnt vmcnt(0)")
    k.stamp(2)
    ACC = 16
    bufs = [32, 64]
    for i in range(8):
        k.e(f"ds_read_b128 v[{bufs[0]+4*i}:{bufs[0]+3+4*i}], v6 offset:{32*i}")
    for ci in range(4):
        if ci < 3:
            for i in range(8):
                b = bufs[(ci+1) % 2] + 4*i
                if b + 3 >= QF: raise Exception("reg overlap")
                k.e(f"ds_read_b128 v[{b}:{b+3}], v6 offset:{32*(8*(ci+1)+i)}")
            k.e("s_waitcnt lgkmcnt(8)")
        else:
            k.e("s_waitcnt lgkmcnt(0)")
        for i in range(8):
            t = 8*ci + i
            b = bufs[ci % 2] + 4*i
            cin = "0" if t == 0 else f"v[{ACC}:{ACC+15}]"
            k.e(f"v_mfma_f32_32x32x16_bf16 v[{ACC}:{ACC+15}], v[{b}:{b+3}], v[{QF+4*t}:{QF+3+4*t}], {cin}")
    k.e("s_nop 15")
    k.e(f"v_max3_f32 v8, v{ACC}, v{ACC+1}, v{ACC+2}")
    for i in range(3, 15, 2):
        k.e(f"v_max3_f32 v8, v8, v{ACC+i}, v{ACC+i+1}")
    k.e(f"""v_max_f32 v8, v8, v{ACC+15}
            v_mov_b32 v9, v8
            s_nop 1
            v_permlane32_swap_b32 v8, v9
            s_nop 0
            v_max_f32 v8, v8, v9
            s_lshl_b32 s43, s20, 2
            v_lshl_add_u32 v10, v2, 4, s43
            v_lshlrev_b32 v11, 4, v2
            ds_write_b32 v10, v8 offset:{MX}""")
    lds_sync(k, 5, 4, 224, 225, 226, 44)
    k.e(f"""ds_read_b128 v[12:15], v11 offset:{MX}
            s_waitcnt lgkmcnt(0)
            v_max3_f32 v8, v12, v13, v14
            v_max_f32 v8, v8, v15""")
    for i in range(16):
        k.e(f"v_sub_f32 v{ACC+i}, v{ACC+i}, v8")
    for i in range(16):
        k.e(f"v_exp_f32 v{ACC+i}, v{ACC+i}")
    k.e(f"s_nop 0\nv_add_f32 v9, v{ACC}, v{ACC+1}")
    for i in range(2, 16):
        k.e(f"v_add_f32 v9, v9, v{ACC+i}")
    for i in range(8):
        k.e(f"v_cvt_pk_bf16_f32 v{32+i}, v{ACC+2*i}, v{ACC+2*i+1}")
    k.e(f"""v_mov_b32 v12, v9
            s_lshl_b32 s44, s20, 11
            v_lshl_add_u32 v13, v1, 4, s44
            v_permlane32_swap_b32 v9, v12
            s_nop 0
            v_add_f32 v9, v9, v12
            ds_write_b128 v13, v[32:35] offset:{PX}
            ds_write_b128 v13, v[36:39] offset:{PX+1024}
            ds_write_b32 v10, v9 offset:{SX}""")
    lds_sync(k, 6, 4, 224, 225, 226, 44)
    k.stamp(3)
    PF = 32
    for s in range(8):
        k.e(f"ds_read_b128 v[{PF+4*s}:{PF+3+4*s}], v5 offset:{PX + 1024*s}")
    k.e(f"ds_read_b128 v[12:15], v11 offset:{SX}")
    k.e(f"""v_bfe_u32 v66, v1, 2, 2
            v_lshlrev_b32 v66, 2, v66
            v_lshl_add_u32 v66, v3, 1, v66
            v_mul_u32_u24 v66, {RS}, v66
            v_bfe_u32 v67, v1, 4, 1
            v_lshlrev_b32 v67, 5, v67
            v_and_b32 v7, 3, v1
            v_lshl_add_u32 v67, v7, 3, v67
            s_lshl_b32 s45, s20, 8
            s_add_u32 s45, s45, {CT}
            v_add3_u32 v64, v66, v67, s45
            v_add_u32 v65, {64*RS}, v64""")
    OACC = 96
    VB = [160, 192]
    steps = [(T, s) for s in range(8) for T in range(4)]
    def trread(dst, T, s):
        wq, u = s >> 1, s & 1
        base = 64 if wq < 2 else 65
        off = (32*(wq & 1) + 16*u) * RS + 64*T
        k.e(f"ds_read_b64_tr_b16 v[{dst}:{dst+1}], v{base} offset:{off}")
        k.e(f"ds_read_b64_tr_b16 v[{dst+2}:{dst+3}], v{base} offset:{off+RS}")
    CH = 4
    chunks = [steps[i:i+CH] for i in range(0, 32, CH)]
    for i, (T, s) in enumerate(chunks[0]):
        trread(VB[0] + 4*i, T, s)
    for ci, ch in enumerate(chunks):
        if ci + 1 < len(chunks):
            for i, (T, s) in enumerate(chunks[ci+1]):
                trread(VB[(ci+1) % 2] + 4*i, T, s)
            k.e(f"s_waitcnt lgkmcnt({2*CH})")
        else:
            k.e("s_waitcnt lgkmcnt(0)")
        for i, (T, s) in enumerate(ch):
            a = VB[ci % 2] + 4*i
            o = OACC + 16*T
            cin = "0" if s == 0 else f"v[{o}:{o+15}]"
            k.e(f"v_mfma_f32_32x32x16_bf16 v[{o}:{o+15}], v[{a}:{a+3}], v[{PF+4*s}:{PF+3+4*s}], {cin}")
    k.stamp(4)
    Lk = k.newlab("skipml")
    k.e(f"""v_add_f32 v12, v12, v13
            v_add_f32 v14, v14, v15
            v_add_f32 v9, v12, v14
            s_and_b32 s46, s2, 127
            s_lshl_b32 s47, s21, 12
            s_add_u32 s46, s46, s47
            s_lshl_b32 s46, s46, 3
            v_lshl_add_u32 v10, v2, 10, s46
            s_cmp_lg_u32 s20, 0
            s_cbranch_scc1 {Lk}
            v_cmp_gt_u32 vcc, 32, v1
            s_and_saveexec_b64 s[48:49], vcc
            buffer_store_dwordx2 v[8:9], v10, s[64:67], 0 offen sc1
            s_mov_b64 exec, s[48:49]""")
    k.lab(Lk)
    k.e(f"""s_lshl_b32 s46, s2, 15
            s_lshl_b32 s47, s20, 8
            s_add_u32 s46, s46, s47
            v_mul_u32_u24 v10, {RS}, v2
            v_lshl_add_u32 v10, v3, 3, v10
            v_add_u32 v10, s45, v10
            v_lshrrev_b32 v11, 4, v1
            v_and_b32 v12, 15, v1
            v_mul_u32_u24 v13, {RS}, v11
            v_lshl_add_u32 v13, v12, 4, v13
            v_add_u32 v13, s45, v13
            v_lshlrev_b32 v14, 10, v11
            v_lshl_add_u32 v14, v12, 4, v14""")
    for T in range(4):
        o = OACC + 16*T
        for a in range(4):
            d = 32 + 2*(4*T + a)
            k.e(f"""v_cvt_pk_bf16_f32 v{d}, v{o+4*a}, v{o+4*a+1}
                    v_cvt_pk_bf16_f32 v{d+1}, v{o+4*a+2}, v{o+4*a+3}
                    ds_write_b64 v10, v[{d}:{d+1}] offset:{64*T + 16*a}""")
    for n in range(8):
        k.e(f"ds_read_b128 v[{160+4*n}:{163+4*n}], v13 offset:{4*RS*n}")
    for n in range(8):
        k.e(f"""s_waitcnt lgkmcnt({7-n})
                buffer_store_dwordx4 v[{160+4*n}:{163+4*n}], v14, s[60:63], s46 offen sc1
                s_add_u32 s46, s46, 4096""")
    k.e("s_waitcnt vmcnt(0)")
    k.stamp(5)
    publish_rep(k, 7, 80, 1, 224, 225, 226, 44)
    k.e(f"s_cmp_ge_u32 s2, 144\ns_cbranch_scc1 {k.name}_end")
    lds_wait(k, 7, 4, 224, 226, 44)
    dma64_off(k, 8, 1, 10, 11, 9, 9216)
    k.e(f"""s_mul_i32 s41, s20, 9*16*9216
            s_lshl_b32 s42, s2, 6
            s_add_u32 s41, s41, s42
            s_mul_i32 s43, s20, 9216
            s_add_u32 s43, s43, {BIG_L}
            s_add_u32 s44, s43, 36864""")
    for mi in range(9):
        if mi >= 2: k.e("s_waitcnt vmcnt(2)")
        k.e(f"""s_mov_b32 m0, s43
                s_add_u32 s43, s43, 1024
                buffer_load_dwordx4 v8, s[72:75], s41 offen nt lds
                s_mov_b32 m0, s44
                s_add_u32 s44, s44, 1024
                buffer_load_dwordx4 v8, s[76:79], s41 offen nt lds
                s_add_u32 s41, s41, {16*9216}""")
    k.e(f"s_waitcnt vmcnt(0)\ns_branch {k.name}_end")

def dma64_off(k, vA, lane, t1, t2, t3, rowstride):
    k.e(f"""v_lshrrev_b32 v{t1}, 2, v{lane}
            v_and_b32 v{t2}, 3, v{lane}
            v_bfe_u32 v{t3}, v{lane}, 5, 1
            v_lshlrev_b32 v{t3}, 1, v{t3}
            v_xor_b32 v{t2}, v{t2}, v{t3}
            v_mul_u32_u24 v{vA}, {rowstride}, v{t1}
            v_lshl_add_u32 v{vA}, v{t2}, 4, v{vA}""")

def tr64_base(k, dst, v3, v4, nt_sreg, t1, t2):
    k.e(f"""v_lshrrev_b32 v{t1}, 2, v{v3}
            v_lshl_add_u32 v{t1}, v{v4}, 3, v{t1}
            v_lshlrev_b32 v{t1}, 6, v{t1}
            v_bfe_u32 v{t2}, v{v3}, 1, 1
            v_add_u32 v{t2}, s{nt_sreg}, v{t2}
            v_and_b32 v{dst}, 1, v{v4}
            v_lshlrev_b32 v{dst}, 1, v{dst}
            v_xor_b32 v{t2}, v{t2}, v{dst}
            v_lshl_add_u32 v{t1}, v{t2}, 4, v{t1}
            v_and_b32 v{dst}, 1, v{v3}
            v_lshl_add_u32 v{dst}, v{dst}, 3, v{t1}""")

def poll_gather(k, loads, regs, scnt, mask_s=None):
    L = k.newlab("poll"); Ld = k.newlab("pdone")
    k.e(f"s_mov_b32 s{scnt}, 0")
    k.lab(L)
    for l in loads: k.e(l)
    k.e("s_waitcnt vmcnt(0)")
    k.e(f"v_max_u32 v7, v{regs[0]}, v{regs[1]}")
    for i in range(2, len(regs) - 1, 2):
        k.e(f"v_max3_u32 v7, v7, v{regs[i]}, v{regs[i+1]}")
    if len(regs) % 2: k.e(f"v_max_u32 v7, v7, v{regs[-1]}")
    k.e(f"""v_cmp_eq_u32 vcc, -1, v7
            s_add_u32 s{scnt}, s{scnt}, 1
            s_cmp_gt_u32 s{scnt}, {SPIN_MAX}
            s_cbranch_scc1 {Ld}
            s_cbranch_vccz {Ld}
            s_sleep 4
            s_branch {L}""")
    k.lab(Ld)

def team_b(k):
    k.e("""v_subrev_u32 v0, 0x100, v0
           s_sub_u32 s20, s20, 4
           v_and_b32 v3, 15, v1
           v_lshrrev_b32 v4, 4, v1
           s_and_b32 s21, s2, 31
           s_lshr_b32 s22, s2, 5
           v_mov_b32 v124, 0
           v_mov_b32 v125, 1""")
    k.ldptr(12, "wuv"); k.ldptr(14, "wo"); k.ldptr(64, "wd"); k.ldptr(66, "x"); k.ldptr(68, "out")
    k.e("s_waitcnt lgkmcnt(0)")
    k.srd(24, 12, SZ["wuv"]); k.srd(28, 10, 65536, WS_ML); k.srd(32, 10, 8388608, WS_OP); k.srd(36, 10, 262144, WS_CTX)
    k.srd(52, 10, 16384, WS_FL); k.srd(56, 10, 8*36864, WS_OUTP); k.srd(60, 10, 663552, WS_DNP)
    k.srd(72, 14, SZ["wo"]); k.srd(76, 4, SZ["ckv"]); k.srd(84, 64, SZ["wd"])
    k.srd(88, 66, SZ["x"]); k.srd(92, 68, SZ["out"])
    k.e("""s_sub_u32 s47, s2, 144
           s_mul_i32 s48, s47, 7282
           s_lshr_b32 s48, s48, 16
           s_mul_i32 s49, s48, 9
           s_sub_u32 s49, s47, s49""")
    k.e(f"""v_lshlrev_b32 v9, 4, v1
            s_lshl_b32 s40, s2, 7
            s_lshl_b32 s41, s20, 5
            s_add_u32 s40, s40, s41
            s_lshl_b32 s40, s40, 10
            s_mul_i32 s42, s41, {RS}
            s_add_u32 s42, s42, {CT}""")
    THR = int(os.environ.get("THR", "0")); DLY = int(os.environ.get("DLY", "0"))
    if DLY: lds_wait(k, 1, 1, 124, 126, 46, sleep=1)
    for r in range(32):
        if THR and r >= THR: k.e(f"s_waitcnt vmcnt({THR-1})")
        k.e(f"""s_mov_b32 m0, s42
                s_add_u32 s42, s42, {RS}
                buffer_load_dwordx4 v9, s[76:79], s40 offen nt lds
                s_add_u32 s40, s40, 1024""")
    k.e(f"""v_lshlrev_b32 v13, 1, v4
            v_xor_b32 v13, v13, v3
            v_lshlrev_b32 v13, 4, v13
            v_lshl_add_u32 v13, v4, 13, v13
            v_xor_b32 v14, 0x80, v13
            s_lshl_b32 s44, s22, 6
            s_lshl_b32 s45, s20, 4
            s_add_u32 s44, s44, s45
            s_lshl_b32 s44, s44, 13
            s_lshl_b32 s45, s21, 8
            s_add_u32 s44, s44, s45
            s_waitcnt vmcnt(0)
            s_mov_b64 exec, 1
            ds_add_u32 v124, v125 offset:{SYNC}
            s_mov_b64 exec, -1""")
    k.stamp(1)
    for mi in range(4):
        k.e(f"""buffer_load_dwordx4 v[{128+4*mi}:{131+4*mi}], v{14 if mi & 2 else 13}, s[24:27], s44 offen nt
                s_add_u32 s44, s44, 32768""")
    LW = k.newlab("ldW")
    k.e(f"""s_cmp_lt_u32 s2, 144
            s_cbranch_scc1 {LW}
            s_cmp_ge_u32 s2, 216
            s_cbranch_scc1 {LW}""")
    k.e("""v_lshrrev_b32 v10, 3, v1
           v_and_b32 v11, 7, v1
           v_and_b32 v12, 2, v10
           v_xor_b32 v11, v11, v12
           v_mul_u32_u24 v8, 1152, v10
           v_lshl_add_u32 v8, v11, 4, v8
           v_xor_b32 v11, 4, v11
           v_mul_u32_u24 v7, 1152, v10
           v_lshl_add_u32 v7, v11, 4, v7
           s_lshl_b32 s41, s48, 9
           s_lshl_b32 s42, s20, 7
           s_add_u32 s41, s41, s42
           s_mul_i32 s41, s41, 1152
           s_lshl_b32 s42, s49, 7
           s_add_u32 s41, s41, s42""")
    for mi in range(16):
        k.e(f"""buffer_load_dwordx4 v[{144+4*mi}:{147+4*mi}], v{7 if mi & 1 else 8}, s[72:75], s41 offen nt
                s_add_u32 s41, s41, {8*1152}""")
    k.lab(LW)
    k.stamp(2)
    lds_wait(k, 7, 4, 124, 126, 46, sleep=2)
    k.stamp(3)
    k.e(f"""s_waitcnt vmcnt(0)
            s_lshl_b32 s41, s20, 12
            s_add_u32 s41, s41, {WUV_L}
            v_add_u32 v10, s41, v9""")
    for mi in range(4):
        k.e(f"ds_write_b128 v10, v[{128+4*mi}:{131+4*mi}] offset:{1024*mi}")
    LW2 = k.newlab("stW")
    k.e(f"""s_cmp_lt_u32 s2, 144
            s_cbranch_scc1 {LW2}
            s_cmp_ge_u32 s2, 216
            s_cbranch_scc1 {LW2}
            s_lshl_b32 s41, s20, 14
            s_add_u32 s41, s41, {BIG_L}
            v_add_u32 v10, s41, v9""")
    for mi in range(16):
        k.e(f"ds_write_b128 v10, v[{144+4*mi}:{147+4*mi}] offset:{1024*mi}")
    k.lab(LW2)
    k.stamp(5)
    k.e("""v_lshlrev_b32 v24, 4, v1
           s_and_b32 s47, s2, 7
           s_lshl_b32 s47, s47, 10
           s_add_u32 s47, s47, 8192""")
    single_poll(k, 14, 124, 125, 20, 46, 52, 47)
    k.stamp(6)
    k.e("""v_lshrrev_b32 v5, 7, v0
           v_and_b32 v6, 127, v0
           v_lshlrev_b32 v5, 12, v5
           v_add_u32 v5, v5, v6
           s_lshl_b32 s40, s21, 7
           v_add_u32 v5, s40, v5
           v_lshlrev_b32 v5, 3, v5
           buffer_load_dwordx2 v[8:9], v5, s[28:31], 0 offen sc1""")
    k.e(f"""v_lshrrev_b32 v10, 3, v1
            v_and_b32 v11, 7, v1
            v_and_b32 v12, 2, v10
            v_xor_b32 v11, v11, v12
            v_lshlrev_b32 v11, 4, v11
            v_lshl_add_u32 v11, v10, 15, v11
            v_xor_b32 v12, 64, v11
            s_lshl_b32 s41, s21, 10
            s_lshl_b32 s42, s22, 7
            s_add_u32 s41, s41, s42
            s_lshl_b32 s42, s20, 21
            s_add_u32 s41, s41, s42
            s_lshl_b32 s43, s20, 13
            s_add_u32 s43, s43, {OST_L}""")
    for mi in range(8):
        k.e(f"""s_mov_b32 m0, s43
                s_add_u32 s43, s43, 1024
                buffer_load_dwordx4 v{12 if mi & 1 else 11}, s[32:35], s41 offen sc1 lds
                s_add_u32 s41, s41, 262144""")
    k.e("s_waitcnt vmcnt(8)\nv_mov_b32 v15, v8")
    k.allreduce("max", 15, 16)
    k.e(f"""s_lshl_b32 s46, s20, 2
            v_mov_b32 v17, s46
            ds_write_b32 v17, v15 offset:{D_R}
            s_waitcnt lgkmcnt(0)
            """)
    lds_sync(k, 8, 4, 124, 125, 126, 46)
    k.e(f"""
            s_and_b32 s47, s20, 2
            s_lshl_b32 s47, s47, 2
            v_mov_b32 v18, s47
            ds_read_b64 v[20:21], v18 offset:{D_R}
            s_waitcnt lgkmcnt(0)
            v_max_f32 v15, v20, v21
            v_sub_f32 v8, v8, v15
            v_exp_f32 v8, v8
            s_nop 0
            v_mul_f32 v19, v8, v9""")
    k.allreduce("add", 19, 16)
    k.e(f"""ds_write_b32 v17, v19 offset:{D_R+16}
            s_waitcnt lgkmcnt(0)
            """)
    lds_sync(k, 9, 4, 124, 125, 126, 46)
    k.e(f"""
            ds_read_b64 v[20:21], v18 offset:{D_R+16}
            s_waitcnt lgkmcnt(0)
            v_add_f32 v19, v20, v21
            v_rcp_f32 v19, v19
            s_nop 0
            v_mul_f32 v8, v8, v19""")
    k.hilo(8, 22, 23, 24)
    k.e(f"""v_lshrrev_b32 v25, 7, v0
            v_lshlrev_b32 v25, 9, v25
            v_lshl_add_u32 v25, v6, 1, v25
            ds_write_b16 v25, v22 offset:{D_A}
            ds_write_b16 v25, v23 offset:{D_A+256}
            s_waitcnt vmcnt(0) lgkmcnt(0)
            """)
    lds_sync(k, 10, 4, 124, 125, 126, 46)
    k.e(f"""""")
    k.stamp(7)
    k.e(f"""v_and_b32 v26, 1, v1
            v_lshlrev_b32 v26, 8, v26
            v_lshl_add_u32 v26, v4, 4, v26
            s_lshr_b32 s46, s20, 1
            s_lshl_b32 s47, s46, 9
            v_add_u32 v26, s47, v26""")
    for t in range(4):
        k.e(f"ds_read_b128 v[{28+4*t}:{31+4*t}], v26 offset:{D_A + 64*t}")
    k.e(f"""v_lshrrev_b32 v9, 2, v3
            v_lshl_add_u32 v10, v4, 3, v9
            v_lshlrev_b32 v10, 7, v10
            v_and_b32 v11, 2, v9
            v_and_b32 v12, 1, v4
            v_lshl_or_b32 v11, v12, 2, v11
            v_bfe_u32 v12, v3, 1, 1
            s_and_b32 s47, s20, 1
            s_lshl_b32 s47, s47, 2
            v_add_u32 v12, s47, v12
            v_and_b32 v13, 1, v3
            v_lshl_add_u32 v10, v13, 3, v10
            s_lshl_b32 s47, s46, 14
            s_add_u32 s47, s47, {OST_L}
            v_add_u32 v10, s47, v10""")
    for nt in range(2):
        k.e(f"""v_add_u32 v14, {2*nt}, v12
                v_xor_b32 v14, v14, v11
                v_lshl_add_u32 v{15+nt}, v14, 4, v10""")
    for nt in range(2):
        for t in range(4):
            d = 44 + 16*nt + 4*t
            k.e(f"""ds_read_b64_tr_b16 v[{d}:{d+1}], v{15+nt} offset:{4096*t}
                    ds_read_b64_tr_b16 v[{d+2}:{d+3}], v{15+nt} offset:{4096*t + 512}""")
    k.e("s_waitcnt lgkmcnt(0)")
    for nt in range(2):
        for t in range(4):
            d = 44 + 16*nt + 4*t
            acc = 20 if nt == 0 else 76
            cin = "0" if t == 0 else f"v[{acc}:{acc+3}]"
            k.e(f"v_mfma_f32_16x16x32_bf16 v[{acc}:{acc+3}], v[{28+4*t}:{31+4*t}], v[{d}:{d+3}], {cin}")
    k.e(f"""s_and_b32 s47, s20, 1
            s_lshl_b32 s47, s47, 6
            s_lshl_b32 s50, s46, 7
            s_add_u32 s47, s47, s50
            v_lshl_add_u32 v27, v3, 1, s47
            s_nop 7""")
    for nt in range(2):
        acc = 20 if nt == 0 else 76
        k.e(f"v_add_f32 v8, v{acc}, v{acc+1}")
        k.hilo(8, 9, 24, 25)
        k.e(f"""ds_write_b16 v27, v9 offset:{D_A2 + 32*nt}
                ds_write_b16 v27, v24 offset:{D_A2 + 256 + 32*nt}""")
    k.e("s_waitcnt lgkmcnt(0)")
    lds_sync(k, 11, 4, 124, 125, 126, 46)
    k.e(f"""v_and_b32 v8, 3, v1
            v_lshlrev_b32 v8, 7, v8
            v_lshl_add_u32 v8, v4, 4, v8
            ds_read_b128 v[28:31], v8 offset:{D_A2}
            ds_read_b128 v[32:35], v8 offset:{D_A2+64}""")
    k.e(f"""v_lshrrev_b32 v9, 2, v3
            v_lshl_add_u32 v10, v4, 3, v9
            v_lshlrev_b32 v10, 8, v10
            v_and_b32 v11, 1, v4
            v_lshlrev_b32 v11, 3, v11
            v_lshl_or_b32 v11, v9, 1, v11
            v_bfe_u32 v12, v3, 1, 1
            s_lshl_b32 s47, s20, 2
            v_add_u32 v12, s47, v12
            v_and_b32 v13, 1, v3
            v_lshl_add_u32 v10, v13, 3, v10""")
    for nt in range(2):
        k.e(f"""v_add_u32 v14, {2*nt}, v12
                v_xor_b32 v14, v14, v11
                v_lshl_add_u32 v{15+nt}, v14, 4, v10""")
    for nt in range(2):
        for t in range(2):
            d = 44 + 8*nt + 4*t
            k.e(f"""ds_read_b64_tr_b16 v[{d}:{d+1}], v{15+nt} offset:{WUV_L + 8192*t}
                    ds_read_b64_tr_b16 v[{d+2}:{d+3}], v{15+nt} offset:{WUV_L + 8192*t + 1024}""")
    k.e("s_waitcnt lgkmcnt(0)")
    for nt in range(2):
        acc = 20 if nt == 0 else 76
        for t in range(2):
            d = 44 + 8*nt + 4*t
            cin = "0" if t == 0 else f"v[{acc}:{acc+3}]"
            k.e(f"v_mfma_f32_16x16x32_bf16 v[{acc}:{acc+3}], v[{28+4*t}:{31+4*t}], v[{d}:{d+3}], {cin}")
    k.e(f"""s_lshl_b32 s47, s22, 15
            s_lshl_b32 s50, s21, 9
            s_add_u32 s47, s47, s50
            s_lshl_b32 s50, s20, 7
            s_add_u32 s47, s47, s50
            v_lshl_add_u32 v27, v3, 2, s47
            s_nop 7
            v_add_f32 v8, v20, v22
            v_add_f32 v9, v21, v23
            v_add_f32 v10, v76, v78
            v_add_f32 v11, v77, v79""")
    k.sanitize([8, 9, 10, 11], 12)
    k.e(f"""s_mov_b32 s47, 16384
            v_cmp_gt_u32 vcc, 16, v1
            s_and_saveexec_b64 s[50:51], vcc
            buffer_store_dword v8, v27, s[36:39], 0 offen sc1
            buffer_store_dword v9, v27, s[36:39], s47 offen sc1
            buffer_store_dword v10, v27, s[36:39], 0 offen offset:64 sc1
            buffer_store_dword v11, v27, s[36:39], s47 offen offset:64 sc1
            s_mov_b64 exec, s[50:51]""")
    k.stamp(8)
    LPE, LPG = k.newlab("phE"), k.newlab("phG")
    k.e(f"s_cmp_ge_u32 s2, 144\ns_cbranch_scc1 {LPE}")
    phase_f(k)
    k.e(f"s_branch {k.name}_end")
    k.lab(LPE)
    k.e(f"s_cmp_ge_u32 s2, 216\ns_cbranch_scc1 {LPG}")
    phase_e(k)
    k.e(f"s_branch {k.name}_end")
    k.lab(LPG)
    k.e(f"s_cmp_ge_u32 s2, 234\ns_cbranch_scc1 {k.name}_end")
    phase_g(k)

def phase_e(k):
    A_LDS = T_A
    k.e("""v_lshrrev_b32 v5, 7, v0
           v_and_b32 v6, 127, v0
           v_lshlrev_b32 v8, 14, v5
           v_lshl_add_u32 v8, v6, 4, v8
           s_lshl_b32 s40, s48, 11""")
    loads = []
    for j in range(8):
        loads.append(f"s_add_u32 s41, s40, {32768*j}\nbuffer_load_dwordx4 v[{20+4*j}:{23+4*j}], v8, s[36:39], s41 offen sc1")
    poll_gather(k, loads, list(range(20, 52)), 46)
    k.stamp(9)
    for j in range(1, 8):
        for e in range(4):
            k.e(f"v_add_f32 v{20+e}, v{20+e}, v{20+4*j+e}")
    k.e("""v_cvt_pk_bf16_f32 v24, v20, v21
           v_cvt_pk_bf16_f32 v25, v22, v23
           v_lshlrev_b32 v26, 16, v24
           v_and_b32 v27, 0xffff0000, v24
           v_lshlrev_b32 v28, 16, v25
           v_and_b32 v29, 0xffff0000, v25
           v_sub_f32 v20, v20, v26
           v_sub_f32 v21, v21, v27
           v_sub_f32 v22, v22, v28
           v_sub_f32 v23, v23, v29
           v_cvt_pk_bf16_f32 v26, v20, v21
           v_cvt_pk_bf16_f32 v27, v22, v23
           v_lshlrev_b32 v12, 10, v5
           v_lshl_add_u32 v12, v6, 3, v12""")
    k.e(f"""ds_write_b64 v12, v[24:25] offset:{A_LDS}
            ds_write_b64 v12, v[26:27] offset:{A_LDS+2048}
            s_waitcnt lgkmcnt(0)
            s_barrier""")
    k.e("""v_and_b32 v8, 3, v1
           v_lshlrev_b32 v8, 10, v8
           v_lshl_add_u32 v8, v4, 4, v8""")
    for t in range(16):
        k.e(f"ds_read_b128 v[{20+4*t}:{23+4*t}], v8 offset:{A_LDS + 64*t}")
    k.e(f"""v_lshrrev_b32 v9, 2, v3
            v_lshl_add_u32 v10, v4, 3, v9
            v_lshlrev_b32 v10, 7, v10
            v_and_b32 v11, 2, v9
            v_and_b32 v12, 1, v4
            v_lshl_or_b32 v11, v12, 2, v11
            v_bfe_u32 v12, v3, 1, 1
            s_lshl_b32 s47, s20, 1
            v_add_u32 v12, s47, v12
            v_and_b32 v13, 1, v3
            v_lshl_add_u32 v10, v13, 3, v10
            v_xor_b32 v12, v12, v11
            v_lshl_add_u32 v15, v12, 4, v10
            v_add_u32 v15, {BIG_L}, v15""")
    for c in range(2):
        for i in range(8):
            t = 8*c + i
            d = 88 + 4*i
            k.e(f"""ds_read_b64_tr_b16 v[{d}:{d+1}], v15 offset:{4096*t}
                    ds_read_b64_tr_b16 v[{d+2}:{d+3}], v15 offset:{4096*t + 512}""")
        k.e("s_waitcnt lgkmcnt(0)")
        for i in range(8):
            t = 8*c + i
            d = 88 + 4*i
            cin = "0" if t == 0 else "v[120:123]"
            k.e(f"v_mfma_f32_16x16x32_bf16 v[120:123], v[{20+4*t}:{23+4*t}], v[{d}:{d+3}], {cin}")
        k.e("s_nop 3")
    k.e(f"""s_mul_i32 s45, s48, 4608
            s_lshl_b32 s46, s49, 8
            s_add_u32 s45, s45, s46
            s_lshl_b32 s46, s20, 6
            s_add_u32 s45, s45, s46
            v_lshl_add_u32 v12, v3, 2, s45
            s_nop 7
            v_add_f32 v8, v120, v122
            v_add_f32 v9, v121, v123""")
    k.sanitize([8, 9], 10)
    k.e(f"""v_cmp_gt_u32 vcc, 16, v1
            s_and_saveexec_b64 s[50:51], vcc
            s_mov_b32 s45, 0""")
    for r in range(8):
        k.e("""buffer_store_dword v8, v12, s[56:59], s45 offen sc1
               buffer_store_dword v9, v12, s[56:59], s45 offen offset:2304 sc1
               s_add_u32 s45, s45, 36864""")

def phase_f(k):
    A_LDS, R_LDS, GU_LDS, A2_LDS = T_A, T_A + 4608, T_A + 4672, T_A + 5184
    D_LDS = OST_L
    k.e("s_barrier")
    k.e(f"""v_lshlrev_b32 v9, 4, v1
            s_mul_i32 s41, s2, 36864
            s_mul_i32 s42, s20, 9216
            s_add_u32 s41, s41, s42
            s_add_u32 s43, s42, {D_LDS}""")
    for mi in range(9):
        k.e(f"""s_mov_b32 m0, s43
                s_add_u32 s43, s43, 1024
                buffer_load_dwordx4 v9, s[84:87], s41 offen nt lds
                s_add_u32 s41, s41, 1024""")
    k.stamp(10)
    k.e("""v_lshlrev_b32 v5, 4, v0
           v_mov_b32 v6, 0x7fffffff
           v_cmp_gt_u32 vcc, 144, v0
           s_nop 1
           v_cndmask_b32 v5, v6, v5, vcc
           v_lshrrev_b32 v8, 1, v5
           v_cndmask_b32 v8, v6, v8, vcc
           s_mov_b64 s[64:65], vcc""")
    k.e("""buffer_load_dwordx2 v[84:85], v8, s[88:91], 0 offen
           buffer_load_dwordx2 v[86:87], v8, s[88:91], 0 offen offset:1152""")
    k.e("s_and_b32 s41, s2, 7\ns_mul_i32 s41, s41, 36864")
    loads = []
    for ks in range(8):
        for b in range(2):
            r = 20 + 8*ks + 4*b
            loads.append(f"s_add_u32 s40, s41, {4608*ks}\nbuffer_load_dwordx4 v[{r}:{r+3}], v5, s[56:59], s40 offen offset:{2304*b} sc1")
    poll_gather(k, loads, list(range(20, 84)), 46)
    k.stamp(9)
    for ks in range(1, 8):
        for e in range(8):
            k.e(f"v_add_f32 v{20+e}, v{20+e}, v{20+8*ks+e}")
    for b in range(2):
        k.e(f"""v_lshlrev_b32 v12, 16, v{84+2*b}
                v_and_b32 v13, 0xffff0000, v{84+2*b}
                v_lshlrev_b32 v14, 16, v{85+2*b}
                v_and_b32 v15, 0xffff0000, v{85+2*b}
                v_add_f32 v{20+4*b}, v{20+4*b}, v12
                v_add_f32 v{21+4*b}, v{21+4*b}, v13
                v_add_f32 v{22+4*b}, v{22+4*b}, v14
                v_add_f32 v{23+4*b}, v{23+4*b}, v15""")
    k.e(f"""v_add_u32 v16, {BIG_L + 73728}, v5
            s_mov_b64 s[66:67], exec
            s_mov_b64 exec, s[64:65]
            ds_write_b128 v16, v[20:23]
            ds_write_b128 v16, v[24:27] offset:2304
            s_mov_b64 exec, s[66:67]""")
    k.e("""v_add_f32 v28, v20, v21
           v_add_f32 v29, v22, v23
           v_add_f32 v28, v28, v29
           v_add_f32 v29, v24, v25
           v_add_f32 v30, v26, v27
           v_add_f32 v29, v29, v30""")
    k.allreduce("add", 28, 31)
    k.allreduce("add", 29, 31)
    k.e(f"""s_lshl_b32 s46, s20, 3
            v_mov_b32 v32, s46
            v_mov_b32 v33, 0
            ds_write_b64 v32, v[28:29] offset:{R_LDS}
            s_waitcnt lgkmcnt(0)
            s_barrier
            ds_read_b128 v[36:39], v33 offset:{R_LDS}
            ds_read_b64 v[40:41], v33 offset:{R_LDS+16}
            s_waitcnt lgkmcnt(0)
            v_add_f32 v28, v36, v38
            v_add_f32 v28, v28, v40
            v_add_f32 v29, v37, v39
            v_add_f32 v29, v29, v41
            v_mul_f32 v28, {f2u(1.0/576)}, v28
            v_mul_f32 v29, {f2u(1.0/576)}, v29""")
    for b in range(2):
        for e in range(4):
            k.e(f"v_sub_f32 v{20+4*b+e}, v{20+4*b+e}, v{28+b}")
    for b in range(2):
        k.e(f"""v_mul_f32 v{30+b}, v{20+4*b}, v{20+4*b}
                v_fmac_f32 v{30+b}, v{21+4*b}, v{21+4*b}
                v_fmac_f32 v{30+b}, v{22+4*b}, v{22+4*b}
                v_fmac_f32 v{30+b}, v{23+4*b}, v{23+4*b}
                v_cndmask_b32 v{30+b}, 0, v{30+b}, s[64:65]""")
    k.allreduce("add", 30, 34)
    k.allreduce("add", 31, 34)
    k.e(f"""ds_write_b64 v32, v[30:31] offset:{R_LDS+32}
            s_waitcnt lgkmcnt(0)
            s_barrier
            ds_read_b128 v[36:39], v33 offset:{R_LDS+32}
            ds_read_b64 v[40:41], v33 offset:{R_LDS+48}
            s_waitcnt lgkmcnt(0)
            v_add_f32 v30, v36, v38
            v_add_f32 v30, v30, v40
            v_add_f32 v31, v37, v39
            v_add_f32 v31, v31, v41
            v_mov_b32 v34, {f2u(1e-5)}
            v_mov_b32 v35, {f2u(1e-5)}
            v_fmac_f32 v34, {f2u(1.0/576)}, v30
            v_fmac_f32 v35, {f2u(1.0/576)}, v31
            v_rsq_f32 v34, v34
            v_rsq_f32 v35, v35
            v_lshlrev_b32 v12, 3, v0""")
    for b in range(2):
        o = 20 + 4*b
        for e in range(4):
            k.e(f"v_mul_f32 v{o+e}, v{o+e}, v{34+b}")
        k.e(f"""v_cvt_pk_bf16_f32 v36, v{o}, v{o+1}
                v_cvt_pk_bf16_f32 v37, v{o+2}, v{o+3}
                v_lshlrev_b32 v38, 16, v36
                v_and_b32 v39, 0xffff0000, v36
                v_lshlrev_b32 v40, 16, v37
                v_and_b32 v41, 0xffff0000, v37
                v_sub_f32 v{o}, v{o}, v38
                v_sub_f32 v{o+1}, v{o+1}, v39
                v_sub_f32 v{o+2}, v{o+2}, v40
                v_sub_f32 v{o+3}, v{o+3}, v41
                v_cvt_pk_bf16_f32 v38, v{o}, v{o+1}
                v_cvt_pk_bf16_f32 v39, v{o+2}, v{o+3}
                s_mov_b64 s[66:67], exec
                s_mov_b64 exec, s[64:65]
                ds_write_b64 v12, v[36:37] offset:{A_LDS + 1152*b}
                ds_write_b64 v12, v[38:39] offset:{A_LDS + 2304 + 1152*b}
                s_mov_b64 exec, s[66:67]""")
    k.e("s_waitcnt lgkmcnt(0)\ns_barrier")
    k.e(f"""v_and_b32 v8, 3, v1
            v_mul_u32_u24 v8, 1152, v8
            v_lshl_add_u32 v8, v4, 4, v8
            s_and_b32 s44, s20, 1
            s_lshl_b32 s44, s44, 1
            s_lshr_b32 s45, s20, 1
            s_mul_i32 s45, s45, 36864
            s_add_u32 s45, s45, {BIG_L}""")
    for t in range(18):
        k.e(f"ds_read_b128 v[{20+4*t}:{23+4*t}], v8 offset:{A_LDS + 64*t}")
    tr64_base(k, 15, 3, 4, 44, 10, 11)
    k.e("v_add_u32 v15, s45, v15")
    for c in range(3):
        for i in range(6):
            t = 6*c + i
            d = 96 + 4*i
            k.e(f"""ds_read_b64_tr_b16 v[{d}:{d+1}], v15 offset:{2048*t}
                    ds_read_b64_tr_b16 v[{d+2}:{d+3}], v15 offset:{2048*t + 256}""")
        k.e("s_waitcnt lgkmcnt(0)")
        for i in range(6):
            t = 6*c + i
            d = 96 + 4*i
            cin = "0" if t == 0 else "v[120:123]"
            k.e(f"v_mfma_f32_16x16x32_bf16 v[120:123], v[{20+4*t}:{23+4*t}], v[{d}:{d+3}], {cin}")
        k.e("s_nop 3")
    k.e("s_nop 7")
    k.e(f"""s_lshr_b32 s45, s20, 1
            s_lshl_b32 s45, s45, 8
            s_and_b32 s46, s20, 1
            s_lshl_b32 s46, s46, 6
            s_add_u32 s45, s45, s46
            v_lshl_add_u32 v12, v3, 2, s45
            v_add_f32 v8, v120, v122
            v_add_f32 v9, v121, v123
            ds_write_b32 v12, v8 offset:{GU_LDS}
            ds_write_b32 v12, v9 offset:{GU_LDS+128}
            s_waitcnt lgkmcnt(0)
            s_barrier
            v_lshlrev_b32 v12, 2, v1
            ds_read_b32 v8, v12 offset:{GU_LDS}
            ds_read_b32 v9, v12 offset:{GU_LDS+256}
            s_waitcnt lgkmcnt(0)
            v_mul_f32 v10, {f2u(-LOG2E)}, v8
            v_exp_f32 v10, v10
            s_nop 0
            v_add_f32 v10, 1.0, v10
            v_rcp_f32 v10, v10
            s_nop 0
            v_mul_f32 v8, v8, v10
            v_mul_f32 v8, v8, v9""")
    k.hilo(8, 9, 10, 11)
    k.e(f"""v_lshlrev_b32 v12, 1, v1
            ds_write_b16 v12, v9 offset:{A2_LDS}
            ds_write_b16 v12, v10 offset:{A2_LDS+128}
            s_waitcnt lgkmcnt(0)
            s_barrier
            v_and_b32 v8, 3, v1
            v_lshlrev_b32 v8, 6, v8
            v_lshl_add_u32 v8, v4, 4, v8
            ds_read_b128 v[20:23], v8 offset:{A2_LDS}""")
    k.e(f"""v_lshrrev_b32 v10, 2, v3
            v_lshl_add_u32 v10, v4, 3, v10
            v_mul_u32_u24 v10, 1152, v10
            v_and_b32 v11, 3, v3
            v_lshl_add_u32 v10, v11, 3, v10
            s_mul_i32 s45, s20, 288
            s_add_u32 s45, s45, {D_LDS}
            v_add_u32 v10, s45, v10""")
    for n in range(9):
        d = 24 + 4*n
        k.e(f"""ds_read_b64_tr_b16 v[{d}:{d+1}], v10 offset:{32*n}
                ds_read_b64_tr_b16 v[{d+2}:{d+3}], v10 offset:{32*n + 4608}""")
    k.e(f"""s_mul_i32 s46, s20, 576
            s_add_u32 s46, s46, {BIG_L + 73728}
            v_lshl_add_u32 v13, v3, 2, s46""")
    for n in range(9):
        k.e(f"""ds_read_b32 v{100+2*n}, v13 offset:{64*n}
                ds_read_b32 v{101+2*n}, v13 offset:{2304 + 64*n}""")
    k.e("s_waitcnt lgkmcnt(0)")
    for n in range(9):
        d = 24 + 4*n
        k.e(f"v_mfma_f32_16x16x32_bf16 v[{64+4*n}:{67+4*n}], v[20:23], v[{d}:{d+3}], 0")
    k.e(f"""s_mul_i32 s45, s2, 4608
            s_mul_i32 s46, s20, 576
            s_add_u32 s45, s45, s46
            v_lshl_add_u32 v12, v3, 2, s45
            s_cmp_eq_u32 s2, 0
            s_cselect_b32 s47, 1.0, 0
            v_mov_b32 v14, 0x7fc00000
            s_nop 4""")
    for n in range(9):
        a = 64 + 4*n
        k.e(f"""v_add_f32 v{a}, v{a}, v{a+2}
                v_add_f32 v{a+1}, v{a+1}, v{a+3}""")
    Lh = k.newlab("noh")
    k.e(f"s_cbranch_scc0 {Lh}")
    for n in range(9):
        a = 64 + 4*n
        k.e(f"""v_add_f32 v{a}, v{a}, v{100+2*n}
                v_add_f32 v{a+1}, v{a+1}, v{101+2*n}""")
    k.lab(Lh)
    for n in range(9):
        a = 64 + 4*n
        k.e(f"""v_cmp_eq_u32 vcc, -1, v{a}
                v_cmp_eq_u32 s[66:67], -1, v{a+1}
                s_nop 1
                v_cndmask_b32 v{a}, v{a}, v14, vcc
                v_cndmask_b32 v{a+1}, v{a+1}, v14, s[66:67]""")
    k.e("""v_cmp_gt_u32 vcc, 16, v1
           s_and_saveexec_b64 s[50:51], vcc""")
    for n in range(9):
        a = 64 + 4*n
        k.e(f"""buffer_store_dword v{a}, v12, s[60:63], 0 offen offset:{64*n} sc1
                buffer_store_dword v{a+1}, v12, s[60:63], 0 offen offset:{2304 + 64*n} sc1""")

def phase_g(k):
    k.e("""s_sub_u32 s48, s2, 216
           v_lshrrev_b32 v5, 4, v0
           v_and_b32 v6, 15, v0
           v_mul_u32_u24 v8, 4608, v5
           v_lshl_add_u32 v8, v6, 4, v8
           s_lshl_b32 s40, s48, 8""")
    loads = []
    for i in range(9):
        loads.append(f"s_add_u32 s41, s40, {16*4608*i}\nbuffer_load_dwordx4 v[{20+4*i}:{23+4*i}], v8, s[60:63], s41 offen sc1")
    poll_gather(k, loads, list(range(20, 56)), 46)
    k.stamp(9)
    for i in range(1, 9):
        for e in range(4):
            k.e(f"v_add_f32 v{20+e}, v{20+e}, v{20+4*i+e}")
    k.e(f"""v_lshlrev_b32 v9, 4, v0
            v_lshlrev_b32 v10, 2, v0
            ds_write_b128 v9, v[20:23] offset:{T_A}
            s_waitcnt lgkmcnt(0)
            s_barrier
            s_cmp_lg_u32 s20, 0
            s_cbranch_scc1 {k.name}_end""")
    for i in range(16):
        k.e(f"ds_read_b32 v{20+i}, v10 offset:{T_A + 256*i}")
    k.e("s_waitcnt lgkmcnt(0)")
    for i in range(1, 16):
        k.e(f"v_add_f32 v20, v20, v{20+i}")
    k.e("""v_cvt_pk_bf16_f32 v20, v20, v20
           v_lshlrev_b32 v10, 1, v0
           s_lshl_b32 s41, s48, 7
           buffer_store_short v20, v10, s[92:95], s41 offen""")

def k2_main():
    k = Kern("k_main_kernel", 256, 512, LDS_TOTAL, 256)
    guard(k, 256)
    k.ldptr(4, "ckv"); k.ldptr(10, "ws")
    wave_id(k, 20, 1)
    k.e(f"""v_and_b32 v1, 63, v0
            v_mov_b32 v2, 0
            v_lshlrev_b32 v3, 2, v1
            v_cmp_gt_u32 vcc, 20, v0
            s_and_saveexec_b64 s[48:49], vcc
            ds_write_b32 v3, v2 offset:{SYNC}
            s_mov_b64 exec, s[48:49]
            s_waitcnt lgkmcnt(0)
            s_barrier""")
    LB = k.newlab("teamB")
    if STAMP:
        k.sgpr = 102
        k.e("s_mov_b32 s101, s20\nv_mov_b32 v255, 0")
        k.stamp(0)
    k.e(f"s_cmp_ge_u32 s20, 4\ns_cbranch_scc1 {LB}")
    team_a(k)
    k.lab(LB)
    team_b(k)
    k.lab(f"{k.name}_end")
    if STAMP:
        k.e(f"s_cmp_ge_u32 s2, 256\ns_cbranch_scc1 {k.name}_end2")
        k.stamp_out()
        k.lab(f"{k.name}_end2")
    return k

def main():
    ks = [k1_qpart(), k2_main()]
    out = [HEADER.rstrip("\n")]
    for k in ks:
        out.append(f"; @launch kernel={k.name} grid=({k.grid},1,1) block=({k.block},1,1) lds={k.lds}")
    out.append('.amdgcn_target "amdgcn-amd-amdhsa--gfx950"\n.text')
    for k in ks:
        out.append(k.text())
    open(sys.argv[1] if len(sys.argv) > 1 else "u.s", "w").write("\n".join(out))
main()
```

```python
import sys, struct

HEADER = open("sequential_preLN__compressed_kv_cla__swiglu_ffn__decode.s.ref").read().split("; Override launch")[0]

WS_QA   = 0x000000
WS_ML   = 0x010000
WS_QP   = 0x020000
WS_INIT = 0x080000
WS_CTX  = 0x080000
WS_DNP  = 0x0C0000
WS_OUTP = 0x170000
WS_FL   = 0x1C0000
WS_OP   = 0x200000
INIT_BYTES = 0x180000
SENT = 0xFFFFFFFF
SPIN_MAX = 40000
import os
STAMP = bool(os.environ.get('STAMP'))

KA = dict(x=0, ckv=8, wq=16, wuk=24, wuv=32, wo=40, bx=48, wg=56, wu=64, wd=72, out=80, dbg=88, ws=96)
SZ = dict(x=2304, ckv=33554432, wq=4718592, wuk=4194304, wuv=4194304, wo=4718592, wg=5308416, wu=5308416,
          wd=5308416, out=2304)
LOG2E = 1.4426950408889634
def f2u(f): return struct.unpack("<I", struct.pack("<f", f))[0]

class Kern:
    def __init__(self, name, grid, block, lds, vgpr, sgpr=100):
        self.name, self.grid, self.block, self.lds, self.vgpr, self.sgpr = name, grid, block, lds, vgpr, sgpr
        self.lines = []
        self.nlab = 0
    def e(self, s):
        for l in s.strip("\n").split("\n"):
            if l.strip(): self.lines.append("    " + l.strip())
    def lab(self, s): self.lines.append(s + ":")
    def newlab(self, p):
        self.nlab += 1
        return f"{self.name}_{p}{self.nlab}"
    def ldptr(self, d, key): self.e(f"s_load_dwordx2 s[{d}:{d+1}], s[0:1], {KA[key]}")
    def srd(self, d, p, n, off=0):
        if off:
            self.e(f"s_add_u32 s{d}, s{p}, {off}\ns_addc_u32 s{d+1}, s{p+1}, 0")
        else:
            self.e(f"s_mov_b32 s{d}, s{p}\ns_mov_b32 s{d+1}, s{p+1}")
        self.e(f"s_mov_b32 s{d+2}, {n}\ns_mov_b32 s{d+3}, 0x00020000")
    def allreduce(self, op, x, t):
        for ctl in ("quad_perm:[1,0,3,2]", "quad_perm:[2,3,0,1]", "row_half_mirror", "row_mirror"):
            self.e(f"s_nop 1\nv_{op}_f32_dpp v{x}, v{x}, v{x} {ctl} row_mask:0xf bank_mask:0xf")
        for sw in ("v_permlane16_swap_b32", "v_permlane32_swap_b32"):
            self.e(f"v_mov_b32 v{t}, v{x}\ns_nop 1\n{sw} v{x}, v{t}\ns_nop 0\nv_{op}_f32 v{x}, v{x}, v{t}")
    def hilo(self, x, hi, lo, t):
        self.e(f"""v_cvt_pk_bf16_f32 v{hi}, v{x}, v{x}
                   v_lshlrev_b32 v{t}, 16, v{hi}
                   v_sub_f32 v{t}, v{x}, v{t}
                   v_cvt_pk_bf16_f32 v{lo}, v{t}, v{t}""")
    def sanitize(self, regs, tmp):
        self.e(f"v_mov_b32 v{tmp}, 0x7fc00000")
        for r in regs:
            self.e(f"v_cmp_eq_u32 vcc, -1, v{r}\ns_nop 1\nv_cndmask_b32 v{r}, v{r}, v{tmp}, vcc")
    def stamp(self, idx):
        if not STAMP: return
        self.e(f"s_memrealtime s[96:97]\ns_waitcnt lgkmcnt(0)\nv_writelane_b32 v255, s96, {idx}")
    def stamp_out(self):
        if not STAMP: return
        self.e(f"""s_mov_b64 exec, -1
                   s_waitcnt vmcnt(0)
                   s_memrealtime s[96:97]
                   s_waitcnt lgkmcnt(0)
                   v_writelane_b32 v255, s96, 15
                   s_add_u32 s96, s10, 0x1000000
                   s_addc_u32 s97, s11, 0
                   s_mov_b32 s98, 0x1000000
                   s_mov_b32 s99, 0x00020000
                   v_mbcnt_lo_u32_b32 v254, -1, 0
                   v_mbcnt_hi_u32_b32 v254, -1, v254
                   s_lshl_b32 s100, s2, 3
                   s_add_u32 s100, s100, s101
                   s_lshl_b32 s100, s100, 8
                   v_lshl_add_u32 v254, v254, 2, s100
                   buffer_store_dword v255, v254, s[96:99], 0 offen""")
    def text(self):
        acc = (self.vgpr + 3) // 4 * 4
        return "\n".join([
            f".globl {self.name}", ".p2align 8", f".type {self.name},@function", f"{self.name}:"] + self.lines + [
            "    s_endpgm",
            '.section .rodata,"a"', ".p2align 6", f".amdhsa_kernel {self.name}",
            f"  .amdhsa_next_free_vgpr {self.vgpr}", f"  .amdhsa_next_free_sgpr {self.sgpr}",
            f"  .amdhsa_accum_offset {acc}", "  .amdhsa_group_segment_fixed_size 0", "  .amdhsa_kernarg_size 104",
            "  .amdhsa_user_sgpr_count 2", "  .amdhsa_user_sgpr_kernarg_segment_ptr 1",
            "  .amdhsa_system_sgpr_workgroup_id_x 1", ".end_amdhsa_kernel", ".text", ""])

def guard(k, n):
    k.e(f"s_cmp_ge_u32 s2, {n}\ns_cbranch_scc1 {k.name}_end")

def wave_id(k, sdst, vt):
    k.e(f"v_lshrrev_b32 v{vt}, 6, v0\ns_nop 0\nv_readfirstlane_b32 s{sdst}, v{vt}")

RS = 1040
PX, MX, SX, SYNC, CT = 0, 8192, 8704, 9216, 9296
NONCE_L = SYNC + 64
WQ_L = CT + 128 * RS
LDS_TOTAL = WQ_L
LN_L, QQ_L = 0, 4608
D_A, D_A2, D_R = 0, 1024, 2048
T_A = 2304
WUV_L, OST_L, BIG_L = 9728, 26112, 63488

def lds_sync(k, word, target, vz, vone, vt, st):
    L = k.newlab("spin")
    k.e(f"""s_mov_b64 exec, 1
            ds_add_u32 v{vz}, v{vone} offset:{SYNC + 4*word}
            s_mov_b64 exec, -1""")
    k.lab(L)
    k.e(f"""ds_read_b32 v{vt}, v{vz} offset:{SYNC + 4*word}
            s_waitcnt lgkmcnt(0)
            v_readfirstlane_b32 s{st}, v{vt}
            s_cmp_lt_u32 s{st}, {target}
            s_cbranch_scc1 {L}""")

def poll_flags(k, vmask, vt, scnt, srd):
    L = k.newlab("pf"); Ld = k.newlab("pfd")
    k.e(f"s_mov_b32 s{scnt}, 0")
    k.lab(L)
    k.e(f"""buffer_load_dword v{vt}, v{vt+2}, s[{srd}:{srd+3}], 0 offen sc1
            s_waitcnt vmcnt(0)
            v_and_b32 v{vt}, v{vt}, v{vmask}
            v_cmp_ne_u32 vcc, v{vt}, v{vmask}
            s_add_u32 s{scnt}, s{scnt}, 1
            s_cmp_gt_u32 s{scnt}, {SPIN_MAX}
            s_cbranch_scc1 {Ld}
            s_cbranch_vccnz {L}""")
    k.lab(Ld)

def single_poll(k, word, vz, vone, vt, st, srd, soff, slp=3):
    L, Ld, Lo, Le = k.newlab("sp"), k.newlab("spd"), k.newlab("spo"), k.newlab("spe")
    k.e(f"s_cmp_lg_u32 s20, 0\ns_cbranch_scc1 {Lo}\ns_mov_b32 s{st}, 0")
    k.lab(L)
    k.e(f"""buffer_load_dwordx4 v[{vt}:{vt+3}], v{vt+4}, s[{srd}:{srd+3}], s{soff} offen sc1
            s_waitcnt vmcnt(0)
            v_max_u32 v{vt}, v{vt}, v{vt+1}
            v_max3_u32 v{vt}, v{vt}, v{vt+2}, v{vt+3}
            v_cmp_eq_u32 vcc, -1, v{vt}
            s_add_u32 s{st}, s{st}, 1
            s_cmp_gt_u32 s{st}, {SPIN_MAX}
            s_cbranch_scc1 {Ld}
            s_cbranch_vccz {Ld}
            s_sleep {slp}
            s_branch {L}""")
    k.lab(Ld)
    k.e(f"""ds_write_b32 v{vz}, v{vone} offset:{SYNC + 4*word}
            s_branch {Le}""")
    k.lab(Lo)
    lds_wait(k, word, 1, vz, vt, st, sleep=1)
    k.lab(Le)

def publish_rep(k, word, srd, hop, vz, vone, vt, st):
    L = k.newlab("pub")
    k.e(f"""s_waitcnt vmcnt(0)
            s_mov_b64 exec, 1
            ds_add_rtn_u32 v{vt}, v{vz}, v{vone} offset:{SYNC + 4*word}
            s_waitcnt lgkmcnt(0)
            v_readfirstlane_b32 s{st}, v{vt}
            s_mov_b64 exec, 0xff
            s_cmp_lg_u32 s{st}, 3
            s_cbranch_scc1 {L}
            s_lshl_b32 s{st}, s2, 2
            s_add_u32 s{st}, s{st}, {8192*hop}
            v_lshlrev_b32 v{vt}, 10, v1
            buffer_store_dword v{vone}, v{vt}, s[{srd}:{srd+3}], s{st} offen sc1""")
    k.lab(L)
    k.e("s_mov_b64 exec, -1")

def publish_flag(k, word, val, srd, vz, vone, vt, st):
    L = k.newlab("pub")
    k.e(f"""s_waitcnt vmcnt(0)
            s_mov_b64 exec, 1
            ds_add_rtn_u32 v{vt}, v{vz}, v{vone} offset:{SYNC + 4*word}
            s_waitcnt lgkmcnt(0)
            v_readfirstlane_b32 s{st}, v{vt}
            s_cmp_lg_u32 s{st}, 3
            s_cbranch_scc1 {L}
            v_mov_b32 v{vt}, s2
            v_mov_b32 v{vt+1}, {val}
            buffer_store_byte v{vt+1}, v{vt}, s[{srd}:{srd+3}], 0 offen sc1""")
    k.lab(L)
    k.e("s_mov_b64 exec, -1")

def lds_wait(k, word, target, vz, vt, st, sleep=0):
    L = k.newlab("lw")
    k.lab(L)
    if sleep: k.e(f"s_sleep {sleep}")
    k.e(f"""ds_read_b32 v{vt}, v{vz} offset:{SYNC + 4*word}
            s_waitcnt lgkmcnt(0)
            v_readfirstlane_b32 s{st}, v{vt}
            s_cmp_lt_u32 s{st}, {target}
            s_cbranch_scc1 {L}""")

def k1_qpart():
    WQ1, LN1 = 5120, 0
    k = Kern("k1_qpart_kernel", 256, 256, WQ1 + 18432, 80)
    guard(k, 256)
    k.ldptr(12, "x"); k.ldptr(14, "wq"); k.ldptr(10, "ws")
    wave_id(k, 20, 1)
    k.e("""v_and_b32 v1, 63, v0
           s_and_b32 s21, s2, 31
           s_lshr_b32 s22, s2, 5
           v_and_b32 v3, 15, v1
           v_lshrrev_b32 v4, 4, v1
           s_waitcnt lgkmcnt(0)""")
    k.srd(24, 12, SZ["x"]); k.srd(28, 14, SZ["wq"]); k.srd(36, 10, 262144, WS_QP); k.srd(52, 10, INIT_BYTES, WS_INIT)
    k.e("s_and_b32 s23, s20, 1\ns_mul_i32 s23, s23, 1152\nv_lshlrev_b32 v2, 1, v1")
    for i in range(9):
        k.e(f"buffer_load_ushort v{10+i}, v2, s[24:27], s23 offen offset:{128*i}")
    k.e(f"""v_lshlrev_b32 v6, 1, v4
            v_xor_b32 v6, v6, v3
            v_lshlrev_b32 v6, 4, v6
            v_lshl_add_u32 v6, v4, 13, v6
            s_and_b32 s40, s20, 2
            s_lshl_b32 s40, s40, 6
            v_xor_b32 v6, s40, v6
            s_mul_i32 s41, s22, 72
            s_lshl_b32 s42, s20, 2
            s_add_u32 s41, s41, s42
            s_lshl_b32 s41, s41, 13
            s_lshl_b32 s42, s21, 8
            s_add_u32 s41, s41, s42
            s_lshl_b32 s43, s20, 10
            s_add_u32 s43, s43, {WQ1}""")
    Lq = k.newlab("wq4")
    for i in range(5):
        if i == 4: k.e(f"s_cmp_ge_u32 s20, 2\ns_cbranch_scc1 {Lq}")
        k.e(f"""s_mov_b32 m0, s43
                s_add_u32 s43, s43, 4096
                buffer_load_dwordx4 v6, s[28:31], s41 offen nt lds
                s_add_u32 s41, s41, {16*8192}""")
    k.lab(Lq)
    if os.environ.get("TOUCH"):
        STEP = int(os.environ["TOUCH"])
        k.ldptr(60, "ckv"); k.ldptr(62, "wuk"); k.ldptr(64, "wuv"); k.ldptr(66, "wo"); k.ldptr(68, "wg"); k.ldptr(70, "wu"); k.ldptr(72, "wd"); k.ldptr(74, "out")
        k.e(f"v_mul_u32_u24 v70, {STEP}, v1\ns_waitcnt lgkmcnt(0)")
        for i, (p, key) in enumerate(((60, "ckv"), (62, "wuk"), (64, "wuv"), (66, "wo"), (68, "wg"), (70, "wu"), (72, "wd"), (74, "out"))):
            k.srd(76, p, SZ[key])
            k.e(f"buffer_load_dword v{71+i}, v70, s[76:79], 0 offen")
        k.srd(76, 10, 0xA00000)
        k.e("buffer_load_dword v79, v70, s[76:79], 0 offen")
    k.e("""v_mov_b32 v28, -1
           v_mov_b32 v29, -1
           v_mov_b32 v30, -1
           v_mov_b32 v31, -1
           v_lshlrev_b32 v9, 4, v0
           s_mul_i32 s45, s2, 6144
           buffer_store_dwordx4 v[28:31], v9, s[52:55], s45 offen
           s_add_u32 s45, s45, 4096
           v_cmp_gt_u32 vcc, 128, v0
           s_and_saveexec_b64 s[48:49], vcc
           buffer_store_dwordx4 v[28:31], v9, s[52:55], s45 offen
           s_mov_b64 exec, s[48:49]
           s_waitcnt vmcnt(5)""") if not os.environ.get('TOUCH') else k.e("""v_mov_b32 v28, -1
           v_mov_b32 v29, -1
           v_mov_b32 v30, -1
           v_mov_b32 v31, -1
           v_lshlrev_b32 v9, 4, v0
           s_mul_i32 s45, s2, 6144
           buffer_store_dwordx4 v[28:31], v9, s[52:55], s45 offen
           s_add_u32 s45, s45, 4096
           v_cmp_gt_u32 vcc, 128, v0
           s_and_saveexec_b64 s[48:49], vcc
           buffer_store_dwordx4 v[28:31], v9, s[52:55], s45 offen
           s_mov_b64 exec, s[48:49]
           s_waitcnt vmcnt(14)""")
    for i in range(9):
        k.e(f"v_lshlrev_b32 v{10+i}, 16, v{10+i}")
    k.e("v_add_f32 v20, v10, v11")
    for i in range(2, 9):
        k.e(f"v_add_f32 v20, v20, v{10+i}")
    k.allreduce("add", 20, 21)
    k.e(f"v_mul_f32 v20, {f2u(1.0/576)}, v20")
    for i in range(9):
        k.e(f"v_sub_f32 v{10+i}, v{10+i}, v20")
    k.e("v_mul_f32 v22, v10, v10")
    for i in range(1, 9):
        k.e(f"v_fmac_f32 v22, v{10+i}, v{10+i}")
    k.allreduce("add", 22, 21)
    k.e(f"""v_mov_b32 v23, {f2u(1e-5)}
            v_fmac_f32 v23, {f2u(1.0/576)}, v22
            v_rsq_f32 v23, v23
            v_add_u32 v24, s23, v2""")
    for i in range(9):
        k.e(f"v_mul_f32 v{10+i}, v{10+i}, v23")
        k.hilo(10+i, 25, 26, 27)
        k.e(f"""ds_write_b16 v24, v25 offset:{LN1 + 128*i}
                ds_write_b16 v24, v26 offset:{LN1 + 2304 + 128*i}""")
    k.e("s_waitcnt vmcnt(1) lgkmcnt(0)\ns_barrier")
    k.e(f"""v_and_b32 v8, 3, v1
            v_mul_u32_u24 v8, 1152, v8
            v_lshl_add_u32 v8, v4, 4, v8
            s_mul_i32 s40, s22, 144
            v_add_u32 v8, s40, v8""")
    for t in range(3):
        k.e(f"ds_read_b128 v[{28+4*t}:{31+4*t}], v8 offset:{LN1 + 64*t}")
    k.e(f"""v_lshrrev_b32 v9, 2, v3
            v_lshl_add_u32 v10, v4, 3, v9
            v_lshlrev_b32 v10, 8, v10
            v_and_b32 v11, 1, v4
            v_lshlrev_b32 v11, 3, v11
            v_lshl_or_b32 v11, v9, 1, v11
            v_bfe_u32 v12, v3, 1, 1
            s_lshl_b32 s46, s20, 2
            v_add_u32 v12, s46, v12
            v_and_b32 v13, 1, v3
            v_lshlrev_b32 v13, 3, v13
            s_mov_b32 s47, {WQ1}
            v_add3_u32 v10, v10, v13, s47
            v_lshlrev_b32 v19, 8, v9
            s_mov_b32 s47, {WQ1 + 16384}
            v_add3_u32 v19, v19, v13, s47
            v_lshlrev_b32 v18, 1, v9""")
    for nt in range(2):
        k.e(f"""v_add_u32 v14, {2*nt}, v12
                v_xor_b32 v15, v14, v11
                v_lshl_add_u32 v15, v15, 4, v10
                v_xor_b32 v16, v14, v18
                v_lshl_add_u32 v16, v16, 4, v19""")
        for t in range(2):
            d = 40 + 12*nt + 4*t
            k.e(f"""ds_read_b64_tr_b16 v[{d}:{d+1}], v15 offset:{8192*t}
                    ds_read_b64_tr_b16 v[{d+2}:{d+3}], v15 offset:{8192*t + 1024}""")
        d = 40 + 12*nt + 8
        k.e(f"""ds_read_b64_tr_b16 v[{d}:{d+1}], v16
                ds_read_b64_tr_b16 v[{d+2}:{d+3}], v16 offset:1024""")
    k.e("""v_cmp_gt_u32 vcc, 16, v1
           s_waitcnt lgkmcnt(0)
           v_cndmask_b32 v36, 0, v36, vcc
           v_cndmask_b32 v37, 0, v37, vcc
           v_cndmask_b32 v38, 0, v38, vcc
           v_cndmask_b32 v39, 0, v39, vcc
           s_nop 1""")
    for nt in range(2):
        acc = 64 + 4*nt
        for t in range(3):
            d = 40 + 12*nt + 4*t
            cin = "0" if t == 0 else f"v[{acc}:{acc+3}]"
            k.e(f"v_mfma_f32_16x16x32_bf16 v[{acc}:{acc+3}], v[{28+4*t}:{31+4*t}], v[{d}:{d+3}], {cin}")
    k.e(f"""s_lshl_b32 s46, s22, 15
            s_lshl_b32 s47, s21, 9
            s_add_u32 s46, s46, s47
            s_lshl_b32 s47, s20, 7
            s_add_u32 s46, s46, s47
            v_lshl_add_u32 v27, v3, 2, s46
            s_mov_b32 s47, 16384
            s_nop 4
            v_add_f32 v8, v64, v66
            v_add_f32 v9, v65, v67
            v_add_f32 v10, v68, v70
            v_add_f32 v11, v69, v71
            s_and_saveexec_b64 s[48:49], vcc
            buffer_store_dword v8, v27, s[36:39], 0 offen
            buffer_store_dword v9, v27, s[36:39], s47 offen
            buffer_store_dword v10, v27, s[36:39], 0 offen offset:64
            buffer_store_dword v11, v27, s[36:39], s47 offen offset:64""")
    k.lab(f"{k.name}_end")
    return k

def team_a(k):
    k.ldptr(16, "wuk"); k.ldptr(68, "wg"); k.ldptr(70, "wu")
    k.e("""s_and_b32 s21, s2, 31
           s_lshr_b32 s22, s2, 5
           v_and_b32 v3, 15, v1
           v_lshrrev_b32 v4, 4, v1
           v_mov_b32 v224, 0
           v_mov_b32 v225, 1
           s_waitcnt lgkmcnt(0)""")
    k.srd(32, 16, SZ["wuk"]); k.srd(36, 10, 262144, WS_QP)
    k.srd(56, 10, 65536, WS_QA); k.srd(60, 10, 8388608, WS_OP); k.srd(64, 10, 65536, WS_ML)
    k.srd(72, 68, SZ["wg"]); k.srd(76, 70, SZ["wu"]); k.srd(80, 10, 16384, WS_FL)
    if os.environ.get("EXP") == "1": lds_wait(k, 0, 4, 224, 226, 44, sleep=8)
    k.e("""v_lshlrev_b32 v252, 4, v1
           s_and_b32 s84, s2, 7
           s_lshl_b32 s84, s84, 10
           v_lshrrev_b32 v5, 7, v0
           v_and_b32 v6, 127, v0
           v_lshlrev_b32 v8, 14, v5
           v_lshl_add_u32 v8, v6, 2, v8
           s_lshl_b32 s46, s21, 9""")
    for j in range(8):
        k.e(f"buffer_load_dword v{10+j}, v8, s[36:39], s46 offen\ns_add_u32 s46, s46, 32768")
    k.e("""s_lshl_b32 s40, s22, 6
           s_lshl_b32 s41, s20, 4
           s_add_u32 s40, s40, s41
           v_add_u32 v7, s40, v3
           v_lshlrev_b32 v7, 13, v7
           v_lshl_add_u32 v7, v4, 4, v7
           s_lshl_b32 s41, s21, 8""")
    for t in range(4):
        k.e(f"buffer_load_dwordx4 v[{232+4*t}:{235+4*t}], v7, s[32:35], s41 offen offset:{64*t} {os.environ.get('UKNT', 'nt')}")
    k.e("""v_lshlrev_b32 v24, 8, v5
           v_lshl_add_u32 v24, v6, 1, v24
           s_waitcnt vmcnt(4)""")
    for j in range(1, 8):
        k.e(f"v_add_f32 v10, v10, v{10+j}")
    k.hilo(10, 25, 26, 27)
    k.e(f"""ds_write_b16 v24, v25 offset:{QQ_L}
            ds_write_b16 v24, v26 offset:{QQ_L + 512}""")
    lds_sync(k, 3, 4, 224, 225, 226, 44)
    k.e(f"""v_and_b32 v8, 3, v1
            v_lshlrev_b32 v8, 8, v8
            v_lshl_add_u32 v8, v4, 4, v8""")
    for t in range(4):
        k.e(f"ds_read_b128 v[{28+4*t}:{31+4*t}], v8 offset:{QQ_L + 64*t}")
    k.e("s_waitcnt vmcnt(0) lgkmcnt(0)")
    k.stamp(8)
    for t in range(4):
        cin = "0" if t == 0 else "v[64:67]"
        k.e(f"v_mfma_f32_16x16x32_bf16 v[64:67], v[{28+4*t}:{31+4*t}], v[{232+4*t}:{235+4*t}], {cin}")
    sc = f2u((128 ** -0.5) * LOG2E)
    k.e(f"""s_lshl_b32 s46, s22, 2
            s_add_u32 s46, s46, s20
            s_lshl_b32 s46, s46, 10
            s_lshl_b32 s47, s21, 4
            s_add_u32 s46, s46, s47
            v_lshrrev_b32 v12, 1, v1
            v_lshlrev_b32 v12, 15, v12
            v_and_b32 v13, 1, v1
            v_lshl_add_u32 v12, v13, 9, v12
            s_lshl_b32 s47, s20, 6
            v_lshl_add_u32 v13, v3, 1, s47
            v_lshl_add_u32 v14, v1, 4, s47
            v_add_f32 v10, v64, v66
            v_add_f32 v11, v65, v67
            v_mul_f32 v10, {sc}, v10
            v_mul_f32 v11, {sc}, v11
            v_cvt_pk_bf16_f32 v10, v10, v11
            ds_write_b16 v13, v10 offset:{QQ_L + 1024}
            ds_write_b16_d16_hi v13, v10 offset:{QQ_L + 1024 + 32}
            s_mov_b64 exec, 0xf
            ds_read_b128 v[16:19], v14 offset:{QQ_L + 1024}
            s_waitcnt lgkmcnt(0)
            buffer_store_dwordx4 v[16:19], v12, s[56:59], s46 offen sc1
            s_mov_b64 exec, -1""")
    publish_rep(k, 4, 80, 0, 224, 225, 226, 44)
    k.stamp(9)
    k.e(f"""v_and_b32 v2, 31, v1
            v_lshrrev_b32 v3, 5, v1
            s_lshr_b32 s21, s2, 7
            s_lshl_b32 s22, s21, 15
            v_lshlrev_b32 v5, 4, v1
            s_lshl_b32 s41, s20, 5
            v_and_b32 v6, 16, v2
            v_and_b32 v7, 3, v2
            v_lshl_add_u32 v6, v7, 2, v6
            v_bfe_u32 v7, v2, 2, 1
            v_lshl_add_u32 v6, v7, 1, v6
            v_bfe_u32 v7, v2, 3, 1
            v_add_u32 v6, v6, v7
            v_add_u32 v6, s41, v6
            v_mul_u32_u24 v6, {RS}, v6
            v_lshl_add_u32 v6, v3, 4, v6
            v_add_u32 v6, {CT}, v6
            """)
    single_poll(k, 13, 224, 225, 248, 44, 80, 84, slp=int(os.environ.get('SLP1', '3')))
    k.stamp(1)
    QF = 96
    for t in range(32):
        if t % 4 == 0 and t: k.e("s_add_u32 s22, s22, 4096")
        k.e(f"buffer_load_dwordx4 v[{QF+4*t}:{QF+3+4*t}], v5, s[56:59], s22 offen offset:{1024*(t%4)} sc1")
    lds_wait(k, 0, 4, 224, 226, 44)
    k.e("s_waitcnt vmcnt(0)")
    k.stamp(2)
    ACC = 16
    bufs = [32, 64]
    for i in range(8):
        k.e(f"ds_read_b128 v[{bufs[0]+4*i}:{bufs[0]+3+4*i}], v6 offset:{32*i}")
    for ci in range(4):
        if ci < 3:
            for i in range(8):
                b = bufs[(ci+1) % 2] + 4*i
                if b + 3 >= QF: raise Exception("reg overlap")
                k.e(f"ds_read_b128 v[{b}:{b+3}], v6 offset:{32*(8*(ci+1)+i)}")
            k.e("s_waitcnt lgkmcnt(8)")
        else:
            k.e("s_waitcnt lgkmcnt(0)")
        for i in range(8):
            t = 8*ci + i
            b = bufs[ci % 2] + 4*i
            cin = "0" if t == 0 else f"v[{ACC}:{ACC+15}]"
            k.e(f"v_mfma_f32_32x32x16_bf16 v[{ACC}:{ACC+15}], v[{b}:{b+3}], v[{QF+4*t}:{QF+3+4*t}], {cin}")
    k.e("s_nop 15")
    k.e(f"v_max3_f32 v8, v{ACC}, v{ACC+1}, v{ACC+2}")
    for i in range(3, 15, 2):
        k.e(f"v_max3_f32 v8, v8, v{ACC+i}, v{ACC+i+1}")
    k.e(f"""v_max_f32 v8, v8, v{ACC+15}
            v_mov_b32 v9, v8
            s_nop 1
            v_permlane32_swap_b32 v8, v9
            s_nop 0
            v_max_f32 v8, v8, v9
            s_lshl_b32 s43, s20, 2
            v_lshl_add_u32 v10, v2, 4, s43
            v_lshlrev_b32 v11, 4, v2
            ds_write_b32 v10, v8 offset:{MX}""")
    lds_sync(k, 5, 4, 224, 225, 226, 44)
    k.e(f"""ds_read_b128 v[12:15], v11 offset:{MX}
            s_waitcnt lgkmcnt(0)
            v_max3_f32 v8, v12, v13, v14
            v_max_f32 v8, v8, v15""")
    for i in range(16):
        k.e(f"v_sub_f32 v{ACC+i}, v{ACC+i}, v8")
    for i in range(16):
        k.e(f"v_exp_f32 v{ACC+i}, v{ACC+i}")
    k.e(f"s_nop 0\nv_add_f32 v9, v{ACC}, v{ACC+1}")
    for i in range(2, 16):
        k.e(f"v_add_f32 v9, v9, v{ACC+i}")
    for i in range(8):
        k.e(f"v_cvt_pk_bf16_f32 v{32+i}, v{ACC+2*i}, v{ACC+2*i+1}")
    k.e(f"""v_mov_b32 v12, v9
            s_lshl_b32 s44, s20, 11
            v_lshl_add_u32 v13, v1, 4, s44
            v_permlane32_swap_b32 v9, v12
            s_nop 0
            v_add_f32 v9, v9, v12
            ds_write_b128 v13, v[32:35] offset:{PX}
            ds_write_b128 v13, v[36:39] offset:{PX+1024}
            ds_write_b32 v10, v9 offset:{SX}""")
    lds_sync(k, 6, 4, 224, 225, 226, 44)
    k.stamp(3)
    PF = 32
    for s in range(8):
        k.e(f"ds_read_b128 v[{PF+4*s}:{PF+3+4*s}], v5 offset:{PX + 1024*s}")
    k.e(f"ds_read_b128 v[12:15], v11 offset:{SX}")
    k.e(f"""v_bfe_u32 v66, v1, 2, 2
            v_lshlrev_b32 v66, 2, v66
            v_lshl_add_u32 v66, v3, 1, v66
            v_mul_u32_u24 v66, {RS}, v66
            v_bfe_u32 v67, v1, 4, 1
            v_lshlrev_b32 v67, 5, v67
            v_and_b32 v7, 3, v1
            v_lshl_add_u32 v67, v7, 3, v67
            s_lshl_b32 s45, s20, 8
            s_add_u32 s45, s45, {CT}
            v_add3_u32 v64, v66, v67, s45
            v_add_u32 v65, {64*RS}, v64""")
    OACC = 96
    VB = [160, 192]
    steps = [(T, s) for s in range(8) for T in range(4)]
    def trread(dst, T, s):
        wq, u = s >> 1, s & 1
        base = 64 if wq < 2 else 65
        off = (32*(wq & 1) + 16*u) * RS + 64*T
        k.e(f"ds_read_b64_tr_b16 v[{dst}:{dst+1}], v{base} offset:{off}")
        k.e(f"ds_read_b64_tr_b16 v[{dst+2}:{dst+3}], v{base} offset:{off+RS}")
    CH = 4
    chunks = [steps[i:i+CH] for i in range(0, 32, CH)]
    for i, (T, s) in enumerate(chunks[0]):
        trread(VB[0] + 4*i, T, s)
    for ci, ch in enumerate(chunks):
        if ci + 1 < len(chunks):
            for i, (T, s) in enumerate(chunks[ci+1]):
                trread(VB[(ci+1) % 2] + 4*i, T, s)
            k.e(f"s_waitcnt lgkmcnt({2*CH})")
        else:
            k.e("s_waitcnt lgkmcnt(0)")
        for i, (T, s) in enumerate(ch):
            a = VB[ci % 2] + 4*i
            o = OACC + 16*T
            cin = "0" if s == 0 else f"v[{o}:{o+15}]"
            k.e(f"v_mfma_f32_32x32x16_bf16 v[{o}:{o+15}], v[{a}:{a+3}], v[{PF+4*s}:{PF+3+4*s}], {cin}")
    k.stamp(4)
    Lk = k.newlab("skipml")
    k.e(f"""v_add_f32 v12, v12, v13
            v_add_f32 v14, v14, v15
            v_add_f32 v9, v12, v14
            s_and_b32 s46, s2, 127
            s_lshl_b32 s47, s21, 12
            s_add_u32 s46, s46, s47
            s_lshl_b32 s46, s46, 3
            v_lshl_add_u32 v10, v2, 10, s46
            s_cmp_lg_u32 s20, 0
            s_cbranch_scc1 {Lk}
            v_cmp_gt_u32 vcc, 32, v1
            s_and_saveexec_b64 s[48:49], vcc
            buffer_store_dwordx2 v[8:9], v10, s[64:67], 0 offen sc1
            s_mov_b64 exec, s[48:49]""")
    k.lab(Lk)
    k.e(f"""s_lshl_b32 s46, s2, 15
            s_lshl_b32 s47, s20, 8
            s_add_u32 s46, s46, s47
            v_mul_u32_u24 v10, {RS}, v2
            v_lshl_add_u32 v10, v3, 3, v10
            v_add_u32 v10, s45, v10
            v_lshrrev_b32 v11, 4, v1
            v_and_b32 v12, 15, v1
            v_mul_u32_u24 v13, {RS}, v11
            v_lshl_add_u32 v13, v12, 4, v13
            v_add_u32 v13, s45, v13
            v_lshlrev_b32 v14, 10, v11
            v_lshl_add_u32 v14, v12, 4, v14""")
    for T in range(4):
        o = OACC + 16*T
        for a in range(4):
            d = 32 + 2*(4*T + a)
            k.e(f"""v_cvt_pk_bf16_f32 v{d}, v{o+4*a}, v{o+4*a+1}
                    v_cvt_pk_bf16_f32 v{d+1}, v{o+4*a+2}, v{o+4*a+3}
                    ds_write_b64 v10, v[{d}:{d+1}] offset:{64*T + 16*a}""")
    for n in range(8):
        k.e(f"ds_read_b128 v[{160+4*n}:{163+4*n}], v13 offset:{4*RS*n}")
    for n in range(8):
        k.e(f"""s_waitcnt lgkmcnt({7-n})
                buffer_store_dwordx4 v[{160+4*n}:{163+4*n}], v14, s[60:63], s46 offen sc1
                s_add_u32 s46, s46, 4096""")
    k.e("s_waitcnt vmcnt(0)")
    k.stamp(5)
    publish_rep(k, 7, 80, 1, 224, 225, 226, 44)
    k.e(f"s_cmp_ge_u32 s2, 144\ns_cbranch_scc1 {k.name}_end")
    lds_wait(k, 7, 4, 224, 226, 44)
    dma64_off(k, 8, 1, 10, 11, 9, 9216)
    k.e(f"""s_mul_i32 s41, s20, 9*16*9216
            s_lshl_b32 s42, s2, 6
            s_add_u32 s41, s41, s42
            s_mul_i32 s43, s20, 9216
            s_add_u32 s43, s43, {BIG_L}
            s_add_u32 s44, s43, 36864""")
    for mi in range(9):
        if mi >= 2: k.e("s_waitcnt vmcnt(2)")
        k.e(f"""s_mov_b32 m0, s43
                s_add_u32 s43, s43, 1024
                buffer_load_dwordx4 v8, s[72:75], s41 offen nt lds
                s_mov_b32 m0, s44
                s_add_u32 s44, s44, 1024
                buffer_load_dwordx4 v8, s[76:79], s41 offen nt lds
                s_add_u32 s41, s41, {16*9216}""")
    k.e(f"s_waitcnt vmcnt(0)\ns_branch {k.name}_end")

def dma64_off(k, vA, lane, t1, t2, t3, rowstride):
    k.e(f"""v_lshrrev_b32 v{t1}, 2, v{lane}
            v_and_b32 v{t2}, 3, v{lane}
            v_bfe_u32 v{t3}, v{lane}, 5, 1
            v_lshlrev_b32 v{t3}, 1, v{t3}
            v_xor_b32 v{t2}, v{t2}, v{t3}
            v_mul_u32_u24 v{vA}, {rowstride}, v{t1}
            v_lshl_add_u32 v{vA}, v{t2}, 4, v{vA}""")

def tr64_base(k, dst, v3, v4, nt_sreg, t1, t2):
    k.e(f"""v_lshrrev_b32 v{t1}, 2, v{v3}
            v_lshl_add_u32 v{t1}, v{v4}, 3, v{t1}
            v_lshlrev_b32 v{t1}, 6, v{t1}
            v_bfe_u32 v{t2}, v{v3}, 1, 1
            v_add_u32 v{t2}, s{nt_sreg}, v{t2}
            v_and_b32 v{dst}, 1, v{v4}
            v_lshlrev_b32 v{dst}, 1, v{dst}
            v_xor_b32 v{t2}, v{t2}, v{dst}
            v_lshl_add_u32 v{t1}, v{t2}, 4, v{t1}
            v_and_b32 v{dst}, 1, v{v3}
            v_lshl_add_u32 v{dst}, v{dst}, 3, v{t1}""")

def poll_gather(k, loads, regs, scnt, mask_s=None):
    L = k.newlab("poll"); Ld = k.newlab("pdone")
    k.e(f"s_mov_b32 s{scnt}, 0")
    k.lab(L)
    for l in loads: k.e(l)
    k.e("s_waitcnt vmcnt(0)")
    k.e(f"v_max_u32 v7, v{regs[0]}, v{regs[1]}")
    for i in range(2, len(regs) - 1, 2):
        k.e(f"v_max3_u32 v7, v7, v{regs[i]}, v{regs[i+1]}")
    if len(regs) % 2: k.e(f"v_max_u32 v7, v7, v{regs[-1]}")
    k.e(f"""v_cmp_eq_u32 vcc, -1, v7
            s_add_u32 s{scnt}, s{scnt}, 1
            s_cmp_gt_u32 s{scnt}, {SPIN_MAX}
            s_cbranch_scc1 {Ld}
            s_cbranch_vccz {Ld}
            s_sleep 4
            s_branch {L}""")
    k.lab(Ld)

def team_b(k):
    k.e("""v_subrev_u32 v0, 0x100, v0
           s_sub_u32 s20, s20, 4
           v_and_b32 v3, 15, v1
           v_lshrrev_b32 v4, 4, v1
           s_and_b32 s21, s2, 31
           s_lshr_b32 s22, s2, 5
           v_mov_b32 v124, 0
           v_mov_b32 v125, 1""")
    k.ldptr(12, "wuv"); k.ldptr(14, "wo"); k.ldptr(64, "wd"); k.ldptr(66, "x"); k.ldptr(68, "out")
    k.e("s_waitcnt lgkmcnt(0)")
    k.srd(24, 12, SZ["wuv"]); k.srd(28, 10, 65536, WS_ML); k.srd(32, 10, 8388608, WS_OP); k.srd(36, 10, 262144, WS_CTX)
    k.srd(52, 10, 16384, WS_FL); k.srd(56, 10, 8*36864, WS_OUTP); k.srd(60, 10, 663552, WS_DNP)
    k.srd(72, 14, SZ["wo"]); k.srd(76, 4, SZ["ckv"]); k.srd(84, 64, SZ["wd"])
    k.srd(88, 66, SZ["x"]); k.srd(92, 68, SZ["out"])
    k.e("""s_sub_u32 s47, s2, 144
           s_mul_i32 s48, s47, 7282
           s_lshr_b32 s48, s48, 16
           s_mul_i32 s49, s48, 9
           s_sub_u32 s49, s47, s49""")
    k.e(f"""v_lshlrev_b32 v9, 4, v1
            s_lshl_b32 s40, s2, 7
            s_lshl_b32 s41, s20, 5
            s_add_u32 s40, s40, s41
            s_lshl_b32 s40, s40, 10
            s_mul_i32 s42, s41, {RS}
            s_add_u32 s42, s42, {CT}""")
    THR = int(os.environ.get("THR", "0")); DLY = int(os.environ.get("DLY", "0"))
    if DLY: lds_wait(k, 1, 1, 124, 126, 46, sleep=1)
    for r in range(32):
        if THR and r >= THR: k.e(f"s_waitcnt vmcnt({THR-1})")
        k.e(f"""s_mov_b32 m0, s42
                s_add_u32 s42, s42, {RS}
                buffer_load_dwordx4 v9, s[76:79], s40 offen nt lds
                s_add_u32 s40, s40, 1024""")
    k.e(f"""v_lshlrev_b32 v13, 1, v4
            v_xor_b32 v13, v13, v3
            v_lshlrev_b32 v13, 4, v13
            v_lshl_add_u32 v13, v4, 13, v13
            v_xor_b32 v14, 0x80, v13
            s_lshl_b32 s44, s22, 6
            s_lshl_b32 s45, s20, 4
            s_add_u32 s44, s44, s45
            s_lshl_b32 s44, s44, 13
            s_lshl_b32 s45, s21, 8
            s_add_u32 s44, s44, s45
            s_waitcnt vmcnt(0)
            s_mov_b64 exec, 1
            ds_add_u32 v124, v125 offset:{SYNC}
            s_mov_b64 exec, -1""")
    k.stamp(1)
    for mi in range(4):
        k.e(f"""buffer_load_dwordx4 v[{128+4*mi}:{131+4*mi}], v{14 if mi & 2 else 13}, s[24:27], s44 offen nt
                s_add_u32 s44, s44, 32768""")
    LW = k.newlab("ldW")
    k.e(f"""s_cmp_lt_u32 s2, 144
            s_cbranch_scc1 {LW}
            s_cmp_ge_u32 s2, 216
            s_cbranch_scc1 {LW}""")
    k.e("""v_lshrrev_b32 v10, 3, v1
           v_and_b32 v11, 7, v1
           v_and_b32 v12, 2, v10
           v_xor_b32 v11, v11, v12
           v_mul_u32_u24 v8, 1152, v10
           v_lshl_add_u32 v8, v11, 4, v8
           v_xor_b32 v11, 4, v11
           v_mul_u32_u24 v7, 1152, v10
           v_lshl_add_u32 v7, v11, 4, v7
           s_lshl_b32 s41, s48, 9
           s_lshl_b32 s42, s20, 7
           s_add_u32 s41, s41, s42
           s_mul_i32 s41, s41, 1152
           s_lshl_b32 s42, s49, 7
           s_add_u32 s41, s41, s42""")
    for mi in range(16):
        k.e(f"""buffer_load_dwordx4 v[{144+4*mi}:{147+4*mi}], v{7 if mi & 1 else 8}, s[72:75], s41 offen nt
                s_add_u32 s41, s41, {8*1152}""")
    k.lab(LW)
    k.stamp(2)
    lds_wait(k, 7, 4, 124, 126, 46, sleep=2)
    k.stamp(3)
    k.e(f"""s_waitcnt vmcnt(0)
            s_lshl_b32 s41, s20, 12
            s_add_u32 s41, s41, {WUV_L}
            v_add_u32 v10, s41, v9""")
    for mi in range(4):
        k.e(f"ds_write_b128 v10, v[{128+4*mi}:{131+4*mi}] offset:{1024*mi}")
    LW2 = k.newlab("stW")
    k.e(f"""s_cmp_lt_u32 s2, 144
            s_cbranch_scc1 {LW2}
            s_cmp_ge_u32 s2, 216
            s_cbranch_scc1 {LW2}
            s_lshl_b32 s41, s20, 14
            s_add_u32 s41, s41, {BIG_L}
            v_add_u32 v10, s41, v9""")
    for mi in range(16):
        k.e(f"ds_write_b128 v10, v[{144+4*mi}:{147+4*mi}] offset:{1024*mi}")
    k.lab(LW2)
    k.stamp(5)
    k.e("""v_lshlrev_b32 v24, 4, v1
           s_and_b32 s47, s2, 7
           s_lshl_b32 s47, s47, 10
           s_add_u32 s47, s47, 8192""")
    single_poll(k, 14, 124, 125, 20, 46, 52, 47)
    k.stamp(6)
    k.e("""v_lshrrev_b32 v5, 7, v0
           v_and_b32 v6, 127, v0
           v_lshlrev_b32 v5, 12, v5
           v_add_u32 v5, v5, v6
           s_lshl_b32 s40, s21, 7
           v_add_u32 v5, s40, v5
           v_lshlrev_b32 v5, 3, v5
           buffer_load_dwordx2 v[8:9], v5, s[28:31], 0 offen sc1""")
    k.e(f"""v_lshrrev_b32 v10, 3, v1
            v_and_b32 v11, 7, v1
            v_and_b32 v12, 2, v10
            v_xor_b32 v11, v11, v12
            v_lshlrev_b32 v11, 4, v11
            v_lshl_add_u32 v11, v10, 15, v11
            v_xor_b32 v12, 64, v11
            s_lshl_b32 s41, s21, 10
            s_lshl_b32 s42, s22, 7
            s_add_u32 s41, s41, s42
            s_lshl_b32 s42, s20, 21
            s_add_u32 s41, s41, s42
            s_lshl_b32 s43, s20, 13
            s_add_u32 s43, s43, {OST_L}""")
    for mi in range(8):
        k.e(f"""s_mov_b32 m0, s43
                s_add_u32 s43, s43, 1024
                buffer_load_dwordx4 v{12 if mi & 1 else 11}, s[32:35], s41 offen sc1 lds
                s_add_u32 s41, s41, 262144""")
    k.e("s_waitcnt vmcnt(8)\nv_mov_b32 v15, v8")
    k.allreduce("max", 15, 16)
    k.e(f"""s_lshl_b32 s46, s20, 2
            v_mov_b32 v17, s46
            ds_write_b32 v17, v15 offset:{D_R}
            s_waitcnt lgkmcnt(0)
            """)
    lds_sync(k, 8, 4, 124, 125, 126, 46)
    k.e(f"""
            s_and_b32 s47, s20, 2
            s_lshl_b32 s47, s47, 2
            v_mov_b32 v18, s47
            ds_read_b64 v[20:21], v18 offset:{D_R}
            s_waitcnt lgkmcnt(0)
            v_max_f32 v15, v20, v21
            v_sub_f32 v8, v8, v15
            v_exp_f32 v8, v8
            s_nop 0
            v_mul_f32 v19, v8, v9""")
    k.allreduce("add", 19, 16)
    k.e(f"""ds_write_b32 v17, v19 offset:{D_R+16}
            s_waitcnt lgkmcnt(0)
            """)
    lds_sync(k, 9, 4, 124, 125, 126, 46)
    k.e(f"""
            ds_read_b64 v[20:21], v18 offset:{D_R+16}
            s_waitcnt lgkmcnt(0)
            v_add_f32 v19, v20, v21
            v_rcp_f32 v19, v19
            s_nop 0
            v_mul_f32 v8, v8, v19""")
    k.hilo(8, 22, 23, 24)
    k.e(f"""v_lshrrev_b32 v25, 7, v0
            v_lshlrev_b32 v25, 9, v25
            v_lshl_add_u32 v25, v6, 1, v25
            ds_write_b16 v25, v22 offset:{D_A}
            ds_write_b16 v25, v23 offset:{D_A+256}
            s_waitcnt vmcnt(0) lgkmcnt(0)
            """)
    lds_sync(k, 10, 4, 124, 125, 126, 46)
    k.e(f"""""")
    k.stamp(7)
    k.e(f"""v_and_b32 v26, 1, v1
            v_lshlrev_b32 v26, 8, v26
            v_lshl_add_u32 v26, v4, 4, v26
            s_lshr_b32 s46, s20, 1
            s_lshl_b32 s47, s46, 9
            v_add_u32 v26, s47, v26""")
    for t in range(4):
        k.e(f"ds_read_b128 v[{28+4*t}:{31+4*t}], v26 offset:{D_A + 64*t}")
    k.e(f"""v_lshrrev_b32 v9, 2, v3
            v_lshl_add_u32 v10, v4, 3, v9
            v_lshlrev_b32 v10, 7, v10
            v_and_b32 v11, 2, v9
            v_and_b32 v12, 1, v4
            v_lshl_or_b32 v11, v12, 2, v11
            v_bfe_u32 v12, v3, 1, 1
            s_and_b32 s47, s20, 1
            s_lshl_b32 s47, s47, 2
            v_add_u32 v12, s47, v12
            v_and_b32 v13, 1, v3
            v_lshl_add_u32 v10, v13, 3, v10
            s_lshl_b32 s47, s46, 14
            s_add_u32 s47, s47, {OST_L}
            v_add_u32 v10, s47, v10""")
    for nt in range(2):
        k.e(f"""v_add_u32 v14, {2*nt}, v12
                v_xor_b32 v14, v14, v11
                v_lshl_add_u32 v{15+nt}, v14, 4, v10""")
    for nt in range(2):
        for t in range(4):
            d = 44 + 16*nt + 4*t
            k.e(f"""ds_read_b64_tr_b16 v[{d}:{d+1}], v{15+nt} offset:{4096*t}
                    ds_read_b64_tr_b16 v[{d+2}:{d+3}], v{15+nt} offset:{4096*t + 512}""")
    k.e("s_waitcnt lgkmcnt(0)")
    for nt in range(2):
        for t in range(4):
            d = 44 + 16*nt + 4*t
            acc = 20 if nt == 0 else 76
            cin = "0" if t == 0 else f"v[{acc}:{acc+3}]"
            k.e(f"v_mfma_f32_16x16x32_bf16 v[{acc}:{acc+3}], v[{28+4*t}:{31+4*t}], v[{d}:{d+3}], {cin}")
    k.e(f"""s_and_b32 s47, s20, 1
            s_lshl_b32 s47, s47, 6
            s_lshl_b32 s50, s46, 7
            s_add_u32 s47, s47, s50
            v_lshl_add_u32 v27, v3, 1, s47
            s_nop 7""")
    for nt in range(2):
        acc = 20 if nt == 0 else 76
        k.e(f"v_add_f32 v8, v{acc}, v{acc+1}")
        k.hilo(8, 9, 24, 25)
        k.e(f"""ds_write_b16 v27, v9 offset:{D_A2 + 32*nt}
                ds_write_b16 v27, v24 offset:{D_A2 + 256 + 32*nt}""")
    k.e("s_waitcnt lgkmcnt(0)")
    lds_sync(k, 11, 4, 124, 125, 126, 46)
    k.e(f"""v_and_b32 v8, 3, v1
            v_lshlrev_b32 v8, 7, v8
            v_lshl_add_u32 v8, v4, 4, v8
            ds_read_b128 v[28:31], v8 offset:{D_A2}
            ds_read_b128 v[32:35], v8 offset:{D_A2+64}""")
    k.e(f"""v_lshrrev_b32 v9, 2, v3
            v_lshl_add_u32 v10, v4, 3, v9
            v_lshlrev_b32 v10, 8, v10
            v_and_b32 v11, 1, v4
            v_lshlrev_b32 v11, 3, v11
            v_lshl_or_b32 v11, v9, 1, v11
            v_bfe_u32 v12, v3, 1, 1
            s_lshl_b32 s47, s20, 2
            v_add_u32 v12, s47, v12
            v_and_b32 v13, 1, v3
            v_lshl_add_u32 v10, v13, 3, v10""")
    for nt in range(2):
        k.e(f"""v_add_u32 v14, {2*nt}, v12
                v_xor_b32 v14, v14, v11
                v_lshl_add_u32 v{15+nt}, v14, 4, v10""")
    for nt in range(2):
        for t in range(2):
            d = 44 + 8*nt + 4*t
            k.e(f"""ds_read_b64_tr_b16 v[{d}:{d+1}], v{15+nt} offset:{WUV_L + 8192*t}
                    ds_read_b64_tr_b16 v[{d+2}:{d+3}], v{15+nt} offset:{WUV_L + 8192*t + 1024}""")
    k.e("s_waitcnt lgkmcnt(0)")
    for nt in range(2):
        acc = 20 if nt == 0 else 76
        for t in range(2):
            d = 44 + 8*nt + 4*t
            cin = "0" if t == 0 else f"v[{acc}:{acc+3}]"
            k.e(f"v_mfma_f32_16x16x32_bf16 v[{acc}:{acc+3}], v[{28+4*t}:{31+4*t}], v[{d}:{d+3}], {cin}")
    k.e(f"""s_lshl_b32 s47, s22, 15
            s_lshl_b32 s50, s21, 9
            s_add_u32 s47, s47, s50
            s_lshl_b32 s50, s20, 7
            s_add_u32 s47, s47, s50
            v_lshl_add_u32 v27, v3, 2, s47
            s_nop 7
            v_add_f32 v8, v20, v22
            v_add_f32 v9, v21, v23
            v_add_f32 v10, v76, v78
            v_add_f32 v11, v77, v79""")
    k.sanitize([8, 9, 10, 11], 12)
    k.e(f"""s_mov_b32 s47, 16384
            v_cmp_gt_u32 vcc, 16, v1
            s_and_saveexec_b64 s[50:51], vcc
            buffer_store_dword v8, v27, s[36:39], 0 offen sc1
            buffer_store_dword v9, v27, s[36:39], s47 offen sc1
            buffer_store_dword v10, v27, s[36:39], 0 offen offset:64 sc1
            buffer_store_dword v11, v27, s[36:39], s47 offen offset:64 sc1
            s_mov_b64 exec, s[50:51]""")
    k.stamp(8)
    LPE, LPG = k.newlab("phE"), k.newlab("phG")
    k.e(f"s_cmp_ge_u32 s2, 144\ns_cbranch_scc1 {LPE}")
    phase_f(k)
    k.e(f"s_branch {k.name}_end")
    k.lab(LPE)
    k.e(f"s_cmp_ge_u32 s2, 216\ns_cbranch_scc1 {LPG}")
    phase_e(k)
    k.e(f"s_branch {k.name}_end")
    k.lab(LPG)
    k.e(f"s_cmp_ge_u32 s2, 234\ns_cbranch_scc1 {k.name}_end")
    phase_g(k)

def phase_e(k):
    A_LDS = T_A
    k.e("""v_lshrrev_b32 v5, 7, v0
           v_and_b32 v6, 127, v0
           v_lshlrev_b32 v8, 14, v5
           v_lshl_add_u32 v8, v6, 4, v8
           s_lshl_b32 s40, s48, 11""")
    loads = []
    for j in range(8):
        loads.append(f"s_add_u32 s41, s40, {32768*j}\nbuffer_load_dwordx4 v[{20+4*j}:{23+4*j}], v8, s[36:39], s41 offen sc1")
    poll_gather(k, loads, list(range(20, 52)), 46)
    k.stamp(9)
    for j in range(1, 8):
        for e in range(4):
            k.e(f"v_add_f32 v{20+e}, v{20+e}, v{20+4*j+e}")
    k.e("""v_cvt_pk_bf16_f32 v24, v20, v21
           v_cvt_pk_bf16_f32 v25, v22, v23
           v_lshlrev_b32 v26, 16, v24
           v_and_b32 v27, 0xffff0000, v24
           v_lshlrev_b32 v28, 16, v25
           v_and_b32 v29, 0xffff0000, v25
           v_sub_f32 v20, v20, v26
           v_sub_f32 v21, v21, v27
           v_sub_f32 v22, v22, v28
           v_sub_f32 v23, v23, v29
           v_cvt_pk_bf16_f32 v26, v20, v21
           v_cvt_pk_bf16_f32 v27, v22, v23
           v_lshlrev_b32 v12, 10, v5
           v_lshl_add_u32 v12, v6, 3, v12""")
    k.e(f"""ds_write_b64 v12, v[24:25] offset:{A_LDS}
            ds_write_b64 v12, v[26:27] offset:{A_LDS+2048}
            s_waitcnt lgkmcnt(0)
            s_barrier""")
    k.e("""v_and_b32 v8, 3, v1
           v_lshlrev_b32 v8, 10, v8
           v_lshl_add_u32 v8, v4, 4, v8""")
    for t in range(16):
        k.e(f"ds_read_b128 v[{20+4*t}:{23+4*t}], v8 offset:{A_LDS + 64*t}")
    k.e(f"""v_lshrrev_b32 v9, 2, v3
            v_lshl_add_u32 v10, v4, 3, v9
            v_lshlrev_b32 v10, 7, v10
            v_and_b32 v11, 2, v9
            v_and_b32 v12, 1, v4
            v_lshl_or_b32 v11, v12, 2, v11
            v_bfe_u32 v12, v3, 1, 1
            s_lshl_b32 s47, s20, 1
            v_add_u32 v12, s47, v12
            v_and_b32 v13, 1, v3
            v_lshl_add_u32 v10, v13, 3, v10
            v_xor_b32 v12, v12, v11
            v_lshl_add_u32 v15, v12, 4, v10
            v_add_u32 v15, {BIG_L}, v15""")
    for c in range(2):
        for i in range(8):
            t = 8*c + i
            d = 88 + 4*i
            k.e(f"""ds_read_b64_tr_b16 v[{d}:{d+1}], v15 offset:{4096*t}
                    ds_read_b64_tr_b16 v[{d+2}:{d+3}], v15 offset:{4096*t + 512}""")
        k.e("s_waitcnt lgkmcnt(0)")
        for i in range(8):
            t = 8*c + i
            d = 88 + 4*i
            cin = "0" if t == 0 else "v[120:123]"
            k.e(f"v_mfma_f32_16x16x32_bf16 v[120:123], v[{20+4*t}:{23+4*t}], v[{d}:{d+3}], {cin}")
        k.e("s_nop 3")
    k.e(f"""s_mul_i32 s45, s48, 4608
            s_lshl_b32 s46, s49, 8
            s_add_u32 s45, s45, s46
            s_lshl_b32 s46, s20, 6
            s_add_u32 s45, s45, s46
            v_lshl_add_u32 v12, v3, 2, s45
            s_nop 7
            v_add_f32 v8, v120, v122
            v_add_f32 v9, v121, v123""")
    k.sanitize([8, 9], 10)
    k.e(f"""v_cmp_gt_u32 vcc, 16, v1
            s_and_saveexec_b64 s[50:51], vcc
            s_mov_b32 s45, 0""")
    for r in range(8):
        k.e("""buffer_store_dword v8, v12, s[56:59], s45 offen sc1
               buffer_store_dword v9, v12, s[56:59], s45 offen offset:2304 sc1
               s_add_u32 s45, s45, 36864""")

def phase_f(k):
    A_LDS, R_LDS, GU_LDS, A2_LDS = T_A, T_A + 4608, T_A + 4672, T_A + 5184
    D_LDS = OST_L
    k.e("s_barrier")
    k.e(f"""v_lshlrev_b32 v9, 4, v1
            s_mul_i32 s41, s2, 36864
            s_mul_i32 s42, s20, 9216
            s_add_u32 s41, s41, s42
            s_add_u32 s43, s42, {D_LDS}""")
    for mi in range(9):
        k.e(f"""s_mov_b32 m0, s43
                s_add_u32 s43, s43, 1024
                buffer_load_dwordx4 v9, s[84:87], s41 offen nt lds
                s_add_u32 s41, s41, 1024""")
    k.stamp(10)
    k.e("""v_lshlrev_b32 v5, 4, v0
           v_mov_b32 v6, 0x7fffffff
           v_cmp_gt_u32 vcc, 144, v0
           s_nop 1
           v_cndmask_b32 v5, v6, v5, vcc
           v_lshrrev_b32 v8, 1, v5
           v_cndmask_b32 v8, v6, v8, vcc
           s_mov_b64 s[64:65], vcc""")
    k.e("""buffer_load_dwordx2 v[84:85], v8, s[88:91], 0 offen
           buffer_load_dwordx2 v[86:87], v8, s[88:91], 0 offen offset:1152""")
    k.e("s_and_b32 s41, s2, 7\ns_mul_i32 s41, s41, 36864")
    loads = []
    for ks in range(8):
        for b in range(2):
            r = 20 + 8*ks + 4*b
            loads.append(f"s_add_u32 s40, s41, {4608*ks}\nbuffer_load_dwordx4 v[{r}:{r+3}], v5, s[56:59], s40 offen offset:{2304*b} sc1")
    poll_gather(k, loads, list(range(20, 84)), 46)
    k.stamp(9)
    for ks in range(1, 8):
        for e in range(8):
            k.e(f"v_add_f32 v{20+e}, v{20+e}, v{20+8*ks+e}")
    for b in range(2):
        k.e(f"""v_lshlrev_b32 v12, 16, v{84+2*b}
                v_and_b32 v13, 0xffff0000, v{84+2*b}
                v_lshlrev_b32 v14, 16, v{85+2*b}
                v_and_b32 v15, 0xffff0000, v{85+2*b}
                v_add_f32 v{20+4*b}, v{20+4*b}, v12
                v_add_f32 v{21+4*b}, v{21+4*b}, v13
                v_add_f32 v{22+4*b}, v{22+4*b}, v14
                v_add_f32 v{23+4*b}, v{23+4*b}, v15""")
    k.e(f"""v_add_u32 v16, {BIG_L + 73728}, v5
            s_mov_b64 s[66:67], exec
            s_mov_b64 exec, s[64:65]
            ds_write_b128 v16, v[20:23]
            ds_write_b128 v16, v[24:27] offset:2304
            s_mov_b64 exec, s[66:67]""")
    k.e("""v_add_f32 v28, v20, v21
           v_add_f32 v29, v22, v23
           v_add_f32 v28, v28, v29
           v_add_f32 v29, v24, v25
           v_add_f32 v30, v26, v27
           v_add_f32 v29, v29, v30""")
    k.allreduce("add", 28, 31)
    k.allreduce("add", 29, 31)
    k.e(f"""s_lshl_b32 s46, s20, 3
            v_mov_b32 v32, s46
            v_mov_b32 v33, 0
            ds_write_b64 v32, v[28:29] offset:{R_LDS}
            s_waitcnt lgkmcnt(0)
            s_barrier
            ds_read_b128 v[36:39], v33 offset:{R_LDS}
            ds_read_b64 v[40:41], v33 offset:{R_LDS+16}
            s_waitcnt lgkmcnt(0)
            v_add_f32 v28, v36, v38
            v_add_f32 v28, v28, v40
            v_add_f32 v29, v37, v39
            v_add_f32 v29, v29, v41
            v_mul_f32 v28, {f2u(1.0/576)}, v28
            v_mul_f32 v29, {f2u(1.0/576)}, v29""")
    for b in range(2):
        for e in range(4):
            k.e(f"v_sub_f32 v{20+4*b+e}, v{20+4*b+e}, v{28+b}")
    for b in range(2):
        k.e(f"""v_mul_f32 v{30+b}, v{20+4*b}, v{20+4*b}
                v_fmac_f32 v{30+b}, v{21+4*b}, v{21+4*b}
                v_fmac_f32 v{30+b}, v{22+4*b}, v{22+4*b}
                v_fmac_f32 v{30+b}, v{23+4*b}, v{23+4*b}
                v_cndmask_b32 v{30+b}, 0, v{30+b}, s[64:65]""")
    k.allreduce("add", 30, 34)
    k.allreduce("add", 31, 34)
    k.e(f"""ds_write_b64 v32, v[30:31] offset:{R_LDS+32}
            s_waitcnt lgkmcnt(0)
            s_barrier
            ds_read_b128 v[36:39], v33 offset:{R_LDS+32}
            ds_read_b64 v[40:41], v33 offset:{R_LDS+48}
            s_waitcnt lgkmcnt(0)
            v_add_f32 v30, v36, v38
            v_add_f32 v30, v30, v40
            v_add_f32 v31, v37, v39
            v_add_f32 v31, v31, v41
            v_mov_b32 v34, {f2u(1e-5)}
            v_mov_b32 v35, {f2u(1e-5)}
            v_fmac_f32 v34, {f2u(1.0/576)}, v30
            v_fmac_f32 v35, {f2u(1.0/576)}, v31
            v_rsq_f32 v34, v34
            v_rsq_f32 v35, v35
            v_lshlrev_b32 v12, 3, v0""")
    for b in range(2):
        o = 20 + 4*b
        for e in range(4):
            k.e(f"v_mul_f32 v{o+e}, v{o+e}, v{34+b}")
        k.e(f"""v_cvt_pk_bf16_f32 v36, v{o}, v{o+1}
                v_cvt_pk_bf16_f32 v37, v{o+2}, v{o+3}
                v_lshlrev_b32 v38, 16, v36
                v_and_b32 v39, 0xffff0000, v36
                v_lshlrev_b32 v40, 16, v37
                v_and_b32 v41, 0xffff0000, v37
                v_sub_f32 v{o}, v{o}, v38
                v_sub_f32 v{o+1}, v{o+1}, v39
                v_sub_f32 v{o+2}, v{o+2}, v40
                v_sub_f32 v{o+3}, v{o+3}, v41
                v_cvt_pk_bf16_f32 v38, v{o}, v{o+1}
                v_cvt_pk_bf16_f32 v39, v{o+2}, v{o+3}
                s_mov_b64 s[66:67], exec
                s_mov_b64 exec, s[64:65]
                ds_write_b64 v12, v[36:37] offset:{A_LDS + 1152*b}
                ds_write_b64 v12, v[38:39] offset:{A_LDS + 2304 + 1152*b}
                s_mov_b64 exec, s[66:67]""")
    k.e("s_waitcnt lgkmcnt(0)\ns_barrier")
    k.e(f"""v_and_b32 v8, 3, v1
            v_mul_u32_u24 v8, 1152, v8
            v_lshl_add_u32 v8, v4, 4, v8
            s_and_b32 s44, s20, 1
            s_lshl_b32 s44, s44, 1
            s_lshr_b32 s45, s20, 1
            s_mul_i32 s45, s45, 36864
            s_add_u32 s45, s45, {BIG_L}""")
    for t in range(18):
        k.e(f"ds_read_b128 v[{20+4*t}:{23+4*t}], v8 offset:{A_LDS + 64*t}")
    tr64_base(k, 15, 3, 4, 44, 10, 11)
    k.e("v_add_u32 v15, s45, v15")
    for c in range(3):
        for i in range(6):
            t = 6*c + i
            d = 96 + 4*i
            k.e(f"""ds_read_b64_tr_b16 v[{d}:{d+1}], v15 offset:{2048*t}
                    ds_read_b64_tr_b16 v[{d+2}:{d+3}], v15 offset:{2048*t + 256}""")
        k.e("s_waitcnt lgkmcnt(0)")
        for i in range(6):
            t = 6*c + i
            d = 96 + 4*i
            cin = "0" if t == 0 else "v[120:123]"
            k.e(f"v_mfma_f32_16x16x32_bf16 v[120:123], v[{20+4*t}:{23+4*t}], v[{d}:{d+3}], {cin}")
        k.e("s_nop 3")
    k.e("s_nop 7")
    k.e(f"""s_lshr_b32 s45, s20, 1
            s_lshl_b32 s45, s45, 8
            s_and_b32 s46, s20, 1
            s_lshl_b32 s46, s46, 6
            s_add_u32 s45, s45, s46
            v_lshl_add_u32 v12, v3, 2, s45
            v_add_f32 v8, v120, v122
            v_add_f32 v9, v121, v123
            ds_write_b32 v12, v8 offset:{GU_LDS}
            ds_write_b32 v12, v9 offset:{GU_LDS+128}
            s_waitcnt lgkmcnt(0)
            s_barrier
            v_lshlrev_b32 v12, 2, v1
            ds_read_b32 v8, v12 offset:{GU_LDS}
            ds_read_b32 v9, v12 offset:{GU_LDS+256}
            s_waitcnt lgkmcnt(0)
            v_mul_f32 v10, {f2u(-LOG2E)}, v8
            v_exp_f32 v10, v10
            s_nop 0
            v_add_f32 v10, 1.0, v10
            v_rcp_f32 v10, v10
            s_nop 0
            v_mul_f32 v8, v8, v10
            v_mul_f32 v8, v8, v9""")
    k.hilo(8, 9, 10, 11)
    k.e(f"""v_lshlrev_b32 v12, 1, v1
            ds_write_b16 v12, v9 offset:{A2_LDS}
            ds_write_b16 v12, v10 offset:{A2_LDS+128}
            s_waitcnt lgkmcnt(0)
            s_barrier
            v_and_b32 v8, 3, v1
            v_lshlrev_b32 v8, 6, v8
            v_lshl_add_u32 v8, v4, 4, v8
            ds_read_b128 v[20:23], v8 offset:{A2_LDS}""")
    k.e(f"""v_lshrrev_b32 v10, 2, v3
            v_lshl_add_u32 v10, v4, 3, v10
            v_mul_u32_u24 v10, 1152, v10
            v_and_b32 v11, 3, v3
            v_lshl_add_u32 v10, v11, 3, v10
            s_mul_i32 s45, s20, 288
            s_add_u32 s45, s45, {D_LDS}
            v_add_u32 v10, s45, v10""")
    for n in range(9):
        d = 24 + 4*n
        k.e(f"""ds_read_b64_tr_b16 v[{d}:{d+1}], v10 offset:{32*n}
                ds_read_b64_tr_b16 v[{d+2}:{d+3}], v10 offset:{32*n + 4608}""")
    k.e(f"""s_mul_i32 s46, s20, 576
            s_add_u32 s46, s46, {BIG_L + 73728}
            v_lshl_add_u32 v13, v3, 2, s46""")
    for n in range(9):
        k.e(f"""ds_read_b32 v{100+2*n}, v13 offset:{64*n}
                ds_read_b32 v{101+2*n}, v13 offset:{2304 + 64*n}""")
    k.e("s_waitcnt lgkmcnt(0)")
    for n in range(9):
        d = 24 + 4*n
        k.e(f"v_mfma_f32_16x16x32_bf16 v[{64+4*n}:{67+4*n}], v[20:23], v[{d}:{d+3}], 0")
    k.e(f"""s_mul_i32 s45, s2, 4608
            s_mul_i32 s46, s20, 576
            s_add_u32 s45, s45, s46
            v_lshl_add_u32 v12, v3, 2, s45
            s_cmp_eq_u32 s2, 0
            s_cselect_b32 s47, 1.0, 0
            v_mov_b32 v14, 0x7fc00000
            s_nop 4""")
    for n in range(9):
        a = 64 + 4*n
        k.e(f"""v_add_f32 v{a}, v{a}, v{a+2}
                v_add_f32 v{a+1}, v{a+1}, v{a+3}""")
    Lh = k.newlab("noh")
    k.e(f"s_cbranch_scc0 {Lh}")
    for n in range(9):
        a = 64 + 4*n
        k.e(f"""v_add_f32 v{a}, v{a}, v{100+2*n}
                v_add_f32 v{a+1}, v{a+1}, v{101+2*n}""")
    k.lab(Lh)
    for n in range(9):
        a = 64 + 4*n
        k.e(f"""v_cmp_eq_u32 vcc, -1, v{a}
                v_cmp_eq_u32 s[66:67], -1, v{a+1}
                s_nop 1
                v_cndmask_b32 v{a}, v{a}, v14, vcc
                v_cndmask_b32 v{a+1}, v{a+1}, v14, s[66:67]""")
    k.e("""v_cmp_gt_u32 vcc, 16, v1
           s_and_saveexec_b64 s[50:51], vcc""")
    for n in range(9):
        a = 64 + 4*n
        k.e(f"""buffer_store_dword v{a}, v12, s[60:63], 0 offen offset:{64*n} sc1
                buffer_store_dword v{a+1}, v12, s[60:63], 0 offen offset:{2304 + 64*n} sc1""")

def phase_g(k):
    k.e("""s_sub_u32 s48, s2, 216
           v_lshrrev_b32 v5, 4, v0
           v_and_b32 v6, 15, v0
           v_mul_u32_u24 v8, 4608, v5
           v_lshl_add_u32 v8, v6, 4, v8
           s_lshl_b32 s40, s48, 8""")
    loads = []
    for i in range(9):
        loads.append(f"s_add_u32 s41, s40, {16*4608*i}\nbuffer_load_dwordx4 v[{20+4*i}:{23+4*i}], v8, s[60:63], s41 offen sc1")
    poll_gather(k, loads, list(range(20, 56)), 46)
    k.stamp(9)
    for i in range(1, 9):
        for e in range(4):
            k.e(f"v_add_f32 v{20+e}, v{20+e}, v{20+4*i+e}")
    k.e(f"""v_lshlrev_b32 v9, 4, v0
            v_lshlrev_b32 v10, 2, v0
            ds_write_b128 v9, v[20:23] offset:{T_A}
            s_waitcnt lgkmcnt(0)
            s_barrier
            s_cmp_lg_u32 s20, 0
            s_cbranch_scc1 {k.name}_end""")
    for i in range(16):
        k.e(f"ds_read_b32 v{20+i}, v10 offset:{T_A + 256*i}")
    k.e("s_waitcnt lgkmcnt(0)")
    for i in range(1, 16):
        k.e(f"v_add_f32 v20, v20, v{20+i}")
    k.e("""v_cvt_pk_bf16_f32 v20, v20, v20
           v_lshlrev_b32 v10, 1, v0
           s_lshl_b32 s41, s48, 7
           buffer_store_short v20, v10, s[92:95], s41 offen""")

def k2_main():
    k = Kern("k_main_kernel", 256, 512, LDS_TOTAL, 256)
    guard(k, 256)
    k.ldptr(4, "ckv"); k.ldptr(10, "ws")
    wave_id(k, 20, 1)
    k.e(f"""v_and_b32 v1, 63, v0
            v_mov_b32 v2, 0
            v_lshlrev_b32 v3, 2, v1
            v_cmp_gt_u32 vcc, 20, v0
            s_and_saveexec_b64 s[48:49], vcc
            ds_write_b32 v3, v2 offset:{SYNC}
            s_mov_b64 exec, s[48:49]
            s_waitcnt lgkmcnt(0)
            s_barrier""")
    LB = k.newlab("teamB")
    if STAMP:
        k.sgpr = 102
        k.e("s_mov_b32 s101, s20\nv_mov_b32 v255, 0")
        k.stamp(0)
    k.e(f"s_cmp_ge_u32 s20, 4\ns_cbranch_scc1 {LB}")
    team_a(k)
    k.lab(LB)
    team_b(k)
    k.lab(f"{k.name}_end")
    if STAMP:
        k.e(f"s_cmp_ge_u32 s2, 256\ns_cbranch_scc1 {k.name}_end2")
        k.stamp_out()
        k.lab(f"{k.name}_end2")
    return k

def main():
    ks = [k1_qpart(), k2_main()]
    out = [HEADER.rstrip("\n")]
    for k in ks:
        out.append(f"; @launch kernel={k.name} grid=({k.grid},1,1) block=({k.block},1,1) lds={k.lds}")
    out.append('.amdgcn_target "amdgcn-amd-amdhsa--gfx950"\n.text')
    for k in ks:
        out.append(k.text())
    open(sys.argv[1] if len(sys.argv) > 1 else "u.s", "w").write("\n".join(out))
main()
```

```python
import sys, struct

HEADER = open("sequential_preLN__compressed_kv_cla__swiglu_ffn__decode.s.ref").read().split("; Override launch")[0]

WS_QA   = 0x000000
WS_ML   = 0x010000
WS_QP   = 0x020000
WS_INIT = 0x080000
WS_CTX  = 0x080000
WS_DNP  = 0x0C0000
WS_OUTP = 0x170000
WS_FL   = 0x1C0000
WS_OP   = 0x200000
INIT_BYTES = 0x180000
SENT = 0xFFFFFFFF
import os
GUNT = os.environ.get('GUNT', '')
SPIN_MAX = 40000
import os
STAMP = bool(os.environ.get('STAMP'))

KA = dict(x=0, ckv=8, wq=16, wuk=24, wuv=32, wo=40, bx=48, wg=56, wu=64, wd=72, out=80, dbg=88, ws=96)
SZ = dict(x=2304, ckv=33554432, wq=4718592, wuk=4194304, wuv=4194304, wo=4718592, wg=5308416, wu=5308416,
          wd=5308416, out=2304)
LOG2E = 1.4426950408889634
def f2u(f): return struct.unpack("<I", struct.pack("<f", f))[0]

class Kern:
    def __init__(self, name, grid, block, lds, vgpr, sgpr=100):
        self.name, self.grid, self.block, self.lds, self.vgpr, self.sgpr = name, grid, block, lds, vgpr, sgpr
        self.lines = []
        self.nlab = 0
    def e(self, s):
        for l in s.strip("\n").split("\n"):
            if l.strip(): self.lines.append("    " + l.strip())
    def lab(self, s): self.lines.append(s + ":")
    def newlab(self, p):
        self.nlab += 1
        return f"{self.name}_{p}{self.nlab}"
    def ldptr(self, d, key): self.e(f"s_load_dwordx2 s[{d}:{d+1}], s[0:1], {KA[key]}")
    def srd(self, d, p, n, off=0):
        if off:
            self.e(f"s_add_u32 s{d}, s{p}, {off}\ns_addc_u32 s{d+1}, s{p+1}, 0")
        else:
            self.e(f"s_mov_b32 s{d}, s{p}\ns_mov_b32 s{d+1}, s{p+1}")
        self.e(f"s_mov_b32 s{d+2}, {n}\ns_mov_b32 s{d+3}, 0x00020000")
    def allreduce(self, op, x, t):
        for ctl in ("quad_perm:[1,0,3,2]", "quad_perm:[2,3,0,1]", "row_half_mirror", "row_mirror"):
            self.e(f"s_nop 1\nv_{op}_f32_dpp v{x}, v{x}, v{x} {ctl} row_mask:0xf bank_mask:0xf")
        for sw in ("v_permlane16_swap_b32", "v_permlane32_swap_b32"):
            self.e(f"v_mov_b32 v{t}, v{x}\ns_nop 1\n{sw} v{x}, v{t}\ns_nop 0\nv_{op}_f32 v{x}, v{x}, v{t}")
    def hilo(self, x, hi, lo, t):
        self.e(f"""v_cvt_pk_bf16_f32 v{hi}, v{x}, v{x}
                   v_lshlrev_b32 v{t}, 16, v{hi}
                   v_sub_f32 v{t}, v{x}, v{t}
                   v_cvt_pk_bf16_f32 v{lo}, v{t}, v{t}""")
    def sanitize(self, regs, tmp):
        self.e(f"v_mov_b32 v{tmp}, 0x7fc00000")
        for r in regs:
            self.e(f"v_cmp_eq_u32 vcc, -1, v{r}\ns_nop 1\nv_cndmask_b32 v{r}, v{r}, v{tmp}, vcc")
    def stamp(self, idx):
        if not STAMP: return
        self.e(f"s_memrealtime s[96:97]\ns_waitcnt lgkmcnt(0)\nv_writelane_b32 v255, s96, {idx}")
    def stamp_out(self):
        if not STAMP: return
        self.e(f"""s_mov_b64 exec, -1
                   s_waitcnt vmcnt(0)
                   s_memrealtime s[96:97]
                   s_waitcnt lgkmcnt(0)
                   v_writelane_b32 v255, s96, 15
                   s_add_u32 s96, s10, 0x1000000
                   s_addc_u32 s97, s11, 0
                   s_mov_b32 s98, 0x1000000
                   s_mov_b32 s99, 0x00020000
                   v_mbcnt_lo_u32_b32 v254, -1, 0
                   v_mbcnt_hi_u32_b32 v254, -1, v254
                   s_lshl_b32 s100, s2, 3
                   s_add_u32 s100, s100, s101
                   s_lshl_b32 s100, s100, 8
                   v_lshl_add_u32 v254, v254, 2, s100
                   buffer_store_dword v255, v254, s[96:99], 0 offen""")
    def text(self):
        acc = (self.vgpr + 3) // 4 * 4
        return "\n".join([
            f".globl {self.name}", ".p2align 8", f".type {self.name},@function", f"{self.name}:"] + self.lines + [
            "    s_endpgm",
            '.section .rodata,"a"', ".p2align 6", f".amdhsa_kernel {self.name}",
            f"  .amdhsa_next_free_vgpr {self.vgpr}", f"  .amdhsa_next_free_sgpr {self.sgpr}",
            f"  .amdhsa_accum_offset {acc}", "  .amdhsa_group_segment_fixed_size 0", "  .amdhsa_kernarg_size 104",
            "  .amdhsa_user_sgpr_count 2", "  .amdhsa_user_sgpr_kernarg_segment_ptr 1",
            "  .amdhsa_system_sgpr_workgroup_id_x 1", ".end_amdhsa_kernel", ".text", ""])

def guard(k, n):
    k.e(f"s_cmp_ge_u32 s2, {n}\ns_cbranch_scc1 {k.name}_end")

def wave_id(k, sdst, vt):
    k.e(f"v_lshrrev_b32 v{vt}, 6, v0\ns_nop 0\nv_readfirstlane_b32 s{sdst}, v{vt}")

RS = 1040
PX, MX, SX, SYNC, CT = 0, 8192, 8704, 9216, 9296
NONCE_L = SYNC + 64
WQ_L = CT + 128 * RS
LDS_TOTAL = WQ_L
LN_L, QQ_L = 0, 4608
D_A, D_A2, D_R = 0, 1024, 2048
T_A = 2304
WUV_L, OST_L, BIG_L = 9728, 26112, 63488

def lds_sync(k, word, target, vz, vone, vt, st):
    L = k.newlab("spin")
    k.e(f"""s_mov_b64 exec, 1
            ds_add_u32 v{vz}, v{vone} offset:{SYNC + 4*word}
            s_mov_b64 exec, -1""")
    k.lab(L)
    k.e(f"""ds_read_b32 v{vt}, v{vz} offset:{SYNC + 4*word}
            s_waitcnt lgkmcnt(0)
            v_readfirstlane_b32 s{st}, v{vt}
            s_cmp_lt_u32 s{st}, {target}
            s_cbranch_scc1 {L}""")

def poll_flags(k, vmask, vt, scnt, srd):
    L = k.newlab("pf"); Ld = k.newlab("pfd")
    k.e(f"s_mov_b32 s{scnt}, 0")
    k.lab(L)
    k.e(f"""buffer_load_dword v{vt}, v{vt+2}, s[{srd}:{srd+3}], 0 offen sc1
            s_waitcnt vmcnt(0)
            v_and_b32 v{vt}, v{vt}, v{vmask}
            v_cmp_ne_u32 vcc, v{vt}, v{vmask}
            s_add_u32 s{scnt}, s{scnt}, 1
            s_cmp_gt_u32 s{scnt}, {SPIN_MAX}
            s_cbranch_scc1 {Ld}
            s_cbranch_vccnz {L}""")
    k.lab(Ld)

def single_poll(k, word, vz, vone, vt, st, srd, soff, slp=3):
    L, Ld, Lo, Le = k.newlab("sp"), k.newlab("spd"), k.newlab("spo"), k.newlab("spe")
    k.e(f"s_cmp_lg_u32 s20, 0\ns_cbranch_scc1 {Lo}\ns_mov_b32 s{st}, 0")
    k.lab(L)
    k.e(f"""buffer_load_dwordx4 v[{vt}:{vt+3}], v{vt+4}, s[{srd}:{srd+3}], s{soff} offen sc1
            s_waitcnt vmcnt(0)
            v_max_u32 v{vt}, v{vt}, v{vt+1}
            v_max3_u32 v{vt}, v{vt}, v{vt+2}, v{vt+3}
            v_cmp_eq_u32 vcc, -1, v{vt}
            s_add_u32 s{st}, s{st}, 1
            s_cmp_gt_u32 s{st}, {SPIN_MAX}
            s_cbranch_scc1 {Ld}
            s_cbranch_vccz {Ld}
            s_sleep {slp}
            s_branch {L}""")
    k.lab(Ld)
    k.e(f"""ds_write_b32 v{vz}, v{vone} offset:{SYNC + 4*word}
            s_branch {Le}""")
    k.lab(Lo)
    lds_wait(k, word, 1, vz, vt, st, sleep=1)
    k.lab(Le)

def publish_rep(k, word, srd, hop, vz, vone, vt, st):
    L = k.newlab("pub")
    k.e(f"""s_waitcnt vmcnt(0)
            s_mov_b64 exec, 1
            ds_add_rtn_u32 v{vt}, v{vz}, v{vone} offset:{SYNC + 4*word}
            s_waitcnt lgkmcnt(0)
            v_readfirstlane_b32 s{st}, v{vt}
            s_mov_b64 exec, 0xff
            s_cmp_lg_u32 s{st}, 3
            s_cbranch_scc1 {L}
            s_lshl_b32 s{st}, s2, 2
            s_add_u32 s{st}, s{st}, {8192*hop}
            v_lshlrev_b32 v{vt}, 10, v1
            buffer_store_dword v{vone}, v{vt}, s[{srd}:{srd+3}], s{st} offen sc1""")
    k.lab(L)
    k.e("s_mov_b64 exec, -1")

def publish_flag(k, word, val, srd, vz, vone, vt, st):
    L = k.newlab("pub")
    k.e(f"""s_waitcnt vmcnt(0)
            s_mov_b64 exec, 1
            ds_add_rtn_u32 v{vt}, v{vz}, v{vone} offset:{SYNC + 4*word}
            s_waitcnt lgkmcnt(0)
            v_readfirstlane_b32 s{st}, v{vt}
            s_cmp_lg_u32 s{st}, 3
            s_cbranch_scc1 {L}
            v_mov_b32 v{vt}, s2
            v_mov_b32 v{vt+1}, {val}
            buffer_store_byte v{vt+1}, v{vt}, s[{srd}:{srd+3}], 0 offen sc1""")
    k.lab(L)
    k.e("s_mov_b64 exec, -1")

def lds_wait(k, word, target, vz, vt, st, sleep=0):
    L = k.newlab("lw")
    k.lab(L)
    if sleep: k.e(f"s_sleep {sleep}")
    k.e(f"""ds_read_b32 v{vt}, v{vz} offset:{SYNC + 4*word}
            s_waitcnt lgkmcnt(0)
            v_readfirstlane_b32 s{st}, v{vt}
            s_cmp_lt_u32 s{st}, {target}
            s_cbranch_scc1 {L}""")

def k1_qpart():
    WQ1, LN1 = 5120, 0
    k = Kern("k1_qpart_kernel", 256, 256, WQ1 + 18432, 80)
    guard(k, 256)
    k.ldptr(12, "x"); k.ldptr(14, "wq"); k.ldptr(10, "ws")
    wave_id(k, 20, 1)
    k.e("""v_and_b32 v1, 63, v0
           s_and_b32 s21, s2, 31
           s_lshr_b32 s22, s2, 5
           v_and_b32 v3, 15, v1
           v_lshrrev_b32 v4, 4, v1
           s_waitcnt lgkmcnt(0)""")
    k.srd(24, 12, SZ["x"]); k.srd(28, 14, SZ["wq"]); k.srd(36, 10, 262144, WS_QP); k.srd(52, 10, INIT_BYTES, WS_INIT)
    k.e("s_and_b32 s23, s20, 1\ns_mul_i32 s23, s23, 1152\nv_lshlrev_b32 v2, 1, v1")
    for i in range(9):
        k.e(f"buffer_load_ushort v{10+i}, v2, s[24:27], s23 offen offset:{128*i}")
    k.e(f"""v_lshlrev_b32 v6, 1, v4
            v_xor_b32 v6, v6, v3
            v_lshlrev_b32 v6, 4, v6
            v_lshl_add_u32 v6, v4, 13, v6
            s_and_b32 s40, s20, 2
            s_lshl_b32 s40, s40, 6
            v_xor_b32 v6, s40, v6
            s_mul_i32 s41, s22, 72
            s_lshl_b32 s42, s20, 2
            s_add_u32 s41, s41, s42
            s_lshl_b32 s41, s41, 13
            s_lshl_b32 s42, s21, 8
            s_add_u32 s41, s41, s42
            s_lshl_b32 s43, s20, 10
            s_add_u32 s43, s43, {WQ1}""")
    Lq = k.newlab("wq4")
    for i in range(5):
        if i == 4: k.e(f"s_cmp_ge_u32 s20, 2\ns_cbranch_scc1 {Lq}")
        k.e(f"""s_mov_b32 m0, s43
                s_add_u32 s43, s43, 4096
                buffer_load_dwordx4 v6, s[28:31], s41 offen nt lds
                s_add_u32 s41, s41, {16*8192}""")
    k.lab(Lq)
    k.e("""v_mov_b32 v28, -1
           v_mov_b32 v29, -1
           v_mov_b32 v30, -1
           v_mov_b32 v31, -1
           v_lshlrev_b32 v9, 4, v0
           s_mul_i32 s45, s2, 6144
           buffer_store_dwordx4 v[28:31], v9, s[52:55], s45 offen
           s_add_u32 s45, s45, 4096
           v_cmp_gt_u32 vcc, 128, v0
           s_and_saveexec_b64 s[48:49], vcc
           buffer_store_dwordx4 v[28:31], v9, s[52:55], s45 offen
           s_mov_b64 exec, s[48:49]
           s_waitcnt vmcnt(5)""")
    for i in range(9):
        k.e(f"v_lshlrev_b32 v{10+i}, 16, v{10+i}")
    k.e("v_add_f32 v20, v10, v11")
    for i in range(2, 9):
        k.e(f"v_add_f32 v20, v20, v{10+i}")
    k.allreduce("add", 20, 21)
    k.e(f"v_mul_f32 v20, {f2u(1.0/576)}, v20")
    for i in range(9):
        k.e(f"v_sub_f32 v{10+i}, v{10+i}, v20")
    k.e("v_mul_f32 v22, v10, v10")
    for i in range(1, 9):
        k.e(f"v_fmac_f32 v22, v{10+i}, v{10+i}")
    k.allreduce("add", 22, 21)
    k.e(f"""v_mov_b32 v23, {f2u(1e-5)}
            v_fmac_f32 v23, {f2u(1.0/576)}, v22
            v_rsq_f32 v23, v23
            v_add_u32 v24, s23, v2""")
    for i in range(9):
        k.e(f"v_mul_f32 v{10+i}, v{10+i}, v23")
        k.hilo(10+i, 25, 26, 27)
        k.e(f"""ds_write_b16 v24, v25 offset:{LN1 + 128*i}
                ds_write_b16 v24, v26 offset:{LN1 + 2304 + 128*i}""")
    k.e("s_waitcnt vmcnt(1) lgkmcnt(0)\ns_barrier")
    k.e(f"""v_and_b32 v8, 3, v1
            v_mul_u32_u24 v8, 1152, v8
            v_lshl_add_u32 v8, v4, 4, v8
            s_mul_i32 s40, s22, 144
            v_add_u32 v8, s40, v8""")
    for t in range(3):
        k.e(f"ds_read_b128 v[{28+4*t}:{31+4*t}], v8 offset:{LN1 + 64*t}")
    k.e(f"""v_lshrrev_b32 v9, 2, v3
            v_lshl_add_u32 v10, v4, 3, v9
            v_lshlrev_b32 v10, 8, v10
            v_and_b32 v11, 1, v4
            v_lshlrev_b32 v11, 3, v11
            v_lshl_or_b32 v11, v9, 1, v11
            v_bfe_u32 v12, v3, 1, 1
            s_lshl_b32 s46, s20, 2
            v_add_u32 v12, s46, v12
            v_and_b32 v13, 1, v3
            v_lshlrev_b32 v13, 3, v13
            s_mov_b32 s47, {WQ1}
            v_add3_u32 v10, v10, v13, s47
            v_lshlrev_b32 v19, 8, v9
            s_mov_b32 s47, {WQ1 + 16384}
            v_add3_u32 v19, v19, v13, s47
            v_lshlrev_b32 v18, 1, v9""")
    for nt in range(2):
        k.e(f"""v_add_u32 v14, {2*nt}, v12
                v_xor_b32 v15, v14, v11
                v_lshl_add_u32 v15, v15, 4, v10
                v_xor_b32 v16, v14, v18
                v_lshl_add_u32 v16, v16, 4, v19""")
        for t in range(2):
            d = 40 + 12*nt + 4*t
            k.e(f"""ds_read_b64_tr_b16 v[{d}:{d+1}], v15 offset:{8192*t}
                    ds_read_b64_tr_b16 v[{d+2}:{d+3}], v15 offset:{8192*t + 1024}""")
        d = 40 + 12*nt + 8
        k.e(f"""ds_read_b64_tr_b16 v[{d}:{d+1}], v16
                ds_read_b64_tr_b16 v[{d+2}:{d+3}], v16 offset:1024""")
    k.e("""v_cmp_gt_u32 vcc, 16, v1
           s_waitcnt lgkmcnt(0)
           v_cndmask_b32 v36, 0, v36, vcc
           v_cndmask_b32 v37, 0, v37, vcc
           v_cndmask_b32 v38, 0, v38, vcc
           v_cndmask_b32 v39, 0, v39, vcc
           s_nop 1""")
    for nt in range(2):
        acc = 64 + 4*nt
        for t in range(3):
            d = 40 + 12*nt + 4*t
            cin = "0" if t == 0 else f"v[{acc}:{acc+3}]"
            k.e(f"v_mfma_f32_16x16x32_bf16 v[{acc}:{acc+3}], v[{28+4*t}:{31+4*t}], v[{d}:{d+3}], {cin}")
    k.e(f"""s_lshl_b32 s46, s22, 15
            s_lshl_b32 s47, s21, 9
            s_add_u32 s46, s46, s47
            s_lshl_b32 s47, s20, 7
            s_add_u32 s46, s46, s47
            v_lshl_add_u32 v27, v3, 2, s46
            s_mov_b32 s47, 16384
            s_nop 4
            v_add_f32 v8, v64, v66
            v_add_f32 v9, v65, v67
            v_add_f32 v10, v68, v70
            v_add_f32 v11, v69, v71
            s_and_saveexec_b64 s[48:49], vcc
            buffer_store_dword v8, v27, s[36:39], 0 offen
            buffer_store_dword v9, v27, s[36:39], s47 offen
            buffer_store_dword v10, v27, s[36:39], 0 offen offset:64
            buffer_store_dword v11, v27, s[36:39], s47 offen offset:64""")
    k.lab(f"{k.name}_end")
    return k

def team_a(k):
    k.ldptr(16, "wuk"); k.ldptr(68, "wg"); k.ldptr(70, "wu")
    k.e("""s_and_b32 s21, s2, 31
           s_lshr_b32 s22, s2, 5
           v_and_b32 v3, 15, v1
           v_lshrrev_b32 v4, 4, v1
           v_mov_b32 v224, 0
           v_mov_b32 v225, 1
           s_waitcnt lgkmcnt(0)""")
    k.srd(32, 16, SZ["wuk"]); k.srd(36, 10, 262144, WS_QP)
    k.srd(56, 10, 65536, WS_QA); k.srd(60, 10, 8388608, WS_OP); k.srd(64, 10, 65536, WS_ML)
    k.srd(72, 68, SZ["wg"]); k.srd(76, 70, SZ["wu"]); k.srd(80, 10, 16384, WS_FL)
    if os.environ.get("EXP") == "1": lds_wait(k, 0, 4, 224, 226, 44, sleep=8)
    k.e("""v_lshlrev_b32 v252, 4, v1
           s_and_b32 s84, s2, 7
           s_lshl_b32 s84, s84, 10
           v_lshrrev_b32 v5, 7, v0
           v_and_b32 v6, 127, v0
           v_lshlrev_b32 v8, 14, v5
           v_lshl_add_u32 v8, v6, 2, v8
           s_lshl_b32 s46, s21, 9""")
    for j in range(8):
        k.e(f"buffer_load_dword v{10+j}, v8, s[36:39], s46 offen\ns_add_u32 s46, s46, 32768")
    k.e("""s_lshl_b32 s40, s22, 6
           s_lshl_b32 s41, s20, 4
           s_add_u32 s40, s40, s41
           v_add_u32 v7, s40, v3
           v_lshlrev_b32 v7, 13, v7
           v_lshl_add_u32 v7, v4, 4, v7
           s_lshl_b32 s41, s21, 8""")
    for t in range(4):
        k.e(f"buffer_load_dwordx4 v[{232+4*t}:{235+4*t}], v7, s[32:35], s41 offen offset:{64*t} {os.environ.get('UKNT', 'nt')}")
    k.e("""v_lshlrev_b32 v24, 8, v5
           v_lshl_add_u32 v24, v6, 1, v24
           s_waitcnt vmcnt(4)""")
    for j in range(1, 8):
        k.e(f"v_add_f32 v10, v10, v{10+j}")
    k.hilo(10, 25, 26, 27)
    k.e(f"""ds_write_b16 v24, v25 offset:{QQ_L}
            ds_write_b16 v24, v26 offset:{QQ_L + 512}""")
    lds_sync(k, 3, 4, 224, 225, 226, 44)
    k.e(f"""v_and_b32 v8, 3, v1
            v_lshlrev_b32 v8, 8, v8
            v_lshl_add_u32 v8, v4, 4, v8""")
    for t in range(4):
        k.e(f"ds_read_b128 v[{28+4*t}:{31+4*t}], v8 offset:{QQ_L + 64*t}")
    k.e("s_waitcnt vmcnt(0) lgkmcnt(0)")
    k.stamp(8)
    for t in range(4):
        cin = "0" if t == 0 else "v[64:67]"
        k.e(f"v_mfma_f32_16x16x32_bf16 v[64:67], v[{28+4*t}:{31+4*t}], v[{232+4*t}:{235+4*t}], {cin}")
    sc = f2u((128 ** -0.5) * LOG2E)
    k.e(f"""s_lshl_b32 s46, s22, 2
            s_add_u32 s46, s46, s20
            s_lshl_b32 s46, s46, 10
            s_lshl_b32 s47, s21, 4
            s_add_u32 s46, s46, s47
            v_lshrrev_b32 v12, 1, v1
            v_lshlrev_b32 v12, 15, v12
            v_and_b32 v13, 1, v1
            v_lshl_add_u32 v12, v13, 9, v12
            s_lshl_b32 s47, s20, 6
            v_lshl_add_u32 v13, v3, 1, s47
            v_lshl_add_u32 v14, v1, 4, s47
            v_add_f32 v10, v64, v66
            v_add_f32 v11, v65, v67
            v_mul_f32 v10, {sc}, v10
            v_mul_f32 v11, {sc}, v11
            v_cvt_pk_bf16_f32 v10, v10, v11
            ds_write_b16 v13, v10 offset:{QQ_L + 1024}
            ds_write_b16_d16_hi v13, v10 offset:{QQ_L + 1024 + 32}
            s_mov_b64 exec, 0xf
            ds_read_b128 v[16:19], v14 offset:{QQ_L + 1024}
            s_waitcnt lgkmcnt(0)
            buffer_store_dwordx4 v[16:19], v12, s[56:59], s46 offen sc1
            s_mov_b64 exec, -1""")
    publish_rep(k, 4, 80, 0, 224, 225, 226, 44)
    k.stamp(9)
    k.e(f"""v_and_b32 v2, 31, v1
            v_lshrrev_b32 v3, 5, v1
            s_lshr_b32 s21, s2, 7
            s_lshl_b32 s22, s21, 15
            v_lshlrev_b32 v5, 4, v1
            s_lshl_b32 s41, s20, 5
            v_and_b32 v6, 16, v2
            v_and_b32 v7, 3, v2
            v_lshl_add_u32 v6, v7, 2, v6
            v_bfe_u32 v7, v2, 2, 1
            v_lshl_add_u32 v6, v7, 1, v6
            v_bfe_u32 v7, v2, 3, 1
            v_add_u32 v6, v6, v7
            v_add_u32 v6, s41, v6
            v_mul_u32_u24 v6, {RS}, v6
            v_lshl_add_u32 v6, v3, 4, v6
            v_add_u32 v6, {CT}, v6
            """)
    single_poll(k, 13, 224, 225, 248, 44, 80, 84, slp=int(os.environ.get('SLP1', '3')))
    k.stamp(1)
    QF = 96
    for t in range(32):
        if t % 4 == 0 and t: k.e("s_add_u32 s22, s22, 4096")
        k.e(f"buffer_load_dwordx4 v[{QF+4*t}:{QF+3+4*t}], v5, s[56:59], s22 offen offset:{1024*(t%4)} sc1")
    lds_wait(k, 0, 4, 224, 226, 44)
    k.e("s_waitcnt vmcnt(0)")
    k.stamp(2)
    ACC = 16
    bufs = [32, 64]
    for i in range(8):
        k.e(f"ds_read_b128 v[{bufs[0]+4*i}:{bufs[0]+3+4*i}], v6 offset:{32*i}")
    for ci in range(4):
        if ci < 3:
            for i in range(8):
                b = bufs[(ci+1) % 2] + 4*i
                if b + 3 >= QF: raise Exception("reg overlap")
                k.e(f"ds_read_b128 v[{b}:{b+3}], v6 offset:{32*(8*(ci+1)+i)}")
            k.e("s_waitcnt lgkmcnt(8)")
        else:
            k.e("s_waitcnt lgkmcnt(0)")
        for i in range(8):
            t = 8*ci + i
            b = bufs[ci % 2] + 4*i
            cin = "0" if t == 0 else f"v[{ACC}:{ACC+15}]"
            k.e(f"v_mfma_f32_32x32x16_bf16 v[{ACC}:{ACC+15}], v[{b}:{b+3}], v[{QF+4*t}:{QF+3+4*t}], {cin}")
    k.e("s_nop 15")
    k.e(f"v_max3_f32 v8, v{ACC}, v{ACC+1}, v{ACC+2}")
    for i in range(3, 15, 2):
        k.e(f"v_max3_f32 v8, v8, v{ACC+i}, v{ACC+i+1}")
    k.e(f"""v_max_f32 v8, v8, v{ACC+15}
            v_mov_b32 v9, v8
            s_nop 1
            v_permlane32_swap_b32 v8, v9
            s_nop 0
            v_max_f32 v8, v8, v9
            s_lshl_b32 s43, s20, 2
            v_lshl_add_u32 v10, v2, 4, s43
            v_lshlrev_b32 v11, 4, v2
            ds_write_b32 v10, v8 offset:{MX}""")
    lds_sync(k, 5, 4, 224, 225, 226, 44)
    k.e(f"""ds_read_b128 v[12:15], v11 offset:{MX}
            s_waitcnt lgkmcnt(0)
            v_max3_f32 v8, v12, v13, v14
            v_max_f32 v8, v8, v15""")
    for i in range(16):
        k.e(f"v_sub_f32 v{ACC+i}, v{ACC+i}, v8")
    for i in range(16):
        k.e(f"v_exp_f32 v{ACC+i}, v{ACC+i}")
    k.e(f"s_nop 0\nv_add_f32 v9, v{ACC}, v{ACC+1}")
    for i in range(2, 16):
        k.e(f"v_add_f32 v9, v9, v{ACC+i}")
    for i in range(8):
        k.e(f"v_cvt_pk_bf16_f32 v{32+i}, v{ACC+2*i}, v{ACC+2*i+1}")
    k.e(f"""v_mov_b32 v12, v9
            s_lshl_b32 s44, s20, 11
            v_lshl_add_u32 v13, v1, 4, s44
            v_permlane32_swap_b32 v9, v12
            s_nop 0
            v_add_f32 v9, v9, v12
            ds_write_b128 v13, v[32:35] offset:{PX}
            ds_write_b128 v13, v[36:39] offset:{PX+1024}
            ds_write_b32 v10, v9 offset:{SX}""")
    lds_sync(k, 6, 4, 224, 225, 226, 44)
    k.stamp(3)
    PF = 32
    for s in range(8):
        k.e(f"ds_read_b128 v[{PF+4*s}:{PF+3+4*s}], v5 offset:{PX + 1024*s}")
    k.e(f"ds_read_b128 v[12:15], v11 offset:{SX}")
    k.e(f"""v_bfe_u32 v66, v1, 2, 2
            v_lshlrev_b32 v66, 2, v66
            v_lshl_add_u32 v66, v3, 1, v66
            v_mul_u32_u24 v66, {RS}, v66
            v_bfe_u32 v67, v1, 4, 1
            v_lshlrev_b32 v67, 5, v67
            v_and_b32 v7, 3, v1
            v_lshl_add_u32 v67, v7, 3, v67
            s_lshl_b32 s45, s20, 8
            s_add_u32 s45, s45, {CT}
            v_add3_u32 v64, v66, v67, s45
            v_add_u32 v65, {64*RS}, v64""")
    OACC = 96
    VB = [160, 192]
    steps = [(T, s) for s in range(8) for T in range(4)]
    def trread(dst, T, s):
        wq, u = s >> 1, s & 1
        base = 64 if wq < 2 else 65
        off = (32*(wq & 1) + 16*u) * RS + 64*T
        k.e(f"ds_read_b64_tr_b16 v[{dst}:{dst+1}], v{base} offset:{off}")
        k.e(f"ds_read_b64_tr_b16 v[{dst+2}:{dst+3}], v{base} offset:{off+RS}")
    CH = 4
    chunks = [steps[i:i+CH] for i in range(0, 32, CH)]
    for i, (T, s) in enumerate(chunks[0]):
        trread(VB[0] + 4*i, T, s)
    for ci, ch in enumerate(chunks):
        if ci + 1 < len(chunks):
            for i, (T, s) in enumerate(chunks[ci+1]):
                trread(VB[(ci+1) % 2] + 4*i, T, s)
            k.e(f"s_waitcnt lgkmcnt({2*CH})")
        else:
            k.e("s_waitcnt lgkmcnt(0)")
        for i, (T, s) in enumerate(ch):
            a = VB[ci % 2] + 4*i
            o = OACC + 16*T
            cin = "0" if s == 0 else f"v[{o}:{o+15}]"
            k.e(f"v_mfma_f32_32x32x16_bf16 v[{o}:{o+15}], v[{a}:{a+3}], v[{PF+4*s}:{PF+3+4*s}], {cin}")
    k.stamp(4)
    Lk = k.newlab("skipml")
    k.e(f"""v_add_f32 v12, v12, v13
            v_add_f32 v14, v14, v15
            v_add_f32 v9, v12, v14
            s_and_b32 s46, s2, 127
            s_lshl_b32 s47, s21, 12
            s_add_u32 s46, s46, s47
            s_lshl_b32 s46, s46, 3
            v_lshl_add_u32 v10, v2, 10, s46
            s_cmp_lg_u32 s20, 0
            s_cbranch_scc1 {Lk}
            v_cmp_gt_u32 vcc, 32, v1
            s_and_saveexec_b64 s[48:49], vcc
            buffer_store_dwordx2 v[8:9], v10, s[64:67], 0 offen sc1
            s_mov_b64 exec, s[48:49]""")
    k.lab(Lk)
    k.e(f"""s_lshl_b32 s46, s2, 15
            s_lshl_b32 s47, s20, 8
            s_add_u32 s46, s46, s47
            v_mul_u32_u24 v10, {RS}, v2
            v_lshl_add_u32 v10, v3, 3, v10
            v_add_u32 v10, s45, v10
            v_lshrrev_b32 v11, 4, v1
            v_and_b32 v12, 15, v1
            v_mul_u32_u24 v13, {RS}, v11
            v_lshl_add_u32 v13, v12, 4, v13
            v_add_u32 v13, s45, v13
            v_lshlrev_b32 v14, 10, v11
            v_lshl_add_u32 v14, v12, 4, v14""")
    for T in range(4):
        o = OACC + 16*T
        for a in range(4):
            d = 32 + 2*(4*T + a)
            k.e(f"""v_cvt_pk_bf16_f32 v{d}, v{o+4*a}, v{o+4*a+1}
                    v_cvt_pk_bf16_f32 v{d+1}, v{o+4*a+2}, v{o+4*a+3}
                    ds_write_b64 v10, v[{d}:{d+1}] offset:{64*T + 16*a}""")
    for n in range(8):
        k.e(f"ds_read_b128 v[{160+4*n}:{163+4*n}], v13 offset:{4*RS*n}")
    for n in range(8):
        k.e(f"""s_waitcnt lgkmcnt({7-n})
                buffer_store_dwordx4 v[{160+4*n}:{163+4*n}], v14, s[60:63], s46 offen sc1
                s_add_u32 s46, s46, 4096""")
    k.e("s_waitcnt vmcnt(0)")
    k.stamp(5)
    publish_rep(k, 7, 80, 1, 224, 225, 226, 44)
    k.e(f"s_cmp_ge_u32 s2, 144\ns_cbranch_scc1 {k.name}_end")
    lds_wait(k, 7, 4, 224, 226, 44)
    dma64_off(k, 8, 1, 10, 11, 9, 9216)
    k.e(f"""s_and_b32 s85, s2, 7
            s_lshl_b32 s85, s85, 1
            s_bfe_u32 s45, s2, 0x10003
            s_add_u32 s85, s85, s45
            s_andn2_b32 s45, s2, 15
            s_add_u32 s85, s85, s45
            s_mul_i32 s41, s20, 9*16*9216
            s_lshl_b32 s42, s85, 6
            s_add_u32 s41, s41, s42
            s_mul_i32 s43, s20, 9216
            s_add_u32 s43, s43, {BIG_L}
            s_add_u32 s44, s43, 36864""")
    for mi in range(9):
        if mi >= 2: k.e("s_waitcnt vmcnt(2)")
        k.e(f"""s_mov_b32 m0, s43
                s_add_u32 s43, s43, 1024
                buffer_load_dwordx4 v8, s[72:75], s41 offen {GUNT} lds
                s_mov_b32 m0, s44
                s_add_u32 s44, s44, 1024
                buffer_load_dwordx4 v8, s[76:79], s41 offen {GUNT} lds
                s_add_u32 s41, s41, {16*9216}""")
    k.e(f"s_waitcnt vmcnt(0)\ns_branch {k.name}_end")

def dma64_off(k, vA, lane, t1, t2, t3, rowstride):
    k.e(f"""v_lshrrev_b32 v{t1}, 2, v{lane}
            v_and_b32 v{t2}, 3, v{lane}
            v_bfe_u32 v{t3}, v{lane}, 5, 1
            v_lshlrev_b32 v{t3}, 1, v{t3}
            v_xor_b32 v{t2}, v{t2}, v{t3}
            v_mul_u32_u24 v{vA}, {rowstride}, v{t1}
            v_lshl_add_u32 v{vA}, v{t2}, 4, v{vA}""")

def tr64_base(k, dst, v3, v4, nt_sreg, t1, t2):
    k.e(f"""v_lshrrev_b32 v{t1}, 2, v{v3}
            v_lshl_add_u32 v{t1}, v{v4}, 3, v{t1}
            v_lshlrev_b32 v{t1}, 6, v{t1}
            v_bfe_u32 v{t2}, v{v3}, 1, 1
            v_add_u32 v{t2}, s{nt_sreg}, v{t2}
            v_and_b32 v{dst}, 1, v{v4}
            v_lshlrev_b32 v{dst}, 1, v{dst}
            v_xor_b32 v{t2}, v{t2}, v{dst}
            v_lshl_add_u32 v{t1}, v{t2}, 4, v{t1}
            v_and_b32 v{dst}, 1, v{v3}
            v_lshl_add_u32 v{dst}, v{dst}, 3, v{t1}""")

def poll_gather(k, loads, regs, scnt, mask_s=None):
    L = k.newlab("poll"); Ld = k.newlab("pdone")
    k.e(f"s_mov_b32 s{scnt}, 0")
    k.lab(L)
    for l in loads: k.e(l)
    k.e("s_waitcnt vmcnt(0)")
    k.e(f"v_max_u32 v7, v{regs[0]}, v{regs[1]}")
    for i in range(2, len(regs) - 1, 2):
        k.e(f"v_max3_u32 v7, v7, v{regs[i]}, v{regs[i+1]}")
    if len(regs) % 2: k.e(f"v_max_u32 v7, v7, v{regs[-1]}")
    k.e(f"""v_cmp_eq_u32 vcc, -1, v7
            s_add_u32 s{scnt}, s{scnt}, 1
            s_cmp_gt_u32 s{scnt}, {SPIN_MAX}
            s_cbranch_scc1 {Ld}
            s_cbranch_vccz {Ld}
            s_sleep 4
            s_branch {L}""")
    k.lab(Ld)

def team_b(k):
    k.e("""v_subrev_u32 v0, 0x100, v0
           s_sub_u32 s20, s20, 4
           v_and_b32 v3, 15, v1
           v_lshrrev_b32 v4, 4, v1
           s_and_b32 s21, s2, 31
           s_lshr_b32 s22, s2, 5
           v_mov_b32 v124, 0
           v_mov_b32 v125, 1""")
    k.ldptr(12, "wuv"); k.ldptr(14, "wo"); k.ldptr(64, "wd"); k.ldptr(66, "x"); k.ldptr(68, "out")
    k.e("s_waitcnt lgkmcnt(0)")
    k.srd(24, 12, SZ["wuv"]); k.srd(28, 10, 65536, WS_ML); k.srd(32, 10, 8388608, WS_OP); k.srd(36, 10, 262144, WS_CTX)
    k.srd(52, 10, 16384, WS_FL); k.srd(56, 10, 8*36864, WS_OUTP); k.srd(60, 10, 663552, WS_DNP)
    k.srd(72, 14, SZ["wo"]); k.srd(76, 4, SZ["ckv"]); k.srd(84, 64, SZ["wd"])
    k.srd(88, 66, SZ["x"]); k.srd(92, 68, SZ["out"])
    k.e("""s_sub_u32 s47, s2, 144
           s_mul_i32 s48, s47, 7282
           s_lshr_b32 s48, s48, 16
           s_mul_i32 s49, s48, 9
           s_sub_u32 s49, s47, s49""")
    k.e(f"""v_lshlrev_b32 v9, 4, v1
            s_lshl_b32 s40, s2, 7
            s_lshl_b32 s41, s20, 5
            s_add_u32 s40, s40, s41
            s_lshl_b32 s40, s40, 10
            s_mul_i32 s42, s41, {RS}
            s_add_u32 s42, s42, {CT}""")
    THR = int(os.environ.get("THR", "0")); DLY = int(os.environ.get("DLY", "0"))
    if DLY: lds_wait(k, 1, 1, 124, 126, 46, sleep=1)
    for r in range(32):
        if THR and r >= THR: k.e(f"s_waitcnt vmcnt({THR-1})")
        k.e(f"""s_mov_b32 m0, s42
                s_add_u32 s42, s42, {RS}
                buffer_load_dwordx4 v9, s[76:79], s40 offen nt lds
                s_add_u32 s40, s40, 1024""")
    k.e(f"""v_lshlrev_b32 v13, 1, v4
            v_xor_b32 v13, v13, v3
            v_lshlrev_b32 v13, 4, v13
            v_lshl_add_u32 v13, v4, 13, v13
            v_xor_b32 v14, 0x80, v13
            s_lshl_b32 s44, s22, 6
            s_lshl_b32 s45, s20, 4
            s_add_u32 s44, s44, s45
            s_lshl_b32 s44, s44, 13
            s_lshl_b32 s45, s21, 8
            s_add_u32 s44, s44, s45
            s_waitcnt vmcnt(0)
            s_mov_b64 exec, 1
            ds_add_u32 v124, v125 offset:{SYNC}
            s_mov_b64 exec, -1""")
    k.stamp(1)
    for mi in range(4):
        k.e(f"""buffer_load_dwordx4 v[{128+4*mi}:{131+4*mi}], v{14 if mi & 2 else 13}, s[24:27], s44 offen nt
                s_add_u32 s44, s44, 32768""")
    LW = k.newlab("ldW")
    k.e(f"""s_cmp_lt_u32 s2, 144
            s_cbranch_scc1 {LW}
            s_cmp_ge_u32 s2, 216
            s_cbranch_scc1 {LW}""")
    k.e("""v_lshrrev_b32 v10, 3, v1
           v_and_b32 v11, 7, v1
           v_and_b32 v12, 2, v10
           v_xor_b32 v11, v11, v12
           v_mul_u32_u24 v8, 1152, v10
           v_lshl_add_u32 v8, v11, 4, v8
           v_xor_b32 v11, 4, v11
           v_mul_u32_u24 v7, 1152, v10
           v_lshl_add_u32 v7, v11, 4, v7
           s_lshl_b32 s41, s48, 9
           s_lshl_b32 s42, s20, 7
           s_add_u32 s41, s41, s42
           s_mul_i32 s41, s41, 1152
           s_lshl_b32 s42, s49, 7
           s_add_u32 s41, s41, s42""")
    for mi in range(16):
        k.e(f"""buffer_load_dwordx4 v[{144+4*mi}:{147+4*mi}], v{7 if mi & 1 else 8}, s[72:75], s41 offen nt
                s_add_u32 s41, s41, {8*1152}""")
    k.lab(LW)
    k.stamp(2)
    lds_wait(k, 7, 4, 124, 126, 46, sleep=2)
    k.stamp(3)
    k.e(f"""s_waitcnt vmcnt(0)
            s_lshl_b32 s41, s20, 12
            s_add_u32 s41, s41, {WUV_L}
            v_add_u32 v10, s41, v9""")
    for mi in range(4):
        k.e(f"ds_write_b128 v10, v[{128+4*mi}:{131+4*mi}] offset:{1024*mi}")
    LW2 = k.newlab("stW")
    k.e(f"""s_cmp_lt_u32 s2, 144
            s_cbranch_scc1 {LW2}
            s_cmp_ge_u32 s2, 216
            s_cbranch_scc1 {LW2}
            s_lshl_b32 s41, s20, 14
            s_add_u32 s41, s41, {BIG_L}
            v_add_u32 v10, s41, v9""")
    for mi in range(16):
        k.e(f"ds_write_b128 v10, v[{144+4*mi}:{147+4*mi}] offset:{1024*mi}")
    k.lab(LW2)
    k.stamp(5)
    k.e("""v_lshlrev_b32 v24, 4, v1
           s_and_b32 s47, s2, 7
           s_lshl_b32 s47, s47, 10
           s_add_u32 s47, s47, 8192""")
    single_poll(k, 14, 124, 125, 20, 46, 52, 47)
    k.stamp(6)
    k.e("""v_lshrrev_b32 v5, 7, v0
           v_and_b32 v6, 127, v0
           v_lshlrev_b32 v5, 12, v5
           v_add_u32 v5, v5, v6
           s_lshl_b32 s40, s21, 7
           v_add_u32 v5, s40, v5
           v_lshlrev_b32 v5, 3, v5
           buffer_load_dwordx2 v[8:9], v5, s[28:31], 0 offen sc1""")
    k.e(f"""v_lshrrev_b32 v10, 3, v1
            v_and_b32 v11, 7, v1
            v_and_b32 v12, 2, v10
            v_xor_b32 v11, v11, v12
            v_lshlrev_b32 v11, 4, v11
            v_lshl_add_u32 v11, v10, 15, v11
            v_xor_b32 v12, 64, v11
            s_lshl_b32 s41, s21, 10
            s_lshl_b32 s42, s22, 7
            s_add_u32 s41, s41, s42
            s_lshl_b32 s42, s20, 21
            s_add_u32 s41, s41, s42
            s_lshl_b32 s43, s20, 13
            s_add_u32 s43, s43, {OST_L}""")
    for mi in range(8):
        k.e(f"""s_mov_b32 m0, s43
                s_add_u32 s43, s43, 1024
                buffer_load_dwordx4 v{12 if mi & 1 else 11}, s[32:35], s41 offen sc1 lds
                s_add_u32 s41, s41, 262144""")
    k.e("s_waitcnt vmcnt(8)\nv_mov_b32 v15, v8")
    k.allreduce("max", 15, 16)
    k.e(f"""s_lshl_b32 s46, s20, 2
            v_mov_b32 v17, s46
            ds_write_b32 v17, v15 offset:{D_R}
            s_waitcnt lgkmcnt(0)
            """)
    lds_sync(k, 8, 4, 124, 125, 126, 46)
    k.e(f"""
            s_and_b32 s47, s20, 2
            s_lshl_b32 s47, s47, 2
            v_mov_b32 v18, s47
            ds_read_b64 v[20:21], v18 offset:{D_R}
            s_waitcnt lgkmcnt(0)
            v_max_f32 v15, v20, v21
            v_sub_f32 v8, v8, v15
            v_exp_f32 v8, v8
            s_nop 0
            v_mul_f32 v19, v8, v9""")
    k.allreduce("add", 19, 16)
    k.e(f"""ds_write_b32 v17, v19 offset:{D_R+16}
            s_waitcnt lgkmcnt(0)
            """)
    lds_sync(k, 9, 4, 124, 125, 126, 46)
    k.e(f"""
            ds_read_b64 v[20:21], v18 offset:{D_R+16}
            s_waitcnt lgkmcnt(0)
            v_add_f32 v19, v20, v21
            v_rcp_f32 v19, v19
            s_nop 0
            v_mul_f32 v8, v8, v19""")
    k.hilo(8, 22, 23, 24)
    k.e(f"""v_lshrrev_b32 v25, 7, v0
            v_lshlrev_b32 v25, 9, v25
            v_lshl_add_u32 v25, v6, 1, v25
            ds_write_b16 v25, v22 offset:{D_A}
            ds_write_b16 v25, v23 offset:{D_A+256}
            s_waitcnt vmcnt(0) lgkmcnt(0)
            """)
    lds_sync(k, 10, 4, 124, 125, 126, 46)
    k.e(f"""""")
    k.stamp(7)
    k.e(f"""v_and_b32 v26, 1, v1
            v_lshlrev_b32 v26, 8, v26
            v_lshl_add_u32 v26, v4, 4, v26
            s_lshr_b32 s46, s20, 1
            s_lshl_b32 s47, s46, 9
            v_add_u32 v26, s47, v26""")
    for t in range(4):
        k.e(f"ds_read_b128 v[{28+4*t}:{31+4*t}], v26 offset:{D_A + 64*t}")
    k.e(f"""v_lshrrev_b32 v9, 2, v3
            v_lshl_add_u32 v10, v4, 3, v9
            v_lshlrev_b32 v10, 7, v10
            v_and_b32 v11, 2, v9
            v_and_b32 v12, 1, v4
            v_lshl_or_b32 v11, v12, 2, v11
            v_bfe_u32 v12, v3, 1, 1
            s_and_b32 s47, s20, 1
            s_lshl_b32 s47, s47, 2
            v_add_u32 v12, s47, v12
            v_and_b32 v13, 1, v3
            v_lshl_add_u32 v10, v13, 3, v10
            s_lshl_b32 s47, s46, 14
            s_add_u32 s47, s47, {OST_L}
            v_add_u32 v10, s47, v10""")
    for nt in range(2):
        k.e(f"""v_add_u32 v14, {2*nt}, v12
                v_xor_b32 v14, v14, v11
                v_lshl_add_u32 v{15+nt}, v14, 4, v10""")
    for nt in range(2):
        for t in range(4):
            d = 44 + 16*nt + 4*t
            k.e(f"""ds_read_b64_tr_b16 v[{d}:{d+1}], v{15+nt} offset:{4096*t}
                    ds_read_b64_tr_b16 v[{d+2}:{d+3}], v{15+nt} offset:{4096*t + 512}""")
    k.e("s_waitcnt lgkmcnt(0)")
    for nt in range(2):
        for t in range(4):
            d = 44 + 16*nt + 4*t
            acc = 20 if nt == 0 else 76
            cin = "0" if t == 0 else f"v[{acc}:{acc+3}]"
            k.e(f"v_mfma_f32_16x16x32_bf16 v[{acc}:{acc+3}], v[{28+4*t}:{31+4*t}], v[{d}:{d+3}], {cin}")
    k.e(f"""s_and_b32 s47, s20, 1
            s_lshl_b32 s47, s47, 6
            s_lshl_b32 s50, s46, 7
            s_add_u32 s47, s47, s50
            v_lshl_add_u32 v27, v3, 1, s47
            s_nop 7""")
    for nt in range(2):
        acc = 20 if nt == 0 else 76
        k.e(f"v_add_f32 v8, v{acc}, v{acc+1}")
        k.hilo(8, 9, 24, 25)
        k.e(f"""ds_write_b16 v27, v9 offset:{D_A2 + 32*nt}
                ds_write_b16 v27, v24 offset:{D_A2 + 256 + 32*nt}""")
    k.e("s_waitcnt lgkmcnt(0)")
    lds_sync(k, 11, 4, 124, 125, 126, 46)
    k.e(f"""v_and_b32 v8, 3, v1
            v_lshlrev_b32 v8, 7, v8
            v_lshl_add_u32 v8, v4, 4, v8
            ds_read_b128 v[28:31], v8 offset:{D_A2}
            ds_read_b128 v[32:35], v8 offset:{D_A2+64}""")
    k.e(f"""v_lshrrev_b32 v9, 2, v3
            v_lshl_add_u32 v10, v4, 3, v9
            v_lshlrev_b32 v10, 8, v10
            v_and_b32 v11, 1, v4
            v_lshlrev_b32 v11, 3, v11
            v_lshl_or_b32 v11, v9, 1, v11
            v_bfe_u32 v12, v3, 1, 1
            s_lshl_b32 s47, s20, 2
            v_add_u32 v12, s47, v12
            v_and_b32 v13, 1, v3
            v_lshl_add_u32 v10, v13, 3, v10""")
    for nt in range(2):
        k.e(f"""v_add_u32 v14, {2*nt}, v12
                v_xor_b32 v14, v14, v11
                v_lshl_add_u32 v{15+nt}, v14, 4, v10""")
    for nt in range(2):
        for t in range(2):
            d = 44 + 8*nt + 4*t
            k.e(f"""ds_read_b64_tr_b16 v[{d}:{d+1}], v{15+nt} offset:{WUV_L + 8192*t}
                    ds_read_b64_tr_b16 v[{d+2}:{d+3}], v{15+nt} offset:{WUV_L + 8192*t + 1024}""")
    k.e("s_waitcnt lgkmcnt(0)")
    for nt in range(2):
        acc = 20 if nt == 0 else 76
        for t in range(2):
            d = 44 + 8*nt + 4*t
            cin = "0" if t == 0 else f"v[{acc}:{acc+3}]"
            k.e(f"v_mfma_f32_16x16x32_bf16 v[{acc}:{acc+3}], v[{28+4*t}:{31+4*t}], v[{d}:{d+3}], {cin}")
    k.e(f"""s_lshl_b32 s47, s22, 15
            s_lshl_b32 s50, s21, 9
            s_add_u32 s47, s47, s50
            s_lshl_b32 s50, s20, 7
            s_add_u32 s47, s47, s50
            v_lshl_add_u32 v27, v3, 2, s47
            s_nop 7
            v_add_f32 v8, v20, v22
            v_add_f32 v9, v21, v23
            v_add_f32 v10, v76, v78
            v_add_f32 v11, v77, v79""")
    k.sanitize([8, 9, 10, 11], 12)
    k.e(f"""s_mov_b32 s47, 16384
            v_cmp_gt_u32 vcc, 16, v1
            s_and_saveexec_b64 s[50:51], vcc
            buffer_store_dword v8, v27, s[36:39], 0 offen sc1
            buffer_store_dword v9, v27, s[36:39], s47 offen sc1
            buffer_store_dword v10, v27, s[36:39], 0 offen offset:64 sc1
            buffer_store_dword v11, v27, s[36:39], s47 offen offset:64 sc1
            s_mov_b64 exec, s[50:51]""")
    k.stamp(8)
    LPE, LPG = k.newlab("phE"), k.newlab("phG")
    k.e(f"s_cmp_ge_u32 s2, 144\ns_cbranch_scc1 {LPE}")
    phase_f(k)
    k.e(f"s_branch {k.name}_end")
    k.lab(LPE)
    k.e(f"s_cmp_ge_u32 s2, 216\ns_cbranch_scc1 {LPG}")
    phase_e(k)
    k.e(f"s_branch {k.name}_end")
    k.lab(LPG)
    k.e(f"s_cmp_ge_u32 s2, 234\ns_cbranch_scc1 {k.name}_end")
    phase_g(k)

def phase_e(k):
    A_LDS = T_A
    k.e("""v_lshrrev_b32 v5, 7, v0
           v_and_b32 v6, 127, v0
           v_lshlrev_b32 v8, 14, v5
           v_lshl_add_u32 v8, v6, 4, v8
           s_lshl_b32 s40, s48, 11""")
    loads = []
    for j in range(8):
        loads.append(f"s_add_u32 s41, s40, {32768*j}\nbuffer_load_dwordx4 v[{20+4*j}:{23+4*j}], v8, s[36:39], s41 offen sc1")
    poll_gather(k, loads, list(range(20, 52)), 46)
    k.stamp(9)
    for j in range(1, 8):
        for e in range(4):
            k.e(f"v_add_f32 v{20+e}, v{20+e}, v{20+4*j+e}")
    k.e("""v_cvt_pk_bf16_f32 v24, v20, v21
           v_cvt_pk_bf16_f32 v25, v22, v23
           v_lshlrev_b32 v26, 16, v24
           v_and_b32 v27, 0xffff0000, v24
           v_lshlrev_b32 v28, 16, v25
           v_and_b32 v29, 0xffff0000, v25
           v_sub_f32 v20, v20, v26
           v_sub_f32 v21, v21, v27
           v_sub_f32 v22, v22, v28
           v_sub_f32 v23, v23, v29
           v_cvt_pk_bf16_f32 v26, v20, v21
           v_cvt_pk_bf16_f32 v27, v22, v23
           v_lshlrev_b32 v12, 10, v5
           v_lshl_add_u32 v12, v6, 3, v12""")
    k.e(f"""ds_write_b64 v12, v[24:25] offset:{A_LDS}
            ds_write_b64 v12, v[26:27] offset:{A_LDS+2048}
            s_waitcnt lgkmcnt(0)
            s_barrier""")
    k.e("""v_and_b32 v8, 3, v1
           v_lshlrev_b32 v8, 10, v8
           v_lshl_add_u32 v8, v4, 4, v8""")
    for t in range(16):
        k.e(f"ds_read_b128 v[{20+4*t}:{23+4*t}], v8 offset:{A_LDS + 64*t}")
    k.e(f"""v_lshrrev_b32 v9, 2, v3
            v_lshl_add_u32 v10, v4, 3, v9
            v_lshlrev_b32 v10, 7, v10
            v_and_b32 v11, 2, v9
            v_and_b32 v12, 1, v4
            v_lshl_or_b32 v11, v12, 2, v11
            v_bfe_u32 v12, v3, 1, 1
            s_lshl_b32 s47, s20, 1
            v_add_u32 v12, s47, v12
            v_and_b32 v13, 1, v3
            v_lshl_add_u32 v10, v13, 3, v10
            v_xor_b32 v12, v12, v11
            v_lshl_add_u32 v15, v12, 4, v10
            v_add_u32 v15, {BIG_L}, v15""")
    for c in range(2):
        for i in range(8):
            t = 8*c + i
            d = 88 + 4*i
            k.e(f"""ds_read_b64_tr_b16 v[{d}:{d+1}], v15 offset:{4096*t}
                    ds_read_b64_tr_b16 v[{d+2}:{d+3}], v15 offset:{4096*t + 512}""")
        k.e("s_waitcnt lgkmcnt(0)")
        for i in range(8):
            t = 8*c + i
            d = 88 + 4*i
            cin = "0" if t == 0 else "v[120:123]"
            k.e(f"v_mfma_f32_16x16x32_bf16 v[120:123], v[{20+4*t}:{23+4*t}], v[{d}:{d+3}], {cin}")
        k.e("s_nop 3")
    k.e(f"""s_mul_i32 s45, s48, 4608
            s_lshl_b32 s46, s49, 8
            s_add_u32 s45, s45, s46
            s_lshl_b32 s46, s20, 6
            s_add_u32 s45, s45, s46
            v_lshl_add_u32 v12, v3, 2, s45
            s_nop 7
            v_add_f32 v8, v120, v122
            v_add_f32 v9, v121, v123""")
    k.sanitize([8, 9], 10)
    k.e(f"""v_cmp_gt_u32 vcc, 16, v1
            s_and_saveexec_b64 s[50:51], vcc
            s_mov_b32 s45, 0""")
    for r in range(8):
        k.e("""buffer_store_dword v8, v12, s[56:59], s45 offen sc1
               buffer_store_dword v9, v12, s[56:59], s45 offen offset:2304 sc1
               s_add_u32 s45, s45, 36864""")

def phase_f(k):
    A_LDS, R_LDS, GU_LDS, A2_LDS = T_A, T_A + 4608, T_A + 4672, T_A + 5184
    D_LDS = OST_L
    k.e("s_barrier")
    k.e(f"""s_and_b32 s83, s2, 7
            s_lshl_b32 s83, s83, 1
            s_bfe_u32 s45, s2, 0x10003
            s_add_u32 s83, s83, s45
            s_andn2_b32 s45, s2, 15
            s_add_u32 s83, s83, s45
            v_lshlrev_b32 v9, 4, v1
            s_mul_i32 s41, s83, 36864
            s_mul_i32 s42, s20, 9216
            s_add_u32 s41, s41, s42
            s_add_u32 s43, s42, {D_LDS}""")
    for mi in range(9):
        k.e(f"""s_mov_b32 m0, s43
                s_add_u32 s43, s43, 1024
                buffer_load_dwordx4 v9, s[84:87], s41 offen nt lds
                s_add_u32 s41, s41, 1024""")
    k.stamp(10)
    k.e("""v_lshlrev_b32 v5, 4, v0
           v_mov_b32 v6, 0x7fffffff
           v_cmp_gt_u32 vcc, 144, v0
           s_nop 1
           v_cndmask_b32 v5, v6, v5, vcc
           v_lshrrev_b32 v8, 1, v5
           v_cndmask_b32 v8, v6, v8, vcc
           s_mov_b64 s[64:65], vcc""")
    k.e("""buffer_load_dwordx2 v[84:85], v8, s[88:91], 0 offen
           buffer_load_dwordx2 v[86:87], v8, s[88:91], 0 offen offset:1152""")
    k.e("s_and_b32 s41, s2, 7\ns_mul_i32 s41, s41, 36864")
    loads = []
    for ks in range(8):
        for b in range(2):
            r = 20 + 8*ks + 4*b
            loads.append(f"s_add_u32 s40, s41, {4608*ks}\nbuffer_load_dwordx4 v[{r}:{r+3}], v5, s[56:59], s40 offen offset:{2304*b} sc1")
    poll_gather(k, loads, list(range(20, 84)), 46)
    k.stamp(9)
    for ks in range(1, 8):
        for e in range(8):
            k.e(f"v_add_f32 v{20+e}, v{20+e}, v{20+8*ks+e}")
    for b in range(2):
        k.e(f"""v_lshlrev_b32 v12, 16, v{84+2*b}
                v_and_b32 v13, 0xffff0000, v{84+2*b}
                v_lshlrev_b32 v14, 16, v{85+2*b}
                v_and_b32 v15, 0xffff0000, v{85+2*b}
                v_add_f32 v{20+4*b}, v{20+4*b}, v12
                v_add_f32 v{21+4*b}, v{21+4*b}, v13
                v_add_f32 v{22+4*b}, v{22+4*b}, v14
                v_add_f32 v{23+4*b}, v{23+4*b}, v15""")
    k.e(f"""v_add_u32 v16, {BIG_L + 73728}, v5
            s_mov_b64 s[66:67], exec
            s_mov_b64 exec, s[64:65]
            ds_write_b128 v16, v[20:23]
            ds_write_b128 v16, v[24:27] offset:2304
            s_mov_b64 exec, s[66:67]""")
    k.e("""v_add_f32 v28, v20, v21
           v_add_f32 v29, v22, v23
           v_add_f32 v28, v28, v29
           v_add_f32 v29, v24, v25
           v_add_f32 v30, v26, v27
           v_add_f32 v29, v29, v30""")
    k.allreduce("add", 28, 31)
    k.allreduce("add", 29, 31)
    k.e(f"""s_lshl_b32 s46, s20, 3
            v_mov_b32 v32, s46
            v_mov_b32 v33, 0
            ds_write_b64 v32, v[28:29] offset:{R_LDS}
            s_waitcnt lgkmcnt(0)
            s_barrier
            ds_read_b128 v[36:39], v33 offset:{R_LDS}
            ds_read_b64 v[40:41], v33 offset:{R_LDS+16}
            s_waitcnt lgkmcnt(0)
            v_add_f32 v28, v36, v38
            v_add_f32 v28, v28, v40
            v_add_f32 v29, v37, v39
            v_add_f32 v29, v29, v41
            v_mul_f32 v28, {f2u(1.0/576)}, v28
            v_mul_f32 v29, {f2u(1.0/576)}, v29""")
    for b in range(2):
        for e in range(4):
            k.e(f"v_sub_f32 v{20+4*b+e}, v{20+4*b+e}, v{28+b}")
    for b in range(2):
        k.e(f"""v_mul_f32 v{30+b}, v{20+4*b}, v{20+4*b}
                v_fmac_f32 v{30+b}, v{21+4*b}, v{21+4*b}
                v_fmac_f32 v{30+b}, v{22+4*b}, v{22+4*b}
                v_fmac_f32 v{30+b}, v{23+4*b}, v{23+4*b}
                v_cndmask_b32 v{30+b}, 0, v{30+b}, s[64:65]""")
    k.allreduce("add", 30, 34)
    k.allreduce("add", 31, 34)
    k.e(f"""ds_write_b64 v32, v[30:31] offset:{R_LDS+32}
            s_waitcnt lgkmcnt(0)
            s_barrier
            ds_read_b128 v[36:39], v33 offset:{R_LDS+32}
            ds_read_b64 v[40:41], v33 offset:{R_LDS+48}
            s_waitcnt lgkmcnt(0)
            v_add_f32 v30, v36, v38
            v_add_f32 v30, v30, v40
            v_add_f32 v31, v37, v39
            v_add_f32 v31, v31, v41
            v_mov_b32 v34, {f2u(1e-5)}
            v_mov_b32 v35, {f2u(1e-5)}
            v_fmac_f32 v34, {f2u(1.0/576)}, v30
            v_fmac_f32 v35, {f2u(1.0/576)}, v31
            v_rsq_f32 v34, v34
            v_rsq_f32 v35, v35
            v_lshlrev_b32 v12, 3, v0""")
    for b in range(2):
        o = 20 + 4*b
        for e in range(4):
            k.e(f"v_mul_f32 v{o+e}, v{o+e}, v{34+b}")
        k.e(f"""v_cvt_pk_bf16_f32 v36, v{o}, v{o+1}
                v_cvt_pk_bf16_f32 v37, v{o+2}, v{o+3}
                v_lshlrev_b32 v38, 16, v36
                v_and_b32 v39, 0xffff0000, v36
                v_lshlrev_b32 v40, 16, v37
                v_and_b32 v41, 0xffff0000, v37
                v_sub_f32 v{o}, v{o}, v38
                v_sub_f32 v{o+1}, v{o+1}, v39
                v_sub_f32 v{o+2}, v{o+2}, v40
                v_sub_f32 v{o+3}, v{o+3}, v41
                v_cvt_pk_bf16_f32 v38, v{o}, v{o+1}
                v_cvt_pk_bf16_f32 v39, v{o+2}, v{o+3}
                s_mov_b64 s[66:67], exec
                s_mov_b64 exec, s[64:65]
                ds_write_b64 v12, v[36:37] offset:{A_LDS + 1152*b}
                ds_write_b64 v12, v[38:39] offset:{A_LDS + 2304 + 1152*b}
                s_mov_b64 exec, s[66:67]""")
    k.e("s_waitcnt lgkmcnt(0)\ns_barrier")
    k.e(f"""v_and_b32 v8, 3, v1
            v_mul_u32_u24 v8, 1152, v8
            v_lshl_add_u32 v8, v4, 4, v8
            s_and_b32 s44, s20, 1
            s_lshl_b32 s44, s44, 1
            s_lshr_b32 s45, s20, 1
            s_mul_i32 s45, s45, 36864
            s_add_u32 s45, s45, {BIG_L}""")
    for t in range(18):
        k.e(f"ds_read_b128 v[{20+4*t}:{23+4*t}], v8 offset:{A_LDS + 64*t}")
    tr64_base(k, 15, 3, 4, 44, 10, 11)
    k.e("v_add_u32 v15, s45, v15")
    for c in range(3):
        for i in range(6):
            t = 6*c + i
            d = 96 + 4*i
            k.e(f"""ds_read_b64_tr_b16 v[{d}:{d+1}], v15 offset:{2048*t}
                    ds_read_b64_tr_b16 v[{d+2}:{d+3}], v15 offset:{2048*t + 256}""")
        k.e("s_waitcnt lgkmcnt(0)")
        for i in range(6):
            t = 6*c + i
            d = 96 + 4*i
            cin = "0" if t == 0 else "v[120:123]"
            k.e(f"v_mfma_f32_16x16x32_bf16 v[120:123], v[{20+4*t}:{23+4*t}], v[{d}:{d+3}], {cin}")
        k.e("s_nop 3")
    k.e("s_nop 7")
    k.e(f"""s_lshr_b32 s45, s20, 1
            s_lshl_b32 s45, s45, 8
            s_and_b32 s46, s20, 1
            s_lshl_b32 s46, s46, 6
            s_add_u32 s45, s45, s46
            v_lshl_add_u32 v12, v3, 2, s45
            v_add_f32 v8, v120, v122
            v_add_f32 v9, v121, v123
            ds_write_b32 v12, v8 offset:{GU_LDS}
            ds_write_b32 v12, v9 offset:{GU_LDS+128}
            s_waitcnt lgkmcnt(0)
            s_barrier
            v_lshlrev_b32 v12, 2, v1
            ds_read_b32 v8, v12 offset:{GU_LDS}
            ds_read_b32 v9, v12 offset:{GU_LDS+256}
            s_waitcnt lgkmcnt(0)
            v_mul_f32 v10, {f2u(-LOG2E)}, v8
            v_exp_f32 v10, v10
            s_nop 0
            v_add_f32 v10, 1.0, v10
            v_rcp_f32 v10, v10
            s_nop 0
            v_mul_f32 v8, v8, v10
            v_mul_f32 v8, v8, v9""")
    k.hilo(8, 9, 10, 11)
    k.e(f"""v_lshlrev_b32 v12, 1, v1
            ds_write_b16 v12, v9 offset:{A2_LDS}
            ds_write_b16 v12, v10 offset:{A2_LDS+128}
            s_waitcnt lgkmcnt(0)
            s_barrier
            v_and_b32 v8, 3, v1
            v_lshlrev_b32 v8, 6, v8
            v_lshl_add_u32 v8, v4, 4, v8
            ds_read_b128 v[20:23], v8 offset:{A2_LDS}""")
    k.e(f"""v_lshrrev_b32 v10, 2, v3
            v_lshl_add_u32 v10, v4, 3, v10
            v_mul_u32_u24 v10, 1152, v10
            v_and_b32 v11, 3, v3
            v_lshl_add_u32 v10, v11, 3, v10
            s_mul_i32 s45, s20, 288
            s_add_u32 s45, s45, {D_LDS}
            v_add_u32 v10, s45, v10""")
    for n in range(9):
        d = 24 + 4*n
        k.e(f"""ds_read_b64_tr_b16 v[{d}:{d+1}], v10 offset:{32*n}
                ds_read_b64_tr_b16 v[{d+2}:{d+3}], v10 offset:{32*n + 4608}""")
    k.e(f"""s_mul_i32 s46, s20, 576
            s_add_u32 s46, s46, {BIG_L + 73728}
            v_lshl_add_u32 v13, v3, 2, s46""")
    for n in range(9):
        k.e(f"""ds_read_b32 v{100+2*n}, v13 offset:{64*n}
                ds_read_b32 v{101+2*n}, v13 offset:{2304 + 64*n}""")
    k.e("s_waitcnt lgkmcnt(0)")
    for n in range(9):
        d = 24 + 4*n
        k.e(f"v_mfma_f32_16x16x32_bf16 v[{64+4*n}:{67+4*n}], v[20:23], v[{d}:{d+3}], 0")
    k.e(f"""s_mul_i32 s45, s2, 4608
            s_mul_i32 s46, s20, 576
            s_add_u32 s45, s45, s46
            v_lshl_add_u32 v12, v3, 2, s45
            s_cmp_eq_u32 s2, 0
            s_cselect_b32 s47, 1.0, 0
            v_mov_b32 v14, 0x7fc00000
            s_nop 4""")
    for n in range(9):
        a = 64 + 4*n
        k.e(f"""v_add_f32 v{a}, v{a}, v{a+2}
                v_add_f32 v{a+1}, v{a+1}, v{a+3}""")
    Lh = k.newlab("noh")
    k.e(f"s_cbranch_scc0 {Lh}")
    for n in range(9):
        a = 64 + 4*n
        k.e(f"""v_add_f32 v{a}, v{a}, v{100+2*n}
                v_add_f32 v{a+1}, v{a+1}, v{101+2*n}""")
    k.lab(Lh)
    for n in range(9):
        a = 64 + 4*n
        k.e(f"""v_cmp_eq_u32 vcc, -1, v{a}
                v_cmp_eq_u32 s[66:67], -1, v{a+1}
                s_nop 1
                v_cndmask_b32 v{a}, v{a}, v14, vcc
                v_cndmask_b32 v{a+1}, v{a+1}, v14, s[66:67]""")
    k.e("""v_cmp_gt_u32 vcc, 16, v1
           s_and_saveexec_b64 s[50:51], vcc""")
    for n in range(9):
        a = 64 + 4*n
        k.e(f"""buffer_store_dword v{a}, v12, s[60:63], 0 offen offset:{64*n} sc1
                buffer_store_dword v{a+1}, v12, s[60:63], 0 offen offset:{2304 + 64*n} sc1""")

def phase_g(k):
    k.e("""s_sub_u32 s48, s2, 216
           v_lshrrev_b32 v5, 4, v0
           v_and_b32 v6, 15, v0
           v_mul_u32_u24 v8, 4608, v5
           v_lshl_add_u32 v8, v6, 4, v8
           s_lshl_b32 s40, s48, 8""")
    loads = []
    for i in range(9):
        loads.append(f"s_add_u32 s41, s40, {16*4608*i}\nbuffer_load_dwordx4 v[{20+4*i}:{23+4*i}], v8, s[60:63], s41 offen sc1")
    poll_gather(k, loads, list(range(20, 56)), 46)
    k.stamp(9)
    for i in range(1, 9):
        for e in range(4):
            k.e(f"v_add_f32 v{20+e}, v{20+e}, v{20+4*i+e}")
    k.e(f"""v_lshlrev_b32 v9, 4, v0
            v_lshlrev_b32 v10, 2, v0
            ds_write_b128 v9, v[20:23] offset:{T_A}
            s_waitcnt lgkmcnt(0)
            s_barrier
            s_cmp_lg_u32 s20, 0
            s_cbranch_scc1 {k.name}_end""")
    for i in range(16):
        k.e(f"ds_read_b32 v{20+i}, v10 offset:{T_A + 256*i}")
    k.e("s_waitcnt lgkmcnt(0)")
    for i in range(1, 16):
        k.e(f"v_add_f32 v20, v20, v{20+i}")
    k.e("""v_cvt_pk_bf16_f32 v20, v20, v20
           v_lshlrev_b32 v10, 1, v0
           s_lshl_b32 s41, s48, 7
           buffer_store_short v20, v10, s[92:95], s41 offen""")

def k2_main():
    k = Kern("k_main_kernel", 256, 512, LDS_TOTAL, 256)
    guard(k, 256)
    k.ldptr(4, "ckv"); k.ldptr(10, "ws")
    wave_id(k, 20, 1)
    k.e(f"""v_and_b32 v1, 63, v0
            v_mov_b32 v2, 0
            v_lshlrev_b32 v3, 2, v1
            v_cmp_gt_u32 vcc, 20, v0
            s_and_saveexec_b64 s[48:49], vcc
            ds_write_b32 v3, v2 offset:{SYNC}
            s_mov_b64 exec, s[48:49]
            s_waitcnt lgkmcnt(0)
            s_barrier""")
    LB = k.newlab("teamB")
    if STAMP:
        k.sgpr = 102
        k.e("s_mov_b32 s101, s20\nv_mov_b32 v255, 0")
        k.stamp(0)
    k.e(f"s_cmp_ge_u32 s20, 4\ns_cbranch_scc1 {LB}")
    team_a(k)
    k.lab(LB)
    team_b(k)
    k.lab(f"{k.name}_end")
    if STAMP:
        k.e(f"s_cmp_ge_u32 s2, 256\ns_cbranch_scc1 {k.name}_end2")
        k.stamp_out()
        k.lab(f"{k.name}_end2")
    return k

def main():
    ks = [k1_qpart(), k2_main()]
    out = [HEADER.rstrip("\n")]
    for k in ks:
        out.append(f"; @launch kernel={k.name} grid=({k.grid},1,1) block=({k.block},1,1) lds={k.lds}")
    out.append('.amdgcn_target "amdgcn-amd-amdhsa--gfx950"\n.text')
    for k in ks:
        out.append(k.text())
    open(sys.argv[1] if len(sys.argv) > 1 else "u.s", "w").write("\n".join(out))
main()
```

```python
import sys, struct

HEADER = open("sequential_preLN__compressed_kv_cla__swiglu_ffn__decode.s.ref").read().split("; Override launch")[0]

WS_QA   = 0x000000
WS_ML   = 0x010000
WS_QP   = 0x020000
WS_INIT = 0x080000
WS_CTX  = 0x080000
WS_DNP  = 0x0C0000
WS_OUTP = 0x170000
WS_FL   = 0x1C0000
WS_OP   = 0x200000
INIT_BYTES = 0x180000
SENT = 0xFFFFFFFF
import os
GUNT = os.environ.get('GUNT', 'nt')
SPIN_MAX = 40000
import os
STAMP = bool(os.environ.get('STAMP'))

KA = dict(x=0, ckv=8, wq=16, wuk=24, wuv=32, wo=40, bx=48, wg=56, wu=64, wd=72, out=80, dbg=88, ws=96)
SZ = dict(x=2304, ckv=33554432, wq=4718592, wuk=4194304, wuv=4194304, wo=4718592, wg=5308416, wu=5308416,
          wd=5308416, out=2304)
LOG2E = 1.4426950408889634
def f2u(f): return struct.unpack("<I", struct.pack("<f", f))[0]

class Kern:
    def __init__(self, name, grid, block, lds, vgpr, sgpr=100):
        self.name, self.grid, self.block, self.lds, self.vgpr, self.sgpr = name, grid, block, lds, vgpr, sgpr
        self.lines = []
        self.nlab = 0
    def e(self, s):
        for l in s.strip("\n").split("\n"):
            if l.strip(): self.lines.append("    " + l.strip())
    def lab(self, s): self.lines.append(s + ":")
    def newlab(self, p):
        self.nlab += 1
        return f"{self.name}_{p}{self.nlab}"
    def ldptr(self, d, key): self.e(f"s_load_dwordx2 s[{d}:{d+1}], s[0:1], {KA[key]}")
    def srd(self, d, p, n, off=0):
        if off:
            self.e(f"s_add_u32 s{d}, s{p}, {off}\ns_addc_u32 s{d+1}, s{p+1}, 0")
        else:
            self.e(f"s_mov_b32 s{d}, s{p}\ns_mov_b32 s{d+1}, s{p+1}")
        self.e(f"s_mov_b32 s{d+2}, {n}\ns_mov_b32 s{d+3}, 0x00020000")
    def allreduce(self, op, x, t):
        for ctl in ("quad_perm:[1,0,3,2]", "quad_perm:[2,3,0,1]", "row_half_mirror", "row_mirror"):
            self.e(f"s_nop 1\nv_{op}_f32_dpp v{x}, v{x}, v{x} {ctl} row_mask:0xf bank_mask:0xf")
        for sw in ("v_permlane16_swap_b32", "v_permlane32_swap_b32"):
            self.e(f"v_mov_b32 v{t}, v{x}\ns_nop 1\n{sw} v{x}, v{t}\ns_nop 0\nv_{op}_f32 v{x}, v{x}, v{t}")
    def hilo(self, x, hi, lo, t):
        self.e(f"""v_cvt_pk_bf16_f32 v{hi}, v{x}, v{x}
                   v_lshlrev_b32 v{t}, 16, v{hi}
                   v_sub_f32 v{t}, v{x}, v{t}
                   v_cvt_pk_bf16_f32 v{lo}, v{t}, v{t}""")
    def sanitize(self, regs, tmp):
        self.e(f"v_mov_b32 v{tmp}, 0x7fc00000")
        for r in regs:
            self.e(f"v_cmp_eq_u32 vcc, -1, v{r}\ns_nop 1\nv_cndmask_b32 v{r}, v{r}, v{tmp}, vcc")
    def stamp(self, idx):
        if not STAMP: return
        self.e(f"s_memrealtime s[96:97]\ns_waitcnt lgkmcnt(0)\nv_writelane_b32 v255, s96, {idx}")
    def stamp_out(self):
        if not STAMP: return
        self.e(f"""s_mov_b64 exec, -1
                   s_waitcnt vmcnt(0)
                   s_memrealtime s[96:97]
                   s_waitcnt lgkmcnt(0)
                   v_writelane_b32 v255, s96, 15
                   s_add_u32 s96, s10, 0x1000000
                   s_addc_u32 s97, s11, 0
                   s_mov_b32 s98, 0x1000000
                   s_mov_b32 s99, 0x00020000
                   v_mbcnt_lo_u32_b32 v254, -1, 0
                   v_mbcnt_hi_u32_b32 v254, -1, v254
                   s_lshl_b32 s100, s2, 3
                   s_add_u32 s100, s100, s101
                   s_lshl_b32 s100, s100, 8
                   v_lshl_add_u32 v254, v254, 2, s100
                   buffer_store_dword v255, v254, s[96:99], 0 offen""")
    def text(self):
        acc = (self.vgpr + 3) // 4 * 4
        return "\n".join([
            f".globl {self.name}", ".p2align 8", f".type {self.name},@function", f"{self.name}:"] + self.lines + [
            "    s_endpgm",
            '.section .rodata,"a"', ".p2align 6", f".amdhsa_kernel {self.name}",
            f"  .amdhsa_next_free_vgpr {self.vgpr}", f"  .amdhsa_next_free_sgpr {self.sgpr}",
            f"  .amdhsa_accum_offset {acc}", "  .amdhsa_group_segment_fixed_size 0", "  .amdhsa_kernarg_size 104",
            "  .amdhsa_user_sgpr_count 2", "  .amdhsa_user_sgpr_kernarg_segment_ptr 1",
            "  .amdhsa_system_sgpr_workgroup_id_x 1", ".end_amdhsa_kernel", ".text", ""])

def guard(k, n):
    k.e(f"s_cmp_ge_u32 s2, {n}\ns_cbranch_scc1 {k.name}_end")

def wave_id(k, sdst, vt):
    k.e(f"v_lshrrev_b32 v{vt}, 6, v0\ns_nop 0\nv_readfirstlane_b32 s{sdst}, v{vt}")

RS = 1040
PX, MX, SX, SYNC, CT = 0, 8192, 8704, 9216, 9296
NONCE_L = SYNC + 64
WQ_L = CT + 128 * RS
LDS_TOTAL = WQ_L
LN_L, QQ_L = 0, 4608
D_A, D_A2, D_R = 0, 1024, 2048
T_A = 2304
WUV_L, OST_L, BIG_L = 9728, 26112, 63488

def lds_sync(k, word, target, vz, vone, vt, st):
    L = k.newlab("spin")
    k.e(f"""s_mov_b64 exec, 1
            ds_add_u32 v{vz}, v{vone} offset:{SYNC + 4*word}
            s_mov_b64 exec, -1""")
    k.lab(L)
    k.e(f"""ds_read_b32 v{vt}, v{vz} offset:{SYNC + 4*word}
            s_waitcnt lgkmcnt(0)
            v_readfirstlane_b32 s{st}, v{vt}
            s_cmp_lt_u32 s{st}, {target}
            s_cbranch_scc1 {L}""")

def poll_flags(k, vmask, vt, scnt, srd):
    L = k.newlab("pf"); Ld = k.newlab("pfd")
    k.e(f"s_mov_b32 s{scnt}, 0")
    k.lab(L)
    k.e(f"""buffer_load_dword v{vt}, v{vt+2}, s[{srd}:{srd+3}], 0 offen sc1
            s_waitcnt vmcnt(0)
            v_and_b32 v{vt}, v{vt}, v{vmask}
            v_cmp_ne_u32 vcc, v{vt}, v{vmask}
            s_add_u32 s{scnt}, s{scnt}, 1
            s_cmp_gt_u32 s{scnt}, {SPIN_MAX}
            s_cbranch_scc1 {Ld}
            s_cbranch_vccnz {L}""")
    k.lab(Ld)

def single_poll(k, word, vz, vone, vt, st, srd, soff, slp=3):
    L, Ld, Lo, Le = k.newlab("sp"), k.newlab("spd"), k.newlab("spo"), k.newlab("spe")
    k.e(f"s_cmp_lg_u32 s20, 0\ns_cbranch_scc1 {Lo}\ns_mov_b32 s{st}, 0")
    k.lab(L)
    k.e(f"""buffer_load_dwordx4 v[{vt}:{vt+3}], v{vt+4}, s[{srd}:{srd+3}], s{soff} offen sc1
            s_waitcnt vmcnt(0)
            v_max_u32 v{vt}, v{vt}, v{vt+1}
            v_max3_u32 v{vt}, v{vt}, v{vt+2}, v{vt+3}
            v_cmp_eq_u32 vcc, -1, v{vt}
            s_add_u32 s{st}, s{st}, 1
            s_cmp_gt_u32 s{st}, {SPIN_MAX}
            s_cbranch_scc1 {Ld}
            s_cbranch_vccz {Ld}
            s_sleep {slp}
            s_branch {L}""")
    k.lab(Ld)
    k.e(f"""ds_write_b32 v{vz}, v{vone} offset:{SYNC + 4*word}
            s_branch {Le}""")
    k.lab(Lo)
    lds_wait(k, word, 1, vz, vt, st, sleep=1)
    k.lab(Le)

def publish_rep(k, word, srd, hop, vz, vone, vt, st):
    L = k.newlab("pub")
    k.e(f"""s_waitcnt vmcnt(0)
            s_mov_b64 exec, 1
            ds_add_rtn_u32 v{vt}, v{vz}, v{vone} offset:{SYNC + 4*word}
            s_waitcnt lgkmcnt(0)
            v_readfirstlane_b32 s{st}, v{vt}
            s_mov_b64 exec, 0xff
            s_cmp_lg_u32 s{st}, 3
            s_cbranch_scc1 {L}
            s_lshl_b32 s{st}, s2, 2
            s_add_u32 s{st}, s{st}, {8192*hop}
            v_lshlrev_b32 v{vt}, 10, v1
            buffer_store_dword v{vone}, v{vt}, s[{srd}:{srd+3}], s{st} offen sc1""")
    k.lab(L)
    k.e("s_mov_b64 exec, -1")

def publish_flag(k, word, val, srd, vz, vone, vt, st):
    L = k.newlab("pub")
    k.e(f"""s_waitcnt vmcnt(0)
            s_mov_b64 exec, 1
            ds_add_rtn_u32 v{vt}, v{vz}, v{vone} offset:{SYNC + 4*word}
            s_waitcnt lgkmcnt(0)
            v_readfirstlane_b32 s{st}, v{vt}
            s_cmp_lg_u32 s{st}, 3
            s_cbranch_scc1 {L}
            v_mov_b32 v{vt}, s2
            v_mov_b32 v{vt+1}, {val}
            buffer_store_byte v{vt+1}, v{vt}, s[{srd}:{srd+3}], 0 offen sc1""")
    k.lab(L)
    k.e("s_mov_b64 exec, -1")

def lds_wait(k, word, target, vz, vt, st, sleep=0):
    L = k.newlab("lw")
    k.lab(L)
    if sleep: k.e(f"s_sleep {sleep}")
    k.e(f"""ds_read_b32 v{vt}, v{vz} offset:{SYNC + 4*word}
            s_waitcnt lgkmcnt(0)
            v_readfirstlane_b32 s{st}, v{vt}
            s_cmp_lt_u32 s{st}, {target}
            s_cbranch_scc1 {L}""")

def k1_qpart():
    WQ1, LN1 = 5120, 0
    k = Kern("k1_qpart_kernel", 256, 256, WQ1 + 18432, 80)
    guard(k, 256)
    k.ldptr(12, "x"); k.ldptr(14, "wq"); k.ldptr(10, "ws")
    wave_id(k, 20, 1)
    k.e("""v_and_b32 v1, 63, v0
           s_and_b32 s21, s2, 31
           s_lshr_b32 s22, s2, 5
           v_and_b32 v3, 15, v1
           v_lshrrev_b32 v4, 4, v1
           s_waitcnt lgkmcnt(0)""")
    k.srd(24, 12, SZ["x"]); k.srd(28, 14, SZ["wq"]); k.srd(36, 10, 262144, WS_QP); k.srd(52, 10, INIT_BYTES, WS_INIT)
    k.e("s_and_b32 s23, s20, 1\ns_mul_i32 s23, s23, 1152\nv_lshlrev_b32 v2, 1, v1")
    for i in range(9):
        k.e(f"buffer_load_ushort v{10+i}, v2, s[24:27], s23 offen offset:{128*i}")
    k.e(f"""v_lshlrev_b32 v6, 1, v4
            v_xor_b32 v6, v6, v3
            v_lshlrev_b32 v6, 4, v6
            v_lshl_add_u32 v6, v4, 13, v6
            s_and_b32 s40, s20, 2
            s_lshl_b32 s40, s40, 6
            v_xor_b32 v6, s40, v6
            s_mul_i32 s41, s22, 72
            s_lshl_b32 s42, s20, 2
            s_add_u32 s41, s41, s42
            s_lshl_b32 s41, s41, 13
            s_lshl_b32 s42, s21, 8
            s_add_u32 s41, s41, s42
            s_lshl_b32 s43, s20, 10
            s_add_u32 s43, s43, {WQ1}""")
    Lq = k.newlab("wq4")
    for i in range(5):
        if i == 4: k.e(f"s_cmp_ge_u32 s20, 2\ns_cbranch_scc1 {Lq}")
        k.e(f"""s_mov_b32 m0, s43
                s_add_u32 s43, s43, 4096
                buffer_load_dwordx4 v6, s[28:31], s41 offen nt lds
                s_add_u32 s41, s41, {16*8192}""")
    k.lab(Lq)
    k.e("""v_mov_b32 v28, -1
           v_mov_b32 v29, -1
           v_mov_b32 v30, -1
           v_mov_b32 v31, -1
           v_lshlrev_b32 v9, 4, v0
           s_mul_i32 s45, s2, 6144
           buffer_store_dwordx4 v[28:31], v9, s[52:55], s45 offen """ + os.environ.get('FILL', '') + """
           s_add_u32 s45, s45, 4096
           v_cmp_gt_u32 vcc, 128, v0
           s_and_saveexec_b64 s[48:49], vcc
           buffer_store_dwordx4 v[28:31], v9, s[52:55], s45 offen """ + os.environ.get('FILL', '') + """
           s_mov_b64 exec, s[48:49]
           s_waitcnt vmcnt(5)""")
    for i in range(9):
        k.e(f"v_lshlrev_b32 v{10+i}, 16, v{10+i}")
    k.e("v_add_f32 v20, v10, v11")
    for i in range(2, 9):
        k.e(f"v_add_f32 v20, v20, v{10+i}")
    k.allreduce("add", 20, 21)
    k.e(f"v_mul_f32 v20, {f2u(1.0/576)}, v20")
    for i in range(9):
        k.e(f"v_sub_f32 v{10+i}, v{10+i}, v20")
    k.e("v_mul_f32 v22, v10, v10")
    for i in range(1, 9):
        k.e(f"v_fmac_f32 v22, v{10+i}, v{10+i}")
    k.allreduce("add", 22, 21)
    k.e(f"""v_mov_b32 v23, {f2u(1e-5)}
            v_fmac_f32 v23, {f2u(1.0/576)}, v22
            v_rsq_f32 v23, v23
            v_add_u32 v24, s23, v2""")
    for i in range(9):
        k.e(f"v_mul_f32 v{10+i}, v{10+i}, v23")
        k.hilo(10+i, 25, 26, 27)
        k.e(f"""ds_write_b16 v24, v25 offset:{LN1 + 128*i}
                ds_write_b16 v24, v26 offset:{LN1 + 2304 + 128*i}""")
    k.e("s_waitcnt vmcnt(1) lgkmcnt(0)\ns_barrier")
    k.e(f"""v_and_b32 v8, 3, v1
            v_mul_u32_u24 v8, 1152, v8
            v_lshl_add_u32 v8, v4, 4, v8
            s_mul_i32 s40, s22, 144
            v_add_u32 v8, s40, v8""")
    for t in range(3):
        k.e(f"ds_read_b128 v[{28+4*t}:{31+4*t}], v8 offset:{LN1 + 64*t}")
    k.e(f"""v_lshrrev_b32 v9, 2, v3
            v_lshl_add_u32 v10, v4, 3, v9
            v_lshlrev_b32 v10, 8, v10
            v_and_b32 v11, 1, v4
            v_lshlrev_b32 v11, 3, v11
            v_lshl_or_b32 v11, v9, 1, v11
            v_bfe_u32 v12, v3, 1, 1
            s_lshl_b32 s46, s20, 2
            v_add_u32 v12, s46, v12
            v_and_b32 v13, 1, v3
            v_lshlrev_b32 v13, 3, v13
            s_mov_b32 s47, {WQ1}
            v_add3_u32 v10, v10, v13, s47
            v_lshlrev_b32 v19, 8, v9
            s_mov_b32 s47, {WQ1 + 16384}
            v_add3_u32 v19, v19, v13, s47
            v_lshlrev_b32 v18, 1, v9""")
    for nt in range(2):
        k.e(f"""v_add_u32 v14, {2*nt}, v12
                v_xor_b32 v15, v14, v11
                v_lshl_add_u32 v15, v15, 4, v10
                v_xor_b32 v16, v14, v18
                v_lshl_add_u32 v16, v16, 4, v19""")
        for t in range(2):
            d = 40 + 12*nt + 4*t
            k.e(f"""ds_read_b64_tr_b16 v[{d}:{d+1}], v15 offset:{8192*t}
                    ds_read_b64_tr_b16 v[{d+2}:{d+3}], v15 offset:{8192*t + 1024}""")
        d = 40 + 12*nt + 8
        k.e(f"""ds_read_b64_tr_b16 v[{d}:{d+1}], v16
                ds_read_b64_tr_b16 v[{d+2}:{d+3}], v16 offset:1024""")
    k.e("""v_cmp_gt_u32 vcc, 16, v1
           s_waitcnt lgkmcnt(0)
           v_cndmask_b32 v36, 0, v36, vcc
           v_cndmask_b32 v37, 0, v37, vcc
           v_cndmask_b32 v38, 0, v38, vcc
           v_cndmask_b32 v39, 0, v39, vcc
           s_nop 1""")
    for nt in range(2):
        acc = 64 + 4*nt
        for t in range(3):
            d = 40 + 12*nt + 4*t
            cin = "0" if t == 0 else f"v[{acc}:{acc+3}]"
            k.e(f"v_mfma_f32_16x16x32_bf16 v[{acc}:{acc+3}], v[{28+4*t}:{31+4*t}], v[{d}:{d+3}], {cin}")
    k.e(f"""s_lshl_b32 s46, s22, 15
            s_lshl_b32 s47, s21, 9
            s_add_u32 s46, s46, s47
            s_lshl_b32 s47, s20, 7
            s_add_u32 s46, s46, s47
            v_lshl_add_u32 v27, v3, 2, s46
            s_mov_b32 s47, 16384
            s_nop 4
            v_add_f32 v8, v64, v66
            v_add_f32 v9, v65, v67
            v_add_f32 v10, v68, v70
            v_add_f32 v11, v69, v71
            s_and_saveexec_b64 s[48:49], vcc
            buffer_store_dword v8, v27, s[36:39], 0 offen
            buffer_store_dword v9, v27, s[36:39], s47 offen
            buffer_store_dword v10, v27, s[36:39], 0 offen offset:64
            buffer_store_dword v11, v27, s[36:39], s47 offen offset:64""")
    k.lab(f"{k.name}_end")
    return k

def team_a(k):
    k.ldptr(16, "wuk"); k.ldptr(68, "wg"); k.ldptr(70, "wu")
    k.e("""s_and_b32 s21, s2, 31
           s_lshr_b32 s22, s2, 5
           v_and_b32 v3, 15, v1
           v_lshrrev_b32 v4, 4, v1
           v_mov_b32 v224, 0
           v_mov_b32 v225, 1
           s_waitcnt lgkmcnt(0)""")
    k.srd(32, 16, SZ["wuk"]); k.srd(36, 10, 262144, WS_QP)
    k.srd(56, 10, 65536, WS_QA); k.srd(60, 10, 8388608, WS_OP); k.srd(64, 10, 65536, WS_ML)
    k.srd(72, 68, SZ["wg"]); k.srd(76, 70, SZ["wu"]); k.srd(80, 10, 16384, WS_FL)
    if os.environ.get("EXP") == "1": lds_wait(k, 0, 4, 224, 226, 44, sleep=8)
    k.e("""v_lshlrev_b32 v252, 4, v1
           s_and_b32 s84, s2, 7
           s_lshl_b32 s84, s84, 10
           v_lshrrev_b32 v5, 7, v0
           v_and_b32 v6, 127, v0
           v_lshlrev_b32 v8, 14, v5
           v_lshl_add_u32 v8, v6, 2, v8
           s_lshl_b32 s46, s21, 9""")
    for j in range(8):
        k.e(f"buffer_load_dword v{10+j}, v8, s[36:39], s46 offen\ns_add_u32 s46, s46, 32768")
    k.e("""s_lshl_b32 s40, s22, 6
           s_lshl_b32 s41, s20, 4
           s_add_u32 s40, s40, s41
           v_add_u32 v7, s40, v3
           v_lshlrev_b32 v7, 13, v7
           v_lshl_add_u32 v7, v4, 4, v7
           s_lshl_b32 s41, s21, 8""")
    for t in range(4):
        k.e(f"buffer_load_dwordx4 v[{232+4*t}:{235+4*t}], v7, s[32:35], s41 offen offset:{64*t} {os.environ.get('UKNT', 'nt')}")
    k.e("""v_lshlrev_b32 v24, 8, v5
           v_lshl_add_u32 v24, v6, 1, v24
           s_waitcnt vmcnt(4)""")
    for j in range(1, 8):
        k.e(f"v_add_f32 v10, v10, v{10+j}")
    k.hilo(10, 25, 26, 27)
    k.e(f"""ds_write_b16 v24, v25 offset:{QQ_L}
            ds_write_b16 v24, v26 offset:{QQ_L + 512}""")
    lds_sync(k, 3, 4, 224, 225, 226, 44)
    k.e(f"""v_and_b32 v8, 3, v1
            v_lshlrev_b32 v8, 8, v8
            v_lshl_add_u32 v8, v4, 4, v8""")
    for t in range(4):
        k.e(f"ds_read_b128 v[{28+4*t}:{31+4*t}], v8 offset:{QQ_L + 64*t}")
    k.e("s_waitcnt vmcnt(0) lgkmcnt(0)")
    k.stamp(8)
    for t in range(4):
        cin = "0" if t == 0 else "v[64:67]"
        k.e(f"v_mfma_f32_16x16x32_bf16 v[64:67], v[{28+4*t}:{31+4*t}], v[{232+4*t}:{235+4*t}], {cin}")
    sc = f2u((128 ** -0.5) * LOG2E)
    k.e(f"""s_lshl_b32 s46, s22, 2
            s_add_u32 s46, s46, s20
            s_lshl_b32 s46, s46, 10
            s_lshl_b32 s47, s21, 4
            s_add_u32 s46, s46, s47
            v_lshrrev_b32 v12, 1, v1
            v_lshlrev_b32 v12, 15, v12
            v_and_b32 v13, 1, v1
            v_lshl_add_u32 v12, v13, 9, v12
            s_lshl_b32 s47, s20, 6
            v_lshl_add_u32 v13, v3, 1, s47
            v_lshl_add_u32 v14, v1, 4, s47
            v_add_f32 v10, v64, v66
            v_add_f32 v11, v65, v67
            v_mul_f32 v10, {sc}, v10
            v_mul_f32 v11, {sc}, v11
            v_cvt_pk_bf16_f32 v10, v10, v11
            ds_write_b16 v13, v10 offset:{QQ_L + 1024}
            ds_write_b16_d16_hi v13, v10 offset:{QQ_L + 1024 + 32}
            s_mov_b64 exec, 0xf
            ds_read_b128 v[16:19], v14 offset:{QQ_L + 1024}
            s_waitcnt lgkmcnt(0)
            buffer_store_dwordx4 v[16:19], v12, s[56:59], s46 offen sc1
            s_mov_b64 exec, -1""")
    publish_rep(k, 4, 80, 0, 224, 225, 226, 44)
    k.stamp(9)
    k.e(f"""v_and_b32 v2, 31, v1
            v_lshrrev_b32 v3, 5, v1
            s_lshr_b32 s21, s2, 7
            s_lshl_b32 s22, s21, 15
            v_lshlrev_b32 v5, 4, v1
            s_lshl_b32 s41, s20, 5
            v_and_b32 v6, 16, v2
            v_and_b32 v7, 3, v2
            v_lshl_add_u32 v6, v7, 2, v6
            v_bfe_u32 v7, v2, 2, 1
            v_lshl_add_u32 v6, v7, 1, v6
            v_bfe_u32 v7, v2, 3, 1
            v_add_u32 v6, v6, v7
            v_add_u32 v6, s41, v6
            v_mul_u32_u24 v6, {RS}, v6
            v_lshl_add_u32 v6, v3, 4, v6
            v_add_u32 v6, {CT}, v6
            """)
    single_poll(k, 13, 224, 225, 248, 44, 80, 84, slp=int(os.environ.get('SLP1', '3')))
    k.stamp(1)
    QF = 96
    for t in range(32):
        if t % 4 == 0 and t: k.e("s_add_u32 s22, s22, 4096")
        k.e(f"buffer_load_dwordx4 v[{QF+4*t}:{QF+3+4*t}], v5, s[56:59], s22 offen offset:{1024*(t%4)} {os.environ.get('QSC', 'sc1')}")
    lds_wait(k, 0, 4, 224, 226, 44)
    k.e("s_waitcnt vmcnt(0)")
    k.stamp(2)
    ACC = 16
    bufs = [32, 64]
    for i in range(8):
        k.e(f"ds_read_b128 v[{bufs[0]+4*i}:{bufs[0]+3+4*i}], v6 offset:{32*i}")
    for ci in range(4):
        if ci < 3:
            for i in range(8):
                b = bufs[(ci+1) % 2] + 4*i
                if b + 3 >= QF: raise Exception("reg overlap")
                k.e(f"ds_read_b128 v[{b}:{b+3}], v6 offset:{32*(8*(ci+1)+i)}")
            k.e("s_waitcnt lgkmcnt(8)")
        else:
            k.e("s_waitcnt lgkmcnt(0)")
        for i in range(8):
            t = 8*ci + i
            b = bufs[ci % 2] + 4*i
            cin = "0" if t == 0 else f"v[{ACC}:{ACC+15}]"
            k.e(f"v_mfma_f32_32x32x16_bf16 v[{ACC}:{ACC+15}], v[{b}:{b+3}], v[{QF+4*t}:{QF+3+4*t}], {cin}")
    k.e("s_nop 15")
    k.e(f"v_max3_f32 v8, v{ACC}, v{ACC+1}, v{ACC+2}")
    for i in range(3, 15, 2):
        k.e(f"v_max3_f32 v8, v8, v{ACC+i}, v{ACC+i+1}")
    k.e(f"""v_max_f32 v8, v8, v{ACC+15}
            v_mov_b32 v9, v8
            s_nop 1
            v_permlane32_swap_b32 v8, v9
            s_nop 0
            v_max_f32 v8, v8, v9
            s_lshl_b32 s43, s20, 2
            v_lshl_add_u32 v10, v2, 4, s43
            v_lshlrev_b32 v11, 4, v2
            ds_write_b32 v10, v8 offset:{MX}""")
    lds_sync(k, 5, 4, 224, 225, 226, 44)
    k.e(f"""ds_read_b128 v[12:15], v11 offset:{MX}
            s_waitcnt lgkmcnt(0)
            v_max3_f32 v8, v12, v13, v14
            v_max_f32 v8, v8, v15""")
    for i in range(16):
        k.e(f"v_sub_f32 v{ACC+i}, v{ACC+i}, v8")
    for i in range(16):
        k.e(f"v_exp_f32 v{ACC+i}, v{ACC+i}")
    k.e(f"s_nop 0\nv_add_f32 v9, v{ACC}, v{ACC+1}")
    for i in range(2, 16):
        k.e(f"v_add_f32 v9, v9, v{ACC+i}")
    for i in range(8):
        k.e(f"v_cvt_pk_bf16_f32 v{32+i}, v{ACC+2*i}, v{ACC+2*i+1}")
    k.e(f"""v_mov_b32 v12, v9
            s_lshl_b32 s44, s20, 11
            v_lshl_add_u32 v13, v1, 4, s44
            v_permlane32_swap_b32 v9, v12
            s_nop 0
            v_add_f32 v9, v9, v12
            ds_write_b128 v13, v[32:35] offset:{PX}
            ds_write_b128 v13, v[36:39] offset:{PX+1024}
            ds_write_b32 v10, v9 offset:{SX}""")
    lds_sync(k, 6, 4, 224, 225, 226, 44)
    k.stamp(3)
    PF = 32
    for s in range(8):
        k.e(f"ds_read_b128 v[{PF+4*s}:{PF+3+4*s}], v5 offset:{PX + 1024*s}")
    k.e(f"ds_read_b128 v[12:15], v11 offset:{SX}")
    k.e(f"""v_bfe_u32 v66, v1, 2, 2
            v_lshlrev_b32 v66, 2, v66
            v_lshl_add_u32 v66, v3, 1, v66
            v_mul_u32_u24 v66, {RS}, v66
            v_bfe_u32 v67, v1, 4, 1
            v_lshlrev_b32 v67, 5, v67
            v_and_b32 v7, 3, v1
            v_lshl_add_u32 v67, v7, 3, v67
            s_lshl_b32 s45, s20, 8
            s_add_u32 s45, s45, {CT}
            v_add3_u32 v64, v66, v67, s45
            v_add_u32 v65, {64*RS}, v64""")
    OACC = 96
    VB = [160, 192]
    steps = [(T, s) for s in range(8) for T in range(4)]
    def trread(dst, T, s):
        wq, u = s >> 1, s & 1
        base = 64 if wq < 2 else 65
        off = (32*(wq & 1) + 16*u) * RS + 64*T
        k.e(f"ds_read_b64_tr_b16 v[{dst}:{dst+1}], v{base} offset:{off}")
        k.e(f"ds_read_b64_tr_b16 v[{dst+2}:{dst+3}], v{base} offset:{off+RS}")
    CH = 4
    chunks = [steps[i:i+CH] for i in range(0, 32, CH)]
    for i, (T, s) in enumerate(chunks[0]):
        trread(VB[0] + 4*i, T, s)
    for ci, ch in enumerate(chunks):
        if ci + 1 < len(chunks):
            for i, (T, s) in enumerate(chunks[ci+1]):
                trread(VB[(ci+1) % 2] + 4*i, T, s)
            k.e(f"s_waitcnt lgkmcnt({2*CH})")
        else:
            k.e("s_waitcnt lgkmcnt(0)")
        for i, (T, s) in enumerate(ch):
            a = VB[ci % 2] + 4*i
            o = OACC + 16*T
            cin = "0" if s == 0 else f"v[{o}:{o+15}]"
            k.e(f"v_mfma_f32_32x32x16_bf16 v[{o}:{o+15}], v[{a}:{a+3}], v[{PF+4*s}:{PF+3+4*s}], {cin}")
    k.stamp(4)
    Lk = k.newlab("skipml")
    k.e(f"""v_add_f32 v12, v12, v13
            v_add_f32 v14, v14, v15
            v_add_f32 v9, v12, v14
            s_and_b32 s46, s2, 127
            s_lshl_b32 s47, s21, 12
            s_add_u32 s46, s46, s47
            s_lshl_b32 s46, s46, 3
            v_lshl_add_u32 v10, v2, 10, s46
            s_cmp_lg_u32 s20, 0
            s_cbranch_scc1 {Lk}
            v_cmp_gt_u32 vcc, 32, v1
            s_and_saveexec_b64 s[48:49], vcc
            buffer_store_dwordx2 v[8:9], v10, s[64:67], 0 offen sc1
            s_mov_b64 exec, s[48:49]""")
    k.lab(Lk)
    k.e(f"""s_lshl_b32 s46, s2, 15
            s_lshl_b32 s47, s20, 8
            s_add_u32 s46, s46, s47
            v_mul_u32_u24 v10, {RS}, v2
            v_lshl_add_u32 v10, v3, 3, v10
            v_add_u32 v10, s45, v10
            v_lshrrev_b32 v11, 4, v1
            v_and_b32 v12, 15, v1
            v_mul_u32_u24 v13, {RS}, v11
            v_lshl_add_u32 v13, v12, 4, v13
            v_add_u32 v13, s45, v13
            v_lshlrev_b32 v14, 10, v11
            v_lshl_add_u32 v14, v12, 4, v14""")
    for T in range(4):
        o = OACC + 16*T
        for a in range(4):
            d = 32 + 2*(4*T + a)
            k.e(f"""v_cvt_pk_bf16_f32 v{d}, v{o+4*a}, v{o+4*a+1}
                    v_cvt_pk_bf16_f32 v{d+1}, v{o+4*a+2}, v{o+4*a+3}
                    ds_write_b64 v10, v[{d}:{d+1}] offset:{64*T + 16*a}""")
    for n in range(8):
        k.e(f"ds_read_b128 v[{160+4*n}:{163+4*n}], v13 offset:{4*RS*n}")
    for n in range(8):
        k.e(f"""s_waitcnt lgkmcnt({7-n})
                buffer_store_dwordx4 v[{160+4*n}:{163+4*n}], v14, s[60:63], s46 offen sc1
                s_add_u32 s46, s46, 4096""")
    k.e("s_waitcnt vmcnt(0)")
    k.stamp(5)
    publish_rep(k, 7, 80, 1, 224, 225, 226, 44)
    k.e(f"s_cmp_ge_u32 s2, 144\ns_cbranch_scc1 {k.name}_end")
    lds_wait(k, int(os.environ.get("GUW", "7")), 4, 224, 226, 44, sleep=2)
    dma64_off(k, 8, 1, 10, 11, 9, 9216)
    k.e(f"""s_and_b32 s85, s2, 7
            s_lshl_b32 s85, s85, 1
            s_bfe_u32 s45, s2, 0x10003
            s_add_u32 s85, s85, s45
            s_andn2_b32 s45, s2, 15
            s_add_u32 s85, s85, s45
            s_mul_i32 s41, s20, 9*16*9216
            s_lshl_b32 s42, s85, 6
            s_add_u32 s41, s41, s42
            s_mul_i32 s43, s20, 9216
            s_add_u32 s43, s43, {BIG_L}
            s_add_u32 s44, s43, 36864""")
    for mi in range(9):
        GT = int(os.environ.get("GUT", "2"))
        if GT and mi >= GT: k.e(f"s_waitcnt vmcnt({2*GT-2})")
        k.e(f"""s_mov_b32 m0, s43
                s_add_u32 s43, s43, 1024
                buffer_load_dwordx4 v8, s[72:75], s41 offen {GUNT} lds
                s_mov_b32 m0, s44
                s_add_u32 s44, s44, 1024
                buffer_load_dwordx4 v8, s[76:79], s41 offen {GUNT} lds
                s_add_u32 s41, s41, {16*9216}""")
    k.e(f"s_waitcnt vmcnt(0)\ns_branch {k.name}_end")

def dma64_off(k, vA, lane, t1, t2, t3, rowstride):
    k.e(f"""v_lshrrev_b32 v{t1}, 2, v{lane}
            v_and_b32 v{t2}, 3, v{lane}
            v_bfe_u32 v{t3}, v{lane}, 5, 1
            v_lshlrev_b32 v{t3}, 1, v{t3}
            v_xor_b32 v{t2}, v{t2}, v{t3}
            v_mul_u32_u24 v{vA}, {rowstride}, v{t1}
            v_lshl_add_u32 v{vA}, v{t2}, 4, v{vA}""")

def tr64_base(k, dst, v3, v4, nt_sreg, t1, t2):
    k.e(f"""v_lshrrev_b32 v{t1}, 2, v{v3}
            v_lshl_add_u32 v{t1}, v{v4}, 3, v{t1}
            v_lshlrev_b32 v{t1}, 6, v{t1}
            v_bfe_u32 v{t2}, v{v3}, 1, 1
            v_add_u32 v{t2}, s{nt_sreg}, v{t2}
            v_and_b32 v{dst}, 1, v{v4}
            v_lshlrev_b32 v{dst}, 1, v{dst}
            v_xor_b32 v{t2}, v{t2}, v{dst}
            v_lshl_add_u32 v{t1}, v{t2}, 4, v{t1}
            v_and_b32 v{dst}, 1, v{v3}
            v_lshl_add_u32 v{dst}, v{dst}, 3, v{t1}""")

def poll_gather(k, loads, regs, scnt, mask_s=None):
    L = k.newlab("poll"); Ld = k.newlab("pdone")
    k.e(f"s_mov_b32 s{scnt}, 0")
    k.lab(L)
    for l in loads: k.e(l)
    k.e("s_waitcnt vmcnt(0)")
    k.e(f"v_max_u32 v7, v{regs[0]}, v{regs[1]}")
    for i in range(2, len(regs) - 1, 2):
        k.e(f"v_max3_u32 v7, v7, v{regs[i]}, v{regs[i+1]}")
    if len(regs) % 2: k.e(f"v_max_u32 v7, v7, v{regs[-1]}")
    k.e(f"""v_cmp_eq_u32 vcc, -1, v7
            s_add_u32 s{scnt}, s{scnt}, 1
            s_cmp_gt_u32 s{scnt}, {SPIN_MAX}
            s_cbranch_scc1 {Ld}
            s_cbranch_vccz {Ld}
            s_sleep {os.environ.get('GSLP', '4')}
            s_branch {L}""")
    k.lab(Ld)

def team_b(k):
    k.e("""v_subrev_u32 v0, 0x100, v0
           s_sub_u32 s20, s20, 4
           v_and_b32 v3, 15, v1
           v_lshrrev_b32 v4, 4, v1
           s_and_b32 s21, s2, 31
           s_lshr_b32 s22, s2, 5
           v_mov_b32 v124, 0
           v_mov_b32 v125, 1""")
    k.ldptr(12, "wuv"); k.ldptr(14, "wo"); k.ldptr(64, "wd"); k.ldptr(66, "x"); k.ldptr(68, "out")
    k.e("s_waitcnt lgkmcnt(0)")
    k.srd(24, 12, SZ["wuv"]); k.srd(28, 10, 65536, WS_ML); k.srd(32, 10, 8388608, WS_OP); k.srd(36, 10, 262144, WS_CTX)
    k.srd(52, 10, 16384, WS_FL); k.srd(56, 10, 8*36864, WS_OUTP); k.srd(60, 10, 663552, WS_DNP)
    k.srd(72, 14, SZ["wo"]); k.srd(76, 4, SZ["ckv"]); k.srd(84, 64, SZ["wd"])
    k.srd(88, 66, SZ["x"]); k.srd(92, 68, SZ["out"])
    k.e("""s_sub_u32 s47, s2, 144
           s_mul_i32 s48, s47, 7282
           s_lshr_b32 s48, s48, 16
           s_mul_i32 s49, s48, 9
           s_sub_u32 s49, s47, s49""")
    k.e(f"""v_lshlrev_b32 v9, 4, v1
            s_lshl_b32 s40, s2, 7
            s_lshl_b32 s41, s20, 5
            s_add_u32 s40, s40, s41
            s_lshl_b32 s40, s40, 10
            s_mul_i32 s42, s41, {RS}
            s_add_u32 s42, s42, {CT}""")
    THR = int(os.environ.get("THR", "3")); DLY = int(os.environ.get("DLY", "0"))
    if DLY: lds_wait(k, 1, 1, 124, 126, 46, sleep=1)
    for r in range(32):
        R1 = int(os.environ.get("R1", "12")); THR2 = int(os.environ.get("THR2", "0"))
        th = THR if r < R1 else THR2
        if th and r >= th: k.e(f"s_waitcnt vmcnt({th-1})")
        k.e(f"""s_mov_b32 m0, s42
                s_add_u32 s42, s42, {RS}
                buffer_load_dwordx4 v9, s[76:79], s40 offen nt lds
                s_add_u32 s40, s40, 1024""")
    k.e(f"""v_lshlrev_b32 v13, 1, v4
            v_xor_b32 v13, v13, v3
            v_lshlrev_b32 v13, 4, v13
            v_lshl_add_u32 v13, v4, 13, v13
            v_xor_b32 v14, 0x80, v13
            s_lshl_b32 s44, s22, 6
            s_lshl_b32 s45, s20, 4
            s_add_u32 s44, s44, s45
            s_lshl_b32 s44, s44, 13
            s_lshl_b32 s45, s21, 8
            s_add_u32 s44, s44, s45
            s_waitcnt vmcnt(0)
            s_mov_b64 exec, 1
            ds_add_u32 v124, v125 offset:{SYNC}
            s_mov_b64 exec, -1""")
    k.stamp(1)
    for mi in range(4):
        k.e(f"""buffer_load_dwordx4 v[{128+4*mi}:{131+4*mi}], v{14 if mi & 2 else 13}, s[24:27], s44 offen nt
                s_add_u32 s44, s44, 32768""")
    LW = k.newlab("ldW")
    k.e(f"""s_cmp_lt_u32 s2, 144
            s_cbranch_scc1 {LW}
            s_cmp_ge_u32 s2, 216
            s_cbranch_scc1 {LW}""")
    k.e("""v_lshrrev_b32 v10, 3, v1
           v_and_b32 v11, 7, v1
           v_and_b32 v12, 2, v10
           v_xor_b32 v11, v11, v12
           v_mul_u32_u24 v8, 1152, v10
           v_lshl_add_u32 v8, v11, 4, v8
           v_xor_b32 v11, 4, v11
           v_mul_u32_u24 v7, 1152, v10
           v_lshl_add_u32 v7, v11, 4, v7
           s_lshl_b32 s41, s48, 9
           s_lshl_b32 s42, s20, 7
           s_add_u32 s41, s41, s42
           s_mul_i32 s41, s41, 1152
           s_lshl_b32 s42, s49, 7
           s_add_u32 s41, s41, s42""")
    for mi in range(16):
        k.e(f"""buffer_load_dwordx4 v[{144+4*mi}:{147+4*mi}], v{7 if mi & 1 else 8}, s[72:75], s41 offen nt
                s_add_u32 s41, s41, {8*1152}""")
    k.lab(LW)
    k.stamp(2)
    lds_wait(k, 7, 4, 124, 126, 46, sleep=2)
    k.stamp(3)
    k.e(f"""s_waitcnt vmcnt(0)
            s_lshl_b32 s41, s20, 12
            s_add_u32 s41, s41, {WUV_L}
            v_add_u32 v10, s41, v9""")
    for mi in range(4):
        k.e(f"ds_write_b128 v10, v[{128+4*mi}:{131+4*mi}] offset:{1024*mi}")
    LW2 = k.newlab("stW")
    k.e(f"""s_cmp_lt_u32 s2, 144
            s_cbranch_scc1 {LW2}
            s_cmp_ge_u32 s2, 216
            s_cbranch_scc1 {LW2}
            s_lshl_b32 s41, s20, 14
            s_add_u32 s41, s41, {BIG_L}
            v_add_u32 v10, s41, v9""")
    for mi in range(16):
        k.e(f"ds_write_b128 v10, v[{144+4*mi}:{147+4*mi}] offset:{1024*mi}")
    k.lab(LW2)
    k.stamp(5)
    k.e("""v_lshlrev_b32 v24, 4, v1
           s_and_b32 s47, s2, 7
           s_lshl_b32 s47, s47, 10
           s_add_u32 s47, s47, 8192""")
    single_poll(k, 14, 124, 125, 20, 46, 52, 47)
    k.stamp(6)
    k.e("""v_lshrrev_b32 v5, 7, v0
           v_and_b32 v6, 127, v0
           v_lshlrev_b32 v5, 12, v5
           v_add_u32 v5, v5, v6
           s_lshl_b32 s40, s21, 7
           v_add_u32 v5, s40, v5
           v_lshlrev_b32 v5, 3, v5
           buffer_load_dwordx2 v[8:9], v5, s[28:31], 0 offen sc1""")
    k.e(f"""v_lshrrev_b32 v10, 3, v1
            v_and_b32 v11, 7, v1
            v_and_b32 v12, 2, v10
            v_xor_b32 v11, v11, v12
            v_lshlrev_b32 v11, 4, v11
            v_lshl_add_u32 v11, v10, 15, v11
            v_xor_b32 v12, 64, v11
            s_lshl_b32 s41, s21, 10
            s_lshl_b32 s42, s22, 7
            s_add_u32 s41, s41, s42
            s_lshl_b32 s42, s20, 21
            s_add_u32 s41, s41, s42
            s_lshl_b32 s43, s20, 13
            s_add_u32 s43, s43, {OST_L}""")
    for mi in range(8):
        k.e(f"""s_mov_b32 m0, s43
                s_add_u32 s43, s43, 1024
                buffer_load_dwordx4 v{12 if mi & 1 else 11}, s[32:35], s41 offen sc1 lds
                s_add_u32 s41, s41, 262144""")
    k.e("s_waitcnt vmcnt(8)\nv_mov_b32 v15, v8")
    k.allreduce("max", 15, 16)
    k.e(f"""s_lshl_b32 s46, s20, 2
            v_mov_b32 v17, s46
            ds_write_b32 v17, v15 offset:{D_R}
            s_waitcnt lgkmcnt(0)
            """)
    lds_sync(k, 8, 4, 124, 125, 126, 46)
    k.e(f"""
            s_and_b32 s47, s20, 2
            s_lshl_b32 s47, s47, 2
            v_mov_b32 v18, s47
            ds_read_b64 v[20:21], v18 offset:{D_R}
            s_waitcnt lgkmcnt(0)
            v_max_f32 v15, v20, v21
            v_sub_f32 v8, v8, v15
            v_exp_f32 v8, v8
            s_nop 0
            v_mul_f32 v19, v8, v9""")
    k.allreduce("add", 19, 16)
    k.e(f"""ds_write_b32 v17, v19 offset:{D_R+16}
            s_waitcnt lgkmcnt(0)
            """)
    lds_sync(k, 9, 4, 124, 125, 126, 46)
    k.e(f"""
            ds_read_b64 v[20:21], v18 offset:{D_R+16}
            s_waitcnt lgkmcnt(0)
            v_add_f32 v19, v20, v21
            v_rcp_f32 v19, v19
            s_nop 0
            v_mul_f32 v8, v8, v19""")
    k.hilo(8, 22, 23, 24)
    k.e(f"""v_lshrrev_b32 v25, 7, v0
            v_lshlrev_b32 v25, 9, v25
            v_lshl_add_u32 v25, v6, 1, v25
            ds_write_b16 v25, v22 offset:{D_A}
            ds_write_b16 v25, v23 offset:{D_A+256}
            s_waitcnt vmcnt(0) lgkmcnt(0)
            """)
    lds_sync(k, 10, 4, 124, 125, 126, 46)
    k.e(f"""""")
    k.stamp(7)
    k.e(f"""v_and_b32 v26, 1, v1
            v_lshlrev_b32 v26, 8, v26
            v_lshl_add_u32 v26, v4, 4, v26
            s_lshr_b32 s46, s20, 1
            s_lshl_b32 s47, s46, 9
            v_add_u32 v26, s47, v26""")
    for t in range(4):
        k.e(f"ds_read_b128 v[{28+4*t}:{31+4*t}], v26 offset:{D_A + 64*t}")
    k.e(f"""v_lshrrev_b32 v9, 2, v3
            v_lshl_add_u32 v10, v4, 3, v9
            v_lshlrev_b32 v10, 7, v10
            v_and_b32 v11, 2, v9
            v_and_b32 v12, 1, v4
            v_lshl_or_b32 v11, v12, 2, v11
            v_bfe_u32 v12, v3, 1, 1
            s_and_b32 s47, s20, 1
            s_lshl_b32 s47, s47, 2
            v_add_u32 v12, s47, v12
            v_and_b32 v13, 1, v3
            v_lshl_add_u32 v10, v13, 3, v10
            s_lshl_b32 s47, s46, 14
            s_add_u32 s47, s47, {OST_L}
            v_add_u32 v10, s47, v10""")
    for nt in range(2):
        k.e(f"""v_add_u32 v14, {2*nt}, v12
                v_xor_b32 v14, v14, v11
                v_lshl_add_u32 v{15+nt}, v14, 4, v10""")
    for nt in range(2):
        for t in range(4):
            d = 44 + 16*nt + 4*t
            k.e(f"""ds_read_b64_tr_b16 v[{d}:{d+1}], v{15+nt} offset:{4096*t}
                    ds_read_b64_tr_b16 v[{d+2}:{d+3}], v{15+nt} offset:{4096*t + 512}""")
    k.e("s_waitcnt lgkmcnt(0)")
    for nt in range(2):
        for t in range(4):
            d = 44 + 16*nt + 4*t
            acc = 20 if nt == 0 else 76
            cin = "0" if t == 0 else f"v[{acc}:{acc+3}]"
            k.e(f"v_mfma_f32_16x16x32_bf16 v[{acc}:{acc+3}], v[{28+4*t}:{31+4*t}], v[{d}:{d+3}], {cin}")
    k.e(f"""s_and_b32 s47, s20, 1
            s_lshl_b32 s47, s47, 6
            s_lshl_b32 s50, s46, 7
            s_add_u32 s47, s47, s50
            v_lshl_add_u32 v27, v3, 1, s47
            s_nop 7""")
    for nt in range(2):
        acc = 20 if nt == 0 else 76
        k.e(f"v_add_f32 v8, v{acc}, v{acc+1}")
        k.hilo(8, 9, 24, 25)
        k.e(f"""ds_write_b16 v27, v9 offset:{D_A2 + 32*nt}
                ds_write_b16 v27, v24 offset:{D_A2 + 256 + 32*nt}""")
    k.e("s_waitcnt lgkmcnt(0)")
    lds_sync(k, 11, 4, 124, 125, 126, 46)
    k.e(f"""v_and_b32 v8, 3, v1
            v_lshlrev_b32 v8, 7, v8
            v_lshl_add_u32 v8, v4, 4, v8
            ds_read_b128 v[28:31], v8 offset:{D_A2}
            ds_read_b128 v[32:35], v8 offset:{D_A2+64}""")
    k.e(f"""v_lshrrev_b32 v9, 2, v3
            v_lshl_add_u32 v10, v4, 3, v9
            v_lshlrev_b32 v10, 8, v10
            v_and_b32 v11, 1, v4
            v_lshlrev_b32 v11, 3, v11
            v_lshl_or_b32 v11, v9, 1, v11
            v_bfe_u32 v12, v3, 1, 1
            s_lshl_b32 s47, s20, 2
            v_add_u32 v12, s47, v12
            v_and_b32 v13, 1, v3
            v_lshl_add_u32 v10, v13, 3, v10""")
    for nt in range(2):
        k.e(f"""v_add_u32 v14, {2*nt}, v12
                v_xor_b32 v14, v14, v11
                v_lshl_add_u32 v{15+nt}, v14, 4, v10""")
    for nt in range(2):
        for t in range(2):
            d = 44 + 8*nt + 4*t
            k.e(f"""ds_read_b64_tr_b16 v[{d}:{d+1}], v{15+nt} offset:{WUV_L + 8192*t}
                    ds_read_b64_tr_b16 v[{d+2}:{d+3}], v{15+nt} offset:{WUV_L + 8192*t + 1024}""")
    k.e("s_waitcnt lgkmcnt(0)")
    for nt in range(2):
        acc = 20 if nt == 0 else 76
        for t in range(2):
            d = 44 + 8*nt + 4*t
            cin = "0" if t == 0 else f"v[{acc}:{acc+3}]"
            k.e(f"v_mfma_f32_16x16x32_bf16 v[{acc}:{acc+3}], v[{28+4*t}:{31+4*t}], v[{d}:{d+3}], {cin}")
    k.e(f"""s_lshl_b32 s47, s22, 15
            s_lshl_b32 s50, s21, 9
            s_add_u32 s47, s47, s50
            s_lshl_b32 s50, s20, 7
            s_add_u32 s47, s47, s50
            v_lshl_add_u32 v27, v3, 2, s47
            s_nop 7
            v_add_f32 v8, v20, v22
            v_add_f32 v9, v21, v23
            v_add_f32 v10, v76, v78
            v_add_f32 v11, v77, v79""")
    k.sanitize([8, 9, 10, 11], 12)
    k.e(f"""s_mov_b32 s47, 16384
            v_cmp_gt_u32 vcc, 16, v1
            s_and_saveexec_b64 s[50:51], vcc
            buffer_store_dword v8, v27, s[36:39], 0 offen sc1
            buffer_store_dword v9, v27, s[36:39], s47 offen sc1
            buffer_store_dword v10, v27, s[36:39], 0 offen offset:64 sc1
            buffer_store_dword v11, v27, s[36:39], s47 offen offset:64 sc1
            s_mov_b64 exec, s[50:51]""")
    k.stamp(8)
    LPE, LPG = k.newlab("phE"), k.newlab("phG")
    k.e(f"s_cmp_ge_u32 s2, 144\ns_cbranch_scc1 {LPE}")
    phase_f(k)
    k.e(f"s_branch {k.name}_end")
    k.lab(LPE)
    k.e(f"s_cmp_ge_u32 s2, 216\ns_cbranch_scc1 {LPG}")
    phase_e(k)
    k.e(f"s_branch {k.name}_end")
    k.lab(LPG)
    k.e(f"s_cmp_ge_u32 s2, 234\ns_cbranch_scc1 {k.name}_end")
    phase_g(k)

def phase_e(k):
    A_LDS = T_A
    k.e("""v_lshrrev_b32 v5, 7, v0
           v_and_b32 v6, 127, v0
           v_lshlrev_b32 v8, 14, v5
           v_lshl_add_u32 v8, v6, 4, v8
           s_lshl_b32 s40, s48, 11""")
    loads = []
    for j in range(8):
        loads.append(f"s_add_u32 s41, s40, {32768*j}\nbuffer_load_dwordx4 v[{20+4*j}:{23+4*j}], v8, s[36:39], s41 offen sc1")
    poll_gather(k, loads, list(range(20, 52)), 46)
    k.stamp(9)
    for j in range(1, 8):
        for e in range(4):
            k.e(f"v_add_f32 v{20+e}, v{20+e}, v{20+4*j+e}")
    k.e("""v_cvt_pk_bf16_f32 v24, v20, v21
           v_cvt_pk_bf16_f32 v25, v22, v23
           v_lshlrev_b32 v26, 16, v24
           v_and_b32 v27, 0xffff0000, v24
           v_lshlrev_b32 v28, 16, v25
           v_and_b32 v29, 0xffff0000, v25
           v_sub_f32 v20, v20, v26
           v_sub_f32 v21, v21, v27
           v_sub_f32 v22, v22, v28
           v_sub_f32 v23, v23, v29
           v_cvt_pk_bf16_f32 v26, v20, v21
           v_cvt_pk_bf16_f32 v27, v22, v23
           v_lshlrev_b32 v12, 10, v5
           v_lshl_add_u32 v12, v6, 3, v12""")
    k.e(f"""ds_write_b64 v12, v[24:25] offset:{A_LDS}
            ds_write_b64 v12, v[26:27] offset:{A_LDS+2048}
            s_waitcnt lgkmcnt(0)
            s_barrier""")
    k.e("""v_and_b32 v8, 3, v1
           v_lshlrev_b32 v8, 10, v8
           v_lshl_add_u32 v8, v4, 4, v8""")
    for t in range(16):
        k.e(f"ds_read_b128 v[{20+4*t}:{23+4*t}], v8 offset:{A_LDS + 64*t}")
    k.e(f"""v_lshrrev_b32 v9, 2, v3
            v_lshl_add_u32 v10, v4, 3, v9
            v_lshlrev_b32 v10, 7, v10
            v_and_b32 v11, 2, v9
            v_and_b32 v12, 1, v4
            v_lshl_or_b32 v11, v12, 2, v11
            v_bfe_u32 v12, v3, 1, 1
            s_lshl_b32 s47, s20, 1
            v_add_u32 v12, s47, v12
            v_and_b32 v13, 1, v3
            v_lshl_add_u32 v10, v13, 3, v10
            v_xor_b32 v12, v12, v11
            v_lshl_add_u32 v15, v12, 4, v10
            v_add_u32 v15, {BIG_L}, v15""")
    for c in range(2):
        for i in range(8):
            t = 8*c + i
            d = 88 + 4*i
            k.e(f"""ds_read_b64_tr_b16 v[{d}:{d+1}], v15 offset:{4096*t}
                    ds_read_b64_tr_b16 v[{d+2}:{d+3}], v15 offset:{4096*t + 512}""")
        k.e("s_waitcnt lgkmcnt(0)")
        for i in range(8):
            t = 8*c + i
            d = 88 + 4*i
            cin = "0" if t == 0 else "v[120:123]"
            k.e(f"v_mfma_f32_16x16x32_bf16 v[120:123], v[{20+4*t}:{23+4*t}], v[{d}:{d+3}], {cin}")
        k.e("s_nop 3")
    k.e(f"""s_mul_i32 s45, s48, 4608
            s_lshl_b32 s46, s49, 8
            s_add_u32 s45, s45, s46
            s_lshl_b32 s46, s20, 6
            s_add_u32 s45, s45, s46
            v_lshl_add_u32 v12, v3, 2, s45
            s_nop 7
            v_add_f32 v8, v120, v122
            v_add_f32 v9, v121, v123""")
    k.sanitize([8, 9], 10)
    k.e(f"""v_cmp_gt_u32 vcc, 16, v1
            s_and_saveexec_b64 s[50:51], vcc
            s_mov_b32 s45, 0""")
    for r in range(8):
        k.e("""buffer_store_dword v8, v12, s[56:59], s45 offen sc1
               buffer_store_dword v9, v12, s[56:59], s45 offen offset:2304 sc1
               s_add_u32 s45, s45, 36864""")

def phase_f(k):
    A_LDS, R_LDS, GU_LDS, A2_LDS = T_A, T_A + 4608, T_A + 4672, T_A + 5184
    D_LDS = OST_L
    k.e("s_barrier")
    k.e(f"""s_and_b32 s83, s2, 7
            s_lshl_b32 s83, s83, 1
            s_bfe_u32 s45, s2, 0x10003
            s_add_u32 s83, s83, s45
            s_andn2_b32 s45, s2, 15
            s_add_u32 s83, s83, s45
            v_lshlrev_b32 v9, 4, v1
            s_mul_i32 s41, s83, 36864
            s_mul_i32 s42, s20, 9216
            s_add_u32 s41, s41, s42
            s_add_u32 s43, s42, {D_LDS}""")
    for mi in range(9):
        k.e(f"""s_mov_b32 m0, s43
                s_add_u32 s43, s43, 1024
                buffer_load_dwordx4 v9, s[84:87], s41 offen nt lds
                s_add_u32 s41, s41, 1024""")
    k.stamp(10)
    k.e("""v_lshlrev_b32 v5, 4, v0
           v_mov_b32 v6, 0x7fffffff
           v_cmp_gt_u32 vcc, 144, v0
           s_nop 1
           v_cndmask_b32 v5, v6, v5, vcc
           v_lshrrev_b32 v8, 1, v5
           v_cndmask_b32 v8, v6, v8, vcc
           s_mov_b64 s[64:65], vcc""")
    k.e("""buffer_load_dwordx2 v[84:85], v8, s[88:91], 0 offen
           buffer_load_dwordx2 v[86:87], v8, s[88:91], 0 offen offset:1152""")
    k.e("s_and_b32 s41, s2, 7\ns_mul_i32 s41, s41, 36864")
    loads = []
    for ks in range(8):
        for b in range(2):
            r = 20 + 8*ks + 4*b
            loads.append(f"s_add_u32 s40, s41, {4608*ks}\nbuffer_load_dwordx4 v[{r}:{r+3}], v5, s[56:59], s40 offen offset:{2304*b} sc1")
    poll_gather(k, loads, list(range(20, 84)), 46)
    k.stamp(9)
    for ks in range(1, 8):
        for e in range(8):
            k.e(f"v_add_f32 v{20+e}, v{20+e}, v{20+8*ks+e}")
    for b in range(2):
        k.e(f"""v_lshlrev_b32 v12, 16, v{84+2*b}
                v_and_b32 v13, 0xffff0000, v{84+2*b}
                v_lshlrev_b32 v14, 16, v{85+2*b}
                v_and_b32 v15, 0xffff0000, v{85+2*b}
                v_add_f32 v{20+4*b}, v{20+4*b}, v12
                v_add_f32 v{21+4*b}, v{21+4*b}, v13
                v_add_f32 v{22+4*b}, v{22+4*b}, v14
                v_add_f32 v{23+4*b}, v{23+4*b}, v15""")
    k.e(f"""v_add_u32 v16, {BIG_L + 73728}, v5
            s_mov_b64 s[66:67], exec
            s_mov_b64 exec, s[64:65]
            ds_write_b128 v16, v[20:23]
            ds_write_b128 v16, v[24:27] offset:2304
            s_mov_b64 exec, s[66:67]""")
    k.e("""v_add_f32 v28, v20, v21
           v_add_f32 v29, v22, v23
           v_add_f32 v28, v28, v29
           v_add_f32 v29, v24, v25
           v_add_f32 v30, v26, v27
           v_add_f32 v29, v29, v30""")
    k.allreduce("add", 28, 31)
    k.allreduce("add", 29, 31)
    k.e(f"""s_lshl_b32 s46, s20, 3
            v_mov_b32 v32, s46
            v_mov_b32 v33, 0
            ds_write_b64 v32, v[28:29] offset:{R_LDS}
            s_waitcnt lgkmcnt(0)
            s_barrier
            ds_read_b128 v[36:39], v33 offset:{R_LDS}
            ds_read_b64 v[40:41], v33 offset:{R_LDS+16}
            s_waitcnt lgkmcnt(0)
            v_add_f32 v28, v36, v38
            v_add_f32 v28, v28, v40
            v_add_f32 v29, v37, v39
            v_add_f32 v29, v29, v41
            v_mul_f32 v28, {f2u(1.0/576)}, v28
            v_mul_f32 v29, {f2u(1.0/576)}, v29""")
    for b in range(2):
        for e in range(4):
            k.e(f"v_sub_f32 v{20+4*b+e}, v{20+4*b+e}, v{28+b}")
    for b in range(2):
        k.e(f"""v_mul_f32 v{30+b}, v{20+4*b}, v{20+4*b}
                v_fmac_f32 v{30+b}, v{21+4*b}, v{21+4*b}
                v_fmac_f32 v{30+b}, v{22+4*b}, v{22+4*b}
                v_fmac_f32 v{30+b}, v{23+4*b}, v{23+4*b}
                v_cndmask_b32 v{30+b}, 0, v{30+b}, s[64:65]""")
    k.allreduce("add", 30, 34)
    k.allreduce("add", 31, 34)
    k.e(f"""ds_write_b64 v32, v[30:31] offset:{R_LDS+32}
            s_waitcnt lgkmcnt(0)
            s_barrier
            ds_read_b128 v[36:39], v33 offset:{R_LDS+32}
            ds_read_b64 v[40:41], v33 offset:{R_LDS+48}
            s_waitcnt lgkmcnt(0)
            v_add_f32 v30, v36, v38
            v_add_f32 v30, v30, v40
            v_add_f32 v31, v37, v39
            v_add_f32 v31, v31, v41
            v_mov_b32 v34, {f2u(1e-5)}
            v_mov_b32 v35, {f2u(1e-5)}
            v_fmac_f32 v34, {f2u(1.0/576)}, v30
            v_fmac_f32 v35, {f2u(1.0/576)}, v31
            v_rsq_f32 v34, v34
            v_rsq_f32 v35, v35
            v_lshlrev_b32 v12, 3, v0""")
    for b in range(2):
        o = 20 + 4*b
        for e in range(4):
            k.e(f"v_mul_f32 v{o+e}, v{o+e}, v{34+b}")
        k.e(f"""v_cvt_pk_bf16_f32 v36, v{o}, v{o+1}
                v_cvt_pk_bf16_f32 v37, v{o+2}, v{o+3}
                v_lshlrev_b32 v38, 16, v36
                v_and_b32 v39, 0xffff0000, v36
                v_lshlrev_b32 v40, 16, v37
                v_and_b32 v41, 0xffff0000, v37
                v_sub_f32 v{o}, v{o}, v38
                v_sub_f32 v{o+1}, v{o+1}, v39
                v_sub_f32 v{o+2}, v{o+2}, v40
                v_sub_f32 v{o+3}, v{o+3}, v41
                v_cvt_pk_bf16_f32 v38, v{o}, v{o+1}
                v_cvt_pk_bf16_f32 v39, v{o+2}, v{o+3}
                s_mov_b64 s[66:67], exec
                s_mov_b64 exec, s[64:65]
                ds_write_b64 v12, v[36:37] offset:{A_LDS + 1152*b}
                ds_write_b64 v12, v[38:39] offset:{A_LDS + 2304 + 1152*b}
                s_mov_b64 exec, s[66:67]""")
    k.e("s_waitcnt lgkmcnt(0)\ns_barrier")
    k.e(f"""v_and_b32 v8, 3, v1
            v_mul_u32_u24 v8, 1152, v8
            v_lshl_add_u32 v8, v4, 4, v8
            s_and_b32 s44, s20, 1
            s_lshl_b32 s44, s44, 1
            s_lshr_b32 s45, s20, 1
            s_mul_i32 s45, s45, 36864
            s_add_u32 s45, s45, {BIG_L}""")
    for t in range(18):
        k.e(f"ds_read_b128 v[{20+4*t}:{23+4*t}], v8 offset:{A_LDS + 64*t}")
    tr64_base(k, 15, 3, 4, 44, 10, 11)
    k.e("v_add_u32 v15, s45, v15")
    for c in range(3):
        for i in range(6):
            t = 6*c + i
            d = 96 + 4*i
            k.e(f"""ds_read_b64_tr_b16 v[{d}:{d+1}], v15 offset:{2048*t}
                    ds_read_b64_tr_b16 v[{d+2}:{d+3}], v15 offset:{2048*t + 256}""")
        k.e("s_waitcnt lgkmcnt(0)")
        for i in range(6):
            t = 6*c + i
            d = 96 + 4*i
            cin = "0" if t == 0 else "v[120:123]"
            k.e(f"v_mfma_f32_16x16x32_bf16 v[120:123], v[{20+4*t}:{23+4*t}], v[{d}:{d+3}], {cin}")
        k.e("s_nop 3")
    k.e("s_nop 7")
    k.e(f"""s_lshr_b32 s45, s20, 1
            s_lshl_b32 s45, s45, 8
            s_and_b32 s46, s20, 1
            s_lshl_b32 s46, s46, 6
            s_add_u32 s45, s45, s46
            v_lshl_add_u32 v12, v3, 2, s45
            v_add_f32 v8, v120, v122
            v_add_f32 v9, v121, v123
            ds_write_b32 v12, v8 offset:{GU_LDS}
            ds_write_b32 v12, v9 offset:{GU_LDS+128}
            s_waitcnt lgkmcnt(0)
            s_barrier
            v_lshlrev_b32 v12, 2, v1
            ds_read_b32 v8, v12 offset:{GU_LDS}
            ds_read_b32 v9, v12 offset:{GU_LDS+256}
            s_waitcnt lgkmcnt(0)
            v_mul_f32 v10, {f2u(-LOG2E)}, v8
            v_exp_f32 v10, v10
            s_nop 0
            v_add_f32 v10, 1.0, v10
            v_rcp_f32 v10, v10
            s_nop 0
            v_mul_f32 v8, v8, v10
            v_mul_f32 v8, v8, v9""")
    k.hilo(8, 9, 10, 11)
    k.e(f"""v_lshlrev_b32 v12, 1, v1
            ds_write_b16 v12, v9 offset:{A2_LDS}
            ds_write_b16 v12, v10 offset:{A2_LDS+128}
            s_waitcnt lgkmcnt(0)
            s_barrier
            v_and_b32 v8, 3, v1
            v_lshlrev_b32 v8, 6, v8
            v_lshl_add_u32 v8, v4, 4, v8
            ds_read_b128 v[20:23], v8 offset:{A2_LDS}""")
    k.e(f"""v_lshrrev_b32 v10, 2, v3
            v_lshl_add_u32 v10, v4, 3, v10
            v_mul_u32_u24 v10, 1152, v10
            v_and_b32 v11, 3, v3
            v_lshl_add_u32 v10, v11, 3, v10
            s_mul_i32 s45, s20, 288
            s_add_u32 s45, s45, {D_LDS}
            v_add_u32 v10, s45, v10""")
    for n in range(9):
        d = 24 + 4*n
        k.e(f"""ds_read_b64_tr_b16 v[{d}:{d+1}], v10 offset:{32*n}
                ds_read_b64_tr_b16 v[{d+2}:{d+3}], v10 offset:{32*n + 4608}""")
    k.e(f"""s_mul_i32 s46, s20, 576
            s_add_u32 s46, s46, {BIG_L + 73728}
            v_lshl_add_u32 v13, v3, 2, s46""")
    for n in range(9):
        k.e(f"""ds_read_b32 v{100+2*n}, v13 offset:{64*n}
                ds_read_b32 v{101+2*n}, v13 offset:{2304 + 64*n}""")
    k.e("s_waitcnt lgkmcnt(0)")
    for n in range(9):
        d = 24 + 4*n
        k.e(f"v_mfma_f32_16x16x32_bf16 v[{64+4*n}:{67+4*n}], v[20:23], v[{d}:{d+3}], 0")
    k.e(f"""s_mul_i32 s45, s2, 4608
            s_mul_i32 s46, s20, 576
            s_add_u32 s45, s45, s46
            v_lshl_add_u32 v12, v3, 2, s45
            s_cmp_eq_u32 s2, 0
            s_cselect_b32 s47, 1.0, 0
            v_mov_b32 v14, 0x7fc00000
            s_nop 4""")
    for n in range(9):
        a = 64 + 4*n
        k.e(f"""v_add_f32 v{a}, v{a}, v{a+2}
                v_add_f32 v{a+1}, v{a+1}, v{a+3}""")
    Lh = k.newlab("noh")
    k.e(f"s_cbranch_scc0 {Lh}")
    for n in range(9):
        a = 64 + 4*n
        k.e(f"""v_add_f32 v{a}, v{a}, v{100+2*n}
                v_add_f32 v{a+1}, v{a+1}, v{101+2*n}""")
    k.lab(Lh)
    for n in range(9):
        a = 64 + 4*n
        k.e(f"""v_cmp_eq_u32 vcc, -1, v{a}
                v_cmp_eq_u32 s[66:67], -1, v{a+1}
                s_nop 1
                v_cndmask_b32 v{a}, v{a}, v14, vcc
                v_cndmask_b32 v{a+1}, v{a+1}, v14, s[66:67]""")
    k.e("""v_cmp_gt_u32 vcc, 16, v1
           s_and_saveexec_b64 s[50:51], vcc""")
    for n in range(9):
        a = 64 + 4*n
        k.e(f"""buffer_store_dword v{a}, v12, s[60:63], 0 offen offset:{64*n} sc1
                buffer_store_dword v{a+1}, v12, s[60:63], 0 offen offset:{2304 + 64*n} sc1""")

def phase_g(k):
    k.e("""s_sub_u32 s48, s2, 216
           v_lshrrev_b32 v5, 4, v0
           v_and_b32 v6, 15, v0
           v_mul_u32_u24 v8, 4608, v5
           v_lshl_add_u32 v8, v6, 4, v8
           s_lshl_b32 s40, s48, 8""")
    loads = []
    for i in range(9):
        loads.append(f"s_add_u32 s41, s40, {16*4608*i}\nbuffer_load_dwordx4 v[{20+4*i}:{23+4*i}], v8, s[60:63], s41 offen sc1")
    poll_gather(k, loads, list(range(20, 56)), 46)
    k.stamp(9)
    for i in range(1, 9):
        for e in range(4):
            k.e(f"v_add_f32 v{20+e}, v{20+e}, v{20+4*i+e}")
    k.e(f"""v_lshlrev_b32 v9, 4, v0
            v_lshlrev_b32 v10, 2, v0
            ds_write_b128 v9, v[20:23] offset:{T_A}
            s_waitcnt lgkmcnt(0)
            s_barrier
            s_cmp_lg_u32 s20, 0
            s_cbranch_scc1 {k.name}_end""")
    for i in range(16):
        k.e(f"ds_read_b32 v{20+i}, v10 offset:{T_A + 256*i}")
    k.e("s_waitcnt lgkmcnt(0)")
    for i in range(1, 16):
        k.e(f"v_add_f32 v20, v20, v{20+i}")
    k.e("""v_cvt_pk_bf16_f32 v20, v20, v20
           v_lshlrev_b32 v10, 1, v0
           s_lshl_b32 s41, s48, 7
           buffer_store_short v20, v10, s[92:95], s41 offen""")

def k2_main():
    k = Kern("k_main_kernel", 256, 512, LDS_TOTAL, 256)
    guard(k, 256)
    k.ldptr(4, "ckv"); k.ldptr(10, "ws")
    wave_id(k, 20, 1)
    k.e(f"""v_and_b32 v1, 63, v0
            v_mov_b32 v2, 0
            v_lshlrev_b32 v3, 2, v1
            v_cmp_gt_u32 vcc, 20, v0
            s_and_saveexec_b64 s[48:49], vcc
            ds_write_b32 v3, v2 offset:{SYNC}
            s_mov_b64 exec, s[48:49]
            s_waitcnt lgkmcnt(0)
            s_barrier""")
    LB = k.newlab("teamB")
    if STAMP:
        k.sgpr = 102
        k.e("s_mov_b32 s101, s20\nv_mov_b32 v255, 0")
        k.stamp(0)
    k.e(f"s_cmp_ge_u32 s20, 4\ns_cbranch_scc1 {LB}")
    team_a(k)
    k.lab(LB)
    team_b(k)
    k.lab(f"{k.name}_end")
    if STAMP:
        k.e(f"s_cmp_ge_u32 s2, 256\ns_cbranch_scc1 {k.name}_end2")
        k.stamp_out()
        k.lab(f"{k.name}_end2")
    return k

def main():
    ks = [k1_qpart(), k2_main()]
    out = [HEADER.rstrip("\n")]
    for k in ks:
        out.append(f"; @launch kernel={k.name} grid=({k.grid},1,1) block=({k.block},1,1) lds={k.lds}")
    out.append('.amdgcn_target "amdgcn-amd-amdhsa--gfx950"\n.text')
    for k in ks:
        out.append(k.text())
    open(sys.argv[1] if len(sys.argv) > 1 else "u.s", "w").write("\n".join(out))
main()
```

```python
import sys, struct

HEADER = open("sequential_preLN__compressed_kv_cla__swiglu_ffn__decode.s.ref").read().split("; Override launch")[0]

WS_QA   = 0x000000
WS_ML   = 0x1D0000
WS_QP   = 0x020000
WS_INIT = 0x080000
WS_CTX  = 0x080000
WS_DNP  = 0x0C0000
WS_OUTP = 0x170000
WS_FL   = 0x1C0000
WS_OP   = 0x200000
INIT_BYTES = 0x180000
SENT = 0xFFFFFFFF
import os
GUNT = os.environ.get('GUNT', 'nt')
SPIN_MAX = 40000
import os
STAMP = bool(os.environ.get('STAMP'))

KA = dict(x=0, ckv=8, wq=16, wuk=24, wuv=32, wo=40, bx=48, wg=56, wu=64, wd=72, out=80, dbg=88, ws=96)
SZ = dict(x=2304, ckv=33554432, wq=4718592, wuk=4194304, wuv=4194304, wo=4718592, wg=5308416, wu=5308416,
          wd=5308416, out=2304)
LOG2E = 1.4426950408889634
def f2u(f): return struct.unpack("<I", struct.pack("<f", f))[0]

class Kern:
    def __init__(self, name, grid, block, lds, vgpr, sgpr=100):
        self.name, self.grid, self.block, self.lds, self.vgpr, self.sgpr = name, grid, block, lds, vgpr, sgpr
        self.lines = []
        self.nlab = 0
    def e(self, s):
        for l in s.strip("\n").split("\n"):
            if l.strip(): self.lines.append("    " + l.strip())
    def lab(self, s): self.lines.append(s + ":")
    def newlab(self, p):
        self.nlab += 1
        return f"{self.name}_{p}{self.nlab}"
    def ldptr(self, d, key): self.e(f"s_load_dwordx2 s[{d}:{d+1}], s[0:1], {KA[key]}")
    def srd(self, d, p, n, off=0):
        if off:
            self.e(f"s_add_u32 s{d}, s{p}, {off}\ns_addc_u32 s{d+1}, s{p+1}, 0")
        else:
            self.e(f"s_mov_b32 s{d}, s{p}\ns_mov_b32 s{d+1}, s{p+1}")
        self.e(f"s_mov_b32 s{d+2}, {n}\ns_mov_b32 s{d+3}, 0x00020000")
    def allreduce(self, op, x, t):
        for ctl in ("quad_perm:[1,0,3,2]", "quad_perm:[2,3,0,1]", "row_half_mirror", "row_mirror"):
            self.e(f"s_nop 1\nv_{op}_f32_dpp v{x}, v{x}, v{x} {ctl} row_mask:0xf bank_mask:0xf")
        for sw in ("v_permlane16_swap_b32", "v_permlane32_swap_b32"):
            self.e(f"v_mov_b32 v{t}, v{x}\ns_nop 1\n{sw} v{x}, v{t}\ns_nop 0\nv_{op}_f32 v{x}, v{x}, v{t}")
    def hilo(self, x, hi, lo, t):
        self.e(f"""v_cvt_pk_bf16_f32 v{hi}, v{x}, v{x}
                   v_lshlrev_b32 v{t}, 16, v{hi}
                   v_sub_f32 v{t}, v{x}, v{t}
                   v_cvt_pk_bf16_f32 v{lo}, v{t}, v{t}""")
    def sanitize(self, regs, tmp):
        self.e(f"v_mov_b32 v{tmp}, 0x7fc00000")
        for r in regs:
            self.e(f"v_cmp_eq_u32 vcc, -1, v{r}\ns_nop 1\nv_cndmask_b32 v{r}, v{r}, v{tmp}, vcc")
    def stamp(self, idx):
        if not STAMP: return
        self.e(f"s_memrealtime s[96:97]\ns_waitcnt lgkmcnt(0)\nv_writelane_b32 v255, s96, {idx}")
    def stamp_out(self):
        if not STAMP: return
        self.e(f"""s_mov_b64 exec, -1
                   s_waitcnt vmcnt(0)
                   s_memrealtime s[96:97]
                   s_waitcnt lgkmcnt(0)
                   v_writelane_b32 v255, s96, 15
                   s_add_u32 s96, s10, 0x1000000
                   s_addc_u32 s97, s11, 0
                   s_mov_b32 s98, 0x1000000
                   s_mov_b32 s99, 0x00020000
                   v_mbcnt_lo_u32_b32 v254, -1, 0
                   v_mbcnt_hi_u32_b32 v254, -1, v254
                   s_lshl_b32 s100, s2, 3
                   s_add_u32 s100, s100, s101
                   s_lshl_b32 s100, s100, 8
                   v_lshl_add_u32 v254, v254, 2, s100
                   buffer_store_dword v255, v254, s[96:99], 0 offen""")
    def text(self):
        acc = (self.vgpr + 3) // 4 * 4
        return "\n".join([
            f".globl {self.name}", ".p2align 8", f".type {self.name},@function", f"{self.name}:"] + self.lines + [
            "    s_endpgm",
            '.section .rodata,"a"', ".p2align 6", f".amdhsa_kernel {self.name}",
            f"  .amdhsa_next_free_vgpr {self.vgpr}", f"  .amdhsa_next_free_sgpr {self.sgpr}",
            f"  .amdhsa_accum_offset {acc}", "  .amdhsa_group_segment_fixed_size 0", "  .amdhsa_kernarg_size 104",
            "  .amdhsa_user_sgpr_count 2", "  .amdhsa_user_sgpr_kernarg_segment_ptr 1",
            "  .amdhsa_system_sgpr_workgroup_id_x 1", ".end_amdhsa_kernel", ".text", ""])

def guard(k, n):
    k.e(f"s_cmp_ge_u32 s2, {n}\ns_cbranch_scc1 {k.name}_end")

def wave_id(k, sdst, vt):
    k.e(f"v_lshrrev_b32 v{vt}, 6, v0\ns_nop 0\nv_readfirstlane_b32 s{sdst}, v{vt}")

RS = 1040
PX, MX, SX, SYNC, CT = 0, 8192, 8704, 9216, 9296
NONCE_L = SYNC + 64
WQ_L = CT + 128 * RS
LDS_TOTAL = WQ_L
LN_L, QQ_L = 0, 4608
D_A, D_A2, D_R = 0, 1024, 2048
T_A = 2304
WUV_L, OST_L, BIG_L = 9728, 26112, 63488

def lds_sync(k, word, target, vz, vone, vt, st):
    L = k.newlab("spin")
    k.e(f"""s_mov_b64 exec, 1
            ds_add_u32 v{vz}, v{vone} offset:{SYNC + 4*word}
            s_mov_b64 exec, -1""")
    k.lab(L)
    k.e(f"""ds_read_b32 v{vt}, v{vz} offset:{SYNC + 4*word}
            s_waitcnt lgkmcnt(0)
            v_readfirstlane_b32 s{st}, v{vt}
            s_cmp_lt_u32 s{st}, {target}
            s_cbranch_scc1 {L}""")

def poll_flags(k, vmask, vt, scnt, srd):
    L = k.newlab("pf"); Ld = k.newlab("pfd")
    k.e(f"s_mov_b32 s{scnt}, 0")
    k.lab(L)
    k.e(f"""buffer_load_dword v{vt}, v{vt+2}, s[{srd}:{srd+3}], 0 offen sc1
            s_waitcnt vmcnt(0)
            v_and_b32 v{vt}, v{vt}, v{vmask}
            v_cmp_ne_u32 vcc, v{vt}, v{vmask}
            s_add_u32 s{scnt}, s{scnt}, 1
            s_cmp_gt_u32 s{scnt}, {SPIN_MAX}
            s_cbranch_scc1 {Ld}
            s_cbranch_vccnz {L}""")
    k.lab(Ld)

def single_poll(k, word, vz, vone, vt, st, srd, soff, slp=3):
    L, Ld, Lo, Le = k.newlab("sp"), k.newlab("spd"), k.newlab("spo"), k.newlab("spe")
    k.e(f"s_cmp_lg_u32 s20, 0\ns_cbranch_scc1 {Lo}\ns_mov_b32 s{st}, 0")
    k.lab(L)
    k.e(f"""buffer_load_dwordx4 v[{vt}:{vt+3}], v{vt+4}, s[{srd}:{srd+3}], s{soff} offen sc1
            s_waitcnt vmcnt(0)
            v_max_u32 v{vt}, v{vt}, v{vt+1}
            v_max3_u32 v{vt}, v{vt}, v{vt+2}, v{vt+3}
            v_cmp_eq_u32 vcc, -1, v{vt}
            s_add_u32 s{st}, s{st}, 1
            s_cmp_gt_u32 s{st}, {SPIN_MAX}
            s_cbranch_scc1 {Ld}
            s_cbranch_vccz {Ld}
            s_sleep {slp}
            s_branch {L}""")
    k.lab(Ld)
    k.e(f"""ds_write_b32 v{vz}, v{vone} offset:{SYNC + 4*word}
            s_branch {Le}""")
    k.lab(Lo)
    lds_wait(k, word, 1, vz, vt, st, sleep=1)
    k.lab(Le)

def publish_rep(k, word, srd, hop, vz, vone, vt, st):
    L = k.newlab("pub")
    k.e(f"""s_waitcnt vmcnt(0)
            s_mov_b64 exec, 1
            ds_add_rtn_u32 v{vt}, v{vz}, v{vone} offset:{SYNC + 4*word}
            s_waitcnt lgkmcnt(0)
            v_readfirstlane_b32 s{st}, v{vt}
            s_mov_b64 exec, 0xff
            s_cmp_lg_u32 s{st}, 3
            s_cbranch_scc1 {L}
            s_lshl_b32 s{st}, s2, 2
            s_add_u32 s{st}, s{st}, {8192*hop}
            v_lshlrev_b32 v{vt}, 10, v1
            buffer_store_dword v{vone}, v{vt}, s[{srd}:{srd+3}], s{st} offen sc1""")
    k.lab(L)
    k.e("s_mov_b64 exec, -1")

def publish_flag(k, word, val, srd, vz, vone, vt, st):
    L = k.newlab("pub")
    k.e(f"""s_waitcnt vmcnt(0)
            s_mov_b64 exec, 1
            ds_add_rtn_u32 v{vt}, v{vz}, v{vone} offset:{SYNC + 4*word}
            s_waitcnt lgkmcnt(0)
            v_readfirstlane_b32 s{st}, v{vt}
            s_cmp_lg_u32 s{st}, 3
            s_cbranch_scc1 {L}
            v_mov_b32 v{vt}, s2
            v_mov_b32 v{vt+1}, {val}
            buffer_store_byte v{vt+1}, v{vt}, s[{srd}:{srd+3}], 0 offen sc1""")
    k.lab(L)
    k.e("s_mov_b64 exec, -1")

def lds_wait(k, word, target, vz, vt, st, sleep=0):
    L = k.newlab("lw")
    k.lab(L)
    if sleep: k.e(f"s_sleep {sleep}")
    k.e(f"""ds_read_b32 v{vt}, v{vz} offset:{SYNC + 4*word}
            s_waitcnt lgkmcnt(0)
            v_readfirstlane_b32 s{st}, v{vt}
            s_cmp_lt_u32 s{st}, {target}
            s_cbranch_scc1 {L}""")

def k1_qpart():
    WQ1, LN1 = 5120, 0
    k = Kern("k1_qpart_kernel", 256, 256, WQ1 + 18432, 80)
    guard(k, 256)
    k.ldptr(12, "x"); k.ldptr(14, "wq"); k.ldptr(10, "ws")
    wave_id(k, 20, 1)
    k.e("""v_and_b32 v1, 63, v0
           s_and_b32 s21, s2, 31
           s_lshr_b32 s22, s2, 5
           v_and_b32 v3, 15, v1
           v_lshrrev_b32 v4, 4, v1
           s_waitcnt lgkmcnt(0)""")
    k.srd(24, 12, SZ["x"]); k.srd(28, 14, SZ["wq"]); k.srd(36, 10, 262144, WS_QP); k.srd(52, 10, INIT_BYTES, WS_INIT)
    k.e("s_and_b32 s23, s20, 1\ns_mul_i32 s23, s23, 1152\nv_lshlrev_b32 v2, 1, v1")
    for i in range(9):
        k.e(f"buffer_load_ushort v{10+i}, v2, s[24:27], s23 offen offset:{128*i}")
    k.e(f"""v_lshlrev_b32 v6, 1, v4
            v_xor_b32 v6, v6, v3
            v_lshlrev_b32 v6, 4, v6
            v_lshl_add_u32 v6, v4, 13, v6
            s_and_b32 s40, s20, 2
            s_lshl_b32 s40, s40, 6
            v_xor_b32 v6, s40, v6
            s_mul_i32 s41, s22, 72
            s_lshl_b32 s42, s20, 2
            s_add_u32 s41, s41, s42
            s_lshl_b32 s41, s41, 13
            s_lshl_b32 s42, s21, 8
            s_add_u32 s41, s41, s42
            s_lshl_b32 s43, s20, 10
            s_add_u32 s43, s43, {WQ1}""")
    Lq = k.newlab("wq4")
    for i in range(5):
        if i == 4: k.e(f"s_cmp_ge_u32 s20, 2\ns_cbranch_scc1 {Lq}")
        k.e(f"""s_mov_b32 m0, s43
                s_add_u32 s43, s43, 4096
                buffer_load_dwordx4 v6, s[28:31], s41 offen nt lds
                s_add_u32 s41, s41, {16*8192}""")
    k.lab(Lq)
    k.e("""v_mov_b32 v28, -1
           v_mov_b32 v29, -1
           v_mov_b32 v30, -1
           v_mov_b32 v31, -1
           v_lshlrev_b32 v9, 4, v0
           s_mul_i32 s45, s2, 6144
           buffer_store_dwordx4 v[28:31], v9, s[52:55], s45 offen """ + os.environ.get('FILL', '') + """
           s_add_u32 s45, s45, 4096
           v_cmp_gt_u32 vcc, 128, v0
           s_and_saveexec_b64 s[48:49], vcc
           buffer_store_dwordx4 v[28:31], v9, s[52:55], s45 offen """ + os.environ.get('FILL', '') + """
           s_mov_b64 exec, s[48:49]
           s_waitcnt vmcnt(5)""")
    for i in range(9):
        k.e(f"v_lshlrev_b32 v{10+i}, 16, v{10+i}")
    k.e("v_add_f32 v20, v10, v11")
    for i in range(2, 9):
        k.e(f"v_add_f32 v20, v20, v{10+i}")
    k.allreduce("add", 20, 21)
    k.e(f"v_mul_f32 v20, {f2u(1.0/576)}, v20")
    for i in range(9):
        k.e(f"v_sub_f32 v{10+i}, v{10+i}, v20")
    k.e("v_mul_f32 v22, v10, v10")
    for i in range(1, 9):
        k.e(f"v_fmac_f32 v22, v{10+i}, v{10+i}")
    k.allreduce("add", 22, 21)
    k.e(f"""v_mov_b32 v23, {f2u(1e-5)}
            v_fmac_f32 v23, {f2u(1.0/576)}, v22
            v_rsq_f32 v23, v23
            v_add_u32 v24, s23, v2""")
    for i in range(9):
        k.e(f"v_mul_f32 v{10+i}, v{10+i}, v23")
        k.hilo(10+i, 25, 26, 27)
        k.e(f"""ds_write_b16 v24, v25 offset:{LN1 + 128*i}
                ds_write_b16 v24, v26 offset:{LN1 + 2304 + 128*i}""")
    k.e("s_waitcnt vmcnt(1) lgkmcnt(0)\ns_barrier")
    k.e(f"""v_and_b32 v8, 3, v1
            v_mul_u32_u24 v8, 1152, v8
            v_lshl_add_u32 v8, v4, 4, v8
            s_mul_i32 s40, s22, 144
            v_add_u32 v8, s40, v8""")
    for t in range(3):
        k.e(f"ds_read_b128 v[{28+4*t}:{31+4*t}], v8 offset:{LN1 + 64*t}")
    k.e(f"""v_lshrrev_b32 v9, 2, v3
            v_lshl_add_u32 v10, v4, 3, v9
            v_lshlrev_b32 v10, 8, v10
            v_and_b32 v11, 1, v4
            v_lshlrev_b32 v11, 3, v11
            v_lshl_or_b32 v11, v9, 1, v11
            v_bfe_u32 v12, v3, 1, 1
            s_lshl_b32 s46, s20, 2
            v_add_u32 v12, s46, v12
            v_and_b32 v13, 1, v3
            v_lshlrev_b32 v13, 3, v13
            s_mov_b32 s47, {WQ1}
            v_add3_u32 v10, v10, v13, s47
            v_lshlrev_b32 v19, 8, v9
            s_mov_b32 s47, {WQ1 + 16384}
            v_add3_u32 v19, v19, v13, s47
            v_lshlrev_b32 v18, 1, v9""")
    for nt in range(2):
        k.e(f"""v_add_u32 v14, {2*nt}, v12
                v_xor_b32 v15, v14, v11
                v_lshl_add_u32 v15, v15, 4, v10
                v_xor_b32 v16, v14, v18
                v_lshl_add_u32 v16, v16, 4, v19""")
        for t in range(2):
            d = 40 + 12*nt + 4*t
            k.e(f"""ds_read_b64_tr_b16 v[{d}:{d+1}], v15 offset:{8192*t}
                    ds_read_b64_tr_b16 v[{d+2}:{d+3}], v15 offset:{8192*t + 1024}""")
        d = 40 + 12*nt + 8
        k.e(f"""ds_read_b64_tr_b16 v[{d}:{d+1}], v16
                ds_read_b64_tr_b16 v[{d+2}:{d+3}], v16 offset:1024""")
    k.e("""v_cmp_gt_u32 vcc, 16, v1
           s_waitcnt lgkmcnt(0)
           v_cndmask_b32 v36, 0, v36, vcc
           v_cndmask_b32 v37, 0, v37, vcc
           v_cndmask_b32 v38, 0, v38, vcc
           v_cndmask_b32 v39, 0, v39, vcc
           s_nop 1""")
    for nt in range(2):
        acc = 64 + 4*nt
        for t in range(3):
            d = 40 + 12*nt + 4*t
            cin = "0" if t == 0 else f"v[{acc}:{acc+3}]"
            k.e(f"v_mfma_f32_16x16x32_bf16 v[{acc}:{acc+3}], v[{28+4*t}:{31+4*t}], v[{d}:{d+3}], {cin}")
    k.e(f"""s_lshl_b32 s46, s22, 15
            s_lshl_b32 s47, s21, 9
            s_add_u32 s46, s46, s47
            s_lshl_b32 s47, s20, 7
            s_add_u32 s46, s46, s47
            v_lshl_add_u32 v27, v3, 2, s46
            s_mov_b32 s47, 16384
            s_nop 4
            v_add_f32 v8, v64, v66
            v_add_f32 v9, v65, v67
            v_add_f32 v10, v68, v70
            v_add_f32 v11, v69, v71
            s_and_saveexec_b64 s[48:49], vcc
            buffer_store_dword v8, v27, s[36:39], 0 offen
            buffer_store_dword v9, v27, s[36:39], s47 offen
            buffer_store_dword v10, v27, s[36:39], 0 offen offset:64
            buffer_store_dword v11, v27, s[36:39], s47 offen offset:64""")
    k.lab(f"{k.name}_end")
    return k

def team_a(k):
    k.ldptr(16, "wuk"); k.ldptr(68, "wg"); k.ldptr(70, "wu"); k.ldptr(18, "wd")
    k.e("""s_and_b32 s21, s2, 31
           s_lshr_b32 s22, s2, 5
           v_and_b32 v3, 15, v1
           v_lshrrev_b32 v4, 4, v1
           v_mov_b32 v224, 0
           v_mov_b32 v225, 1
           s_waitcnt lgkmcnt(0)""")
    k.srd(32, 16, SZ["wuk"]); k.srd(36, 10, 262144, WS_QP)
    k.srd(56, 10, 65536, WS_QA); k.srd(60, 10, 8388608, WS_OP); k.srd(64, 10, 65536, WS_ML)
    k.srd(72, 68, SZ["wg"]); k.srd(76, 70, SZ["wu"]); k.srd(80, 10, 16384, WS_FL); k.srd(88, 18, SZ["wd"])
    if os.environ.get("EXP") == "1": lds_wait(k, 0, 4, 224, 226, 44, sleep=8)
    k.e("""v_lshlrev_b32 v252, 4, v1
           s_and_b32 s84, s2, 7
           s_lshl_b32 s84, s84, 10
           v_lshrrev_b32 v5, 7, v0
           v_and_b32 v6, 127, v0
           v_lshlrev_b32 v8, 14, v5
           v_lshl_add_u32 v8, v6, 2, v8
           s_lshl_b32 s46, s21, 9""")
    for j in range(8):
        k.e(f"buffer_load_dword v{10+j}, v8, s[36:39], s46 offen\ns_add_u32 s46, s46, 32768")
    k.e("""s_lshl_b32 s40, s22, 6
           s_lshl_b32 s41, s20, 4
           s_add_u32 s40, s40, s41
           v_add_u32 v7, s40, v3
           v_lshlrev_b32 v7, 13, v7
           v_lshl_add_u32 v7, v4, 4, v7
           s_lshl_b32 s41, s21, 8""")
    for t in range(4):
        k.e(f"buffer_load_dwordx4 v[{232+4*t}:{235+4*t}], v7, s[32:35], s41 offen offset:{64*t} {os.environ.get('UKNT', 'nt')}")
    k.e("""v_lshlrev_b32 v24, 8, v5
           v_lshl_add_u32 v24, v6, 1, v24
           s_waitcnt vmcnt(4)""")
    for j in range(1, 8):
        k.e(f"v_add_f32 v10, v10, v{10+j}")
    k.hilo(10, 25, 26, 27)
    k.e(f"""ds_write_b16 v24, v25 offset:{QQ_L}
            ds_write_b16 v24, v26 offset:{QQ_L + 512}""")
    lds_sync(k, 3, 4, 224, 225, 226, 44)
    k.e(f"""v_and_b32 v8, 3, v1
            v_lshlrev_b32 v8, 8, v8
            v_lshl_add_u32 v8, v4, 4, v8""")
    for t in range(4):
        k.e(f"ds_read_b128 v[{28+4*t}:{31+4*t}], v8 offset:{QQ_L + 64*t}")
    k.e("s_waitcnt vmcnt(0) lgkmcnt(0)")
    k.stamp(8)
    for t in range(4):
        cin = "0" if t == 0 else "v[64:67]"
        k.e(f"v_mfma_f32_16x16x32_bf16 v[64:67], v[{28+4*t}:{31+4*t}], v[{232+4*t}:{235+4*t}], {cin}")
    sc = f2u((128 ** -0.5) * LOG2E)
    k.e(f"""s_lshl_b32 s46, s22, 2
            s_add_u32 s46, s46, s20
            s_lshl_b32 s46, s46, 10
            s_lshl_b32 s47, s21, 4
            s_add_u32 s46, s46, s47
            v_lshrrev_b32 v12, 1, v1
            v_lshlrev_b32 v12, 15, v12
            v_and_b32 v13, 1, v1
            v_lshl_add_u32 v12, v13, 9, v12
            s_lshl_b32 s47, s20, 6
            v_lshl_add_u32 v13, v3, 1, s47
            v_lshl_add_u32 v14, v1, 4, s47
            v_add_f32 v10, v64, v66
            v_add_f32 v11, v65, v67
            v_mul_f32 v10, {sc}, v10
            v_mul_f32 v11, {sc}, v11
            v_cvt_pk_bf16_f32 v10, v10, v11
            ds_write_b16 v13, v10 offset:{QQ_L + 1024}
            ds_write_b16_d16_hi v13, v10 offset:{QQ_L + 1024 + 32}
            s_mov_b64 exec, 0xf
            ds_read_b128 v[16:19], v14 offset:{QQ_L + 1024}
            s_waitcnt lgkmcnt(0)
            buffer_store_dwordx4 v[16:19], v12, s[56:59], s46 offen sc1
            s_mov_b64 exec, -1""")
    publish_rep(k, 4, 80, 0, 224, 225, 226, 44)
    k.stamp(9)
    k.e(f"""v_and_b32 v2, 31, v1
            v_lshrrev_b32 v3, 5, v1
            s_lshr_b32 s21, s2, 7
            s_lshl_b32 s22, s21, 15
            v_lshlrev_b32 v5, 4, v1
            s_lshl_b32 s41, s20, 5
            v_and_b32 v6, 16, v2
            v_and_b32 v7, 3, v2
            v_lshl_add_u32 v6, v7, 2, v6
            v_bfe_u32 v7, v2, 2, 1
            v_lshl_add_u32 v6, v7, 1, v6
            v_bfe_u32 v7, v2, 3, 1
            v_add_u32 v6, v6, v7
            v_add_u32 v6, s41, v6
            v_mul_u32_u24 v6, {RS}, v6
            v_lshl_add_u32 v6, v3, 4, v6
            v_add_u32 v6, {CT}, v6
            """)
    single_poll(k, 13, 224, 225, 248, 44, 80, 84, slp=int(os.environ.get('SLP1', '3')))
    k.stamp(1)
    QF = 96
    for t in range(32):
        if t % 4 == 0 and t: k.e("s_add_u32 s22, s22, 4096")
        k.e(f"buffer_load_dwordx4 v[{QF+4*t}:{QF+3+4*t}], v5, s[56:59], s22 offen offset:{1024*(t%4)} {os.environ.get('QSC', 'sc1')}")
    lds_wait(k, 0, 4, 224, 226, 44)
    k.e("s_waitcnt vmcnt(0)")
    k.stamp(2)
    ACC = 16
    bufs = [32, 64]
    for i in range(8):
        k.e(f"ds_read_b128 v[{bufs[0]+4*i}:{bufs[0]+3+4*i}], v6 offset:{32*i}")
    for ci in range(4):
        if ci < 3:
            for i in range(8):
                b = bufs[(ci+1) % 2] + 4*i
                if b + 3 >= QF: raise Exception("reg overlap")
                k.e(f"ds_read_b128 v[{b}:{b+3}], v6 offset:{32*(8*(ci+1)+i)}")
            k.e("s_waitcnt lgkmcnt(8)")
        else:
            k.e("s_waitcnt lgkmcnt(0)")
        for i in range(8):
            t = 8*ci + i
            b = bufs[ci % 2] + 4*i
            cin = "0" if t == 0 else f"v[{ACC}:{ACC+15}]"
            k.e(f"v_mfma_f32_32x32x16_bf16 v[{ACC}:{ACC+15}], v[{b}:{b+3}], v[{QF+4*t}:{QF+3+4*t}], {cin}")
    k.e("s_nop 15")
    k.e(f"v_max3_f32 v8, v{ACC}, v{ACC+1}, v{ACC+2}")
    for i in range(3, 15, 2):
        k.e(f"v_max3_f32 v8, v8, v{ACC+i}, v{ACC+i+1}")
    k.e(f"""v_max_f32 v8, v8, v{ACC+15}
            v_mov_b32 v9, v8
            s_nop 1
            v_permlane32_swap_b32 v8, v9
            s_nop 0
            v_max_f32 v8, v8, v9
            s_lshl_b32 s43, s20, 2
            v_lshl_add_u32 v10, v2, 4, s43
            v_lshlrev_b32 v11, 4, v2
            ds_write_b32 v10, v8 offset:{MX}""")
    lds_sync(k, 5, 4, 224, 225, 226, 44)
    k.e(f"""ds_read_b128 v[12:15], v11 offset:{MX}
            s_waitcnt lgkmcnt(0)
            v_max3_f32 v8, v12, v13, v14
            v_max_f32 v8, v8, v15""")
    for i in range(16):
        k.e(f"v_sub_f32 v{ACC+i}, v{ACC+i}, v8")
    for i in range(16):
        k.e(f"v_exp_f32 v{ACC+i}, v{ACC+i}")
    k.e(f"s_nop 0\nv_add_f32 v9, v{ACC}, v{ACC+1}")
    for i in range(2, 16):
        k.e(f"v_add_f32 v9, v9, v{ACC+i}")
    for i in range(8):
        k.e(f"v_cvt_pk_bf16_f32 v{32+i}, v{ACC+2*i}, v{ACC+2*i+1}")
    k.e(f"""v_mov_b32 v12, v9
            s_lshl_b32 s44, s20, 11
            v_lshl_add_u32 v13, v1, 4, s44
            v_permlane32_swap_b32 v9, v12
            s_nop 0
            v_add_f32 v9, v9, v12
            ds_write_b128 v13, v[32:35] offset:{PX}
            ds_write_b128 v13, v[36:39] offset:{PX+1024}
            ds_write_b32 v10, v9 offset:{SX}""")
    lds_sync(k, 6, 4, 224, 225, 226, 44)
    k.stamp(3)
    PF = 32
    for s in range(8):
        k.e(f"ds_read_b128 v[{PF+4*s}:{PF+3+4*s}], v5 offset:{PX + 1024*s}")
    k.e(f"ds_read_b128 v[12:15], v11 offset:{SX}")
    k.e(f"""v_bfe_u32 v66, v1, 2, 2
            v_lshlrev_b32 v66, 2, v66
            v_lshl_add_u32 v66, v3, 1, v66
            v_mul_u32_u24 v66, {RS}, v66
            v_bfe_u32 v67, v1, 4, 1
            v_lshlrev_b32 v67, 5, v67
            v_and_b32 v7, 3, v1
            v_lshl_add_u32 v67, v7, 3, v67
            s_lshl_b32 s45, s20, 8
            s_add_u32 s45, s45, {CT}
            v_add3_u32 v64, v66, v67, s45
            v_add_u32 v65, {64*RS}, v64""")
    OACC = 96
    VB = [160, 192]
    steps = [(T, s) for s in range(8) for T in range(4)]
    def trread(dst, T, s):
        wq, u = s >> 1, s & 1
        base = 64 if wq < 2 else 65
        off = (32*(wq & 1) + 16*u) * RS + 64*T
        k.e(f"ds_read_b64_tr_b16 v[{dst}:{dst+1}], v{base} offset:{off}")
        k.e(f"ds_read_b64_tr_b16 v[{dst+2}:{dst+3}], v{base} offset:{off+RS}")
    CH = 4
    chunks = [steps[i:i+CH] for i in range(0, 32, CH)]
    for i, (T, s) in enumerate(chunks[0]):
        trread(VB[0] + 4*i, T, s)
    for ci, ch in enumerate(chunks):
        if ci + 1 < len(chunks):
            for i, (T, s) in enumerate(chunks[ci+1]):
                trread(VB[(ci+1) % 2] + 4*i, T, s)
            k.e(f"s_waitcnt lgkmcnt({2*CH})")
        else:
            k.e("s_waitcnt lgkmcnt(0)")
        for i, (T, s) in enumerate(ch):
            a = VB[ci % 2] + 4*i
            o = OACC + 16*T
            cin = "0" if s == 0 else f"v[{o}:{o+15}]"
            k.e(f"v_mfma_f32_32x32x16_bf16 v[{o}:{o+15}], v[{a}:{a+3}], v[{PF+4*s}:{PF+3+4*s}], {cin}")
    k.stamp(4)
    Lk = k.newlab("skipml")
    k.e(f"""v_add_f32 v12, v12, v13
            v_add_f32 v14, v14, v15
            v_add_f32 v9, v12, v14
            s_and_b32 s46, s2, 127
            s_lshl_b32 s47, s21, 12
            s_add_u32 s46, s46, s47
            s_lshl_b32 s46, s46, 3
            v_lshl_add_u32 v10, v2, 10, s46
            v_mov_b32 v228, v10""")
    k.e(f"""s_lshl_b32 s46, s2, 15
            s_lshl_b32 s47, s20, 8
            s_add_u32 s46, s46, s47
            v_mul_u32_u24 v10, {RS}, v2
            v_lshl_add_u32 v10, v3, 3, v10
            v_add_u32 v10, s45, v10
            v_lshrrev_b32 v11, 4, v1
            v_and_b32 v12, 15, v1
            v_mul_u32_u24 v13, {RS}, v11
            v_lshl_add_u32 v13, v12, 4, v13
            v_add_u32 v13, s45, v13
            v_lshlrev_b32 v14, 10, v11
            v_lshl_add_u32 v14, v12, 4, v14""")
    for T in range(4):
        o = OACC + 16*T
        for a in range(4):
            d = 32 + 2*(4*T + a)
            k.e(f"""v_cvt_pk_bf16_f32 v{d}, v{o+4*a}, v{o+4*a+1}
                    v_cvt_pk_bf16_f32 v{d+1}, v{o+4*a+2}, v{o+4*a+3}
                    ds_write_b64 v10, v[{d}:{d+1}] offset:{64*T + 16*a}""")
    for n in range(8):
        k.e(f"ds_read_b128 v[{160+4*n}:{163+4*n}], v13 offset:{4*RS*n}")
    for n in range(8):
        k.e(f"""s_waitcnt lgkmcnt({7-n})
                buffer_store_dwordx4 v[{160+4*n}:{163+4*n}], v14, s[60:63], s46 offen sc1
                s_add_u32 s46, s46, 4096""")
    k.e("s_waitcnt vmcnt(0)")
    k.stamp(5)
    k.sanitize([8, 9], 229)
    Lp = k.newlab("pubml")
    k.e(f"""s_waitcnt vmcnt(0)
            s_mov_b64 exec, 1
            ds_add_rtn_u32 v226, v224, v225 offset:{SYNC + 28}
            s_waitcnt lgkmcnt(0)
            v_readfirstlane_b32 s44, v226
            s_mov_b32 exec_lo, -1
            s_cmp_lg_u32 s44, 3
            s_cbranch_scc1 {Lp}
            buffer_store_dwordx2 v[8:9], v228, s[64:67], 0 offen sc1""")
    k.lab(Lp)
    k.e("s_mov_b64 exec, -1")
    k.e(f"s_cmp_ge_u32 s2, 144\ns_cbranch_scc1 {k.name}_end")
    lds_wait(k, int(os.environ.get("GUW", "10")), 4, 224, 226, 44, sleep=2)
    dma64_off(k, 8, 1, 10, 11, 9, 9216)
    k.e(f"""s_and_b32 s85, s2, 7
            s_lshl_b32 s85, s85, 1
            s_bfe_u32 s45, s2, 0x10003
            s_add_u32 s85, s85, s45
            s_andn2_b32 s45, s2, 15
            s_add_u32 s85, s85, s45
            s_mul_i32 s41, s20, 9*16*9216
            s_lshl_b32 s42, s85, 6
            s_add_u32 s41, s41, s42
            s_mul_i32 s43, s20, 9216
            s_add_u32 s43, s43, {BIG_L}
            s_add_u32 s44, s43, 36864""")
    for mi in range(9):
        GT = int(os.environ.get("GUT", "3"))
        if GT and mi >= GT: k.e(f"s_waitcnt vmcnt({2*GT-2})")
        k.e(f"""s_mov_b32 m0, s43
                s_add_u32 s43, s43, 1024
                buffer_load_dwordx4 v8, s[72:75], s41 offen {GUNT} lds
                s_mov_b32 m0, s44
                s_add_u32 s44, s44, 1024
                buffer_load_dwordx4 v8, s[76:79], s41 offen {GUNT} lds
                s_add_u32 s41, s41, {16*9216}""")
    if os.environ.get("DNA", "1") == "1":
        lds_wait(k, 11, 4, 224, 226, 44, sleep=1)
        k.e(f"""v_lshlrev_b32 v9, 4, v1
                s_mul_i32 s41, s85, 36864
                s_mul_i32 s42, s20, 9216
                s_add_u32 s41, s41, s42
                s_add_u32 s43, s42, {OST_L}""")
        for mi in range(9):
            if mi >= 2: k.e("s_waitcnt vmcnt(4)")
            k.e(f"""s_mov_b32 m0, s43
                    s_add_u32 s43, s43, 1024
                    buffer_load_dwordx4 v9, s[88:91], s41 offen nt lds
                    s_add_u32 s41, s41, 1024""")
    k.e(f"s_waitcnt vmcnt(0)\ns_branch {k.name}_end")

def dma64_off(k, vA, lane, t1, t2, t3, rowstride):
    k.e(f"""v_lshrrev_b32 v{t1}, 2, v{lane}
            v_and_b32 v{t2}, 3, v{lane}
            v_bfe_u32 v{t3}, v{lane}, 5, 1
            v_lshlrev_b32 v{t3}, 1, v{t3}
            v_xor_b32 v{t2}, v{t2}, v{t3}
            v_mul_u32_u24 v{vA}, {rowstride}, v{t1}
            v_lshl_add_u32 v{vA}, v{t2}, 4, v{vA}""")

def tr64_base(k, dst, v3, v4, nt_sreg, t1, t2):
    k.e(f"""v_lshrrev_b32 v{t1}, 2, v{v3}
            v_lshl_add_u32 v{t1}, v{v4}, 3, v{t1}
            v_lshlrev_b32 v{t1}, 6, v{t1}
            v_bfe_u32 v{t2}, v{v3}, 1, 1
            v_add_u32 v{t2}, s{nt_sreg}, v{t2}
            v_and_b32 v{dst}, 1, v{v4}
            v_lshlrev_b32 v{dst}, 1, v{dst}
            v_xor_b32 v{t2}, v{t2}, v{dst}
            v_lshl_add_u32 v{t1}, v{t2}, 4, v{t1}
            v_and_b32 v{dst}, 1, v{v3}
            v_lshl_add_u32 v{dst}, v{dst}, 3, v{t1}""")

def poll_gather(k, loads, regs, scnt, mask_s=None):
    L = k.newlab("poll"); Ld = k.newlab("pdone")
    k.e(f"s_mov_b32 s{scnt}, 0")
    k.lab(L)
    for l in loads: k.e(l)
    k.e("s_waitcnt vmcnt(0)")
    k.e(f"v_max_u32 v7, v{regs[0]}, v{regs[1]}")
    for i in range(2, len(regs) - 1, 2):
        k.e(f"v_max3_u32 v7, v7, v{regs[i]}, v{regs[i+1]}")
    if len(regs) % 2: k.e(f"v_max_u32 v7, v7, v{regs[-1]}")
    k.e(f"""v_cmp_eq_u32 vcc, -1, v7
            s_add_u32 s{scnt}, s{scnt}, 1
            s_cmp_gt_u32 s{scnt}, {SPIN_MAX}
            s_cbranch_scc1 {Ld}
            s_cbranch_vccz {Ld}
            s_sleep {os.environ.get('GSLP', '4')}
            s_branch {L}""")
    k.lab(Ld)

def team_b(k):
    k.e("""v_subrev_u32 v0, 0x100, v0
           s_sub_u32 s20, s20, 4
           v_and_b32 v3, 15, v1
           v_lshrrev_b32 v4, 4, v1
           s_and_b32 s21, s2, 31
           s_lshr_b32 s22, s2, 5
           v_mov_b32 v124, 0
           v_mov_b32 v125, 1""")
    k.ldptr(12, "wuv"); k.ldptr(14, "wo"); k.ldptr(64, "wd"); k.ldptr(66, "x"); k.ldptr(68, "out")
    k.e("s_waitcnt lgkmcnt(0)")
    k.srd(24, 12, SZ["wuv"]); k.srd(28, 10, 65536, WS_ML); k.srd(32, 10, 8388608, WS_OP); k.srd(36, 10, 262144, WS_CTX)
    k.srd(52, 10, 16384, WS_FL); k.srd(56, 10, 8*36864, WS_OUTP); k.srd(60, 10, 663552, WS_DNP)
    k.srd(72, 14, SZ["wo"]); k.srd(76, 4, SZ["ckv"]); k.srd(84, 64, SZ["wd"])
    k.srd(88, 66, SZ["x"]); k.srd(92, 68, SZ["out"])
    k.e("""s_sub_u32 s47, s2, 144
           s_mul_i32 s48, s47, 7282
           s_lshr_b32 s48, s48, 16
           s_mul_i32 s49, s48, 9
           s_sub_u32 s49, s47, s49""")
    k.e(f"""v_lshlrev_b32 v9, 4, v1
            s_lshl_b32 s40, s2, 7
            s_lshl_b32 s41, s20, 5
            s_add_u32 s40, s40, s41
            s_lshl_b32 s40, s40, 10
            s_mul_i32 s42, s41, {RS}
            s_add_u32 s42, s42, {CT}""")
    THR = int(os.environ.get("THR", "3")); DLY = int(os.environ.get("DLY", "0"))
    if DLY: lds_wait(k, 1, 1, 124, 126, 46, sleep=1)
    for r in range(32):
        R1 = int(os.environ.get("R1", "12")); THR2 = int(os.environ.get("THR2", "0"))
        th = THR if r < R1 else THR2
        if th and r >= th: k.e(f"s_waitcnt vmcnt({th-1})")
        k.e(f"""s_mov_b32 m0, s42
                s_add_u32 s42, s42, {RS}
                buffer_load_dwordx4 v9, s[76:79], s40 offen nt lds
                s_add_u32 s40, s40, 1024""")
    k.e(f"""v_lshlrev_b32 v13, 1, v4
            v_xor_b32 v13, v13, v3
            v_lshlrev_b32 v13, 4, v13
            v_lshl_add_u32 v13, v4, 13, v13
            v_xor_b32 v14, 0x80, v13
            s_lshl_b32 s44, s22, 6
            s_lshl_b32 s45, s20, 4
            s_add_u32 s44, s44, s45
            s_lshl_b32 s44, s44, 13
            s_lshl_b32 s45, s21, 8
            s_add_u32 s44, s44, s45
            s_waitcnt vmcnt(0)
            s_mov_b64 exec, 1
            ds_add_u32 v124, v125 offset:{SYNC}
            s_mov_b64 exec, -1""")
    k.stamp(1)
    for mi in range(4):
        k.e(f"""buffer_load_dwordx4 v[{128+4*mi}:{131+4*mi}], v{14 if mi & 2 else 13}, s[24:27], s44 offen nt
                s_add_u32 s44, s44, 32768""")
    LW = k.newlab("ldW")
    k.e(f"""s_cmp_lt_u32 s2, 144
            s_cbranch_scc1 {LW}
            s_cmp_ge_u32 s2, 216
            s_cbranch_scc1 {LW}""")
    k.e("""v_lshrrev_b32 v10, 3, v1
           v_and_b32 v11, 7, v1
           v_and_b32 v12, 2, v10
           v_xor_b32 v11, v11, v12
           v_mul_u32_u24 v8, 1152, v10
           v_lshl_add_u32 v8, v11, 4, v8
           v_xor_b32 v11, 4, v11
           v_mul_u32_u24 v7, 1152, v10
           v_lshl_add_u32 v7, v11, 4, v7
           s_lshl_b32 s41, s48, 9
           s_lshl_b32 s42, s20, 7
           s_add_u32 s41, s41, s42
           s_mul_i32 s41, s41, 1152
           s_lshl_b32 s42, s49, 7
           s_add_u32 s41, s41, s42""")
    for mi in range(16):
        k.e(f"""buffer_load_dwordx4 v[{144+4*mi}:{147+4*mi}], v{7 if mi & 1 else 8}, s[72:75], s41 offen nt
                s_add_u32 s41, s41, {8*1152}""")
    k.lab(LW)
    k.stamp(2)
    lds_wait(k, 7, 4, 124, 126, 46, sleep=2)
    k.stamp(3)
    k.e(f"""s_waitcnt vmcnt(0)
            s_lshl_b32 s41, s20, 12
            s_add_u32 s41, s41, {WUV_L}
            v_add_u32 v10, s41, v9""")
    for mi in range(4):
        k.e(f"ds_write_b128 v10, v[{128+4*mi}:{131+4*mi}] offset:{1024*mi}")
    LW2 = k.newlab("stW")
    k.e(f"""s_cmp_lt_u32 s2, 144
            s_cbranch_scc1 {LW2}
            s_cmp_ge_u32 s2, 216
            s_cbranch_scc1 {LW2}
            s_lshl_b32 s41, s20, 14
            s_add_u32 s41, s41, {BIG_L}
            v_add_u32 v10, s41, v9""")
    for mi in range(16):
        k.e(f"ds_write_b128 v10, v[{144+4*mi}:{147+4*mi}] offset:{1024*mi}")
    k.lab(LW2)
    k.stamp(5)
    k.e("""v_lshrrev_b32 v5, 7, v0
           v_and_b32 v6, 127, v0
           v_lshlrev_b32 v5, 12, v5
           v_add_u32 v5, v5, v6
           s_lshl_b32 s40, s21, 7
           v_add_u32 v5, s40, v5
           v_lshlrev_b32 v5, 3, v5""")
    poll_gather(k, ["buffer_load_dwordx2 v[8:9], v5, s[28:31], 0 offen sc1"], [8, 9], 46)
    k.stamp(6)
    k.e(f"""v_lshrrev_b32 v10, 3, v1
            v_and_b32 v11, 7, v1
            v_and_b32 v12, 2, v10
            v_xor_b32 v11, v11, v12
            v_lshlrev_b32 v11, 4, v11
            v_lshl_add_u32 v11, v10, 15, v11
            v_xor_b32 v12, 64, v11
            s_lshl_b32 s41, s21, 10
            s_lshl_b32 s42, s22, 7
            s_add_u32 s41, s41, s42
            s_lshl_b32 s42, s20, 21
            s_add_u32 s41, s41, s42
            s_lshl_b32 s43, s20, 13
            s_add_u32 s43, s43, {OST_L}""")
    for mi in range(8):
        k.e(f"""s_mov_b32 m0, s43
                s_add_u32 s43, s43, 1024
                buffer_load_dwordx4 v{12 if mi & 1 else 11}, s[32:35], s41 offen sc1 lds
                s_add_u32 s41, s41, 262144""")
    k.e("v_mov_b32 v15, v8")
    k.allreduce("max", 15, 16)
    k.e(f"""s_lshl_b32 s46, s20, 2
            v_mov_b32 v17, s46
            ds_write_b32 v17, v15 offset:{D_R}
            s_waitcnt lgkmcnt(0)
            """)
    lds_sync(k, 8, 4, 124, 125, 126, 46)
    k.e(f"""
            s_and_b32 s47, s20, 2
            s_lshl_b32 s47, s47, 2
            v_mov_b32 v18, s47
            ds_read_b64 v[20:21], v18 offset:{D_R}
            s_waitcnt lgkmcnt(0)
            v_max_f32 v15, v20, v21
            v_sub_f32 v8, v8, v15
            v_exp_f32 v8, v8
            s_nop 0
            v_mul_f32 v19, v8, v9""")
    k.allreduce("add", 19, 16)
    k.e(f"""ds_write_b32 v17, v19 offset:{D_R+16}
            s_waitcnt lgkmcnt(0)
            """)
    lds_sync(k, 9, 4, 124, 125, 126, 46)
    k.e(f"""
            ds_read_b64 v[20:21], v18 offset:{D_R+16}
            s_waitcnt lgkmcnt(0)
            v_add_f32 v19, v20, v21
            v_rcp_f32 v19, v19
            s_nop 0
            v_mul_f32 v8, v8, v19""")
    k.hilo(8, 22, 23, 24)
    k.e(f"""v_lshrrev_b32 v25, 7, v0
            v_lshlrev_b32 v25, 9, v25
            v_lshl_add_u32 v25, v6, 1, v25
            ds_write_b16 v25, v22 offset:{D_A}
            ds_write_b16 v25, v23 offset:{D_A+256}
            s_waitcnt vmcnt(0) lgkmcnt(0)
            """)
    lds_sync(k, 10, 4, 124, 125, 126, 46)
    k.e(f"""""")
    k.stamp(7)
    k.e(f"""v_and_b32 v26, 1, v1
            v_lshlrev_b32 v26, 8, v26
            v_lshl_add_u32 v26, v4, 4, v26
            s_lshr_b32 s46, s20, 1
            s_lshl_b32 s47, s46, 9
            v_add_u32 v26, s47, v26""")
    for t in range(4):
        k.e(f"ds_read_b128 v[{28+4*t}:{31+4*t}], v26 offset:{D_A + 64*t}")
    k.e(f"""v_lshrrev_b32 v9, 2, v3
            v_lshl_add_u32 v10, v4, 3, v9
            v_lshlrev_b32 v10, 7, v10
            v_and_b32 v11, 2, v9
            v_and_b32 v12, 1, v4
            v_lshl_or_b32 v11, v12, 2, v11
            v_bfe_u32 v12, v3, 1, 1
            s_and_b32 s47, s20, 1
            s_lshl_b32 s47, s47, 2
            v_add_u32 v12, s47, v12
            v_and_b32 v13, 1, v3
            v_lshl_add_u32 v10, v13, 3, v10
            s_lshl_b32 s47, s46, 14
            s_add_u32 s47, s47, {OST_L}
            v_add_u32 v10, s47, v10""")
    for nt in range(2):
        k.e(f"""v_add_u32 v14, {2*nt}, v12
                v_xor_b32 v14, v14, v11
                v_lshl_add_u32 v{15+nt}, v14, 4, v10""")
    for nt in range(2):
        for t in range(4):
            d = 44 + 16*nt + 4*t
            k.e(f"""ds_read_b64_tr_b16 v[{d}:{d+1}], v{15+nt} offset:{4096*t}
                    ds_read_b64_tr_b16 v[{d+2}:{d+3}], v{15+nt} offset:{4096*t + 512}""")
    k.e("s_waitcnt lgkmcnt(0)")
    for nt in range(2):
        for t in range(4):
            d = 44 + 16*nt + 4*t
            acc = 20 if nt == 0 else 76
            cin = "0" if t == 0 else f"v[{acc}:{acc+3}]"
            k.e(f"v_mfma_f32_16x16x32_bf16 v[{acc}:{acc+3}], v[{28+4*t}:{31+4*t}], v[{d}:{d+3}], {cin}")
    k.e(f"""s_and_b32 s47, s20, 1
            s_lshl_b32 s47, s47, 6
            s_lshl_b32 s50, s46, 7
            s_add_u32 s47, s47, s50
            v_lshl_add_u32 v27, v3, 1, s47
            s_nop 7""")
    for nt in range(2):
        acc = 20 if nt == 0 else 76
        k.e(f"v_add_f32 v8, v{acc}, v{acc+1}")
        k.hilo(8, 9, 24, 25)
        k.e(f"""ds_write_b16 v27, v9 offset:{D_A2 + 32*nt}
                ds_write_b16 v27, v24 offset:{D_A2 + 256 + 32*nt}""")
    k.e("s_waitcnt lgkmcnt(0)")
    lds_sync(k, 11, 4, 124, 125, 126, 46)
    k.e(f"""v_and_b32 v8, 3, v1
            v_lshlrev_b32 v8, 7, v8
            v_lshl_add_u32 v8, v4, 4, v8
            ds_read_b128 v[28:31], v8 offset:{D_A2}
            ds_read_b128 v[32:35], v8 offset:{D_A2+64}""")
    k.e(f"""v_lshrrev_b32 v9, 2, v3
            v_lshl_add_u32 v10, v4, 3, v9
            v_lshlrev_b32 v10, 8, v10
            v_and_b32 v11, 1, v4
            v_lshlrev_b32 v11, 3, v11
            v_lshl_or_b32 v11, v9, 1, v11
            v_bfe_u32 v12, v3, 1, 1
            s_lshl_b32 s47, s20, 2
            v_add_u32 v12, s47, v12
            v_and_b32 v13, 1, v3
            v_lshl_add_u32 v10, v13, 3, v10""")
    for nt in range(2):
        k.e(f"""v_add_u32 v14, {2*nt}, v12
                v_xor_b32 v14, v14, v11
                v_lshl_add_u32 v{15+nt}, v14, 4, v10""")
    for nt in range(2):
        for t in range(2):
            d = 44 + 8*nt + 4*t
            k.e(f"""ds_read_b64_tr_b16 v[{d}:{d+1}], v{15+nt} offset:{WUV_L + 8192*t}
                    ds_read_b64_tr_b16 v[{d+2}:{d+3}], v{15+nt} offset:{WUV_L + 8192*t + 1024}""")
    k.e("s_waitcnt lgkmcnt(0)")
    for nt in range(2):
        acc = 20 if nt == 0 else 76
        for t in range(2):
            d = 44 + 8*nt + 4*t
            cin = "0" if t == 0 else f"v[{acc}:{acc+3}]"
            k.e(f"v_mfma_f32_16x16x32_bf16 v[{acc}:{acc+3}], v[{28+4*t}:{31+4*t}], v[{d}:{d+3}], {cin}")
    k.e(f"""s_lshl_b32 s47, s22, 15
            s_lshl_b32 s50, s21, 9
            s_add_u32 s47, s47, s50
            s_lshl_b32 s50, s20, 7
            s_add_u32 s47, s47, s50
            v_lshl_add_u32 v27, v3, 2, s47
            s_nop 7
            v_add_f32 v8, v20, v22
            v_add_f32 v9, v21, v23
            v_add_f32 v10, v76, v78
            v_add_f32 v11, v77, v79""")
    k.sanitize([8, 9, 10, 11], 12)
    k.e(f"""s_mov_b32 s47, 16384
            v_cmp_gt_u32 vcc, 16, v1
            s_and_saveexec_b64 s[50:51], vcc
            buffer_store_dword v8, v27, s[36:39], 0 offen sc1
            buffer_store_dword v9, v27, s[36:39], s47 offen sc1
            buffer_store_dword v10, v27, s[36:39], 0 offen offset:64 sc1
            buffer_store_dword v11, v27, s[36:39], s47 offen offset:64 sc1
            s_mov_b64 exec, s[50:51]""")
    k.stamp(8)
    LPE, LPG = k.newlab("phE"), k.newlab("phG")
    k.e(f"s_cmp_ge_u32 s2, 144\ns_cbranch_scc1 {LPE}")
    phase_f(k)
    k.e(f"s_branch {k.name}_end")
    k.lab(LPE)
    k.e(f"s_cmp_ge_u32 s2, 216\ns_cbranch_scc1 {LPG}")
    phase_e(k)
    k.e(f"s_branch {k.name}_end")
    k.lab(LPG)
    k.e(f"s_cmp_ge_u32 s2, 234\ns_cbranch_scc1 {k.name}_end")
    phase_g(k)

def phase_e(k):
    A_LDS = T_A
    k.e("""v_lshrrev_b32 v5, 7, v0
           v_and_b32 v6, 127, v0
           v_lshlrev_b32 v8, 14, v5
           v_lshl_add_u32 v8, v6, 4, v8
           s_lshl_b32 s40, s48, 11""")
    loads = []
    for j in range(8):
        loads.append(f"s_add_u32 s41, s40, {32768*j}\nbuffer_load_dwordx4 v[{20+4*j}:{23+4*j}], v8, s[36:39], s41 offen sc1")
    poll_gather(k, loads, list(range(20, 52)), 46)
    k.stamp(9)
    for j in range(1, 8):
        for e in range(4):
            k.e(f"v_add_f32 v{20+e}, v{20+e}, v{20+4*j+e}")
    k.e("""v_cvt_pk_bf16_f32 v24, v20, v21
           v_cvt_pk_bf16_f32 v25, v22, v23
           v_lshlrev_b32 v26, 16, v24
           v_and_b32 v27, 0xffff0000, v24
           v_lshlrev_b32 v28, 16, v25
           v_and_b32 v29, 0xffff0000, v25
           v_sub_f32 v20, v20, v26
           v_sub_f32 v21, v21, v27
           v_sub_f32 v22, v22, v28
           v_sub_f32 v23, v23, v29
           v_cvt_pk_bf16_f32 v26, v20, v21
           v_cvt_pk_bf16_f32 v27, v22, v23
           v_lshlrev_b32 v12, 10, v5
           v_lshl_add_u32 v12, v6, 3, v12""")
    k.e(f"""ds_write_b64 v12, v[24:25] offset:{A_LDS}
            ds_write_b64 v12, v[26:27] offset:{A_LDS+2048}
            s_waitcnt lgkmcnt(0)
            s_barrier""")
    k.e("""v_and_b32 v8, 3, v1
           v_lshlrev_b32 v8, 10, v8
           v_lshl_add_u32 v8, v4, 4, v8""")
    for t in range(16):
        k.e(f"ds_read_b128 v[{20+4*t}:{23+4*t}], v8 offset:{A_LDS + 64*t}")
    k.e(f"""v_lshrrev_b32 v9, 2, v3
            v_lshl_add_u32 v10, v4, 3, v9
            v_lshlrev_b32 v10, 7, v10
            v_and_b32 v11, 2, v9
            v_and_b32 v12, 1, v4
            v_lshl_or_b32 v11, v12, 2, v11
            v_bfe_u32 v12, v3, 1, 1
            s_lshl_b32 s47, s20, 1
            v_add_u32 v12, s47, v12
            v_and_b32 v13, 1, v3
            v_lshl_add_u32 v10, v13, 3, v10
            v_xor_b32 v12, v12, v11
            v_lshl_add_u32 v15, v12, 4, v10
            v_add_u32 v15, {BIG_L}, v15""")
    for c in range(2):
        for i in range(8):
            t = 8*c + i
            d = 88 + 4*i
            k.e(f"""ds_read_b64_tr_b16 v[{d}:{d+1}], v15 offset:{4096*t}
                    ds_read_b64_tr_b16 v[{d+2}:{d+3}], v15 offset:{4096*t + 512}""")
        k.e("s_waitcnt lgkmcnt(0)")
        for i in range(8):
            t = 8*c + i
            d = 88 + 4*i
            cin = "0" if t == 0 else "v[120:123]"
            k.e(f"v_mfma_f32_16x16x32_bf16 v[120:123], v[{20+4*t}:{23+4*t}], v[{d}:{d+3}], {cin}")
        k.e("s_nop 3")
    k.e(f"""s_mul_i32 s45, s48, 4608
            s_lshl_b32 s46, s49, 8
            s_add_u32 s45, s45, s46
            s_lshl_b32 s46, s20, 6
            s_add_u32 s45, s45, s46
            v_lshl_add_u32 v12, v3, 2, s45
            s_nop 7
            v_add_f32 v8, v120, v122
            v_add_f32 v9, v121, v123""")
    k.sanitize([8, 9], 10)
    k.e(f"""v_cmp_gt_u32 vcc, 16, v1
            s_and_saveexec_b64 s[50:51], vcc
            s_mov_b32 s45, 0""")
    for r in range(8):
        k.e("""buffer_store_dword v8, v12, s[56:59], s45 offen sc1
               buffer_store_dword v9, v12, s[56:59], s45 offen offset:2304 sc1
               s_add_u32 s45, s45, 36864""")

def phase_f(k):
    A_LDS, R_LDS, GU_LDS, A2_LDS = T_A, T_A + 4608, T_A + 4672, T_A + 5184
    D_LDS = OST_L
    if os.environ.get("DNA", "1") != "1":
        k.e("s_barrier")
        k.e(f"""s_and_b32 s83, s2, 7
                s_lshl_b32 s83, s83, 1
                s_bfe_u32 s45, s2, 0x10003
                s_add_u32 s83, s83, s45
                s_andn2_b32 s45, s2, 15
                s_add_u32 s83, s83, s45
                v_lshlrev_b32 v9, 4, v1
                s_mul_i32 s41, s83, 36864
                s_mul_i32 s42, s20, 9216
                s_add_u32 s41, s41, s42
                s_add_u32 s43, s42, {D_LDS}""")
        for mi in range(9):
            k.e(f"""s_mov_b32 m0, s43
                    s_add_u32 s43, s43, 1024
                    buffer_load_dwordx4 v9, s[84:87], s41 offen nt lds
                    s_add_u32 s41, s41, 1024""")
    k.stamp(10)
    k.e("""v_lshlrev_b32 v5, 4, v0
           v_mov_b32 v6, 0x7fffffff
           v_cmp_gt_u32 vcc, 144, v0
           s_nop 1
           v_cndmask_b32 v5, v6, v5, vcc
           v_lshrrev_b32 v8, 1, v5
           v_cndmask_b32 v8, v6, v8, vcc
           s_mov_b64 s[64:65], vcc""")
    k.e("""buffer_load_dwordx2 v[84:85], v8, s[88:91], 0 offen
           buffer_load_dwordx2 v[86:87], v8, s[88:91], 0 offen offset:1152""")
    k.e("s_and_b32 s41, s2, 7\ns_mul_i32 s41, s41, 36864")
    loads = []
    for ks in range(8):
        for b in range(2):
            r = 20 + 8*ks + 4*b
            loads.append(f"s_add_u32 s40, s41, {4608*ks}\nbuffer_load_dwordx4 v[{r}:{r+3}], v5, s[56:59], s40 offen offset:{2304*b} sc1")
    poll_gather(k, loads, list(range(20, 84)), 46)
    k.stamp(9)
    for ks in range(1, 8):
        for e in range(8):
            k.e(f"v_add_f32 v{20+e}, v{20+e}, v{20+8*ks+e}")
    for b in range(2):
        k.e(f"""v_lshlrev_b32 v12, 16, v{84+2*b}
                v_and_b32 v13, 0xffff0000, v{84+2*b}
                v_lshlrev_b32 v14, 16, v{85+2*b}
                v_and_b32 v15, 0xffff0000, v{85+2*b}
                v_add_f32 v{20+4*b}, v{20+4*b}, v12
                v_add_f32 v{21+4*b}, v{21+4*b}, v13
                v_add_f32 v{22+4*b}, v{22+4*b}, v14
                v_add_f32 v{23+4*b}, v{23+4*b}, v15""")
    k.e(f"""v_add_u32 v16, {BIG_L + 73728}, v5
            s_mov_b64 s[66:67], exec
            s_mov_b64 exec, s[64:65]
            ds_write_b128 v16, v[20:23]
            ds_write_b128 v16, v[24:27] offset:2304
            s_mov_b64 exec, s[66:67]""")
    k.e("""v_add_f32 v28, v20, v21
           v_add_f32 v29, v22, v23
           v_add_f32 v28, v28, v29
           v_add_f32 v29, v24, v25
           v_add_f32 v30, v26, v27
           v_add_f32 v29, v29, v30""")
    k.allreduce("add", 28, 31)
    k.allreduce("add", 29, 31)
    k.e(f"""s_lshl_b32 s46, s20, 3
            v_mov_b32 v32, s46
            v_mov_b32 v33, 0
            ds_write_b64 v32, v[28:29] offset:{R_LDS}
            s_waitcnt lgkmcnt(0)
            s_barrier
            ds_read_b128 v[36:39], v33 offset:{R_LDS}
            ds_read_b64 v[40:41], v33 offset:{R_LDS+16}
            s_waitcnt lgkmcnt(0)
            v_add_f32 v28, v36, v38
            v_add_f32 v28, v28, v40
            v_add_f32 v29, v37, v39
            v_add_f32 v29, v29, v41
            v_mul_f32 v28, {f2u(1.0/576)}, v28
            v_mul_f32 v29, {f2u(1.0/576)}, v29""")
    for b in range(2):
        for e in range(4):
            k.e(f"v_sub_f32 v{20+4*b+e}, v{20+4*b+e}, v{28+b}")
    for b in range(2):
        k.e(f"""v_mul_f32 v{30+b}, v{20+4*b}, v{20+4*b}
                v_fmac_f32 v{30+b}, v{21+4*b}, v{21+4*b}
                v_fmac_f32 v{30+b}, v{22+4*b}, v{22+4*b}
                v_fmac_f32 v{30+b}, v{23+4*b}, v{23+4*b}
                v_cndmask_b32 v{30+b}, 0, v{30+b}, s[64:65]""")
    k.allreduce("add", 30, 34)
    k.allreduce("add", 31, 34)
    k.e(f"""ds_write_b64 v32, v[30:31] offset:{R_LDS+32}
            s_waitcnt lgkmcnt(0)
            s_barrier
            ds_read_b128 v[36:39], v33 offset:{R_LDS+32}
            ds_read_b64 v[40:41], v33 offset:{R_LDS+48}
            s_waitcnt lgkmcnt(0)
            v_add_f32 v30, v36, v38
            v_add_f32 v30, v30, v40
            v_add_f32 v31, v37, v39
            v_add_f32 v31, v31, v41
            v_mov_b32 v34, {f2u(1e-5)}
            v_mov_b32 v35, {f2u(1e-5)}
            v_fmac_f32 v34, {f2u(1.0/576)}, v30
            v_fmac_f32 v35, {f2u(1.0/576)}, v31
            v_rsq_f32 v34, v34
            v_rsq_f32 v35, v35
            v_lshlrev_b32 v12, 3, v0""")
    for b in range(2):
        o = 20 + 4*b
        for e in range(4):
            k.e(f"v_mul_f32 v{o+e}, v{o+e}, v{34+b}")
        k.e(f"""v_cvt_pk_bf16_f32 v36, v{o}, v{o+1}
                v_cvt_pk_bf16_f32 v37, v{o+2}, v{o+3}
                v_lshlrev_b32 v38, 16, v36
                v_and_b32 v39, 0xffff0000, v36
                v_lshlrev_b32 v40, 16, v37
                v_and_b32 v41, 0xffff0000, v37
                v_sub_f32 v{o}, v{o}, v38
                v_sub_f32 v{o+1}, v{o+1}, v39
                v_sub_f32 v{o+2}, v{o+2}, v40
                v_sub_f32 v{o+3}, v{o+3}, v41
                v_cvt_pk_bf16_f32 v38, v{o}, v{o+1}
                v_cvt_pk_bf16_f32 v39, v{o+2}, v{o+3}
                s_mov_b64 s[66:67], exec
                s_mov_b64 exec, s[64:65]
                ds_write_b64 v12, v[36:37] offset:{A_LDS + 1152*b}
                ds_write_b64 v12, v[38:39] offset:{A_LDS + 2304 + 1152*b}
                s_mov_b64 exec, s[66:67]""")
    k.e("s_waitcnt lgkmcnt(0)\ns_barrier")
    k.e(f"""v_and_b32 v8, 3, v1
            v_mul_u32_u24 v8, 1152, v8
            v_lshl_add_u32 v8, v4, 4, v8
            s_and_b32 s44, s20, 1
            s_lshl_b32 s44, s44, 1
            s_lshr_b32 s45, s20, 1
            s_mul_i32 s45, s45, 36864
            s_add_u32 s45, s45, {BIG_L}""")
    for t in range(18):
        k.e(f"ds_read_b128 v[{20+4*t}:{23+4*t}], v8 offset:{A_LDS + 64*t}")
    tr64_base(k, 15, 3, 4, 44, 10, 11)
    k.e("v_add_u32 v15, s45, v15")
    for c in range(3):
        for i in range(6):
            t = 6*c + i
            d = 96 + 4*i
            k.e(f"""ds_read_b64_tr_b16 v[{d}:{d+1}], v15 offset:{2048*t}
                    ds_read_b64_tr_b16 v[{d+2}:{d+3}], v15 offset:{2048*t + 256}""")
        k.e("s_waitcnt lgkmcnt(0)")
        for i in range(6):
            t = 6*c + i
            d = 96 + 4*i
            cin = "0" if t == 0 else "v[120:123]"
            k.e(f"v_mfma_f32_16x16x32_bf16 v[120:123], v[{20+4*t}:{23+4*t}], v[{d}:{d+3}], {cin}")
        k.e("s_nop 3")
    k.e("s_nop 7")
    k.e(f"""s_lshr_b32 s45, s20, 1
            s_lshl_b32 s45, s45, 8
            s_and_b32 s46, s20, 1
            s_lshl_b32 s46, s46, 6
            s_add_u32 s45, s45, s46
            v_lshl_add_u32 v12, v3, 2, s45
            v_add_f32 v8, v120, v122
            v_add_f32 v9, v121, v123
            ds_write_b32 v12, v8 offset:{GU_LDS}
            ds_write_b32 v12, v9 offset:{GU_LDS+128}
            s_waitcnt lgkmcnt(0)
            s_barrier
            v_lshlrev_b32 v12, 2, v1
            ds_read_b32 v8, v12 offset:{GU_LDS}
            ds_read_b32 v9, v12 offset:{GU_LDS+256}
            s_waitcnt lgkmcnt(0)
            v_mul_f32 v10, {f2u(-LOG2E)}, v8
            v_exp_f32 v10, v10
            s_nop 0
            v_add_f32 v10, 1.0, v10
            v_rcp_f32 v10, v10
            s_nop 0
            v_mul_f32 v8, v8, v10
            v_mul_f32 v8, v8, v9""")
    k.hilo(8, 9, 10, 11)
    k.e(f"""v_lshlrev_b32 v12, 1, v1
            ds_write_b16 v12, v9 offset:{A2_LDS}
            ds_write_b16 v12, v10 offset:{A2_LDS+128}
            s_waitcnt lgkmcnt(0)
            s_barrier
            v_and_b32 v8, 3, v1
            v_lshlrev_b32 v8, 6, v8
            v_lshl_add_u32 v8, v4, 4, v8
            ds_read_b128 v[20:23], v8 offset:{A2_LDS}""")
    k.e(f"""v_lshrrev_b32 v10, 2, v3
            v_lshl_add_u32 v10, v4, 3, v10
            v_mul_u32_u24 v10, 1152, v10
            v_and_b32 v11, 3, v3
            v_lshl_add_u32 v10, v11, 3, v10
            s_mul_i32 s45, s20, 288
            s_add_u32 s45, s45, {D_LDS}
            v_add_u32 v10, s45, v10""")
    for n in range(9):
        d = 24 + 4*n
        k.e(f"""ds_read_b64_tr_b16 v[{d}:{d+1}], v10 offset:{32*n}
                ds_read_b64_tr_b16 v[{d+2}:{d+3}], v10 offset:{32*n + 4608}""")
    k.e(f"""s_mul_i32 s46, s20, 576
            s_add_u32 s46, s46, {BIG_L + 73728}
            v_lshl_add_u32 v13, v3, 2, s46""")
    for n in range(9):
        k.e(f"""ds_read_b32 v{100+2*n}, v13 offset:{64*n}
                ds_read_b32 v{101+2*n}, v13 offset:{2304 + 64*n}""")
    k.e("s_waitcnt lgkmcnt(0)")
    for n in range(9):
        d = 24 + 4*n
        k.e(f"v_mfma_f32_16x16x32_bf16 v[{64+4*n}:{67+4*n}], v[20:23], v[{d}:{d+3}], 0")
    k.e(f"""s_mul_i32 s45, s2, 4608
            s_mul_i32 s46, s20, 576
            s_add_u32 s45, s45, s46
            v_lshl_add_u32 v12, v3, 2, s45
            s_cmp_eq_u32 s2, 0
            s_cselect_b32 s47, 1.0, 0
            v_mov_b32 v14, 0x7fc00000
            s_nop 4""")
    for n in range(9):
        a = 64 + 4*n
        k.e(f"""v_add_f32 v{a}, v{a}, v{a+2}
                v_add_f32 v{a+1}, v{a+1}, v{a+3}""")
    Lh = k.newlab("noh")
    k.e(f"s_cbranch_scc0 {Lh}")
    for n in range(9):
        a = 64 + 4*n
        k.e(f"""v_add_f32 v{a}, v{a}, v{100+2*n}
                v_add_f32 v{a+1}, v{a+1}, v{101+2*n}""")
    k.lab(Lh)
    for n in range(9):
        a = 64 + 4*n
        k.e(f"""v_cmp_eq_u32 vcc, -1, v{a}
                v_cmp_eq_u32 s[66:67], -1, v{a+1}
                s_nop 1
                v_cndmask_b32 v{a}, v{a}, v14, vcc
                v_cndmask_b32 v{a+1}, v{a+1}, v14, s[66:67]""")
    k.e("""v_cmp_gt_u32 vcc, 16, v1
           s_and_saveexec_b64 s[50:51], vcc""")
    for n in range(9):
        a = 64 + 4*n
        k.e(f"""buffer_store_dword v{a}, v12, s[60:63], 0 offen offset:{64*n} sc1
                buffer_store_dword v{a+1}, v12, s[60:63], 0 offen offset:{2304 + 64*n} sc1""")

def phase_g(k):
    k.e("""s_sub_u32 s48, s2, 216
           v_lshrrev_b32 v5, 4, v0
           v_and_b32 v6, 15, v0
           v_mul_u32_u24 v8, 4608, v5
           v_lshl_add_u32 v8, v6, 4, v8
           s_lshl_b32 s40, s48, 8""")
    loads = []
    for i in range(9):
        loads.append(f"s_add_u32 s41, s40, {16*4608*i}\nbuffer_load_dwordx4 v[{20+4*i}:{23+4*i}], v8, s[60:63], s41 offen sc1")
    poll_gather(k, loads, list(range(20, 56)), 46)
    k.stamp(9)
    for i in range(1, 9):
        for e in range(4):
            k.e(f"v_add_f32 v{20+e}, v{20+e}, v{20+4*i+e}")
    k.e(f"""v_lshlrev_b32 v9, 4, v0
            v_lshlrev_b32 v10, 2, v0
            ds_write_b128 v9, v[20:23] offset:{T_A}
            s_waitcnt lgkmcnt(0)
            s_barrier
            s_cmp_lg_u32 s20, 0
            s_cbranch_scc1 {k.name}_end""")
    for i in range(16):
        k.e(f"ds_read_b32 v{20+i}, v10 offset:{T_A + 256*i}")
    k.e("s_waitcnt lgkmcnt(0)")
    for i in range(1, 16):
        k.e(f"v_add_f32 v20, v20, v{20+i}")
    k.e("""v_cvt_pk_bf16_f32 v20, v20, v20
           v_lshlrev_b32 v10, 1, v0
           s_lshl_b32 s41, s48, 7
           buffer_store_short v20, v10, s[92:95], s41 offen""")

def k2_main():
    k = Kern("k_main_kernel", 256, 512, LDS_TOTAL, 256)
    guard(k, 256)
    k.ldptr(4, "ckv"); k.ldptr(10, "ws")
    wave_id(k, 20, 1)
    k.e(f"""v_and_b32 v1, 63, v0
            v_mov_b32 v2, 0
            v_lshlrev_b32 v3, 2, v1
            v_cmp_gt_u32 vcc, 20, v0
            s_and_saveexec_b64 s[48:49], vcc
            ds_write_b32 v3, v2 offset:{SYNC}
            s_mov_b64 exec, s[48:49]
            s_waitcnt lgkmcnt(0)
            s_barrier""")
    LB = k.newlab("teamB")
    if STAMP:
        k.sgpr = 102
        k.e("s_mov_b32 s101, s20\nv_mov_b32 v255, 0")
        k.stamp(0)
    k.e(f"s_cmp_ge_u32 s20, 4\ns_cbranch_scc1 {LB}")
    team_a(k)
    k.lab(LB)
    team_b(k)
    k.lab(f"{k.name}_end")
    if STAMP:
        k.e(f"s_cmp_ge_u32 s2, 256\ns_cbranch_scc1 {k.name}_end2")
        k.stamp_out()
        k.lab(f"{k.name}_end2")
    return k

def main():
    ks = [k1_qpart(), k2_main()]
    out = [HEADER.rstrip("\n")]
    for k in ks:
        out.append(f"; @launch kernel={k.name} grid=({k.grid},1,1) block=({k.block},1,1) lds={k.lds}")
    out.append('.amdgcn_target "amdgcn-amd-amdhsa--gfx950"\n.text')
    for k in ks:
        out.append(k.text())
    open(sys.argv[1] if len(sys.argv) > 1 else "u.s", "w").write("\n".join(out))
main()
```

```python
import sys, struct

HEADER = open("sequential_preLN__compressed_kv_cla__swiglu_ffn__decode.s.ref").read().split("; Override launch")[0]

WS_QA   = 0x000000
WS_ML   = 0x1D0000
WS_QP   = 0x020000
WS_INIT = 0x080000
WS_CTX  = 0x080000
WS_DNP  = 0x0C0000
WS_OUTP = 0x170000
WS_FL   = 0x1C0000
WS_OP   = 0x200000
INIT_BYTES = 0x180000
SENT = 0xFFFFFFFF
import os
GUNT = os.environ.get('GUNT', 'nt')
SPIN_MAX = 40000
import os
STAMP = bool(os.environ.get('STAMP'))

KA = dict(x=0, ckv=8, wq=16, wuk=24, wuv=32, wo=40, bx=48, wg=56, wu=64, wd=72, out=80, dbg=88, ws=96)
SZ = dict(x=2304, ckv=33554432, wq=4718592, wuk=4194304, wuv=4194304, wo=4718592, wg=5308416, wu=5308416,
          wd=5308416, out=2304)
LOG2E = 1.4426950408889634
def f2u(f): return struct.unpack("<I", struct.pack("<f", f))[0]

class Kern:
    def __init__(self, name, grid, block, lds, vgpr, sgpr=100):
        self.name, self.grid, self.block, self.lds, self.vgpr, self.sgpr = name, grid, block, lds, vgpr, sgpr
        self.lines = []
        self.nlab = 0
    def e(self, s):
        for l in s.strip("\n").split("\n"):
            if l.strip(): self.lines.append("    " + l.strip())
    def lab(self, s): self.lines.append(s + ":")
    def newlab(self, p):
        self.nlab += 1
        return f"{self.name}_{p}{self.nlab}"
    def ldptr(self, d, key): self.e(f"s_load_dwordx2 s[{d}:{d+1}], s[0:1], {KA[key]}")
    def srd(self, d, p, n, off=0):
        if off:
            self.e(f"s_add_u32 s{d}, s{p}, {off}\ns_addc_u32 s{d+1}, s{p+1}, 0")
        else:
            self.e(f"s_mov_b32 s{d}, s{p}\ns_mov_b32 s{d+1}, s{p+1}")
        self.e(f"s_mov_b32 s{d+2}, {n}\ns_mov_b32 s{d+3}, 0x00020000")
    def allreduce(self, op, x, t):
        for ctl in ("quad_perm:[1,0,3,2]", "quad_perm:[2,3,0,1]", "row_half_mirror", "row_mirror"):
            self.e(f"s_nop 1\nv_{op}_f32_dpp v{x}, v{x}, v{x} {ctl} row_mask:0xf bank_mask:0xf")
        for sw in ("v_permlane16_swap_b32", "v_permlane32_swap_b32"):
            self.e(f"v_mov_b32 v{t}, v{x}\ns_nop 1\n{sw} v{x}, v{t}\ns_nop 0\nv_{op}_f32 v{x}, v{x}, v{t}")
    def hilo(self, x, hi, lo, t):
        self.e(f"""v_cvt_pk_bf16_f32 v{hi}, v{x}, v{x}
                   v_lshlrev_b32 v{t}, 16, v{hi}
                   v_sub_f32 v{t}, v{x}, v{t}
                   v_cvt_pk_bf16_f32 v{lo}, v{t}, v{t}""")
    def sanitize(self, regs, tmp):
        self.e(f"v_mov_b32 v{tmp}, 0x7fc00000")
        for r in regs:
            self.e(f"v_cmp_eq_u32 vcc, -1, v{r}\ns_nop 1\nv_cndmask_b32 v{r}, v{r}, v{tmp}, vcc")
    def stamp(self, idx):
        if not STAMP: return
        self.e(f"s_memrealtime s[96:97]\ns_waitcnt lgkmcnt(0)\nv_writelane_b32 v255, s96, {idx}")
    def stamp_out(self):
        if not STAMP: return
        self.e(f"""s_mov_b64 exec, -1
                   s_waitcnt vmcnt(0)
                   s_memrealtime s[96:97]
                   s_waitcnt lgkmcnt(0)
                   v_writelane_b32 v255, s96, 15
                   s_add_u32 s96, s10, 0x1000000
                   s_addc_u32 s97, s11, 0
                   s_mov_b32 s98, 0x1000000
                   s_mov_b32 s99, 0x00020000
                   v_mbcnt_lo_u32_b32 v254, -1, 0
                   v_mbcnt_hi_u32_b32 v254, -1, v254
                   s_lshl_b32 s100, s2, 3
                   s_add_u32 s100, s100, s101
                   s_lshl_b32 s100, s100, 8
                   v_lshl_add_u32 v254, v254, 2, s100
                   buffer_store_dword v255, v254, s[96:99], 0 offen""")
    def text(self):
        acc = (self.vgpr + 3) // 4 * 4
        return "\n".join([
            f".globl {self.name}", ".p2align 8", f".type {self.name},@function", f"{self.name}:"] + self.lines + [
            "    s_endpgm",
            '.section .rodata,"a"', ".p2align 6", f".amdhsa_kernel {self.name}",
            f"  .amdhsa_next_free_vgpr {self.vgpr}", f"  .amdhsa_next_free_sgpr {self.sgpr}",
            f"  .amdhsa_accum_offset {acc}", "  .amdhsa_group_segment_fixed_size 0", "  .amdhsa_kernarg_size 104",
            "  .amdhsa_user_sgpr_count 2", "  .amdhsa_user_sgpr_kernarg_segment_ptr 1",
            "  .amdhsa_system_sgpr_workgroup_id_x 1", ".end_amdhsa_kernel", ".text", ""])

def guard(k, n):
    k.e(f"s_cmp_ge_u32 s2, {n}\ns_cbranch_scc1 {k.name}_end")

def wave_id(k, sdst, vt):
    k.e(f"v_lshrrev_b32 v{vt}, 6, v0\ns_nop 0\nv_readfirstlane_b32 s{sdst}, v{vt}")

RS = 1040
PX, MX, SX, SYNC, CT = 0, 8192, 8704, 9216, 9296
NONCE_L = SYNC + 64
WQ_L = CT + 128 * RS
LDS_TOTAL = WQ_L
LN_L, QQ_L = 0, 4608
D_A, D_A2, D_R = 0, 1024, 2048
T_A = 2304
WUV_L, OST_L, BIG_L = 9728, 26112, 63488

def lds_sync(k, word, target, vz, vone, vt, st):
    L = k.newlab("spin")
    k.e(f"""s_mov_b64 exec, 1
            ds_add_u32 v{vz}, v{vone} offset:{SYNC + 4*word}
            s_mov_b64 exec, -1""")
    k.lab(L)
    k.e(f"""ds_read_b32 v{vt}, v{vz} offset:{SYNC + 4*word}
            s_waitcnt lgkmcnt(0)
            v_readfirstlane_b32 s{st}, v{vt}
            s_cmp_lt_u32 s{st}, {target}
            s_cbranch_scc1 {L}""")

def poll_flags(k, vmask, vt, scnt, srd):
    L = k.newlab("pf"); Ld = k.newlab("pfd")
    k.e(f"s_mov_b32 s{scnt}, 0")
    k.lab(L)
    k.e(f"""buffer_load_dword v{vt}, v{vt+2}, s[{srd}:{srd+3}], 0 offen sc1
            s_waitcnt vmcnt(0)
            v_and_b32 v{vt}, v{vt}, v{vmask}
            v_cmp_ne_u32 vcc, v{vt}, v{vmask}
            s_add_u32 s{scnt}, s{scnt}, 1
            s_cmp_gt_u32 s{scnt}, {SPIN_MAX}
            s_cbranch_scc1 {Ld}
            s_cbranch_vccnz {L}""")
    k.lab(Ld)

def single_poll(k, word, vz, vone, vt, st, srd, soff, slp=3):
    L, Ld, Lo, Le = k.newlab("sp"), k.newlab("spd"), k.newlab("spo"), k.newlab("spe")
    k.e(f"s_cmp_lg_u32 s20, 0\ns_cbranch_scc1 {Lo}\ns_mov_b32 s{st}, 0")
    k.lab(L)
    k.e(f"""buffer_load_dwordx4 v[{vt}:{vt+3}], v{vt+4}, s[{srd}:{srd+3}], s{soff} offen sc1
            s_waitcnt vmcnt(0)
            v_max_u32 v{vt}, v{vt}, v{vt+1}
            v_max3_u32 v{vt}, v{vt}, v{vt+2}, v{vt+3}
            v_cmp_eq_u32 vcc, -1, v{vt}
            s_add_u32 s{st}, s{st}, 1
            s_cmp_gt_u32 s{st}, {SPIN_MAX}
            s_cbranch_scc1 {Ld}
            s_cbranch_vccz {Ld}
            s_sleep {slp}
            s_branch {L}""")
    k.lab(Ld)
    k.e(f"""ds_write_b32 v{vz}, v{vone} offset:{SYNC + 4*word}
            s_branch {Le}""")
    k.lab(Lo)
    lds_wait(k, word, 1, vz, vt, st, sleep=1)
    k.lab(Le)

def publish_rep(k, word, srd, hop, vz, vone, vt, st):
    L = k.newlab("pub")
    k.e(f"""s_waitcnt vmcnt(0)
            s_mov_b64 exec, 1
            ds_add_rtn_u32 v{vt}, v{vz}, v{vone} offset:{SYNC + 4*word}
            s_waitcnt lgkmcnt(0)
            v_readfirstlane_b32 s{st}, v{vt}
            s_mov_b64 exec, 0xff
            s_cmp_lg_u32 s{st}, 3
            s_cbranch_scc1 {L}
            s_lshl_b32 s{st}, s2, 2
            s_add_u32 s{st}, s{st}, {8192*hop}
            v_lshlrev_b32 v{vt}, 10, v1
            buffer_store_dword v{vone}, v{vt}, s[{srd}:{srd+3}], s{st} offen sc1""")
    k.lab(L)
    k.e("s_mov_b64 exec, -1")

def publish_flag(k, word, val, srd, vz, vone, vt, st):
    L = k.newlab("pub")
    k.e(f"""s_waitcnt vmcnt(0)
            s_mov_b64 exec, 1
            ds_add_rtn_u32 v{vt}, v{vz}, v{vone} offset:{SYNC + 4*word}
            s_waitcnt lgkmcnt(0)
            v_readfirstlane_b32 s{st}, v{vt}
            s_cmp_lg_u32 s{st}, 3
            s_cbranch_scc1 {L}
            v_mov_b32 v{vt}, s2
            v_mov_b32 v{vt+1}, {val}
            buffer_store_byte v{vt+1}, v{vt}, s[{srd}:{srd+3}], 0 offen sc1""")
    k.lab(L)
    k.e("s_mov_b64 exec, -1")

def lds_wait(k, word, target, vz, vt, st, sleep=0):
    L = k.newlab("lw")
    k.lab(L)
    if sleep: k.e(f"s_sleep {sleep}")
    k.e(f"""ds_read_b32 v{vt}, v{vz} offset:{SYNC + 4*word}
            s_waitcnt lgkmcnt(0)
            v_readfirstlane_b32 s{st}, v{vt}
            s_cmp_lt_u32 s{st}, {target}
            s_cbranch_scc1 {L}""")

def k1_qpart():
    WQ1, LN1 = 5120, 0
    k = Kern("k1_qpart_kernel", 256, 256, WQ1 + 18432, 80)
    guard(k, 256)
    k.ldptr(12, "x"); k.ldptr(14, "wq"); k.ldptr(10, "ws")
    wave_id(k, 20, 1)
    k.e("""v_and_b32 v1, 63, v0
           s_and_b32 s21, s2, 31
           s_lshr_b32 s22, s2, 5
           v_and_b32 v3, 15, v1
           v_lshrrev_b32 v4, 4, v1
           s_waitcnt lgkmcnt(0)""")
    k.srd(24, 12, SZ["x"]); k.srd(28, 14, SZ["wq"]); k.srd(36, 10, 262144, WS_QP); k.srd(52, 10, INIT_BYTES, WS_INIT)
    k.e("s_and_b32 s23, s20, 1\ns_mul_i32 s23, s23, 1152\nv_lshlrev_b32 v2, 1, v1")
    for i in range(9):
        k.e(f"buffer_load_ushort v{10+i}, v2, s[24:27], s23 offen offset:{128*i}")
    k.e(f"""v_lshlrev_b32 v6, 1, v4
            v_xor_b32 v6, v6, v3
            v_lshlrev_b32 v6, 4, v6
            v_lshl_add_u32 v6, v4, 13, v6
            s_and_b32 s40, s20, 2
            s_lshl_b32 s40, s40, 6
            v_xor_b32 v6, s40, v6
            s_mul_i32 s41, s22, 72
            s_lshl_b32 s42, s20, 2
            s_add_u32 s41, s41, s42
            s_lshl_b32 s41, s41, 13
            s_lshl_b32 s42, s21, 8
            s_add_u32 s41, s41, s42
            s_lshl_b32 s43, s20, 10
            s_add_u32 s43, s43, {WQ1}""")
    Lq = k.newlab("wq4")
    for i in range(5):
        if i == 4: k.e(f"s_cmp_ge_u32 s20, 2\ns_cbranch_scc1 {Lq}")
        k.e(f"""s_mov_b32 m0, s43
                s_add_u32 s43, s43, 4096
                buffer_load_dwordx4 v6, s[28:31], s41 offen nt lds
                s_add_u32 s41, s41, {16*8192}""")
    k.lab(Lq)
    k.e("""v_mov_b32 v28, -1
           v_mov_b32 v29, -1
           v_mov_b32 v30, -1
           v_mov_b32 v31, -1
           v_lshlrev_b32 v9, 4, v0
           s_mul_i32 s45, s2, 6144
           buffer_store_dwordx4 v[28:31], v9, s[52:55], s45 offen """ + os.environ.get('FILL', '') + """
           s_add_u32 s45, s45, 4096
           v_cmp_gt_u32 vcc, 128, v0
           s_and_saveexec_b64 s[48:49], vcc
           buffer_store_dwordx4 v[28:31], v9, s[52:55], s45 offen """ + os.environ.get('FILL', '') + """
           s_mov_b64 exec, s[48:49]
           s_waitcnt vmcnt(5)""")
    for i in range(9):
        k.e(f"v_lshlrev_b32 v{10+i}, 16, v{10+i}")
    k.e("v_add_f32 v20, v10, v11")
    for i in range(2, 9):
        k.e(f"v_add_f32 v20, v20, v{10+i}")
    k.allreduce("add", 20, 21)
    k.e(f"v_mul_f32 v20, {f2u(1.0/576)}, v20")
    for i in range(9):
        k.e(f"v_sub_f32 v{10+i}, v{10+i}, v20")
    k.e("v_mul_f32 v22, v10, v10")
    for i in range(1, 9):
        k.e(f"v_fmac_f32 v22, v{10+i}, v{10+i}")
    k.allreduce("add", 22, 21)
    k.e(f"""v_mov_b32 v23, {f2u(1e-5)}
            v_fmac_f32 v23, {f2u(1.0/576)}, v22
            v_rsq_f32 v23, v23
            v_add_u32 v24, s23, v2""")
    for i in range(9):
        k.e(f"v_mul_f32 v{10+i}, v{10+i}, v23")
        k.hilo(10+i, 25, 26, 27)
        k.e(f"""ds_write_b16 v24, v25 offset:{LN1 + 128*i}
                ds_write_b16 v24, v26 offset:{LN1 + 2304 + 128*i}""")
    k.e("s_waitcnt vmcnt(1) lgkmcnt(0)\ns_barrier")
    k.e(f"""v_and_b32 v8, 3, v1
            v_mul_u32_u24 v8, 1152, v8
            v_lshl_add_u32 v8, v4, 4, v8
            s_mul_i32 s40, s22, 144
            v_add_u32 v8, s40, v8""")
    for t in range(3):
        k.e(f"ds_read_b128 v[{28+4*t}:{31+4*t}], v8 offset:{LN1 + 64*t}")
    k.e(f"""v_lshrrev_b32 v9, 2, v3
            v_lshl_add_u32 v10, v4, 3, v9
            v_lshlrev_b32 v10, 8, v10
            v_and_b32 v11, 1, v4
            v_lshlrev_b32 v11, 3, v11
            v_lshl_or_b32 v11, v9, 1, v11
            v_bfe_u32 v12, v3, 1, 1
            s_lshl_b32 s46, s20, 2
            v_add_u32 v12, s46, v12
            v_and_b32 v13, 1, v3
            v_lshlrev_b32 v13, 3, v13
            s_mov_b32 s47, {WQ1}
            v_add3_u32 v10, v10, v13, s47
            v_lshlrev_b32 v19, 8, v9
            s_mov_b32 s47, {WQ1 + 16384}
            v_add3_u32 v19, v19, v13, s47
            v_lshlrev_b32 v18, 1, v9""")
    for nt in range(2):
        k.e(f"""v_add_u32 v14, {2*nt}, v12
                v_xor_b32 v15, v14, v11
                v_lshl_add_u32 v15, v15, 4, v10
                v_xor_b32 v16, v14, v18
                v_lshl_add_u32 v16, v16, 4, v19""")
        for t in range(2):
            d = 40 + 12*nt + 4*t
            k.e(f"""ds_read_b64_tr_b16 v[{d}:{d+1}], v15 offset:{8192*t}
                    ds_read_b64_tr_b16 v[{d+2}:{d+3}], v15 offset:{8192*t + 1024}""")
        d = 40 + 12*nt + 8
        k.e(f"""ds_read_b64_tr_b16 v[{d}:{d+1}], v16
                ds_read_b64_tr_b16 v[{d+2}:{d+3}], v16 offset:1024""")
    k.e("""v_cmp_gt_u32 vcc, 16, v1
           s_waitcnt lgkmcnt(0)
           v_cndmask_b32 v36, 0, v36, vcc
           v_cndmask_b32 v37, 0, v37, vcc
           v_cndmask_b32 v38, 0, v38, vcc
           v_cndmask_b32 v39, 0, v39, vcc
           s_nop 1""")
    for nt in range(2):
        acc = 64 + 4*nt
        for t in range(3):
            d = 40 + 12*nt + 4*t
            cin = "0" if t == 0 else f"v[{acc}:{acc+3}]"
            k.e(f"v_mfma_f32_16x16x32_bf16 v[{acc}:{acc+3}], v[{28+4*t}:{31+4*t}], v[{d}:{d+3}], {cin}")
    k.e(f"""s_lshl_b32 s46, s22, 15
            s_lshl_b32 s47, s21, 9
            s_add_u32 s46, s46, s47
            s_lshl_b32 s47, s20, 7
            s_add_u32 s46, s46, s47
            v_lshl_add_u32 v27, v3, 2, s46
            s_mov_b32 s47, 16384
            s_nop 4
            v_add_f32 v8, v64, v66
            v_add_f32 v9, v65, v67
            v_add_f32 v10, v68, v70
            v_add_f32 v11, v69, v71
            s_and_saveexec_b64 s[48:49], vcc
            buffer_store_dword v8, v27, s[36:39], 0 offen
            buffer_store_dword v9, v27, s[36:39], s47 offen
            buffer_store_dword v10, v27, s[36:39], 0 offen offset:64
            buffer_store_dword v11, v27, s[36:39], s47 offen offset:64""")
    k.lab(f"{k.name}_end")
    return k

def team_a(k):
    k.ldptr(16, "wuk"); k.ldptr(68, "wg"); k.ldptr(70, "wu"); k.ldptr(18, "wd")
    k.e("""s_and_b32 s21, s2, 31
           s_lshr_b32 s22, s2, 5
           v_and_b32 v3, 15, v1
           v_lshrrev_b32 v4, 4, v1
           v_mov_b32 v224, 0
           v_mov_b32 v225, 1
           s_waitcnt lgkmcnt(0)""")
    k.srd(32, 16, SZ["wuk"]); k.srd(36, 10, 262144, WS_QP)
    k.srd(56, 10, 65536, WS_QA); k.srd(60, 10, 8388608, WS_OP); k.srd(64, 10, 65536, WS_ML)
    k.srd(72, 68, SZ["wg"]); k.srd(76, 70, SZ["wu"]); k.srd(80, 10, 16384, WS_FL); k.srd(88, 18, SZ["wd"])
    if os.environ.get("EXP") == "1": lds_wait(k, 0, 4, 224, 226, 44, sleep=8)
    k.e("""v_lshlrev_b32 v252, 4, v1
           s_and_b32 s84, s2, 7
           s_lshl_b32 s84, s84, 10
           v_lshrrev_b32 v5, 7, v0
           v_and_b32 v6, 127, v0
           v_lshlrev_b32 v8, 14, v5
           v_lshl_add_u32 v8, v6, 2, v8
           s_lshl_b32 s46, s21, 9""")
    for j in range(8):
        k.e(f"buffer_load_dword v{10+j}, v8, s[36:39], s46 offen\ns_add_u32 s46, s46, 32768")
    k.e("""s_lshl_b32 s40, s22, 6
           s_lshl_b32 s41, s20, 4
           s_add_u32 s40, s40, s41
           v_add_u32 v7, s40, v3
           v_lshlrev_b32 v7, 13, v7
           v_lshl_add_u32 v7, v4, 4, v7
           s_lshl_b32 s41, s21, 8""")
    for t in range(4):
        k.e(f"buffer_load_dwordx4 v[{232+4*t}:{235+4*t}], v7, s[32:35], s41 offen offset:{64*t} {os.environ.get('UKNT', 'nt')}")
    k.e("""v_lshlrev_b32 v24, 8, v5
           v_lshl_add_u32 v24, v6, 1, v24
           s_waitcnt vmcnt(4)""")
    for j in range(1, 8):
        k.e(f"v_add_f32 v10, v10, v{10+j}")
    k.hilo(10, 25, 26, 27)
    k.e(f"""ds_write_b16 v24, v25 offset:{QQ_L}
            ds_write_b16 v24, v26 offset:{QQ_L + 512}""")
    lds_sync(k, 3, 4, 224, 225, 226, 44)
    k.e(f"""v_and_b32 v8, 3, v1
            v_lshlrev_b32 v8, 8, v8
            v_lshl_add_u32 v8, v4, 4, v8""")
    for t in range(4):
        k.e(f"ds_read_b128 v[{28+4*t}:{31+4*t}], v8 offset:{QQ_L + 64*t}")
    k.e("s_waitcnt vmcnt(0) lgkmcnt(0)")
    k.stamp(8)
    for t in range(4):
        cin = "0" if t == 0 else "v[64:67]"
        k.e(f"v_mfma_f32_16x16x32_bf16 v[64:67], v[{28+4*t}:{31+4*t}], v[{232+4*t}:{235+4*t}], {cin}")
    sc = f2u((128 ** -0.5) * LOG2E)
    k.e(f"""s_lshl_b32 s46, s22, 2
            s_add_u32 s46, s46, s20
            s_lshl_b32 s46, s46, 10
            s_lshl_b32 s47, s21, 4
            s_add_u32 s46, s46, s47
            v_lshrrev_b32 v12, 1, v1
            v_lshlrev_b32 v12, 15, v12
            v_and_b32 v13, 1, v1
            v_lshl_add_u32 v12, v13, 9, v12
            s_lshl_b32 s47, s20, 6
            v_lshl_add_u32 v13, v3, 1, s47
            v_lshl_add_u32 v14, v1, 4, s47
            v_add_f32 v10, v64, v66
            v_add_f32 v11, v65, v67
            v_mul_f32 v10, {sc}, v10
            v_mul_f32 v11, {sc}, v11
            v_cvt_pk_bf16_f32 v10, v10, v11
            ds_write_b16 v13, v10 offset:{QQ_L + 1024}
            ds_write_b16_d16_hi v13, v10 offset:{QQ_L + 1024 + 32}
            s_mov_b64 exec, 0xf
            ds_read_b128 v[16:19], v14 offset:{QQ_L + 1024}
            s_waitcnt lgkmcnt(0)
            buffer_store_dwordx4 v[16:19], v12, s[56:59], s46 offen sc1
            s_mov_b64 exec, -1""")
    publish_rep(k, 4, 80, 0, 224, 225, 226, 44)
    k.stamp(9)
    k.e(f"""v_and_b32 v2, 31, v1
            v_lshrrev_b32 v3, 5, v1
            s_lshr_b32 s21, s2, 7
            s_lshl_b32 s22, s21, 15
            v_lshlrev_b32 v5, 4, v1
            s_lshl_b32 s41, s20, 5
            v_and_b32 v6, 16, v2
            v_and_b32 v7, 3, v2
            v_lshl_add_u32 v6, v7, 2, v6
            v_bfe_u32 v7, v2, 2, 1
            v_lshl_add_u32 v6, v7, 1, v6
            v_bfe_u32 v7, v2, 3, 1
            v_add_u32 v6, v6, v7
            v_add_u32 v6, s41, v6
            v_mul_u32_u24 v6, {RS}, v6
            v_lshl_add_u32 v6, v3, 4, v6
            v_add_u32 v6, {CT}, v6
            """)
    single_poll(k, 13, 224, 225, 248, 44, 80, 84, slp=int(os.environ.get('SLP1', '3')))
    k.stamp(1)
    QF = 96
    for t in range(32):
        if t % 4 == 0 and t: k.e("s_add_u32 s22, s22, 4096")
        k.e(f"buffer_load_dwordx4 v[{QF+4*t}:{QF+3+4*t}], v5, s[56:59], s22 offen offset:{1024*(t%4)} {os.environ.get('QSC', 'sc1')}")
    lds_wait(k, 0, 4, 224, 226, 44)
    k.e("s_waitcnt vmcnt(0)")
    k.stamp(2)
    ACC = 16
    bufs = [32, 64]
    for i in range(8):
        k.e(f"ds_read_b128 v[{bufs[0]+4*i}:{bufs[0]+3+4*i}], v6 offset:{32*i}")
    for ci in range(4):
        if ci < 3:
            for i in range(8):
                b = bufs[(ci+1) % 2] + 4*i
                if b + 3 >= QF: raise Exception("reg overlap")
                k.e(f"ds_read_b128 v[{b}:{b+3}], v6 offset:{32*(8*(ci+1)+i)}")
            k.e("s_waitcnt lgkmcnt(8)")
        else:
            k.e("s_waitcnt lgkmcnt(0)")
        for i in range(8):
            t = 8*ci + i
            b = bufs[ci % 2] + 4*i
            cin = "0" if t == 0 else f"v[{ACC}:{ACC+15}]"
            k.e(f"v_mfma_f32_32x32x16_bf16 v[{ACC}:{ACC+15}], v[{b}:{b+3}], v[{QF+4*t}:{QF+3+4*t}], {cin}")
    k.e("s_nop 15")
    k.e(f"v_max3_f32 v8, v{ACC}, v{ACC+1}, v{ACC+2}")
    for i in range(3, 15, 2):
        k.e(f"v_max3_f32 v8, v8, v{ACC+i}, v{ACC+i+1}")
    k.e(f"""v_max_f32 v8, v8, v{ACC+15}
            v_mov_b32 v9, v8
            s_nop 1
            v_permlane32_swap_b32 v8, v9
            s_nop 0
            v_max_f32 v8, v8, v9
            s_lshl_b32 s43, s20, 2
            v_lshl_add_u32 v10, v2, 4, s43
            v_lshlrev_b32 v11, 4, v2
            ds_write_b32 v10, v8 offset:{MX}""")
    lds_sync(k, 5, 4, 224, 225, 226, 44)
    k.e(f"""ds_read_b128 v[12:15], v11 offset:{MX}
            s_waitcnt lgkmcnt(0)
            v_max3_f32 v8, v12, v13, v14
            v_max_f32 v8, v8, v15""")
    for i in range(16):
        k.e(f"v_sub_f32 v{ACC+i}, v{ACC+i}, v8")
    for i in range(16):
        k.e(f"v_exp_f32 v{ACC+i}, v{ACC+i}")
    k.e(f"s_nop 0\nv_add_f32 v9, v{ACC}, v{ACC+1}")
    for i in range(2, 16):
        k.e(f"v_add_f32 v9, v9, v{ACC+i}")
    for i in range(8):
        k.e(f"v_cvt_pk_bf16_f32 v{32+i}, v{ACC+2*i}, v{ACC+2*i+1}")
    k.e(f"""v_mov_b32 v12, v9
            s_lshl_b32 s44, s20, 11
            v_lshl_add_u32 v13, v1, 4, s44
            v_permlane32_swap_b32 v9, v12
            s_nop 0
            v_add_f32 v9, v9, v12
            ds_write_b128 v13, v[32:35] offset:{PX}
            ds_write_b128 v13, v[36:39] offset:{PX+1024}
            ds_write_b32 v10, v9 offset:{SX}""")
    lds_sync(k, 6, 4, 224, 225, 226, 44)
    k.stamp(3)
    PF = 32
    for s in range(8):
        k.e(f"ds_read_b128 v[{PF+4*s}:{PF+3+4*s}], v5 offset:{PX + 1024*s}")
    k.e(f"ds_read_b128 v[12:15], v11 offset:{SX}")
    k.e(f"""v_bfe_u32 v66, v1, 2, 2
            v_lshlrev_b32 v66, 2, v66
            v_lshl_add_u32 v66, v3, 1, v66
            v_mul_u32_u24 v66, {RS}, v66
            v_bfe_u32 v67, v1, 4, 1
            v_lshlrev_b32 v67, 5, v67
            v_and_b32 v7, 3, v1
            v_lshl_add_u32 v67, v7, 3, v67
            s_lshl_b32 s45, s20, 8
            s_add_u32 s45, s45, {CT}
            v_add3_u32 v64, v66, v67, s45
            v_add_u32 v65, {64*RS}, v64""")
    OACC = 96
    VB = [160, 192]
    steps = [(T, s) for s in range(8) for T in range(4)]
    def trread(dst, T, s):
        wq, u = s >> 1, s & 1
        base = 64 if wq < 2 else 65
        off = (32*(wq & 1) + 16*u) * RS + 64*T
        k.e(f"ds_read_b64_tr_b16 v[{dst}:{dst+1}], v{base} offset:{off}")
        k.e(f"ds_read_b64_tr_b16 v[{dst+2}:{dst+3}], v{base} offset:{off+RS}")
    CH = 4
    chunks = [steps[i:i+CH] for i in range(0, 32, CH)]
    for i, (T, s) in enumerate(chunks[0]):
        trread(VB[0] + 4*i, T, s)
    for ci, ch in enumerate(chunks):
        if ci + 1 < len(chunks):
            for i, (T, s) in enumerate(chunks[ci+1]):
                trread(VB[(ci+1) % 2] + 4*i, T, s)
            k.e(f"s_waitcnt lgkmcnt({2*CH})")
        else:
            k.e("s_waitcnt lgkmcnt(0)")
        for i, (T, s) in enumerate(ch):
            a = VB[ci % 2] + 4*i
            o = OACC + 16*T
            cin = "0" if s == 0 else f"v[{o}:{o+15}]"
            k.e(f"v_mfma_f32_32x32x16_bf16 v[{o}:{o+15}], v[{a}:{a+3}], v[{PF+4*s}:{PF+3+4*s}], {cin}")
    k.stamp(4)
    Lk = k.newlab("skipml")
    k.e(f"""v_add_f32 v12, v12, v13
            v_add_f32 v14, v14, v15
            v_add_f32 v9, v12, v14
            s_and_b32 s46, s2, 127
            s_lshl_b32 s47, s21, 12
            s_add_u32 s46, s46, s47
            s_lshl_b32 s46, s46, 3
            v_lshl_add_u32 v10, v2, 10, s46
            v_mov_b32 v228, v10""")
    k.e(f"""s_lshl_b32 s46, s2, 15
            s_lshl_b32 s47, s20, 8
            s_add_u32 s46, s46, s47
            v_mul_u32_u24 v10, {RS}, v2
            v_lshl_add_u32 v10, v3, 3, v10
            v_add_u32 v10, s45, v10
            v_lshrrev_b32 v11, 4, v1
            v_and_b32 v12, 15, v1
            v_mul_u32_u24 v13, {RS}, v11
            v_lshl_add_u32 v13, v12, 4, v13
            v_add_u32 v13, s45, v13
            v_lshlrev_b32 v14, 10, v11
            v_lshl_add_u32 v14, v12, 4, v14""")
    for T in range(4):
        o = OACC + 16*T
        for a in range(4):
            d = 32 + 2*(4*T + a)
            k.e(f"""v_cvt_pk_bf16_f32 v{d}, v{o+4*a}, v{o+4*a+1}
                    v_cvt_pk_bf16_f32 v{d+1}, v{o+4*a+2}, v{o+4*a+3}
                    ds_write_b64 v10, v[{d}:{d+1}] offset:{64*T + 16*a}""")
    for n in range(8):
        k.e(f"ds_read_b128 v[{160+4*n}:{163+4*n}], v13 offset:{4*RS*n}")
    for n in range(8):
        k.e(f"""s_waitcnt lgkmcnt({7-n})
                buffer_store_dwordx4 v[{160+4*n}:{163+4*n}], v14, s[60:63], s46 offen sc1
                s_add_u32 s46, s46, 4096""")
    k.e("s_waitcnt vmcnt(0)")
    k.stamp(5)
    k.sanitize([8, 9], 229)
    Lp = k.newlab("pubml")
    k.e(f"""s_waitcnt vmcnt(0)
            s_mov_b64 exec, 1
            ds_add_rtn_u32 v226, v224, v225 offset:{SYNC + 28}
            s_waitcnt lgkmcnt(0)
            v_readfirstlane_b32 s44, v226
            s_mov_b32 exec_lo, -1
            s_cmp_lg_u32 s44, 3
            s_cbranch_scc1 {Lp}
            buffer_store_dwordx2 v[8:9], v228, s[64:67], 0 offen sc1""")
    k.lab(Lp)
    k.e("s_mov_b64 exec, -1")
    k.e(f"s_cmp_ge_u32 s2, 144\ns_cbranch_scc1 {k.name}_end")
    lds_wait(k, int(os.environ.get("GUW", "10")), 4, 224, 226, 44, sleep=2)
    dma64_off(k, 8, 1, 10, 11, 9, 9216)
    k.e(f"""s_and_b32 s85, s2, 7
            s_lshl_b32 s85, s85, 1
            s_bfe_u32 s45, s2, 0x10003
            s_add_u32 s85, s85, s45
            s_andn2_b32 s45, s2, 15
            s_add_u32 s85, s85, s45
            s_mul_i32 s41, s20, 9*16*9216
            s_lshl_b32 s42, s85, 6
            s_add_u32 s41, s41, s42
            s_mul_i32 s43, s20, 9216
            s_add_u32 s43, s43, {BIG_L}
            s_add_u32 s44, s43, 36864""")
    for mi in range(9):
        GT = int(os.environ.get("GUT", "3"))
        if GT and mi >= GT: k.e(f"s_waitcnt vmcnt({2*GT-2})")
        k.e(f"""s_mov_b32 m0, s43
                s_add_u32 s43, s43, 1024
                buffer_load_dwordx4 v8, s[72:75], s41 offen {GUNT} lds
                s_mov_b32 m0, s44
                s_add_u32 s44, s44, 1024
                buffer_load_dwordx4 v8, s[76:79], s41 offen {GUNT} lds
                s_add_u32 s41, s41, {16*9216}""")
    if os.environ.get("DNA", "0") == "1":
        lds_wait(k, 11, 4, 224, 226, 44, sleep=1)
        k.e(f"""v_lshlrev_b32 v9, 4, v1
                s_mul_i32 s41, s85, 36864
                s_mul_i32 s42, s20, 9216
                s_add_u32 s41, s41, s42
                s_add_u32 s43, s42, {OST_L}""")
        for mi in range(9):
            if mi >= 2: k.e("s_waitcnt vmcnt(4)")
            k.e(f"""s_mov_b32 m0, s43
                    s_add_u32 s43, s43, 1024
                    buffer_load_dwordx4 v9, s[88:91], s41 offen nt lds
                    s_add_u32 s41, s41, 1024""")
    k.e(f"s_waitcnt vmcnt(0)\ns_branch {k.name}_end")

def dma64_off(k, vA, lane, t1, t2, t3, rowstride):
    k.e(f"""v_lshrrev_b32 v{t1}, 2, v{lane}
            v_and_b32 v{t2}, 3, v{lane}
            v_bfe_u32 v{t3}, v{lane}, 5, 1
            v_lshlrev_b32 v{t3}, 1, v{t3}
            v_xor_b32 v{t2}, v{t2}, v{t3}
            v_mul_u32_u24 v{vA}, {rowstride}, v{t1}
            v_lshl_add_u32 v{vA}, v{t2}, 4, v{vA}""")

def tr64_base(k, dst, v3, v4, nt_sreg, t1, t2):
    k.e(f"""v_lshrrev_b32 v{t1}, 2, v{v3}
            v_lshl_add_u32 v{t1}, v{v4}, 3, v{t1}
            v_lshlrev_b32 v{t1}, 6, v{t1}
            v_bfe_u32 v{t2}, v{v3}, 1, 1
            v_add_u32 v{t2}, s{nt_sreg}, v{t2}
            v_and_b32 v{dst}, 1, v{v4}
            v_lshlrev_b32 v{dst}, 1, v{dst}
            v_xor_b32 v{t2}, v{t2}, v{dst}
            v_lshl_add_u32 v{t1}, v{t2}, 4, v{t1}
            v_and_b32 v{dst}, 1, v{v3}
            v_lshl_add_u32 v{dst}, v{dst}, 3, v{t1}""")

def poll_gather(k, loads, regs, scnt, mask_s=None):
    L = k.newlab("poll"); Ld = k.newlab("pdone")
    k.e(f"s_mov_b32 s{scnt}, 0")
    if len(loads) > 1 and os.environ.get("PRE", "1") == "1":
        L1, L1d = k.newlab("pre"), k.newlab("pred")
        n1 = len(regs) // len(loads)
        r1 = regs[-n1:]
        k.lab(L1)
        k.e(loads[-1])
        k.e(f"""s_waitcnt vmcnt(0)
                v_max_u32 v7, v{r1[0]}, v{r1[1]}
                v_max3_u32 v7, v7, v{r1[2]}, v{r1[3]}
                v_cmp_eq_u32 vcc, -1, v7
                s_add_u32 s{scnt}, s{scnt}, 1
                s_cmp_gt_u32 s{scnt}, {SPIN_MAX}
                s_cbranch_scc1 {L1d}
                s_cbranch_vccz {L1d}
                s_sleep {os.environ.get('PSLP', '4')}
                s_branch {L1}""")
        k.lab(L1d)
    k.lab(L)
    for l in loads: k.e(l)
    k.e("s_waitcnt vmcnt(0)")
    k.e(f"v_max_u32 v7, v{regs[0]}, v{regs[1]}")
    for i in range(2, len(regs) - 1, 2):
        k.e(f"v_max3_u32 v7, v7, v{regs[i]}, v{regs[i+1]}")
    if len(regs) % 2: k.e(f"v_max_u32 v7, v7, v{regs[-1]}")
    k.e(f"""v_cmp_eq_u32 vcc, -1, v7
            s_add_u32 s{scnt}, s{scnt}, 1
            s_cmp_gt_u32 s{scnt}, {SPIN_MAX}
            s_cbranch_scc1 {Ld}
            s_cbranch_vccz {Ld}
            s_sleep {os.environ.get('GSLP', '4')}
            s_branch {L}""")
    k.lab(Ld)

def team_b(k):
    k.e("""v_subrev_u32 v0, 0x100, v0
           s_sub_u32 s20, s20, 4
           v_and_b32 v3, 15, v1
           v_lshrrev_b32 v4, 4, v1
           s_and_b32 s21, s2, 31
           s_lshr_b32 s22, s2, 5
           v_mov_b32 v124, 0
           v_mov_b32 v125, 1""")
    k.ldptr(12, "wuv"); k.ldptr(14, "wo"); k.ldptr(64, "wd"); k.ldptr(66, "x"); k.ldptr(68, "out")
    k.e("s_waitcnt lgkmcnt(0)")
    k.srd(24, 12, SZ["wuv"]); k.srd(28, 10, 65536, WS_ML); k.srd(32, 10, 8388608, WS_OP); k.srd(36, 10, 262144, WS_CTX)
    k.srd(52, 10, 16384, WS_FL); k.srd(56, 10, 8*36864, WS_OUTP); k.srd(60, 10, 663552, WS_DNP)
    k.srd(72, 14, SZ["wo"]); k.srd(76, 4, SZ["ckv"]); k.srd(84, 64, SZ["wd"])
    k.srd(88, 66, SZ["x"]); k.srd(92, 68, SZ["out"])
    k.e("""s_sub_u32 s47, s2, 144
           s_mul_i32 s48, s47, 7282
           s_lshr_b32 s48, s48, 16
           s_mul_i32 s49, s48, 9
           s_sub_u32 s49, s47, s49""")
    k.e(f"""v_lshlrev_b32 v9, 4, v1
            s_lshl_b32 s40, s2, 7
            s_lshl_b32 s41, s20, 5
            s_add_u32 s40, s40, s41
            s_lshl_b32 s40, s40, 10
            s_mul_i32 s42, s41, {RS}
            s_add_u32 s42, s42, {CT}""")
    THR = int(os.environ.get("THR", "3")); DLY = int(os.environ.get("DLY", "0"))
    if DLY: lds_wait(k, 1, 1, 124, 126, 46, sleep=1)
    for r in range(32):
        R1 = int(os.environ.get("R1", "12")); THR2 = int(os.environ.get("THR2", "0"))
        th = THR if r < R1 else THR2
        if th and r >= th: k.e(f"s_waitcnt vmcnt({th-1})")
        k.e(f"""s_mov_b32 m0, s42
                s_add_u32 s42, s42, {RS}
                buffer_load_dwordx4 v9, s[76:79], s40 offen nt lds
                s_add_u32 s40, s40, 1024""")
    k.e(f"""v_lshlrev_b32 v13, 1, v4
            v_xor_b32 v13, v13, v3
            v_lshlrev_b32 v13, 4, v13
            v_lshl_add_u32 v13, v4, 13, v13
            v_xor_b32 v14, 0x80, v13
            s_lshl_b32 s44, s22, 6
            s_lshl_b32 s45, s20, 4
            s_add_u32 s44, s44, s45
            s_lshl_b32 s44, s44, 13
            s_lshl_b32 s45, s21, 8
            s_add_u32 s44, s44, s45
            s_waitcnt vmcnt(0)
            s_mov_b64 exec, 1
            ds_add_u32 v124, v125 offset:{SYNC}
            s_mov_b64 exec, -1""")
    k.stamp(1)
    for mi in range(4):
        k.e(f"""buffer_load_dwordx4 v[{128+4*mi}:{131+4*mi}], v{14 if mi & 2 else 13}, s[24:27], s44 offen nt
                s_add_u32 s44, s44, 32768""")
    LW = k.newlab("ldW")
    k.e(f"""s_cmp_lt_u32 s2, 144
            s_cbranch_scc1 {LW}
            s_cmp_ge_u32 s2, 216
            s_cbranch_scc1 {LW}""")
    k.e("""v_lshrrev_b32 v10, 3, v1
           v_and_b32 v11, 7, v1
           v_and_b32 v12, 2, v10
           v_xor_b32 v11, v11, v12
           v_mul_u32_u24 v8, 1152, v10
           v_lshl_add_u32 v8, v11, 4, v8
           v_xor_b32 v11, 4, v11
           v_mul_u32_u24 v7, 1152, v10
           v_lshl_add_u32 v7, v11, 4, v7
           s_lshl_b32 s41, s48, 9
           s_lshl_b32 s42, s20, 7
           s_add_u32 s41, s41, s42
           s_mul_i32 s41, s41, 1152
           s_lshl_b32 s42, s49, 7
           s_add_u32 s41, s41, s42""")
    for mi in range(16):
        k.e(f"""buffer_load_dwordx4 v[{144+4*mi}:{147+4*mi}], v{7 if mi & 1 else 8}, s[72:75], s41 offen nt
                s_add_u32 s41, s41, {8*1152}""")
    k.lab(LW)
    k.stamp(2)
    lds_wait(k, 7, 4, 124, 126, 46, sleep=2)
    k.stamp(3)
    k.e(f"""s_waitcnt vmcnt(0)
            s_lshl_b32 s41, s20, 12
            s_add_u32 s41, s41, {WUV_L}
            v_add_u32 v10, s41, v9""")
    for mi in range(4):
        k.e(f"ds_write_b128 v10, v[{128+4*mi}:{131+4*mi}] offset:{1024*mi}")
    LW2 = k.newlab("stW")
    k.e(f"""s_cmp_lt_u32 s2, 144
            s_cbranch_scc1 {LW2}
            s_cmp_ge_u32 s2, 216
            s_cbranch_scc1 {LW2}
            s_lshl_b32 s41, s20, 14
            s_add_u32 s41, s41, {BIG_L}
            v_add_u32 v10, s41, v9""")
    for mi in range(16):
        k.e(f"ds_write_b128 v10, v[{144+4*mi}:{147+4*mi}] offset:{1024*mi}")
    k.lab(LW2)
    k.stamp(5)
    k.e("""v_lshrrev_b32 v5, 7, v0
           v_and_b32 v6, 127, v0
           v_lshlrev_b32 v5, 12, v5
           v_add_u32 v5, v5, v6
           s_lshl_b32 s40, s21, 7
           v_add_u32 v5, s40, v5
           v_lshlrev_b32 v5, 3, v5""")
    poll_gather(k, ["buffer_load_dwordx2 v[8:9], v5, s[28:31], 0 offen sc1"], [8, 9], 46)
    k.stamp(6)
    k.e(f"""v_lshrrev_b32 v10, 3, v1
            v_and_b32 v11, 7, v1
            v_and_b32 v12, 2, v10
            v_xor_b32 v11, v11, v12
            v_lshlrev_b32 v11, 4, v11
            v_lshl_add_u32 v11, v10, 15, v11
            v_xor_b32 v12, 64, v11
            s_lshl_b32 s41, s21, 10
            s_lshl_b32 s42, s22, 7
            s_add_u32 s41, s41, s42
            s_lshl_b32 s42, s20, 21
            s_add_u32 s41, s41, s42
            s_lshl_b32 s43, s20, 13
            s_add_u32 s43, s43, {OST_L}""")
    for mi in range(8):
        k.e(f"""s_mov_b32 m0, s43
                s_add_u32 s43, s43, 1024
                buffer_load_dwordx4 v{12 if mi & 1 else 11}, s[32:35], s41 offen sc1 lds
                s_add_u32 s41, s41, 262144""")
    k.e("v_mov_b32 v15, v8")
    k.allreduce("max", 15, 16)
    k.e(f"""s_lshl_b32 s46, s20, 2
            v_mov_b32 v17, s46
            ds_write_b32 v17, v15 offset:{D_R}
            s_waitcnt lgkmcnt(0)
            """)
    lds_sync(k, 8, 4, 124, 125, 126, 46)
    k.e(f"""
            s_and_b32 s47, s20, 2
            s_lshl_b32 s47, s47, 2
            v_mov_b32 v18, s47
            ds_read_b64 v[20:21], v18 offset:{D_R}
            s_waitcnt lgkmcnt(0)
            v_max_f32 v15, v20, v21
            v_sub_f32 v8, v8, v15
            v_exp_f32 v8, v8
            s_nop 0
            v_mul_f32 v19, v8, v9""")
    k.allreduce("add", 19, 16)
    k.e(f"""ds_write_b32 v17, v19 offset:{D_R+16}
            s_waitcnt lgkmcnt(0)
            """)
    lds_sync(k, 9, 4, 124, 125, 126, 46)
    k.e(f"""
            ds_read_b64 v[20:21], v18 offset:{D_R+16}
            s_waitcnt lgkmcnt(0)
            v_add_f32 v19, v20, v21
            v_rcp_f32 v19, v19
            s_nop 0
            v_mul_f32 v8, v8, v19""")
    k.hilo(8, 22, 23, 24)
    k.e(f"""v_lshrrev_b32 v25, 7, v0
            v_lshlrev_b32 v25, 9, v25
            v_lshl_add_u32 v25, v6, 1, v25
            ds_write_b16 v25, v22 offset:{D_A}
            ds_write_b16 v25, v23 offset:{D_A+256}
            s_waitcnt vmcnt(0) lgkmcnt(0)
            """)
    lds_sync(k, 10, 4, 124, 125, 126, 46)
    k.e(f"""""")
    k.stamp(7)
    k.e(f"""v_and_b32 v26, 1, v1
            v_lshlrev_b32 v26, 8, v26
            v_lshl_add_u32 v26, v4, 4, v26
            s_lshr_b32 s46, s20, 1
            s_lshl_b32 s47, s46, 9
            v_add_u32 v26, s47, v26""")
    for t in range(4):
        k.e(f"ds_read_b128 v[{28+4*t}:{31+4*t}], v26 offset:{D_A + 64*t}")
    k.e(f"""v_lshrrev_b32 v9, 2, v3
            v_lshl_add_u32 v10, v4, 3, v9
            v_lshlrev_b32 v10, 7, v10
            v_and_b32 v11, 2, v9
            v_and_b32 v12, 1, v4
            v_lshl_or_b32 v11, v12, 2, v11
            v_bfe_u32 v12, v3, 1, 1
            s_and_b32 s47, s20, 1
            s_lshl_b32 s47, s47, 2
            v_add_u32 v12, s47, v12
            v_and_b32 v13, 1, v3
            v_lshl_add_u32 v10, v13, 3, v10
            s_lshl_b32 s47, s46, 14
            s_add_u32 s47, s47, {OST_L}
            v_add_u32 v10, s47, v10""")
    for nt in range(2):
        k.e(f"""v_add_u32 v14, {2*nt}, v12
                v_xor_b32 v14, v14, v11
                v_lshl_add_u32 v{15+nt}, v14, 4, v10""")
    for nt in range(2):
        for t in range(4):
            d = 44 + 16*nt + 4*t
            k.e(f"""ds_read_b64_tr_b16 v[{d}:{d+1}], v{15+nt} offset:{4096*t}
                    ds_read_b64_tr_b16 v[{d+2}:{d+3}], v{15+nt} offset:{4096*t + 512}""")
    k.e("s_waitcnt lgkmcnt(0)")
    for nt in range(2):
        for t in range(4):
            d = 44 + 16*nt + 4*t
            acc = 20 if nt == 0 else 76
            cin = "0" if t == 0 else f"v[{acc}:{acc+3}]"
            k.e(f"v_mfma_f32_16x16x32_bf16 v[{acc}:{acc+3}], v[{28+4*t}:{31+4*t}], v[{d}:{d+3}], {cin}")
    k.e(f"""s_and_b32 s47, s20, 1
            s_lshl_b32 s47, s47, 6
            s_lshl_b32 s50, s46, 7
            s_add_u32 s47, s47, s50
            v_lshl_add_u32 v27, v3, 1, s47
            s_nop 7""")
    for nt in range(2):
        acc = 20 if nt == 0 else 76
        k.e(f"v_add_f32 v8, v{acc}, v{acc+1}")
        k.hilo(8, 9, 24, 25)
        k.e(f"""ds_write_b16 v27, v9 offset:{D_A2 + 32*nt}
                ds_write_b16 v27, v24 offset:{D_A2 + 256 + 32*nt}""")
    k.e("s_waitcnt lgkmcnt(0)")
    lds_sync(k, 11, 4, 124, 125, 126, 46)
    k.e(f"""v_and_b32 v8, 3, v1
            v_lshlrev_b32 v8, 7, v8
            v_lshl_add_u32 v8, v4, 4, v8
            ds_read_b128 v[28:31], v8 offset:{D_A2}
            ds_read_b128 v[32:35], v8 offset:{D_A2+64}""")
    k.e(f"""v_lshrrev_b32 v9, 2, v3
            v_lshl_add_u32 v10, v4, 3, v9
            v_lshlrev_b32 v10, 8, v10
            v_and_b32 v11, 1, v4
            v_lshlrev_b32 v11, 3, v11
            v_lshl_or_b32 v11, v9, 1, v11
            v_bfe_u32 v12, v3, 1, 1
            s_lshl_b32 s47, s20, 2
            v_add_u32 v12, s47, v12
            v_and_b32 v13, 1, v3
            v_lshl_add_u32 v10, v13, 3, v10""")
    for nt in range(2):
        k.e(f"""v_add_u32 v14, {2*nt}, v12
                v_xor_b32 v14, v14, v11
                v_lshl_add_u32 v{15+nt}, v14, 4, v10""")
    for nt in range(2):
        for t in range(2):
            d = 44 + 8*nt + 4*t
            k.e(f"""ds_read_b64_tr_b16 v[{d}:{d+1}], v{15+nt} offset:{WUV_L + 8192*t}
                    ds_read_b64_tr_b16 v[{d+2}:{d+3}], v{15+nt} offset:{WUV_L + 8192*t + 1024}""")
    k.e("s_waitcnt lgkmcnt(0)")
    for nt in range(2):
        acc = 20 if nt == 0 else 76
        for t in range(2):
            d = 44 + 8*nt + 4*t
            cin = "0" if t == 0 else f"v[{acc}:{acc+3}]"
            k.e(f"v_mfma_f32_16x16x32_bf16 v[{acc}:{acc+3}], v[{28+4*t}:{31+4*t}], v[{d}:{d+3}], {cin}")
    k.e(f"""s_lshl_b32 s47, s22, 15
            s_lshl_b32 s50, s21, 9
            s_add_u32 s47, s47, s50
            s_lshl_b32 s50, s20, 7
            s_add_u32 s47, s47, s50
            v_lshl_add_u32 v27, v3, 2, s47
            s_nop 7
            v_add_f32 v8, v20, v22
            v_add_f32 v9, v21, v23
            v_add_f32 v10, v76, v78
            v_add_f32 v11, v77, v79""")
    k.sanitize([8, 9, 10, 11], 12)
    k.e(f"""s_mov_b32 s47, 16384
            v_cmp_gt_u32 vcc, 16, v1
            s_and_saveexec_b64 s[50:51], vcc
            buffer_store_dword v8, v27, s[36:39], 0 offen sc1
            buffer_store_dword v9, v27, s[36:39], s47 offen sc1
            buffer_store_dword v10, v27, s[36:39], 0 offen offset:64 sc1
            buffer_store_dword v11, v27, s[36:39], s47 offen offset:64 sc1
            s_mov_b64 exec, s[50:51]""")
    k.stamp(8)
    LPE, LPG = k.newlab("phE"), k.newlab("phG")
    k.e(f"s_cmp_ge_u32 s2, 144\ns_cbranch_scc1 {LPE}")
    phase_f(k)
    k.e(f"s_branch {k.name}_end")
    k.lab(LPE)
    k.e(f"s_cmp_ge_u32 s2, 216\ns_cbranch_scc1 {LPG}")
    phase_e(k)
    k.e(f"s_branch {k.name}_end")
    k.lab(LPG)
    k.e(f"s_cmp_ge_u32 s2, 234\ns_cbranch_scc1 {k.name}_end")
    phase_g(k)

def phase_e(k):
    A_LDS = T_A
    k.e("""v_lshrrev_b32 v5, 7, v0
           v_and_b32 v6, 127, v0
           v_lshlrev_b32 v8, 14, v5
           v_lshl_add_u32 v8, v6, 4, v8
           s_lshl_b32 s40, s48, 11""")
    loads = []
    for j in range(8):
        loads.append(f"s_add_u32 s41, s40, {32768*j}\nbuffer_load_dwordx4 v[{20+4*j}:{23+4*j}], v8, s[36:39], s41 offen sc1")
    poll_gather(k, loads, list(range(20, 52)), 46)
    k.stamp(9)
    for j in range(1, 8):
        for e in range(4):
            k.e(f"v_add_f32 v{20+e}, v{20+e}, v{20+4*j+e}")
    k.e("""v_cvt_pk_bf16_f32 v24, v20, v21
           v_cvt_pk_bf16_f32 v25, v22, v23
           v_lshlrev_b32 v26, 16, v24
           v_and_b32 v27, 0xffff0000, v24
           v_lshlrev_b32 v28, 16, v25
           v_and_b32 v29, 0xffff0000, v25
           v_sub_f32 v20, v20, v26
           v_sub_f32 v21, v21, v27
           v_sub_f32 v22, v22, v28
           v_sub_f32 v23, v23, v29
           v_cvt_pk_bf16_f32 v26, v20, v21
           v_cvt_pk_bf16_f32 v27, v22, v23
           v_lshlrev_b32 v12, 10, v5
           v_lshl_add_u32 v12, v6, 3, v12""")
    k.e(f"""ds_write_b64 v12, v[24:25] offset:{A_LDS}
            ds_write_b64 v12, v[26:27] offset:{A_LDS+2048}
            s_waitcnt lgkmcnt(0)
            s_barrier""")
    k.e("""v_and_b32 v8, 3, v1
           v_lshlrev_b32 v8, 10, v8
           v_lshl_add_u32 v8, v4, 4, v8""")
    for t in range(16):
        k.e(f"ds_read_b128 v[{20+4*t}:{23+4*t}], v8 offset:{A_LDS + 64*t}")
    k.e(f"""v_lshrrev_b32 v9, 2, v3
            v_lshl_add_u32 v10, v4, 3, v9
            v_lshlrev_b32 v10, 7, v10
            v_and_b32 v11, 2, v9
            v_and_b32 v12, 1, v4
            v_lshl_or_b32 v11, v12, 2, v11
            v_bfe_u32 v12, v3, 1, 1
            s_lshl_b32 s47, s20, 1
            v_add_u32 v12, s47, v12
            v_and_b32 v13, 1, v3
            v_lshl_add_u32 v10, v13, 3, v10
            v_xor_b32 v12, v12, v11
            v_lshl_add_u32 v15, v12, 4, v10
            v_add_u32 v15, {BIG_L}, v15""")
    for c in range(2):
        for i in range(8):
            t = 8*c + i
            d = 88 + 4*i
            k.e(f"""ds_read_b64_tr_b16 v[{d}:{d+1}], v15 offset:{4096*t}
                    ds_read_b64_tr_b16 v[{d+2}:{d+3}], v15 offset:{4096*t + 512}""")
        k.e("s_waitcnt lgkmcnt(0)")
        for i in range(8):
            t = 8*c + i
            d = 88 + 4*i
            cin = "0" if t == 0 else "v[120:123]"
            k.e(f"v_mfma_f32_16x16x32_bf16 v[120:123], v[{20+4*t}:{23+4*t}], v[{d}:{d+3}], {cin}")
        k.e("s_nop 3")
    k.e(f"""s_mul_i32 s45, s48, 4608
            s_lshl_b32 s46, s49, 8
            s_add_u32 s45, s45, s46
            s_lshl_b32 s46, s20, 6
            s_add_u32 s45, s45, s46
            v_lshl_add_u32 v12, v3, 2, s45
            s_nop 7
            v_add_f32 v8, v120, v122
            v_add_f32 v9, v121, v123""")
    k.sanitize([8, 9], 10)
    k.e(f"""v_cmp_gt_u32 vcc, 16, v1
            s_and_saveexec_b64 s[50:51], vcc
            s_mov_b32 s45, 0""")
    for r in range(8):
        k.e("""buffer_store_dword v8, v12, s[56:59], s45 offen sc1
               buffer_store_dword v9, v12, s[56:59], s45 offen offset:2304 sc1
               s_add_u32 s45, s45, 36864""")

def phase_f(k):
    A_LDS, R_LDS, GU_LDS, A2_LDS = T_A, T_A + 4608, T_A + 4672, T_A + 5184
    D_LDS = OST_L
    if os.environ.get("DNA", "0") != "1":
        k.e("s_barrier")
        k.e(f"""s_and_b32 s83, s2, 7
                s_lshl_b32 s83, s83, 1
                s_bfe_u32 s45, s2, 0x10003
                s_add_u32 s83, s83, s45
                s_andn2_b32 s45, s2, 15
                s_add_u32 s83, s83, s45
                v_lshlrev_b32 v9, 4, v1
                s_mul_i32 s41, s83, 36864
                s_mul_i32 s42, s20, 9216
                s_add_u32 s41, s41, s42
                s_add_u32 s43, s42, {D_LDS}""")
        for mi in range(9):
            k.e(f"""s_mov_b32 m0, s43
                    s_add_u32 s43, s43, 1024
                    buffer_load_dwordx4 v9, s[84:87], s41 offen nt lds
                    s_add_u32 s41, s41, 1024""")
    k.stamp(10)
    k.e("""v_lshlrev_b32 v5, 4, v0
           v_mov_b32 v6, 0x7fffffff
           v_cmp_gt_u32 vcc, 144, v0
           s_nop 1
           v_cndmask_b32 v5, v6, v5, vcc
           v_lshrrev_b32 v8, 1, v5
           v_cndmask_b32 v8, v6, v8, vcc
           s_mov_b64 s[64:65], vcc""")
    k.e("""buffer_load_dwordx2 v[84:85], v8, s[88:91], 0 offen
           buffer_load_dwordx2 v[86:87], v8, s[88:91], 0 offen offset:1152""")
    k.e("s_and_b32 s41, s2, 7\ns_mul_i32 s41, s41, 36864")
    loads = []
    for ks in range(8):
        for b in range(2):
            r = 20 + 8*ks + 4*b
            loads.append(f"s_add_u32 s40, s41, {4608*ks}\nbuffer_load_dwordx4 v[{r}:{r+3}], v5, s[56:59], s40 offen offset:{2304*b} sc1")
    poll_gather(k, loads, list(range(20, 84)), 46)
    k.stamp(9)
    for ks in range(1, 8):
        for e in range(8):
            k.e(f"v_add_f32 v{20+e}, v{20+e}, v{20+8*ks+e}")
    for b in range(2):
        k.e(f"""v_lshlrev_b32 v12, 16, v{84+2*b}
                v_and_b32 v13, 0xffff0000, v{84+2*b}
                v_lshlrev_b32 v14, 16, v{85+2*b}
                v_and_b32 v15, 0xffff0000, v{85+2*b}
                v_add_f32 v{20+4*b}, v{20+4*b}, v12
                v_add_f32 v{21+4*b}, v{21+4*b}, v13
                v_add_f32 v{22+4*b}, v{22+4*b}, v14
                v_add_f32 v{23+4*b}, v{23+4*b}, v15""")
    k.e(f"""v_add_u32 v16, {BIG_L + 73728}, v5
            s_mov_b64 s[66:67], exec
            s_mov_b64 exec, s[64:65]
            ds_write_b128 v16, v[20:23]
            ds_write_b128 v16, v[24:27] offset:2304
            s_mov_b64 exec, s[66:67]""")
    k.e("""v_add_f32 v28, v20, v21
           v_add_f32 v29, v22, v23
           v_add_f32 v28, v28, v29
           v_add_f32 v29, v24, v25
           v_add_f32 v30, v26, v27
           v_add_f32 v29, v29, v30""")
    k.allreduce("add", 28, 31)
    k.allreduce("add", 29, 31)
    k.e(f"""s_lshl_b32 s46, s20, 3
            v_mov_b32 v32, s46
            v_mov_b32 v33, 0
            ds_write_b64 v32, v[28:29] offset:{R_LDS}
            s_waitcnt lgkmcnt(0)
            s_barrier
            ds_read_b128 v[36:39], v33 offset:{R_LDS}
            ds_read_b64 v[40:41], v33 offset:{R_LDS+16}
            s_waitcnt lgkmcnt(0)
            v_add_f32 v28, v36, v38
            v_add_f32 v28, v28, v40
            v_add_f32 v29, v37, v39
            v_add_f32 v29, v29, v41
            v_mul_f32 v28, {f2u(1.0/576)}, v28
            v_mul_f32 v29, {f2u(1.0/576)}, v29""")
    for b in range(2):
        for e in range(4):
            k.e(f"v_sub_f32 v{20+4*b+e}, v{20+4*b+e}, v{28+b}")
    for b in range(2):
        k.e(f"""v_mul_f32 v{30+b}, v{20+4*b}, v{20+4*b}
                v_fmac_f32 v{30+b}, v{21+4*b}, v{21+4*b}
                v_fmac_f32 v{30+b}, v{22+4*b}, v{22+4*b}
                v_fmac_f32 v{30+b}, v{23+4*b}, v{23+4*b}
                v_cndmask_b32 v{30+b}, 0, v{30+b}, s[64:65]""")
    k.allreduce("add", 30, 34)
    k.allreduce("add", 31, 34)
    k.e(f"""ds_write_b64 v32, v[30:31] offset:{R_LDS+32}
            s_waitcnt lgkmcnt(0)
            s_barrier
            ds_read_b128 v[36:39], v33 offset:{R_LDS+32}
            ds_read_b64 v[40:41], v33 offset:{R_LDS+48}
            s_waitcnt lgkmcnt(0)
            v_add_f32 v30, v36, v38
            v_add_f32 v30, v30, v40
            v_add_f32 v31, v37, v39
            v_add_f32 v31, v31, v41
            v_mov_b32 v34, {f2u(1e-5)}
            v_mov_b32 v35, {f2u(1e-5)}
            v_fmac_f32 v34, {f2u(1.0/576)}, v30
            v_fmac_f32 v35, {f2u(1.0/576)}, v31
            v_rsq_f32 v34, v34
            v_rsq_f32 v35, v35
            v_lshlrev_b32 v12, 3, v0""")
    for b in range(2):
        o = 20 + 4*b
        for e in range(4):
            k.e(f"v_mul_f32 v{o+e}, v{o+e}, v{34+b}")
        k.e(f"""v_cvt_pk_bf16_f32 v36, v{o}, v{o+1}
                v_cvt_pk_bf16_f32 v37, v{o+2}, v{o+3}
                v_lshlrev_b32 v38, 16, v36
                v_and_b32 v39, 0xffff0000, v36
                v_lshlrev_b32 v40, 16, v37
                v_and_b32 v41, 0xffff0000, v37
                v_sub_f32 v{o}, v{o}, v38
                v_sub_f32 v{o+1}, v{o+1}, v39
                v_sub_f32 v{o+2}, v{o+2}, v40
                v_sub_f32 v{o+3}, v{o+3}, v41
                v_cvt_pk_bf16_f32 v38, v{o}, v{o+1}
                v_cvt_pk_bf16_f32 v39, v{o+2}, v{o+3}
                s_mov_b64 s[66:67], exec
                s_mov_b64 exec, s[64:65]
                ds_write_b64 v12, v[36:37] offset:{A_LDS + 1152*b}
                ds_write_b64 v12, v[38:39] offset:{A_LDS + 2304 + 1152*b}
                s_mov_b64 exec, s[66:67]""")
    k.e("s_waitcnt lgkmcnt(0)\ns_barrier")
    k.e(f"""v_and_b32 v8, 3, v1
            v_mul_u32_u24 v8, 1152, v8
            v_lshl_add_u32 v8, v4, 4, v8
            s_and_b32 s44, s20, 1
            s_lshl_b32 s44, s44, 1
            s_lshr_b32 s45, s20, 1
            s_mul_i32 s45, s45, 36864
            s_add_u32 s45, s45, {BIG_L}""")
    for t in range(18):
        k.e(f"ds_read_b128 v[{20+4*t}:{23+4*t}], v8 offset:{A_LDS + 64*t}")
    tr64_base(k, 15, 3, 4, 44, 10, 11)
    k.e("v_add_u32 v15, s45, v15")
    for c in range(3):
        for i in range(6):
            t = 6*c + i
            d = 96 + 4*i
            k.e(f"""ds_read_b64_tr_b16 v[{d}:{d+1}], v15 offset:{2048*t}
                    ds_read_b64_tr_b16 v[{d+2}:{d+3}], v15 offset:{2048*t + 256}""")
        k.e("s_waitcnt lgkmcnt(0)")
        for i in range(6):
            t = 6*c + i
            d = 96 + 4*i
            cin = "0" if t == 0 else "v[120:123]"
            k.e(f"v_mfma_f32_16x16x32_bf16 v[120:123], v[{20+4*t}:{23+4*t}], v[{d}:{d+3}], {cin}")
        k.e("s_nop 3")
    k.e("s_nop 7")
    k.e(f"""s_lshr_b32 s45, s20, 1
            s_lshl_b32 s45, s45, 8
            s_and_b32 s46, s20, 1
            s_lshl_b32 s46, s46, 6
            s_add_u32 s45, s45, s46
            v_lshl_add_u32 v12, v3, 2, s45
            v_add_f32 v8, v120, v122
            v_add_f32 v9, v121, v123
            ds_write_b32 v12, v8 offset:{GU_LDS}
            ds_write_b32 v12, v9 offset:{GU_LDS+128}
            s_waitcnt lgkmcnt(0)
            s_barrier
            v_lshlrev_b32 v12, 2, v1
            ds_read_b32 v8, v12 offset:{GU_LDS}
            ds_read_b32 v9, v12 offset:{GU_LDS+256}
            s_waitcnt lgkmcnt(0)
            v_mul_f32 v10, {f2u(-LOG2E)}, v8
            v_exp_f32 v10, v10
            s_nop 0
            v_add_f32 v10, 1.0, v10
            v_rcp_f32 v10, v10
            s_nop 0
            v_mul_f32 v8, v8, v10
            v_mul_f32 v8, v8, v9""")
    k.hilo(8, 9, 10, 11)
    k.e(f"""v_lshlrev_b32 v12, 1, v1
            ds_write_b16 v12, v9 offset:{A2_LDS}
            ds_write_b16 v12, v10 offset:{A2_LDS+128}
            s_waitcnt lgkmcnt(0)
            s_barrier
            v_and_b32 v8, 3, v1
            v_lshlrev_b32 v8, 6, v8
            v_lshl_add_u32 v8, v4, 4, v8
            ds_read_b128 v[20:23], v8 offset:{A2_LDS}""")
    k.e(f"""v_lshrrev_b32 v10, 2, v3
            v_lshl_add_u32 v10, v4, 3, v10
            v_mul_u32_u24 v10, 1152, v10
            v_and_b32 v11, 3, v3
            v_lshl_add_u32 v10, v11, 3, v10
            s_mul_i32 s45, s20, 288
            s_add_u32 s45, s45, {D_LDS}
            v_add_u32 v10, s45, v10""")
    for n in range(9):
        d = 24 + 4*n
        k.e(f"""ds_read_b64_tr_b16 v[{d}:{d+1}], v10 offset:{32*n}
                ds_read_b64_tr_b16 v[{d+2}:{d+3}], v10 offset:{32*n + 4608}""")
    k.e(f"""s_mul_i32 s46, s20, 576
            s_add_u32 s46, s46, {BIG_L + 73728}
            v_lshl_add_u32 v13, v3, 2, s46""")
    for n in range(9):
        k.e(f"""ds_read_b32 v{100+2*n}, v13 offset:{64*n}
                ds_read_b32 v{101+2*n}, v13 offset:{2304 + 64*n}""")
    k.e("s_waitcnt lgkmcnt(0)")
    for n in range(9):
        d = 24 + 4*n
        k.e(f"v_mfma_f32_16x16x32_bf16 v[{64+4*n}:{67+4*n}], v[20:23], v[{d}:{d+3}], 0")
    k.e(f"""s_mul_i32 s45, s2, 4608
            s_mul_i32 s46, s20, 576
            s_add_u32 s45, s45, s46
            v_lshl_add_u32 v12, v3, 2, s45
            s_cmp_eq_u32 s2, 0
            s_cselect_b32 s47, 1.0, 0
            v_mov_b32 v14, 0x7fc00000
            s_nop 4""")
    for n in range(9):
        a = 64 + 4*n
        k.e(f"""v_add_f32 v{a}, v{a}, v{a+2}
                v_add_f32 v{a+1}, v{a+1}, v{a+3}""")
    Lh = k.newlab("noh")
    k.e(f"s_cbranch_scc0 {Lh}")
    for n in range(9):
        a = 64 + 4*n
        k.e(f"""v_add_f32 v{a}, v{a}, v{100+2*n}
                v_add_f32 v{a+1}, v{a+1}, v{101+2*n}""")
    k.lab(Lh)
    for n in range(9):
        a = 64 + 4*n
        k.e(f"""v_cmp_eq_u32 vcc, -1, v{a}
                v_cmp_eq_u32 s[66:67], -1, v{a+1}
                s_nop 1
                v_cndmask_b32 v{a}, v{a}, v14, vcc
                v_cndmask_b32 v{a+1}, v{a+1}, v14, s[66:67]""")
    k.e("""v_cmp_gt_u32 vcc, 16, v1
           s_and_saveexec_b64 s[50:51], vcc""")
    for n in range(9):
        a = 64 + 4*n
        k.e(f"""buffer_store_dword v{a}, v12, s[60:63], 0 offen offset:{64*n} sc1
                buffer_store_dword v{a+1}, v12, s[60:63], 0 offen offset:{2304 + 64*n} sc1""")

def phase_g(k):
    k.e("""s_sub_u32 s48, s2, 216
           v_lshrrev_b32 v5, 4, v0
           v_and_b32 v6, 15, v0
           v_mul_u32_u24 v8, 4608, v5
           v_lshl_add_u32 v8, v6, 4, v8
           s_lshl_b32 s40, s48, 8""")
    loads = []
    for i in range(9):
        loads.append(f"s_add_u32 s41, s40, {16*4608*i}\nbuffer_load_dwordx4 v[{20+4*i}:{23+4*i}], v8, s[60:63], s41 offen sc1")
    poll_gather(k, loads, list(range(20, 56)), 46)
    k.stamp(9)
    for i in range(1, 9):
        for e in range(4):
            k.e(f"v_add_f32 v{20+e}, v{20+e}, v{20+4*i+e}")
    k.e(f"""v_lshlrev_b32 v9, 4, v0
            v_lshlrev_b32 v10, 2, v0
            ds_write_b128 v9, v[20:23] offset:{T_A}
            s_waitcnt lgkmcnt(0)
            s_barrier
            s_cmp_lg_u32 s20, 0
            s_cbranch_scc1 {k.name}_end""")
    for i in range(16):
        k.e(f"ds_read_b32 v{20+i}, v10 offset:{T_A + 256*i}")
    k.e("s_waitcnt lgkmcnt(0)")
    for i in range(1, 16):
        k.e(f"v_add_f32 v20, v20, v{20+i}")
    k.e("""v_cvt_pk_bf16_f32 v20, v20, v20
           v_lshlrev_b32 v10, 1, v0
           s_lshl_b32 s41, s48, 7
           buffer_store_short v20, v10, s[92:95], s41 offen""")

def k2_main():
    k = Kern("k_main_kernel", 256, 512, LDS_TOTAL, 256)
    guard(k, 256)
    k.ldptr(4, "ckv"); k.ldptr(10, "ws")
    wave_id(k, 20, 1)
    k.e(f"""v_and_b32 v1, 63, v0
            v_mov_b32 v2, 0
            v_lshlrev_b32 v3, 2, v1
            v_cmp_gt_u32 vcc, 20, v0
            s_and_saveexec_b64 s[48:49], vcc
            ds_write_b32 v3, v2 offset:{SYNC}
            s_mov_b64 exec, s[48:49]
            s_waitcnt lgkmcnt(0)
            s_barrier""")
    LB = k.newlab("teamB")
    if STAMP:
        k.sgpr = 102
        k.e("s_mov_b32 s101, s20\nv_mov_b32 v255, 0")
        k.stamp(0)
    k.e(f"s_cmp_ge_u32 s20, 4\ns_cbranch_scc1 {LB}")
    team_a(k)
    k.lab(LB)
    team_b(k)
    k.lab(f"{k.name}_end")
    if STAMP:
        k.e(f"s_cmp_ge_u32 s2, 256\ns_cbranch_scc1 {k.name}_end2")
        k.stamp_out()
        k.lab(f"{k.name}_end2")
    return k

def main():
    ks = [k1_qpart(), k2_main()]
    out = [HEADER.rstrip("\n")]
    for k in ks:
        out.append(f"; @launch kernel={k.name} grid=({k.grid},1,1) block=({k.block},1,1) lds={k.lds}")
    out.append('.amdgcn_target "amdgcn-amd-amdhsa--gfx950"\n.text')
    for k in ks:
        out.append(k.text())
    open(sys.argv[1] if len(sys.argv) > 1 else "u.s", "w").write("\n".join(out))
main()
```

```python
import sys, struct

HEADER = open("sequential_preLN__compressed_kv_cla__swiglu_ffn__decode.s.ref").read().split("; Override launch")[0]

WS_QA   = 0x000000
WS_ML   = 0x1D0000
WS_QP   = 0x020000
WS_INIT = 0x080000
WS_CTX  = 0x080000
WS_DNP  = 0x0C0000
WS_OUTP = 0x170000
WS_FL   = 0x1C0000
WS_OP   = 0x200000
INIT_BYTES = 0x180000
SENT = 0xFFFFFFFF
import os
GUNT = os.environ.get('GUNT', 'nt')
SPIN_MAX = 40000
import os
STAMP = bool(os.environ.get('STAMP'))

KA = dict(x=0, ckv=8, wq=16, wuk=24, wuv=32, wo=40, bx=48, wg=56, wu=64, wd=72, out=80, dbg=88, ws=96)
SZ = dict(x=2304, ckv=33554432, wq=4718592, wuk=4194304, wuv=4194304, wo=4718592, wg=5308416, wu=5308416,
          wd=5308416, out=2304)
LOG2E = 1.4426950408889634
def f2u(f): return struct.unpack("<I", struct.pack("<f", f))[0]

class Kern:
    def __init__(self, name, grid, block, lds, vgpr, sgpr=100):
        self.name, self.grid, self.block, self.lds, self.vgpr, self.sgpr = name, grid, block, lds, vgpr, sgpr
        self.lines = []
        self.nlab = 0
    def e(self, s):
        for l in s.strip("\n").split("\n"):
            if l.strip(): self.lines.append("    " + l.strip())
    def lab(self, s): self.lines.append(s + ":")
    def newlab(self, p):
        self.nlab += 1
        return f"{self.name}_{p}{self.nlab}"
    def ldptr(self, d, key): self.e(f"s_load_dwordx2 s[{d}:{d+1}], s[0:1], {KA[key]}")
    def srd(self, d, p, n, off=0):
        if off:
            self.e(f"s_add_u32 s{d}, s{p}, {off}\ns_addc_u32 s{d+1}, s{p+1}, 0")
        else:
            self.e(f"s_mov_b32 s{d}, s{p}\ns_mov_b32 s{d+1}, s{p+1}")
        self.e(f"s_mov_b32 s{d+2}, {n}\ns_mov_b32 s{d+3}, 0x00020000")
    def allreduce(self, op, x, t):
        for ctl in ("quad_perm:[1,0,3,2]", "quad_perm:[2,3,0,1]", "row_half_mirror", "row_mirror"):
            self.e(f"s_nop 1\nv_{op}_f32_dpp v{x}, v{x}, v{x} {ctl} row_mask:0xf bank_mask:0xf")
        for sw in ("v_permlane16_swap_b32", "v_permlane32_swap_b32"):
            self.e(f"v_mov_b32 v{t}, v{x}\ns_nop 1\n{sw} v{x}, v{t}\ns_nop 0\nv_{op}_f32 v{x}, v{x}, v{t}")
    def hilo(self, x, hi, lo, t):
        self.e(f"""v_cvt_pk_bf16_f32 v{hi}, v{x}, v{x}
                   v_lshlrev_b32 v{t}, 16, v{hi}
                   v_sub_f32 v{t}, v{x}, v{t}
                   v_cvt_pk_bf16_f32 v{lo}, v{t}, v{t}""")
    def sanitize(self, regs, tmp):
        self.e(f"v_mov_b32 v{tmp}, 0x7fc00000")
        for r in regs:
            self.e(f"v_cmp_eq_u32 vcc, -1, v{r}\ns_nop 1\nv_cndmask_b32 v{r}, v{r}, v{tmp}, vcc")
    def stamp(self, idx):
        if not STAMP: return
        self.e(f"s_memrealtime s[96:97]\ns_waitcnt lgkmcnt(0)\nv_writelane_b32 v255, s96, {idx}")
    def stamp_out(self):
        if not STAMP: return
        self.e(f"""s_mov_b64 exec, -1
                   s_waitcnt vmcnt(0)
                   s_memrealtime s[96:97]
                   s_waitcnt lgkmcnt(0)
                   v_writelane_b32 v255, s96, 15
                   s_add_u32 s96, s10, 0x1000000
                   s_addc_u32 s97, s11, 0
                   s_mov_b32 s98, 0x1000000
                   s_mov_b32 s99, 0x00020000
                   v_mbcnt_lo_u32_b32 v254, -1, 0
                   v_mbcnt_hi_u32_b32 v254, -1, v254
                   s_lshl_b32 s100, s2, 3
                   s_add_u32 s100, s100, s101
                   s_lshl_b32 s100, s100, 8
                   v_lshl_add_u32 v254, v254, 2, s100
                   buffer_store_dword v255, v254, s[96:99], 0 offen""")
    def text(self):
        acc = (self.vgpr + 3) // 4 * 4
        return "\n".join([
            f".globl {self.name}", ".p2align 8", f".type {self.name},@function", f"{self.name}:"] + self.lines + [
            "    s_endpgm",
            '.section .rodata,"a"', ".p2align 6", f".amdhsa_kernel {self.name}",
            f"  .amdhsa_next_free_vgpr {self.vgpr}", f"  .amdhsa_next_free_sgpr {self.sgpr}",
            f"  .amdhsa_accum_offset {acc}", "  .amdhsa_group_segment_fixed_size 0", "  .amdhsa_kernarg_size 104",
            "  .amdhsa_user_sgpr_count 2", "  .amdhsa_user_sgpr_kernarg_segment_ptr 1",
            "  .amdhsa_system_sgpr_workgroup_id_x 1", ".end_amdhsa_kernel", ".text", ""])

def guard(k, n):
    k.e(f"s_cmp_ge_u32 s2, {n}\ns_cbranch_scc1 {k.name}_end")

def wave_id(k, sdst, vt):
    k.e(f"v_lshrrev_b32 v{vt}, 6, v0\ns_nop 0\nv_readfirstlane_b32 s{sdst}, v{vt}")

RS = 1040
PX, MX, SX, SYNC, CT = 0, 8192, 8704, 9216, 9296
NONCE_L = SYNC + 64
WQ_L = CT + 128 * RS
LDS_TOTAL = WQ_L + 18432
LN_L, QQ_L = 0, 4608
D_A, D_A2, D_R = 0, 1024, 2048
T_A = 2304
WUV_L, OST_L, BIG_L = 9728, 26112, 63488

def lds_sync(k, word, target, vz, vone, vt, st):
    L = k.newlab("spin")
    k.e(f"""s_mov_b64 exec, 1
            ds_add_u32 v{vz}, v{vone} offset:{SYNC + 4*word}
            s_mov_b64 exec, -1""")
    k.lab(L)
    k.e(f"""ds_read_b32 v{vt}, v{vz} offset:{SYNC + 4*word}
            s_waitcnt lgkmcnt(0)
            v_readfirstlane_b32 s{st}, v{vt}
            s_cmp_lt_u32 s{st}, {target}
            s_cbranch_scc1 {L}""")

def poll_flags(k, vmask, vt, scnt, srd):
    L = k.newlab("pf"); Ld = k.newlab("pfd")
    k.e(f"s_mov_b32 s{scnt}, 0")
    k.lab(L)
    k.e(f"""buffer_load_dword v{vt}, v{vt+2}, s[{srd}:{srd+3}], 0 offen sc1
            s_waitcnt vmcnt(0)
            v_and_b32 v{vt}, v{vt}, v{vmask}
            v_cmp_ne_u32 vcc, v{vt}, v{vmask}
            s_add_u32 s{scnt}, s{scnt}, 1
            s_cmp_gt_u32 s{scnt}, {SPIN_MAX}
            s_cbranch_scc1 {Ld}
            s_cbranch_vccnz {L}""")
    k.lab(Ld)

def single_poll(k, kind, word, vz, vone, vt, st, srd, soff, snon, slp=3):
    L, Ld, Lo, Le = k.newlab("sp"), k.newlab("spd"), k.newlab("spo"), k.newlab("spe")
    k.e(f"s_cmp_lg_u32 s20, 0\ns_cbranch_scc1 {Lo}\ns_mov_b32 s{st}, 0")
    if kind == "grp": k.e("s_mov_b64 exec, 0xff")
    k.lab(L)
    if kind == "grp":
        k.e(f"""buffer_load_dwordx2 v[{vt}:{vt+1}], v{vt+8}, s[{srd}:{srd+3}], s{soff} offen sc1
                s_waitcnt vmcnt(0)
                v_xor_b32 v{vt}, s{snon}, v{vt}
                v_xor_b32 v{vt+1}, s{snon+1}, v{vt+1}
                v_or_b32 v{vt}, v{vt}, v{vt+1}""")
    else:
        k.e(f"""buffer_load_dwordx4 v[{vt}:{vt+3}], v{vt+8}, s[{srd}:{srd+3}], s{soff} offen sc1
                buffer_load_dwordx4 v[{vt+4}:{vt+7}], v{vt+8}, s[{srd}:{srd+3}], s{soff} offen offset:1024 sc1
                s_waitcnt vmcnt(0)""")
        for i in range(8):
            k.e(f"v_xor_b32 v{vt+i}, s{snon + (i & 1)}, v{vt+i}")
        k.e(f"""v_or3_b32 v{vt}, v{vt}, v{vt+1}, v{vt+2}
                v_or3_b32 v{vt+3}, v{vt+3}, v{vt+4}, v{vt+5}
                v_or3_b32 v{vt}, v{vt}, v{vt+6}, v{vt+7}
                v_or_b32 v{vt}, v{vt}, v{vt+3}""")
    k.e(f"""v_cmp_ne_u32 vcc, 0, v{vt}
            s_add_u32 s{st}, s{st}, 1
            s_cmp_gt_u32 s{st}, {SPIN_MAX}
            s_cbranch_scc1 {Ld}
            s_cbranch_vccz {Ld}
            s_sleep {slp}
            s_branch {L}""")
    k.lab(Ld)
    k.e(f"""s_mov_b64 exec, -1
            ds_write_b32 v{vz}, v{vone} offset:{SYNC + 4*word}
            s_branch {Le}""")
    k.lab(Lo)
    lds_wait(k, word, 1, vz, vt, st, sleep=1)
    k.lab(Le)

def publish_rep(k, word, srd, hop, vz, vone, vt, st, snon):
    L = k.newlab("pub")
    k.e(f"""s_waitcnt vmcnt(0)
            s_mov_b64 exec, 1
            ds_add_rtn_u32 v{vt}, v{vz}, v{vone} offset:{SYNC + 4*word}
            s_waitcnt lgkmcnt(0)
            v_readfirstlane_b32 s{st}, v{vt}
            s_mov_b64 exec, 0xff
            s_cmp_lg_u32 s{st}, 3
            s_cbranch_scc1 {L}
            s_lshl_b32 s{st}, s2, 3
            s_add_u32 s{st}, s{st}, {16384*hop}
            v_lshlrev_b32 v{vt}, 11, v1
            v_mov_b32 v{vt+2}, s{snon}
            v_mov_b32 v{vt+3}, s{snon+1}
            buffer_store_dwordx2 v[{vt+2}:{vt+3}], v{vt}, s[{srd}:{srd+3}], s{st} offen sc1""")
    k.lab(L)
    k.e("s_mov_b64 exec, -1")

def get_nonce(k, vz, vt, snon, st):
    L = k.newlab("gn")
    k.lab(L)
    k.e(f"""ds_read_b64 v[{vt}:{vt+1}], v{vz} offset:{NONCE_L}
            s_waitcnt lgkmcnt(0)
            v_readfirstlane_b32 s{snon}, v{vt}
            v_readfirstlane_b32 s{snon+1}, v{vt+1}
            s_cmp_eq_u32 s{snon}, 0
            s_cbranch_scc1 {L}""")

def publish_flag(k, word, val, srd, vz, vone, vt, st):
    L = k.newlab("pub")
    k.e(f"""s_waitcnt vmcnt(0)
            s_mov_b64 exec, 1
            ds_add_rtn_u32 v{vt}, v{vz}, v{vone} offset:{SYNC + 4*word}
            s_waitcnt lgkmcnt(0)
            v_readfirstlane_b32 s{st}, v{vt}
            s_cmp_lg_u32 s{st}, 3
            s_cbranch_scc1 {L}
            v_mov_b32 v{vt}, s2
            v_mov_b32 v{vt+1}, {val}
            buffer_store_byte v{vt+1}, v{vt}, s[{srd}:{srd+3}], 0 offen sc1""")
    k.lab(L)
    k.e("s_mov_b64 exec, -1")

def lds_wait(k, word, target, vz, vt, st, sleep=0):
    L = k.newlab("lw")
    k.lab(L)
    if sleep: k.e(f"s_sleep {sleep}")
    k.e(f"""ds_read_b32 v{vt}, v{vz} offset:{SYNC + 4*word}
            s_waitcnt lgkmcnt(0)
            v_readfirstlane_b32 s{st}, v{vt}
            s_cmp_lt_u32 s{st}, {target}
            s_cbranch_scc1 {L}""")

def team_a(k):
    k.ldptr(12, "x"); k.ldptr(14, "wq"); k.ldptr(16, "wuk"); k.ldptr(18, "dbg"); k.ldptr(68, "wg"); k.ldptr(70, "wu")
    k.e("""s_and_b32 s21, s2, 31
           s_lshr_b32 s22, s2, 5
           v_and_b32 v3, 15, v1
           v_lshrrev_b32 v4, 4, v1
           v_mov_b32 v224, 0
           v_mov_b32 v225, 1
           s_waitcnt lgkmcnt(0)""")
    k.srd(24, 12, SZ["x"]); k.srd(28, 14, SZ["wq"]); k.srd(32, 16, SZ["wuk"]); k.srd(36, 10, 262144, WS_QP)
    k.srd(52, 18, 256); k.srd(56, 10, 65536, WS_QA); k.srd(60, 10, 8388608, WS_OP); k.srd(64, 10, 65536, WS_ML)
    k.srd(72, 68, SZ["wg"]); k.srd(76, 70, SZ["wu"]); k.srd(80, 10, 32768, WS_FL); k.srd(88, 10, INIT_BYTES, WS_INIT)
    k.e("""v_lshlrev_b32 v252, 4, v1
           s_and_b32 s84, s2, 7
           s_lshl_b32 s84, s84, 11""")
    k.e("s_and_b32 s23, s20, 1\ns_mul_i32 s23, s23, 1152\nv_lshlrev_b32 v2, 1, v1")
    for i in range(9):
        k.e(f"buffer_load_ushort v{10+i}, v2, s[24:27], s23 offen offset:{128*i}")
    k.e(f"""v_lshlrev_b32 v6, 1, v4
            v_xor_b32 v6, v6, v3
            v_lshlrev_b32 v6, 4, v6
            v_lshl_add_u32 v6, v4, 13, v6
            s_and_b32 s40, s20, 2
            s_lshl_b32 s40, s40, 6
            v_xor_b32 v6, s40, v6
            s_mul_i32 s41, s22, 72
            s_lshl_b32 s42, s20, 2
            s_add_u32 s41, s41, s42
            s_lshl_b32 s41, s41, 13
            s_lshl_b32 s42, s21, 8
            s_add_u32 s41, s41, s42
            s_lshl_b32 s43, s20, 10
            s_add_u32 s43, s43, {WQ_L}""")
    Lq = k.newlab("wq4")
    for i in range(5):
        if i == 4: k.e(f"s_cmp_ge_u32 s20, 2\ns_cbranch_scc1 {Lq}")
        k.e(f"""s_mov_b32 m0, s43
                s_add_u32 s43, s43, 4096
                buffer_load_dwordx4 v6, s[28:31], s41 offen nt lds
                s_add_u32 s41, s41, {16*8192}""")
    k.lab(Lq)
    k.e("""s_lshl_b32 s40, s22, 6
           s_lshl_b32 s41, s20, 4
           s_add_u32 s40, s40, s41
           v_add_u32 v7, s40, v3
           v_lshlrev_b32 v7, 13, v7
           v_lshl_add_u32 v7, v4, 4, v7
           s_lshl_b32 s41, s21, 8""")
    for t in range(4):
        k.e(f"buffer_load_dwordx4 v[{232+4*t}:{235+4*t}], v7, s[32:35], s41 offen offset:{64*t} nt")
    Ln = k.newlab("non")
    k.e(f"""s_or_b32 s44, s20, s2
            s_cmp_lg_u32 s44, 0
            s_cbranch_scc1 {Ln}
            s_mov_b64 exec, 1
            s_memrealtime s[86:87]
            s_waitcnt lgkmcnt(0)
            s_or_b32 s86, s86, 1
            v_mov_b32 v226, s86
            v_mov_b32 v227, s87
            buffer_store_dwordx2 v[226:227], v224, s[52:55], 0 offen sc1
            s_mov_b64 exec, -1""")
    k.lab(Ln)
    k.e("""v_mov_b32 v28, -1
           v_mov_b32 v29, -1
           v_mov_b32 v30, -1
           v_mov_b32 v31, -1
           v_lshlrev_b32 v9, 4, v0
           s_mul_i32 s45, s2, 5120
           buffer_store_dwordx4 v[28:31], v9, s[88:91], s45 offen sc1
           s_add_u32 s45, s45, 4096
           v_cmp_gt_u32 vcc, 64, v0
           s_and_saveexec_b64 s[48:49], vcc
           buffer_store_dwordx4 v[28:31], v9, s[88:91], s45 offen sc1
           s_mov_b64 exec, s[48:49]
           s_lshl_b32 s45, s2, 8
           s_add_u32 s45, s45, 0x150000
           v_cmp_gt_u32 vcc, 16, v0
           s_and_saveexec_b64 s[48:49], vcc
           buffer_store_dwordx4 v[28:31], v9, s[88:91], s45 offen sc1
           s_mov_b64 exec, s[48:49]
           s_waitcnt vmcnt(9)
           buffer_load_dwordx2 v[226:227], v224, s[52:55], 0 offen sc1""")
    for i in range(9):
        k.e(f"v_lshlrev_b32 v{10+i}, 16, v{10+i}")
    k.e("v_add_f32 v20, v10, v11")
    for i in range(2, 9):
        k.e(f"v_add_f32 v20, v20, v{10+i}")
    k.allreduce("add", 20, 21)
    k.e(f"v_mul_f32 v20, {f2u(1.0/576)}, v20")
    for i in range(9):
        k.e(f"v_sub_f32 v{10+i}, v{10+i}, v20")
    k.e("v_mul_f32 v22, v10, v10")
    for i in range(1, 9):
        k.e(f"v_fmac_f32 v22, v{10+i}, v{10+i}")
    k.allreduce("add", 22, 21)
    k.e(f"""v_mov_b32 v23, {f2u(1e-5)}
            v_fmac_f32 v23, {f2u(1.0/576)}, v22
            v_rsq_f32 v23, v23
            v_add_u32 v24, s23, v2""")
    for i in range(9):
        k.e(f"v_mul_f32 v{10+i}, v{10+i}, v23")
        k.hilo(10+i, 25, 26, 27)
        k.e(f"""ds_write_b16 v24, v25 offset:{LN_L + 128*i}
                ds_write_b16 v24, v26 offset:{LN_L + 2304 + 128*i}""")
    k.e("s_waitcnt vmcnt(6)")
    lds_sync(k, 1, 4, 224, 225, 229, 44)
    k.stamp(6)
    k.e(f"""v_and_b32 v8, 3, v1
            v_mul_u32_u24 v8, 1152, v8
            v_lshl_add_u32 v8, v4, 4, v8
            s_mul_i32 s40, s22, 144
            v_add_u32 v8, s40, v8""")
    for t in range(3):
        k.e(f"ds_read_b128 v[{28+4*t}:{31+4*t}], v8 offset:{LN_L + 64*t}")
    k.e(f"""v_lshrrev_b32 v9, 2, v3
            v_lshl_add_u32 v10, v4, 3, v9
            v_lshlrev_b32 v10, 8, v10
            v_and_b32 v11, 1, v4
            v_lshlrev_b32 v11, 3, v11
            v_lshl_or_b32 v11, v9, 1, v11
            v_bfe_u32 v12, v3, 1, 1
            s_lshl_b32 s46, s20, 2
            v_add_u32 v12, s46, v12
            v_and_b32 v13, 1, v3
            v_lshlrev_b32 v13, 3, v13
            s_mov_b32 s47, {WQ_L}
            v_add3_u32 v10, v10, v13, s47
            v_lshlrev_b32 v19, 8, v9
            s_mov_b32 s47, {WQ_L + 16384}
            v_add3_u32 v19, v19, v13, s47
            v_lshlrev_b32 v18, 1, v9""")
    for nt in range(2):
        k.e(f"""v_add_u32 v14, {2*nt}, v12
                v_xor_b32 v15, v14, v11
                v_lshl_add_u32 v15, v15, 4, v10
                v_xor_b32 v16, v14, v18
                v_lshl_add_u32 v16, v16, 4, v19""")
        for t in range(2):
            d = 40 + 12*nt + 4*t
            k.e(f"""ds_read_b64_tr_b16 v[{d}:{d+1}], v15 offset:{8192*t}
                    ds_read_b64_tr_b16 v[{d+2}:{d+3}], v15 offset:{8192*t + 1024}""")
        d = 40 + 12*nt + 8
        k.e(f"""ds_read_b64_tr_b16 v[{d}:{d+1}], v16
                ds_read_b64_tr_b16 v[{d+2}:{d+3}], v16 offset:1024""")
    k.e("""v_cmp_gt_u32 vcc, 16, v1
           s_waitcnt lgkmcnt(0)
           v_cndmask_b32 v36, 0, v36, vcc
           v_cndmask_b32 v37, 0, v37, vcc
           v_cndmask_b32 v38, 0, v38, vcc
           v_cndmask_b32 v39, 0, v39, vcc
           s_nop 1""")
    for nt in range(2):
        acc = 64 + 4*nt
        for t in range(3):
            d = 40 + 12*nt + 4*t
            cin = "0" if t == 0 else f"v[{acc}:{acc+3}]"
            k.e(f"v_mfma_f32_16x16x32_bf16 v[{acc}:{acc+3}], v[{28+4*t}:{31+4*t}], v[{d}:{d+3}], {cin}")
    k.e(f"""s_lshl_b32 s46, s22, 15
            s_lshl_b32 s47, s21, 9
            s_add_u32 s46, s46, s47
            s_lshl_b32 s47, s20, 7
            s_add_u32 s46, s46, s47
            v_lshl_add_u32 v27, v3, 2, s46
            s_mov_b32 s47, 16384
            s_nop 4
            v_add_f32 v8, v64, v66
            v_add_f32 v9, v65, v67
            v_add_f32 v10, v68, v70
            v_add_f32 v11, v69, v71
            s_and_saveexec_b64 s[48:49], vcc
            buffer_store_dword v8, v27, s[36:39], 0 offen sc1
            buffer_store_dword v9, v27, s[36:39], s47 offen sc1
            buffer_store_dword v10, v27, s[36:39], 0 offen offset:64 sc1
            buffer_store_dword v11, v27, s[36:39], s47 offen offset:64 sc1
            s_mov_b64 exec, s[48:49]""")
    Lw, Lf = k.newlab("nw"), k.newlab("nf")
    k.e("s_mov_b32 s44, 0\ns_waitcnt vmcnt(4)")
    k.lab(Lw)
    k.e(f"""v_readfirstlane_b32 s86, v226
            v_readfirstlane_b32 s87, v227
            s_add_u32 s44, s44, 1
            s_cmp_gt_u32 s44, {SPIN_MAX}
            s_cbranch_scc1 {Lf}
            s_cmp_eq_u32 s86, 0
            s_cbranch_scc0 {Lf}
            s_sleep 2
            buffer_load_dwordx2 v[226:227], v224, s[52:55], 0 offen sc1
            s_waitcnt vmcnt(0)
            s_branch {Lw}""")
    k.lab(Lf)
    k.e("s_or_b32 s86, s86, 1")
    publish_rep(k, 2, 80, 0, 224, 225, 226, 44, 86)
    k.stamp(7)
    k.e("""s_lshl_b32 s46, s21, 3
           v_lshl_add_u32 v88, v1, 8, s46""")
    single_poll(k, "grp", 12, 224, 225, 80, 44, 80, 84, 86)
    k.e("""v_lshrrev_b32 v5, 7, v0
           v_and_b32 v6, 127, v0
           v_lshlrev_b32 v8, 14, v5
           v_lshl_add_u32 v8, v6, 2, v8
           s_lshl_b32 s46, s21, 9""")
    for j in range(8):
        k.e(f"buffer_load_dword v{10+j}, v8, s[36:39], s46 offen sc1\ns_add_u32 s46, s46, 32768")
    k.e("""v_lshlrev_b32 v24, 8, v5
           v_lshl_add_u32 v24, v6, 1, v24
           s_waitcnt vmcnt(0)""")
    for j in range(1, 8):
        k.e(f"v_add_f32 v10, v10, v{10+j}")
    k.hilo(10, 25, 26, 27)
    k.e(f"""ds_write_b16 v24, v25 offset:{QQ_L}
            ds_write_b16 v24, v26 offset:{QQ_L + 512}""")
    lds_sync(k, 3, 4, 224, 225, 226, 44)
    k.e(f"""v_and_b32 v8, 3, v1
            v_lshlrev_b32 v8, 8, v8
            v_lshl_add_u32 v8, v4, 4, v8""")
    for t in range(4):
        k.e(f"ds_read_b128 v[{28+4*t}:{31+4*t}], v8 offset:{QQ_L + 64*t}")
    k.e("s_waitcnt vmcnt(0) lgkmcnt(0)")
    k.stamp(8)
    for t in range(4):
        cin = "0" if t == 0 else "v[64:67]"
        k.e(f"v_mfma_f32_16x16x32_bf16 v[64:67], v[{28+4*t}:{31+4*t}], v[{232+4*t}:{235+4*t}], {cin}")
    sc = f2u((128 ** -0.5) * LOG2E)
    k.e(f"""s_lshl_b32 s46, s22, 2
            s_add_u32 s46, s46, s20
            s_lshl_b32 s46, s46, 10
            s_lshl_b32 s47, s21, 4
            s_add_u32 s46, s46, s47
            v_lshrrev_b32 v12, 1, v1
            v_lshlrev_b32 v12, 15, v12
            v_and_b32 v13, 1, v1
            v_lshl_add_u32 v12, v13, 9, v12
            s_lshl_b32 s47, s20, 6
            v_lshl_add_u32 v13, v3, 1, s47
            v_lshl_add_u32 v14, v1, 4, s47
            v_add_f32 v10, v64, v66
            v_add_f32 v11, v65, v67
            v_mul_f32 v10, {sc}, v10
            v_mul_f32 v11, {sc}, v11
            v_cvt_pk_bf16_f32 v10, v10, v11
            ds_write_b16 v13, v10 offset:{QQ_L + 1024}
            ds_write_b16_d16_hi v13, v10 offset:{QQ_L + 1024 + 32}
            s_mov_b64 exec, 0xf
            ds_read_b128 v[16:19], v14 offset:{QQ_L + 1024}
            s_waitcnt lgkmcnt(0)
            buffer_store_dwordx4 v[16:19], v12, s[56:59], s46 offen sc1
            s_mov_b64 exec, -1""")
    publish_rep(k, 4, 80, 1, 224, 225, 226, 44, 86)
    k.stamp(9)
    k.e(f"""v_and_b32 v2, 31, v1
            v_lshrrev_b32 v3, 5, v1
            s_lshr_b32 s21, s2, 7
            s_lshl_b32 s22, s21, 15
            v_lshlrev_b32 v5, 4, v1
            s_lshl_b32 s41, s20, 5
            v_and_b32 v6, 16, v2
            v_and_b32 v7, 3, v2
            v_lshl_add_u32 v6, v7, 2, v6
            v_bfe_u32 v7, v2, 2, 1
            v_lshl_add_u32 v6, v7, 1, v6
            v_bfe_u32 v7, v2, 3, 1
            v_add_u32 v6, v6, v7
            v_add_u32 v6, s41, v6
            v_mul_u32_u24 v6, {RS}, v6
            v_lshl_add_u32 v6, v3, 4, v6
            v_add_u32 v6, {CT}, v6
            """)
    k.e("s_add_u32 s84, s84, 16384")
    single_poll(k, "all", 13, 224, 225, 244, 44, 80, 84, 86, slp=int(os.environ.get('SLP1', '3')))
    k.stamp(1)
    QF = 96
    for t in range(32):
        if t % 4 == 0 and t: k.e("s_add_u32 s22, s22, 4096")
        k.e(f"buffer_load_dwordx4 v[{QF+4*t}:{QF+3+4*t}], v5, s[56:59], s22 offen offset:{1024*(t%4)} {os.environ.get('QSC', 'sc1')}")
    lds_wait(k, 0, 4, 224, 226, 44)
    k.e("s_waitcnt vmcnt(0)")
    k.stamp(2)
    ACC = 16
    bufs = [32, 64]
    for i in range(8):
        k.e(f"ds_read_b128 v[{bufs[0]+4*i}:{bufs[0]+3+4*i}], v6 offset:{32*i}")
    for ci in range(4):
        if ci < 3:
            for i in range(8):
                b = bufs[(ci+1) % 2] + 4*i
                if b + 3 >= QF: raise Exception("reg overlap")
                k.e(f"ds_read_b128 v[{b}:{b+3}], v6 offset:{32*(8*(ci+1)+i)}")
            k.e("s_waitcnt lgkmcnt(8)")
        else:
            k.e("s_waitcnt lgkmcnt(0)")
        for i in range(8):
            t = 8*ci + i
            b = bufs[ci % 2] + 4*i
            cin = "0" if t == 0 else f"v[{ACC}:{ACC+15}]"
            k.e(f"v_mfma_f32_32x32x16_bf16 v[{ACC}:{ACC+15}], v[{b}:{b+3}], v[{QF+4*t}:{QF+3+4*t}], {cin}")
    k.e("s_nop 15")
    k.e(f"v_max3_f32 v8, v{ACC}, v{ACC+1}, v{ACC+2}")
    for i in range(3, 15, 2):
        k.e(f"v_max3_f32 v8, v8, v{ACC+i}, v{ACC+i+1}")
    k.e(f"""v_max_f32 v8, v8, v{ACC+15}
            v_mov_b32 v9, v8
            s_nop 1
            v_permlane32_swap_b32 v8, v9
            s_nop 0
            v_max_f32 v8, v8, v9
            s_lshl_b32 s43, s20, 2
            v_lshl_add_u32 v10, v2, 4, s43
            v_lshlrev_b32 v11, 4, v2
            ds_write_b32 v10, v8 offset:{MX}""")
    lds_sync(k, 5, 4, 224, 225, 226, 44)
    k.e(f"""ds_read_b128 v[12:15], v11 offset:{MX}
            s_waitcnt lgkmcnt(0)
            v_max3_f32 v8, v12, v13, v14
            v_max_f32 v8, v8, v15""")
    for i in range(16):
        k.e(f"v_sub_f32 v{ACC+i}, v{ACC+i}, v8")
    for i in range(16):
        k.e(f"v_exp_f32 v{ACC+i}, v{ACC+i}")
    k.e(f"s_nop 0\nv_add_f32 v9, v{ACC}, v{ACC+1}")
    for i in range(2, 16):
        k.e(f"v_add_f32 v9, v9, v{ACC+i}")
    for i in range(8):
        k.e(f"v_cvt_pk_bf16_f32 v{32+i}, v{ACC+2*i}, v{ACC+2*i+1}")
    k.e(f"""v_mov_b32 v12, v9
            s_lshl_b32 s44, s20, 11
            v_lshl_add_u32 v13, v1, 4, s44
            v_permlane32_swap_b32 v9, v12
            s_nop 0
            v_add_f32 v9, v9, v12
            ds_write_b128 v13, v[32:35] offset:{PX}
            ds_write_b128 v13, v[36:39] offset:{PX+1024}
            ds_write_b32 v10, v9 offset:{SX}""")
    lds_sync(k, 6, 4, 224, 225, 226, 44)
    k.stamp(3)
    PF = 32
    for s in range(8):
        k.e(f"ds_read_b128 v[{PF+4*s}:{PF+3+4*s}], v5 offset:{PX + 1024*s}")
    k.e(f"ds_read_b128 v[12:15], v11 offset:{SX}")
    k.e(f"""v_bfe_u32 v66, v1, 2, 2
            v_lshlrev_b32 v66, 2, v66
            v_lshl_add_u32 v66, v3, 1, v66
            v_mul_u32_u24 v66, {RS}, v66
            v_bfe_u32 v67, v1, 4, 1
            v_lshlrev_b32 v67, 5, v67
            v_and_b32 v7, 3, v1
            v_lshl_add_u32 v67, v7, 3, v67
            s_lshl_b32 s45, s20, 8
            s_add_u32 s45, s45, {CT}
            v_add3_u32 v64, v66, v67, s45
            v_add_u32 v65, {64*RS}, v64""")
    OACC = 96
    VB = [160, 192]
    steps = [(T, s) for s in range(8) for T in range(4)]
    def trread(dst, T, s):
        wq, u = s >> 1, s & 1
        base = 64 if wq < 2 else 65
        off = (32*(wq & 1) + 16*u) * RS + 64*T
        k.e(f"ds_read_b64_tr_b16 v[{dst}:{dst+1}], v{base} offset:{off}")
        k.e(f"ds_read_b64_tr_b16 v[{dst+2}:{dst+3}], v{base} offset:{off+RS}")
    CH = 4
    chunks = [steps[i:i+CH] for i in range(0, 32, CH)]
    for i, (T, s) in enumerate(chunks[0]):
        trread(VB[0] + 4*i, T, s)
    for ci, ch in enumerate(chunks):
        if ci + 1 < len(chunks):
            for i, (T, s) in enumerate(chunks[ci+1]):
                trread(VB[(ci+1) % 2] + 4*i, T, s)
            k.e(f"s_waitcnt lgkmcnt({2*CH})")
        else:
            k.e("s_waitcnt lgkmcnt(0)")
        for i, (T, s) in enumerate(ch):
            a = VB[ci % 2] + 4*i
            o = OACC + 16*T
            cin = "0" if s == 0 else f"v[{o}:{o+15}]"
            k.e(f"v_mfma_f32_32x32x16_bf16 v[{o}:{o+15}], v[{a}:{a+3}], v[{PF+4*s}:{PF+3+4*s}], {cin}")
    k.stamp(4)
    Lk = k.newlab("skipml")
    k.e(f"""v_add_f32 v12, v12, v13
            v_add_f32 v14, v14, v15
            v_add_f32 v9, v12, v14
            s_and_b32 s46, s2, 127
            s_lshl_b32 s47, s21, 12
            s_add_u32 s46, s46, s47
            s_lshl_b32 s46, s46, 3
            v_lshl_add_u32 v10, v2, 10, s46
            v_mov_b32 v228, v10""")
    k.e(f"""s_lshl_b32 s46, s2, 15
            s_lshl_b32 s47, s20, 8
            s_add_u32 s46, s46, s47
            v_mul_u32_u24 v10, {RS}, v2
            v_lshl_add_u32 v10, v3, 3, v10
            v_add_u32 v10, s45, v10
            v_lshrrev_b32 v11, 4, v1
            v_and_b32 v12, 15, v1
            v_mul_u32_u24 v13, {RS}, v11
            v_lshl_add_u32 v13, v12, 4, v13
            v_add_u32 v13, s45, v13
            v_lshlrev_b32 v14, 10, v11
            v_lshl_add_u32 v14, v12, 4, v14""")
    for T in range(4):
        o = OACC + 16*T
        for a in range(4):
            d = 32 + 2*(4*T + a)
            k.e(f"""v_cvt_pk_bf16_f32 v{d}, v{o+4*a}, v{o+4*a+1}
                    v_cvt_pk_bf16_f32 v{d+1}, v{o+4*a+2}, v{o+4*a+3}
                    ds_write_b64 v10, v[{d}:{d+1}] offset:{64*T + 16*a}""")
    for n in range(8):
        k.e(f"ds_read_b128 v[{160+4*n}:{163+4*n}], v13 offset:{4*RS*n}")
    for n in range(8):
        k.e(f"""s_waitcnt lgkmcnt({7-n})
                buffer_store_dwordx4 v[{160+4*n}:{163+4*n}], v14, s[60:63], s46 offen sc1
                s_add_u32 s46, s46, 4096""")
    k.e("s_waitcnt vmcnt(0)")
    k.stamp(5)
    k.sanitize([8, 9], 229)
    Lp = k.newlab("pubml")
    k.e(f"""s_waitcnt vmcnt(0)
            s_mov_b64 exec, 1
            ds_add_rtn_u32 v226, v224, v225 offset:{SYNC + 28}
            s_waitcnt lgkmcnt(0)
            v_readfirstlane_b32 s44, v226
            s_mov_b32 exec_lo, -1
            s_cmp_lg_u32 s44, 3
            s_cbranch_scc1 {Lp}
            buffer_store_dwordx2 v[8:9], v228, s[64:67], 0 offen sc1""")
    k.lab(Lp)
    k.e("s_mov_b64 exec, -1")
    k.e(f"s_cmp_ge_u32 s2, 144\ns_cbranch_scc1 {k.name}_end")
    lds_wait(k, int(os.environ.get("GUW", "10")), 4, 224, 226, 44, sleep=2)
    dma64_off(k, 8, 1, 10, 11, 9, 9216)
    k.e(f"""s_and_b32 s85, s2, 7
            s_lshl_b32 s85, s85, 1
            s_bfe_u32 s45, s2, 0x10003
            s_add_u32 s85, s85, s45
            s_andn2_b32 s45, s2, 15
            s_add_u32 s85, s85, s45
            s_mul_i32 s41, s20, 9*16*9216
            s_lshl_b32 s42, s85, 6
            s_add_u32 s41, s41, s42
            s_mul_i32 s43, s20, 9216
            s_add_u32 s43, s43, {BIG_L}
            s_add_u32 s44, s43, 36864""")
    for mi in range(9):
        GT = int(os.environ.get("GUT", "3"))
        if GT and mi >= GT: k.e(f"s_waitcnt vmcnt({2*GT-2})")
        k.e(f"""s_mov_b32 m0, s43
                s_add_u32 s43, s43, 1024
                buffer_load_dwordx4 v8, s[72:75], s41 offen {GUNT} lds
                s_mov_b32 m0, s44
                s_add_u32 s44, s44, 1024
                buffer_load_dwordx4 v8, s[76:79], s41 offen {GUNT} lds
                s_add_u32 s41, s41, {16*9216}""")
    if os.environ.get("DNA", "0") == "1":
        lds_wait(k, 11, 4, 224, 226, 44, sleep=1)
        k.e(f"""v_lshlrev_b32 v9, 4, v1
                s_mul_i32 s41, s85, 36864
                s_mul_i32 s42, s20, 9216
                s_add_u32 s41, s41, s42
                s_add_u32 s43, s42, {OST_L}""")
        for mi in range(9):
            if mi >= 2: k.e("s_waitcnt vmcnt(4)")
            k.e(f"""s_mov_b32 m0, s43
                    s_add_u32 s43, s43, 1024
                    buffer_load_dwordx4 v9, s[88:91], s41 offen nt lds
                    s_add_u32 s41, s41, 1024""")
    k.e(f"s_waitcnt vmcnt(0)\ns_branch {k.name}_end")

def dma64_off(k, vA, lane, t1, t2, t3, rowstride):
    k.e(f"""v_lshrrev_b32 v{t1}, 2, v{lane}
            v_and_b32 v{t2}, 3, v{lane}
            v_bfe_u32 v{t3}, v{lane}, 5, 1
            v_lshlrev_b32 v{t3}, 1, v{t3}
            v_xor_b32 v{t2}, v{t2}, v{t3}
            v_mul_u32_u24 v{vA}, {rowstride}, v{t1}
            v_lshl_add_u32 v{vA}, v{t2}, 4, v{vA}""")

def tr64_base(k, dst, v3, v4, nt_sreg, t1, t2):
    k.e(f"""v_lshrrev_b32 v{t1}, 2, v{v3}
            v_lshl_add_u32 v{t1}, v{v4}, 3, v{t1}
            v_lshlrev_b32 v{t1}, 6, v{t1}
            v_bfe_u32 v{t2}, v{v3}, 1, 1
            v_add_u32 v{t2}, s{nt_sreg}, v{t2}
            v_and_b32 v{dst}, 1, v{v4}
            v_lshlrev_b32 v{dst}, 1, v{dst}
            v_xor_b32 v{t2}, v{t2}, v{dst}
            v_lshl_add_u32 v{t1}, v{t2}, 4, v{t1}
            v_and_b32 v{dst}, 1, v{v3}
            v_lshl_add_u32 v{dst}, v{dst}, 3, v{t1}""")

def poll_gather(k, loads, regs, scnt, mask_s=None):
    L = k.newlab("poll"); Ld = k.newlab("pdone")
    k.e(f"s_mov_b32 s{scnt}, 0")
    if len(loads) > 1 and os.environ.get("PRE", "1") == "1":
        L1, L1d = k.newlab("pre"), k.newlab("pred")
        n1 = len(regs) // len(loads)
        r1 = regs[-n1:]
        k.lab(L1)
        k.e(loads[-1])
        k.e(f"""s_waitcnt vmcnt(0)
                v_max_u32 v7, v{r1[0]}, v{r1[1]}
                v_max3_u32 v7, v7, v{r1[2]}, v{r1[3]}
                v_cmp_eq_u32 vcc, -1, v7
                s_add_u32 s{scnt}, s{scnt}, 1
                s_cmp_gt_u32 s{scnt}, {SPIN_MAX}
                s_cbranch_scc1 {L1d}
                s_cbranch_vccz {L1d}
                s_sleep {os.environ.get('PSLP', '4')}
                s_branch {L1}""")
        k.lab(L1d)
    k.lab(L)
    for l in loads: k.e(l)
    k.e("s_waitcnt vmcnt(0)")
    k.e(f"v_max_u32 v7, v{regs[0]}, v{regs[1]}")
    for i in range(2, len(regs) - 1, 2):
        k.e(f"v_max3_u32 v7, v7, v{regs[i]}, v{regs[i+1]}")
    if len(regs) % 2: k.e(f"v_max_u32 v7, v7, v{regs[-1]}")
    k.e(f"""v_cmp_eq_u32 vcc, -1, v7
            s_add_u32 s{scnt}, s{scnt}, 1
            s_cmp_gt_u32 s{scnt}, {SPIN_MAX}
            s_cbranch_scc1 {Ld}
            s_cbranch_vccz {Ld}
            s_sleep {os.environ.get('GSLP', '1')}
            s_branch {L}""")
    k.lab(Ld)

def team_b(k):
    k.e("""v_subrev_u32 v0, 0x100, v0
           s_sub_u32 s20, s20, 4
           v_and_b32 v3, 15, v1
           v_lshrrev_b32 v4, 4, v1
           s_and_b32 s21, s2, 31
           s_lshr_b32 s22, s2, 5
           v_mov_b32 v124, 0
           v_mov_b32 v125, 1""")
    k.ldptr(12, "wuv"); k.ldptr(14, "wo"); k.ldptr(64, "wd"); k.ldptr(66, "x"); k.ldptr(68, "out")
    k.e("s_waitcnt lgkmcnt(0)")
    k.srd(24, 12, SZ["wuv"]); k.srd(28, 10, 65536, WS_ML); k.srd(32, 10, 8388608, WS_OP); k.srd(36, 10, 262144, WS_CTX)
    k.srd(56, 10, 8*36864, WS_OUTP); k.srd(60, 10, 663552, WS_DNP)
    k.srd(72, 14, SZ["wo"]); k.srd(76, 4, SZ["ckv"]); k.srd(84, 64, SZ["wd"])
    k.srd(88, 66, SZ["x"]); k.srd(92, 68, SZ["out"])
    k.e("""s_sub_u32 s47, s2, 144
           s_mul_i32 s48, s47, 7282
           s_lshr_b32 s48, s48, 16
           s_mul_i32 s49, s48, 9
           s_sub_u32 s49, s47, s49""")
    k.e(f"""v_lshlrev_b32 v9, 4, v1
            s_lshl_b32 s40, s2, 7
            s_lshl_b32 s41, s20, 5
            s_add_u32 s40, s40, s41
            s_lshl_b32 s40, s40, 10
            s_mul_i32 s42, s41, {RS}
            s_add_u32 s42, s42, {CT}""")
    THR = int(os.environ.get("THR", "3")); DLY = int(os.environ.get("DLY", "0"))
    if DLY: lds_wait(k, 1, 1, 124, 126, 46, sleep=1)
    for r in range(32):
        R1 = int(os.environ.get("R1", "12")); THR2 = int(os.environ.get("THR2", "0"))
        th = THR if r < R1 else THR2
        if th and r >= th: k.e(f"s_waitcnt vmcnt({th-1})")
        k.e(f"""s_mov_b32 m0, s42
                s_add_u32 s42, s42, {RS}
                buffer_load_dwordx4 v9, s[76:79], s40 offen nt lds
                s_add_u32 s40, s40, 1024""")
    k.e(f"""v_lshlrev_b32 v13, 1, v4
            v_xor_b32 v13, v13, v3
            v_lshlrev_b32 v13, 4, v13
            v_lshl_add_u32 v13, v4, 13, v13
            v_xor_b32 v14, 0x80, v13
            s_lshl_b32 s44, s22, 6
            s_lshl_b32 s45, s20, 4
            s_add_u32 s44, s44, s45
            s_lshl_b32 s44, s44, 13
            s_lshl_b32 s45, s21, 8
            s_add_u32 s44, s44, s45
            s_waitcnt vmcnt(0)
            s_mov_b64 exec, 1
            ds_add_u32 v124, v125 offset:{SYNC}
            s_mov_b64 exec, -1""")
    k.stamp(1)
    for mi in range(4):
        k.e(f"""buffer_load_dwordx4 v[{128+4*mi}:{131+4*mi}], v{14 if mi & 2 else 13}, s[24:27], s44 offen nt
                s_add_u32 s44, s44, 32768""")
    LW = k.newlab("ldW")
    k.e(f"""s_cmp_lt_u32 s2, 144
            s_cbranch_scc1 {LW}
            s_cmp_ge_u32 s2, 216
            s_cbranch_scc1 {LW}""")
    k.e("""v_lshrrev_b32 v10, 3, v1
           v_and_b32 v11, 7, v1
           v_and_b32 v12, 2, v10
           v_xor_b32 v11, v11, v12
           v_mul_u32_u24 v8, 1152, v10
           v_lshl_add_u32 v8, v11, 4, v8
           v_xor_b32 v11, 4, v11
           v_mul_u32_u24 v7, 1152, v10
           v_lshl_add_u32 v7, v11, 4, v7
           s_lshl_b32 s41, s48, 9
           s_lshl_b32 s42, s20, 7
           s_add_u32 s41, s41, s42
           s_mul_i32 s41, s41, 1152
           s_lshl_b32 s42, s49, 7
           s_add_u32 s41, s41, s42""")
    for mi in range(16):
        k.e(f"""buffer_load_dwordx4 v[{144+4*mi}:{147+4*mi}], v{7 if mi & 1 else 8}, s[72:75], s41 offen nt
                s_add_u32 s41, s41, {8*1152}""")
    k.lab(LW)
    k.stamp(2)
    lds_wait(k, 7, 4, 124, 126, 46, sleep=2)
    k.stamp(3)
    k.e(f"""s_waitcnt vmcnt(0)
            s_lshl_b32 s41, s20, 12
            s_add_u32 s41, s41, {WUV_L}
            v_add_u32 v10, s41, v9""")
    for mi in range(4):
        k.e(f"ds_write_b128 v10, v[{128+4*mi}:{131+4*mi}] offset:{1024*mi}")
    LW2 = k.newlab("stW")
    k.e(f"""s_cmp_lt_u32 s2, 144
            s_cbranch_scc1 {LW2}
            s_cmp_ge_u32 s2, 216
            s_cbranch_scc1 {LW2}
            s_lshl_b32 s41, s20, 14
            s_add_u32 s41, s41, {BIG_L}
            v_add_u32 v10, s41, v9""")
    for mi in range(16):
        k.e(f"ds_write_b128 v10, v[{144+4*mi}:{147+4*mi}] offset:{1024*mi}")
    k.lab(LW2)
    k.stamp(5)
    k.e("""v_lshrrev_b32 v5, 7, v0
           v_and_b32 v6, 127, v0
           v_lshlrev_b32 v5, 12, v5
           v_add_u32 v5, v5, v6
           s_lshl_b32 s40, s21, 7
           v_add_u32 v5, s40, v5
           v_lshlrev_b32 v5, 3, v5""")
    poll_gather(k, ["buffer_load_dwordx2 v[8:9], v5, s[28:31], 0 offen sc1"], [8, 9], 46)
    k.stamp(6)
    k.e(f"""v_lshrrev_b32 v10, 3, v1
            v_and_b32 v11, 7, v1
            v_and_b32 v12, 2, v10
            v_xor_b32 v11, v11, v12
            v_lshlrev_b32 v11, 4, v11
            v_lshl_add_u32 v11, v10, 15, v11
            v_xor_b32 v12, 64, v11
            s_lshl_b32 s41, s21, 10
            s_lshl_b32 s42, s22, 7
            s_add_u32 s41, s41, s42
            s_lshl_b32 s42, s20, 21
            s_add_u32 s41, s41, s42
            s_lshl_b32 s43, s20, 13
            s_add_u32 s43, s43, {OST_L}""")
    for mi in range(8):
        k.e(f"""s_mov_b32 m0, s43
                s_add_u32 s43, s43, 1024
                buffer_load_dwordx4 v{12 if mi & 1 else 11}, s[32:35], s41 offen sc1 lds
                s_add_u32 s41, s41, 262144""")
    k.e("v_mov_b32 v15, v8")
    k.allreduce("max", 15, 16)
    k.e(f"""s_lshl_b32 s46, s20, 2
            v_mov_b32 v17, s46
            ds_write_b32 v17, v15 offset:{D_R}
            s_waitcnt lgkmcnt(0)
            """)
    lds_sync(k, 8, 4, 124, 125, 126, 46)
    k.e(f"""
            s_and_b32 s47, s20, 2
            s_lshl_b32 s47, s47, 2
            v_mov_b32 v18, s47
            ds_read_b64 v[20:21], v18 offset:{D_R}
            s_waitcnt lgkmcnt(0)
            v_max_f32 v15, v20, v21
            v_sub_f32 v8, v8, v15
            v_exp_f32 v8, v8
            s_nop 0
            v_mul_f32 v19, v8, v9""")
    k.allreduce("add", 19, 16)
    k.e(f"""ds_write_b32 v17, v19 offset:{D_R+16}
            s_waitcnt lgkmcnt(0)
            """)
    lds_sync(k, 9, 4, 124, 125, 126, 46)
    k.e(f"""
            ds_read_b64 v[20:21], v18 offset:{D_R+16}
            s_waitcnt lgkmcnt(0)
            v_add_f32 v19, v20, v21
            v_rcp_f32 v19, v19
            s_nop 0
            v_mul_f32 v8, v8, v19""")
    k.hilo(8, 22, 23, 24)
    k.e(f"""v_lshrrev_b32 v25, 7, v0
            v_lshlrev_b32 v25, 9, v25
            v_lshl_add_u32 v25, v6, 1, v25
            ds_write_b16 v25, v22 offset:{D_A}
            ds_write_b16 v25, v23 offset:{D_A+256}
            s_waitcnt vmcnt(0) lgkmcnt(0)
            """)
    lds_sync(k, 10, 4, 124, 125, 126, 46)
    k.e(f"""""")
    k.stamp(7)
    k.e(f"""v_and_b32 v26, 1, v1
            v_lshlrev_b32 v26, 8, v26
            v_lshl_add_u32 v26, v4, 4, v26
            s_lshr_b32 s46, s20, 1
            s_lshl_b32 s47, s46, 9
            v_add_u32 v26, s47, v26""")
    for t in range(4):
        k.e(f"ds_read_b128 v[{28+4*t}:{31+4*t}], v26 offset:{D_A + 64*t}")
    k.e(f"""v_lshrrev_b32 v9, 2, v3
            v_lshl_add_u32 v10, v4, 3, v9
            v_lshlrev_b32 v10, 7, v10
            v_and_b32 v11, 2, v9
            v_and_b32 v12, 1, v4
            v_lshl_or_b32 v11, v12, 2, v11
            v_bfe_u32 v12, v3, 1, 1
            s_and_b32 s47, s20, 1
            s_lshl_b32 s47, s47, 2
            v_add_u32 v12, s47, v12
            v_and_b32 v13, 1, v3
            v_lshl_add_u32 v10, v13, 3, v10
            s_lshl_b32 s47, s46, 14
            s_add_u32 s47, s47, {OST_L}
            v_add_u32 v10, s47, v10""")
    for nt in range(2):
        k.e(f"""v_add_u32 v14, {2*nt}, v12
                v_xor_b32 v14, v14, v11
                v_lshl_add_u32 v{15+nt}, v14, 4, v10""")
    for nt in range(2):
        for t in range(4):
            d = 44 + 16*nt + 4*t
            k.e(f"""ds_read_b64_tr_b16 v[{d}:{d+1}], v{15+nt} offset:{4096*t}
                    ds_read_b64_tr_b16 v[{d+2}:{d+3}], v{15+nt} offset:{4096*t + 512}""")
    k.e("s_waitcnt lgkmcnt(0)")
    for nt in range(2):
        for t in range(4):
            d = 44 + 16*nt + 4*t
            acc = 20 if nt == 0 else 76
            cin = "0" if t == 0 else f"v[{acc}:{acc+3}]"
            k.e(f"v_mfma_f32_16x16x32_bf16 v[{acc}:{acc+3}], v[{28+4*t}:{31+4*t}], v[{d}:{d+3}], {cin}")
    k.e(f"""s_and_b32 s47, s20, 1
            s_lshl_b32 s47, s47, 6
            s_lshl_b32 s50, s46, 7
            s_add_u32 s47, s47, s50
            v_lshl_add_u32 v27, v3, 1, s47
            s_nop 7""")
    for nt in range(2):
        acc = 20 if nt == 0 else 76
        k.e(f"v_add_f32 v8, v{acc}, v{acc+1}")
        k.hilo(8, 9, 24, 25)
        k.e(f"""ds_write_b16 v27, v9 offset:{D_A2 + 32*nt}
                ds_write_b16 v27, v24 offset:{D_A2 + 256 + 32*nt}""")
    k.e("s_waitcnt lgkmcnt(0)")
    lds_sync(k, 11, 4, 124, 125, 126, 46)
    k.e(f"""v_and_b32 v8, 3, v1
            v_lshlrev_b32 v8, 7, v8
            v_lshl_add_u32 v8, v4, 4, v8
            ds_read_b128 v[28:31], v8 offset:{D_A2}
            ds_read_b128 v[32:35], v8 offset:{D_A2+64}""")
    k.e(f"""v_lshrrev_b32 v9, 2, v3
            v_lshl_add_u32 v10, v4, 3, v9
            v_lshlrev_b32 v10, 8, v10
            v_and_b32 v11, 1, v4
            v_lshlrev_b32 v11, 3, v11
            v_lshl_or_b32 v11, v9, 1, v11
            v_bfe_u32 v12, v3, 1, 1
            s_lshl_b32 s47, s20, 2
            v_add_u32 v12, s47, v12
            v_and_b32 v13, 1, v3
            v_lshl_add_u32 v10, v13, 3, v10""")
    for nt in range(2):
        k.e(f"""v_add_u32 v14, {2*nt}, v12
                v_xor_b32 v14, v14, v11
                v_lshl_add_u32 v{15+nt}, v14, 4, v10""")
    for nt in range(2):
        for t in range(2):
            d = 44 + 8*nt + 4*t
            k.e(f"""ds_read_b64_tr_b16 v[{d}:{d+1}], v{15+nt} offset:{WUV_L + 8192*t}
                    ds_read_b64_tr_b16 v[{d+2}:{d+3}], v{15+nt} offset:{WUV_L + 8192*t + 1024}""")
    k.e("s_waitcnt lgkmcnt(0)")
    for nt in range(2):
        acc = 20 if nt == 0 else 76
        for t in range(2):
            d = 44 + 8*nt + 4*t
            cin = "0" if t == 0 else f"v[{acc}:{acc+3}]"
            k.e(f"v_mfma_f32_16x16x32_bf16 v[{acc}:{acc+3}], v[{28+4*t}:{31+4*t}], v[{d}:{d+3}], {cin}")
    k.e(f"""s_lshl_b32 s47, s22, 15
            s_lshl_b32 s50, s21, 9
            s_add_u32 s47, s47, s50
            s_lshl_b32 s50, s20, 7
            s_add_u32 s47, s47, s50
            v_lshl_add_u32 v27, v3, 2, s47
            s_nop 7
            v_add_f32 v8, v20, v22
            v_add_f32 v9, v21, v23
            v_add_f32 v10, v76, v78
            v_add_f32 v11, v77, v79""")
    k.sanitize([8, 9, 10, 11], 12)
    k.e(f"""s_mov_b32 s47, 16384
            v_cmp_gt_u32 vcc, 16, v1
            s_and_saveexec_b64 s[50:51], vcc
            buffer_store_dword v8, v27, s[36:39], 0 offen sc1
            buffer_store_dword v9, v27, s[36:39], s47 offen sc1
            buffer_store_dword v10, v27, s[36:39], 0 offen offset:64 sc1
            buffer_store_dword v11, v27, s[36:39], s47 offen offset:64 sc1
            s_mov_b64 exec, s[50:51]""")
    k.stamp(8)
    LPE, LPG = k.newlab("phE"), k.newlab("phG")
    k.e(f"s_cmp_ge_u32 s2, 144\ns_cbranch_scc1 {LPE}")
    phase_f(k)
    k.e(f"s_branch {k.name}_end")
    k.lab(LPE)
    k.e(f"s_cmp_ge_u32 s2, 216\ns_cbranch_scc1 {LPG}")
    phase_e(k)
    k.e(f"s_branch {k.name}_end")
    k.lab(LPG)
    k.e(f"s_cmp_ge_u32 s2, 234\ns_cbranch_scc1 {k.name}_end")
    phase_g(k)

def phase_e(k):
    A_LDS = T_A
    k.e("""v_lshrrev_b32 v5, 7, v0
           v_and_b32 v6, 127, v0
           v_lshlrev_b32 v8, 14, v5
           v_lshl_add_u32 v8, v6, 4, v8
           s_lshl_b32 s40, s48, 11""")
    loads = []
    for j in range(8):
        loads.append(f"s_add_u32 s41, s40, {32768*j}\nbuffer_load_dwordx4 v[{20+4*j}:{23+4*j}], v8, s[36:39], s41 offen sc1")
    poll_gather(k, loads, list(range(20, 52)), 46)
    k.stamp(9)
    for j in range(1, 8):
        for e in range(4):
            k.e(f"v_add_f32 v{20+e}, v{20+e}, v{20+4*j+e}")
    k.e("""v_cvt_pk_bf16_f32 v24, v20, v21
           v_cvt_pk_bf16_f32 v25, v22, v23
           v_lshlrev_b32 v26, 16, v24
           v_and_b32 v27, 0xffff0000, v24
           v_lshlrev_b32 v28, 16, v25
           v_and_b32 v29, 0xffff0000, v25
           v_sub_f32 v20, v20, v26
           v_sub_f32 v21, v21, v27
           v_sub_f32 v22, v22, v28
           v_sub_f32 v23, v23, v29
           v_cvt_pk_bf16_f32 v26, v20, v21
           v_cvt_pk_bf16_f32 v27, v22, v23
           v_lshlrev_b32 v12, 10, v5
           v_lshl_add_u32 v12, v6, 3, v12""")
    k.e(f"""ds_write_b64 v12, v[24:25] offset:{A_LDS}
            ds_write_b64 v12, v[26:27] offset:{A_LDS+2048}
            s_waitcnt lgkmcnt(0)
            s_barrier""")
    k.e("""v_and_b32 v8, 3, v1
           v_lshlrev_b32 v8, 10, v8
           v_lshl_add_u32 v8, v4, 4, v8""")
    for t in range(16):
        k.e(f"ds_read_b128 v[{20+4*t}:{23+4*t}], v8 offset:{A_LDS + 64*t}")
    k.e(f"""v_lshrrev_b32 v9, 2, v3
            v_lshl_add_u32 v10, v4, 3, v9
            v_lshlrev_b32 v10, 7, v10
            v_and_b32 v11, 2, v9
            v_and_b32 v12, 1, v4
            v_lshl_or_b32 v11, v12, 2, v11
            v_bfe_u32 v12, v3, 1, 1
            s_lshl_b32 s47, s20, 1
            v_add_u32 v12, s47, v12
            v_and_b32 v13, 1, v3
            v_lshl_add_u32 v10, v13, 3, v10
            v_xor_b32 v12, v12, v11
            v_lshl_add_u32 v15, v12, 4, v10
            v_add_u32 v15, {BIG_L}, v15""")
    for c in range(2):
        for i in range(8):
            t = 8*c + i
            d = 88 + 4*i
            k.e(f"""ds_read_b64_tr_b16 v[{d}:{d+1}], v15 offset:{4096*t}
                    ds_read_b64_tr_b16 v[{d+2}:{d+3}], v15 offset:{4096*t + 512}""")
        k.e("s_waitcnt lgkmcnt(0)")
        for i in range(8):
            t = 8*c + i
            d = 88 + 4*i
            cin = "0" if t == 0 else "v[120:123]"
            k.e(f"v_mfma_f32_16x16x32_bf16 v[120:123], v[{20+4*t}:{23+4*t}], v[{d}:{d+3}], {cin}")
        k.e("s_nop 3")
    k.e(f"""s_mul_i32 s45, s48, 4608
            s_lshl_b32 s46, s49, 8
            s_add_u32 s45, s45, s46
            s_lshl_b32 s46, s20, 6
            s_add_u32 s45, s45, s46
            v_lshl_add_u32 v12, v3, 2, s45
            s_nop 7
            v_add_f32 v8, v120, v122
            v_add_f32 v9, v121, v123""")
    k.sanitize([8, 9], 10)
    k.e(f"""v_cmp_gt_u32 vcc, 16, v1
            s_and_saveexec_b64 s[50:51], vcc
            s_mov_b32 s45, 0""")
    for r in range(8):
        k.e("""buffer_store_dword v8, v12, s[56:59], s45 offen sc1
               buffer_store_dword v9, v12, s[56:59], s45 offen offset:2304 sc1
               s_add_u32 s45, s45, 36864""")

def phase_f(k):
    A_LDS, R_LDS, GU_LDS, A2_LDS = T_A, T_A + 4608, T_A + 4672, T_A + 5184
    D_LDS = OST_L
    if os.environ.get("DNA", "0") != "1":
        k.e("s_barrier")
        k.e(f"""s_and_b32 s83, s2, 7
                s_lshl_b32 s83, s83, 1
                s_bfe_u32 s45, s2, 0x10003
                s_add_u32 s83, s83, s45
                s_andn2_b32 s45, s2, 15
                s_add_u32 s83, s83, s45
                v_lshlrev_b32 v9, 4, v1
                s_mul_i32 s41, s83, 36864
                s_mul_i32 s42, s20, 9216
                s_add_u32 s41, s41, s42
                s_add_u32 s43, s42, {D_LDS}""")
        for mi in range(9):
            k.e(f"""s_mov_b32 m0, s43
                    s_add_u32 s43, s43, 1024
                    buffer_load_dwordx4 v9, s[84:87], s41 offen nt lds
                    s_add_u32 s41, s41, 1024""")
    k.stamp(10)
    k.e("""v_lshlrev_b32 v5, 4, v0
           v_mov_b32 v6, 0x7fffffff
           v_cmp_gt_u32 vcc, 144, v0
           s_nop 1
           v_cndmask_b32 v5, v6, v5, vcc
           v_lshrrev_b32 v8, 1, v5
           v_cndmask_b32 v8, v6, v8, vcc
           s_mov_b64 s[64:65], vcc""")
    k.e("""buffer_load_dwordx2 v[84:85], v8, s[88:91], 0 offen
           buffer_load_dwordx2 v[86:87], v8, s[88:91], 0 offen offset:1152""")
    k.e("s_and_b32 s41, s2, 7\ns_mul_i32 s41, s41, 36864")
    loads = []
    for ks in range(8):
        for b in range(2):
            r = 20 + 8*ks + 4*b
            loads.append(f"s_add_u32 s40, s41, {4608*ks}\nbuffer_load_dwordx4 v[{r}:{r+3}], v5, s[56:59], s40 offen offset:{2304*b} sc1")
    poll_gather(k, loads, list(range(20, 84)), 46)
    k.stamp(9)
    for ks in range(1, 8):
        for e in range(8):
            k.e(f"v_add_f32 v{20+e}, v{20+e}, v{20+8*ks+e}")
    for b in range(2):
        k.e(f"""v_lshlrev_b32 v12, 16, v{84+2*b}
                v_and_b32 v13, 0xffff0000, v{84+2*b}
                v_lshlrev_b32 v14, 16, v{85+2*b}
                v_and_b32 v15, 0xffff0000, v{85+2*b}
                v_add_f32 v{20+4*b}, v{20+4*b}, v12
                v_add_f32 v{21+4*b}, v{21+4*b}, v13
                v_add_f32 v{22+4*b}, v{22+4*b}, v14
                v_add_f32 v{23+4*b}, v{23+4*b}, v15""")
    k.e(f"""v_add_u32 v16, {BIG_L + 73728}, v5
            s_mov_b64 s[66:67], exec
            s_mov_b64 exec, s[64:65]
            ds_write_b128 v16, v[20:23]
            ds_write_b128 v16, v[24:27] offset:2304
            s_mov_b64 exec, s[66:67]""")
    k.e("""v_add_f32 v28, v20, v21
           v_add_f32 v29, v22, v23
           v_add_f32 v28, v28, v29
           v_add_f32 v29, v24, v25
           v_add_f32 v30, v26, v27
           v_add_f32 v29, v29, v30""")
    k.allreduce("add", 28, 31)
    k.allreduce("add", 29, 31)
    k.e(f"""s_lshl_b32 s46, s20, 3
            v_mov_b32 v32, s46
            v_mov_b32 v33, 0
            ds_write_b64 v32, v[28:29] offset:{R_LDS}
            s_waitcnt lgkmcnt(0)
            s_barrier
            ds_read_b128 v[36:39], v33 offset:{R_LDS}
            ds_read_b64 v[40:41], v33 offset:{R_LDS+16}
            s_waitcnt lgkmcnt(0)
            v_add_f32 v28, v36, v38
            v_add_f32 v28, v28, v40
            v_add_f32 v29, v37, v39
            v_add_f32 v29, v29, v41
            v_mul_f32 v28, {f2u(1.0/576)}, v28
            v_mul_f32 v29, {f2u(1.0/576)}, v29""")
    for b in range(2):
        for e in range(4):
            k.e(f"v_sub_f32 v{20+4*b+e}, v{20+4*b+e}, v{28+b}")
    for b in range(2):
        k.e(f"""v_mul_f32 v{30+b}, v{20+4*b}, v{20+4*b}
                v_fmac_f32 v{30+b}, v{21+4*b}, v{21+4*b}
                v_fmac_f32 v{30+b}, v{22+4*b}, v{22+4*b}
                v_fmac_f32 v{30+b}, v{23+4*b}, v{23+4*b}
                v_cndmask_b32 v{30+b}, 0, v{30+b}, s[64:65]""")
    k.allreduce("add", 30, 34)
    k.allreduce("add", 31, 34)
    k.e(f"""ds_write_b64 v32, v[30:31] offset:{R_LDS+32}
            s_waitcnt lgkmcnt(0)
            s_barrier
            ds_read_b128 v[36:39], v33 offset:{R_LDS+32}
            ds_read_b64 v[40:41], v33 offset:{R_LDS+48}
            s_waitcnt lgkmcnt(0)
            v_add_f32 v30, v36, v38
            v_add_f32 v30, v30, v40
            v_add_f32 v31, v37, v39
            v_add_f32 v31, v31, v41
            v_mov_b32 v34, {f2u(1e-5)}
            v_mov_b32 v35, {f2u(1e-5)}
            v_fmac_f32 v34, {f2u(1.0/576)}, v30
            v_fmac_f32 v35, {f2u(1.0/576)}, v31
            v_rsq_f32 v34, v34
            v_rsq_f32 v35, v35
            v_lshlrev_b32 v12, 3, v0""")
    for b in range(2):
        o = 20 + 4*b
        for e in range(4):
            k.e(f"v_mul_f32 v{o+e}, v{o+e}, v{34+b}")
        k.e(f"""v_cvt_pk_bf16_f32 v36, v{o}, v{o+1}
                v_cvt_pk_bf16_f32 v37, v{o+2}, v{o+3}
                v_lshlrev_b32 v38, 16, v36
                v_and_b32 v39, 0xffff0000, v36
                v_lshlrev_b32 v40, 16, v37
                v_and_b32 v41, 0xffff0000, v37
                v_sub_f32 v{o}, v{o}, v38
                v_sub_f32 v{o+1}, v{o+1}, v39
                v_sub_f32 v{o+2}, v{o+2}, v40
                v_sub_f32 v{o+3}, v{o+3}, v41
                v_cvt_pk_bf16_f32 v38, v{o}, v{o+1}
                v_cvt_pk_bf16_f32 v39, v{o+2}, v{o+3}
                s_mov_b64 s[66:67], exec
                s_mov_b64 exec, s[64:65]
                ds_write_b64 v12, v[36:37] offset:{A_LDS + 1152*b}
                ds_write_b64 v12, v[38:39] offset:{A_LDS + 2304 + 1152*b}
                s_mov_b64 exec, s[66:67]""")
    k.e("s_waitcnt lgkmcnt(0)\ns_barrier")
    k.e(f"""v_and_b32 v8, 3, v1
            v_mul_u32_u24 v8, 1152, v8
            v_lshl_add_u32 v8, v4, 4, v8
            s_and_b32 s44, s20, 1
            s_lshl_b32 s44, s44, 1
            s_lshr_b32 s45, s20, 1
            s_mul_i32 s45, s45, 36864
            s_add_u32 s45, s45, {BIG_L}""")
    for t in range(18):
        k.e(f"ds_read_b128 v[{20+4*t}:{23+4*t}], v8 offset:{A_LDS + 64*t}")
    tr64_base(k, 15, 3, 4, 44, 10, 11)
    k.e("v_add_u32 v15, s45, v15")
    for c in range(3):
        for i in range(6):
            t = 6*c + i
            d = 96 + 4*i
            k.e(f"""ds_read_b64_tr_b16 v[{d}:{d+1}], v15 offset:{2048*t}
                    ds_read_b64_tr_b16 v[{d+2}:{d+3}], v15 offset:{2048*t + 256}""")
        k.e("s_waitcnt lgkmcnt(0)")
        for i in range(6):
            t = 6*c + i
            d = 96 + 4*i
            cin = "0" if t == 0 else "v[120:123]"
            k.e(f"v_mfma_f32_16x16x32_bf16 v[120:123], v[{20+4*t}:{23+4*t}], v[{d}:{d+3}], {cin}")
        k.e("s_nop 3")
    k.e("s_nop 7")
    k.e(f"""s_lshr_b32 s45, s20, 1
            s_lshl_b32 s45, s45, 8
            s_and_b32 s46, s20, 1
            s_lshl_b32 s46, s46, 6
            s_add_u32 s45, s45, s46
            v_lshl_add_u32 v12, v3, 2, s45
            v_add_f32 v8, v120, v122
            v_add_f32 v9, v121, v123
            ds_write_b32 v12, v8 offset:{GU_LDS}
            ds_write_b32 v12, v9 offset:{GU_LDS+128}
            s_waitcnt lgkmcnt(0)
            s_barrier
            v_lshlrev_b32 v12, 2, v1
            ds_read_b32 v8, v12 offset:{GU_LDS}
            ds_read_b32 v9, v12 offset:{GU_LDS+256}
            s_waitcnt lgkmcnt(0)
            v_mul_f32 v10, {f2u(-LOG2E)}, v8
            v_exp_f32 v10, v10
            s_nop 0
            v_add_f32 v10, 1.0, v10
            v_rcp_f32 v10, v10
            s_nop 0
            v_mul_f32 v8, v8, v10
            v_mul_f32 v8, v8, v9""")
    k.hilo(8, 9, 10, 11)
    k.e(f"""v_lshlrev_b32 v12, 1, v1
            ds_write_b16 v12, v9 offset:{A2_LDS}
            ds_write_b16 v12, v10 offset:{A2_LDS+128}
            s_waitcnt lgkmcnt(0)
            s_barrier
            v_and_b32 v8, 3, v1
            v_lshlrev_b32 v8, 6, v8
            v_lshl_add_u32 v8, v4, 4, v8
            ds_read_b128 v[20:23], v8 offset:{A2_LDS}""")
    k.e(f"""v_lshrrev_b32 v10, 2, v3
            v_lshl_add_u32 v10, v4, 3, v10
            v_mul_u32_u24 v10, 1152, v10
            v_and_b32 v11, 3, v3
            v_lshl_add_u32 v10, v11, 3, v10
            s_mul_i32 s45, s20, 288
            s_add_u32 s45, s45, {D_LDS}
            v_add_u32 v10, s45, v10""")
    for n in range(9):
        d = 24 + 4*n
        k.e(f"""ds_read_b64_tr_b16 v[{d}:{d+1}], v10 offset:{32*n}
                ds_read_b64_tr_b16 v[{d+2}:{d+3}], v10 offset:{32*n + 4608}""")
    k.e(f"""s_mul_i32 s46, s20, 576
            s_add_u32 s46, s46, {BIG_L + 73728}
            v_lshl_add_u32 v13, v3, 2, s46""")
    for n in range(9):
        k.e(f"""ds_read_b32 v{100+2*n}, v13 offset:{64*n}
                ds_read_b32 v{101+2*n}, v13 offset:{2304 + 64*n}""")
    k.e("s_waitcnt lgkmcnt(0)")
    for n in range(9):
        d = 24 + 4*n
        k.e(f"v_mfma_f32_16x16x32_bf16 v[{64+4*n}:{67+4*n}], v[20:23], v[{d}:{d+3}], 0")
    k.e(f"""s_mul_i32 s45, s2, 4608
            s_mul_i32 s46, s20, 576
            s_add_u32 s45, s45, s46
            v_lshl_add_u32 v12, v3, 2, s45
            s_cmp_eq_u32 s2, 0
            s_cselect_b32 s47, 1.0, 0
            v_mov_b32 v14, 0x7fc00000
            s_nop 4""")
    for n in range(9):
        a = 64 + 4*n
        k.e(f"""v_add_f32 v{a}, v{a}, v{a+2}
                v_add_f32 v{a+1}, v{a+1}, v{a+3}""")
    Lh = k.newlab("noh")
    k.e(f"s_cbranch_scc0 {Lh}")
    for n in range(9):
        a = 64 + 4*n
        k.e(f"""v_add_f32 v{a}, v{a}, v{100+2*n}
                v_add_f32 v{a+1}, v{a+1}, v{101+2*n}""")
    k.lab(Lh)
    for n in range(9):
        a = 64 + 4*n
        k.e(f"""v_cmp_eq_u32 vcc, -1, v{a}
                v_cmp_eq_u32 s[66:67], -1, v{a+1}
                s_nop 1
                v_cndmask_b32 v{a}, v{a}, v14, vcc
                v_cndmask_b32 v{a+1}, v{a+1}, v14, s[66:67]""")
    k.e("""v_cmp_gt_u32 vcc, 16, v1
           s_and_saveexec_b64 s[50:51], vcc""")
    for n in range(9):
        a = 64 + 4*n
        k.e(f"""buffer_store_dword v{a}, v12, s[60:63], 0 offen offset:{64*n} sc1
                buffer_store_dword v{a+1}, v12, s[60:63], 0 offen offset:{2304 + 64*n} sc1""")

def phase_g(k):
    k.e("""s_sub_u32 s48, s2, 216
           v_lshrrev_b32 v5, 4, v0
           v_and_b32 v6, 15, v0
           v_mul_u32_u24 v8, 4608, v5
           v_lshl_add_u32 v8, v6, 4, v8
           s_lshl_b32 s40, s48, 8""")
    loads = []
    for i in range(9):
        loads.append(f"s_add_u32 s41, s40, {16*4608*i}\nbuffer_load_dwordx4 v[{20+4*i}:{23+4*i}], v8, s[60:63], s41 offen sc1")
    poll_gather(k, loads, list(range(20, 56)), 46)
    k.stamp(9)
    for i in range(1, 9):
        for e in range(4):
            k.e(f"v_add_f32 v{20+e}, v{20+e}, v{20+4*i+e}")
    k.e(f"""v_lshlrev_b32 v9, 4, v0
            v_lshlrev_b32 v10, 2, v0
            ds_write_b128 v9, v[20:23] offset:{T_A}
            s_waitcnt lgkmcnt(0)
            s_barrier
            s_cmp_lg_u32 s20, 0
            s_cbranch_scc1 {k.name}_end""")
    for i in range(16):
        k.e(f"ds_read_b32 v{20+i}, v10 offset:{T_A + 256*i}")
    k.e("s_waitcnt lgkmcnt(0)")
    for i in range(1, 16):
        k.e(f"v_add_f32 v20, v20, v{20+i}")
    k.e("""v_cvt_pk_bf16_f32 v20, v20, v20
           v_lshlrev_b32 v10, 1, v0
           s_lshl_b32 s41, s48, 7
           buffer_store_short v20, v10, s[92:95], s41 offen""")

def k2_main():
    k = Kern("k_main_kernel", 256, 512, LDS_TOTAL, 256)
    guard(k, 256)
    k.ldptr(4, "ckv"); k.ldptr(10, "ws")
    wave_id(k, 20, 1)
    k.e(f"""v_and_b32 v1, 63, v0
            v_mov_b32 v2, 0
            v_lshlrev_b32 v3, 2, v1
            v_cmp_gt_u32 vcc, 20, v0
            s_and_saveexec_b64 s[48:49], vcc
            ds_write_b32 v3, v2 offset:{SYNC}
            s_mov_b64 exec, s[48:49]
            s_waitcnt lgkmcnt(0)
            s_barrier""")
    LB = k.newlab("teamB")
    if STAMP:
        k.sgpr = 102
        k.e("s_mov_b32 s101, s20\nv_mov_b32 v255, 0")
        k.stamp(0)
    k.e(f"s_cmp_ge_u32 s20, 4\ns_cbranch_scc1 {LB}")
    team_a(k)
    k.lab(LB)
    team_b(k)
    k.lab(f"{k.name}_end")
    if STAMP:
        k.e(f"s_cmp_ge_u32 s2, 256\ns_cbranch_scc1 {k.name}_end2")
        k.stamp_out()
        k.lab(f"{k.name}_end2")
    return k

def main():
    ks = [k2_main()]
    out = [HEADER.rstrip("\n")]
    for k in ks:
        out.append(f"; @launch kernel={k.name} grid=({k.grid},1,1) block=({k.block},1,1) lds={k.lds}")
    out.append('.amdgcn_target "amdgcn-amd-amdhsa--gfx950"\n.text')
    for k in ks:
        out.append(k.text())
    open(sys.argv[1] if len(sys.argv) > 1 else "u.s", "w").write("\n".join(out))
main()
```

```python
import sys, struct

HEADER = open("sequential_preLN__compressed_kv_cla__swiglu_ffn__decode.s.ref").read().split("; Override launch")[0]

WS_QA   = 0x000000
WS_ML   = 0x1D0000
WS_QP   = 0x020000
WS_INIT = 0x080000
WS_CTX  = 0x080000
WS_DNP  = 0x0C0000
WS_OUTP = 0x170000
WS_FL   = 0x1C0000
WS_OP   = 0x200000
INIT_BYTES = 0x180000
SENT = 0xFFFFFFFF
import os
GUNT = os.environ.get('GUNT', 'nt')
SPIN_MAX = 40000
import os
STAMP = bool(os.environ.get('STAMP'))

KA = dict(x=0, ckv=8, wq=16, wuk=24, wuv=32, wo=40, bx=48, wg=56, wu=64, wd=72, out=80, dbg=88, ws=96)
SZ = dict(x=2304, ckv=33554432, wq=4718592, wuk=4194304, wuv=4194304, wo=4718592, wg=5308416, wu=5308416,
          wd=5308416, out=2304)
LOG2E = 1.4426950408889634
def f2u(f): return struct.unpack("<I", struct.pack("<f", f))[0]

class Kern:
    def __init__(self, name, grid, block, lds, vgpr, sgpr=100):
        self.name, self.grid, self.block, self.lds, self.vgpr, self.sgpr = name, grid, block, lds, vgpr, sgpr
        self.lines = []
        self.nlab = 0
    def e(self, s):
        for l in s.strip("\n").split("\n"):
            if l.strip(): self.lines.append("    " + l.strip())
    def lab(self, s): self.lines.append(s + ":")
    def newlab(self, p):
        self.nlab += 1
        return f"{self.name}_{p}{self.nlab}"
    def ldptr(self, d, key): self.e(f"s_load_dwordx2 s[{d}:{d+1}], s[0:1], {KA[key]}")
    def srd(self, d, p, n, off=0):
        if off:
            self.e(f"s_add_u32 s{d}, s{p}, {off}\ns_addc_u32 s{d+1}, s{p+1}, 0")
        else:
            self.e(f"s_mov_b32 s{d}, s{p}\ns_mov_b32 s{d+1}, s{p+1}")
        self.e(f"s_mov_b32 s{d+2}, {n}\ns_mov_b32 s{d+3}, 0x00020000")
    def allreduce(self, op, x, t):
        for ctl in ("quad_perm:[1,0,3,2]", "quad_perm:[2,3,0,1]", "row_half_mirror", "row_mirror"):
            self.e(f"s_nop 1\nv_{op}_f32_dpp v{x}, v{x}, v{x} {ctl} row_mask:0xf bank_mask:0xf")
        for sw in ("v_permlane16_swap_b32", "v_permlane32_swap_b32"):
            self.e(f"v_mov_b32 v{t}, v{x}\ns_nop 1\n{sw} v{x}, v{t}\ns_nop 0\nv_{op}_f32 v{x}, v{x}, v{t}")
    def hilo(self, x, hi, lo, t):
        self.e(f"""v_cvt_pk_bf16_f32 v{hi}, v{x}, v{x}
                   v_lshlrev_b32 v{t}, 16, v{hi}
                   v_sub_f32 v{t}, v{x}, v{t}
                   v_cvt_pk_bf16_f32 v{lo}, v{t}, v{t}""")
    def sanitize(self, regs, tmp):
        self.e(f"v_mov_b32 v{tmp}, 0x7fc00000")
        for r in regs:
            self.e(f"v_cmp_eq_u32 vcc, -1, v{r}\ns_nop 1\nv_cndmask_b32 v{r}, v{r}, v{tmp}, vcc")
    def stamp(self, idx):
        if not STAMP: return
        self.e(f"s_memrealtime s[96:97]\ns_waitcnt lgkmcnt(0)\nv_writelane_b32 v255, s96, {idx}")
    def stamp_out(self):
        if not STAMP: return
        self.e(f"""s_mov_b64 exec, -1
                   s_waitcnt vmcnt(0)
                   s_memrealtime s[96:97]
                   s_waitcnt lgkmcnt(0)
                   v_writelane_b32 v255, s96, 15
                   s_add_u32 s96, s10, 0x1000000
                   s_addc_u32 s97, s11, 0
                   s_mov_b32 s98, 0x1000000
                   s_mov_b32 s99, 0x00020000
                   v_mbcnt_lo_u32_b32 v254, -1, 0
                   v_mbcnt_hi_u32_b32 v254, -1, v254
                   s_lshl_b32 s100, s2, 3
                   s_add_u32 s100, s100, s101
                   s_lshl_b32 s100, s100, 8
                   v_lshl_add_u32 v254, v254, 2, s100
                   buffer_store_dword v255, v254, s[96:99], 0 offen""")
    def text(self):
        acc = (self.vgpr + 3) // 4 * 4
        return "\n".join([
            f".globl {self.name}", ".p2align 8", f".type {self.name},@function", f"{self.name}:"] + self.lines + [
            "    s_endpgm",
            '.section .rodata,"a"', ".p2align 6", f".amdhsa_kernel {self.name}",
            f"  .amdhsa_next_free_vgpr {self.vgpr}", f"  .amdhsa_next_free_sgpr {self.sgpr}",
            f"  .amdhsa_accum_offset {acc}", "  .amdhsa_group_segment_fixed_size 0", "  .amdhsa_kernarg_size 104",
            "  .amdhsa_user_sgpr_count 2", "  .amdhsa_user_sgpr_kernarg_segment_ptr 1",
            "  .amdhsa_system_sgpr_workgroup_id_x 1", ".end_amdhsa_kernel", ".text", ""])

def guard(k, n):
    k.e(f"s_cmp_ge_u32 s2, {n}\ns_cbranch_scc1 {k.name}_end")

def wave_id(k, sdst, vt):
    k.e(f"v_lshrrev_b32 v{vt}, 6, v0\ns_nop 0\nv_readfirstlane_b32 s{sdst}, v{vt}")

RS = 1040
PX, MX, SX, SYNC, CT = 0, 8192, 8704, 9216, 9296
NONCE_L = SYNC + 64
WQ_L = CT + 128 * RS
LDS_TOTAL = WQ_L + 18432
LN_L, QQ_L = 0, 4608
D_A, D_A2, D_R = 0, 1024, 2048
T_A = 2304
WUV_L, OST_L, BIG_L = 9728, 26112, 63488

def lds_sync(k, word, target, vz, vone, vt, st):
    L = k.newlab("spin")
    k.e(f"""s_mov_b64 exec, 1
            ds_add_u32 v{vz}, v{vone} offset:{SYNC + 4*word}
            s_mov_b64 exec, -1""")
    k.lab(L)
    k.e(f"""ds_read_b32 v{vt}, v{vz} offset:{SYNC + 4*word}
            s_waitcnt lgkmcnt(0)
            v_readfirstlane_b32 s{st}, v{vt}
            s_cmp_lt_u32 s{st}, {target}
            s_cbranch_scc1 {L}""")

def poll_flags(k, vmask, vt, scnt, srd):
    L = k.newlab("pf"); Ld = k.newlab("pfd")
    k.e(f"s_mov_b32 s{scnt}, 0")
    k.lab(L)
    k.e(f"""buffer_load_dword v{vt}, v{vt+2}, s[{srd}:{srd+3}], 0 offen sc1
            s_waitcnt vmcnt(0)
            v_and_b32 v{vt}, v{vt}, v{vmask}
            v_cmp_ne_u32 vcc, v{vt}, v{vmask}
            s_add_u32 s{scnt}, s{scnt}, 1
            s_cmp_gt_u32 s{scnt}, {SPIN_MAX}
            s_cbranch_scc1 {Ld}
            s_cbranch_vccnz {L}""")
    k.lab(Ld)

def single_poll(k, kind, word, vz, vone, vt, st, srd, soff, snon, slp=3):
    L, Ld, Lo, Le = k.newlab("sp"), k.newlab("spd"), k.newlab("spo"), k.newlab("spe")
    k.e(f"s_cmp_lg_u32 s20, 0\ns_cbranch_scc1 {Lo}\ns_mov_b32 s{st}, 0")
    if kind == "grp": k.e("s_mov_b64 exec, 0xff")
    k.lab(L)
    if kind == "grp":
        k.e(f"""buffer_load_dwordx2 v[{vt}:{vt+1}], v{vt+8}, s[{srd}:{srd+3}], s{soff} offen sc1
                s_waitcnt vmcnt(0)
                v_xor_b32 v{vt}, s{snon}, v{vt}
                v_xor_b32 v{vt+1}, s{snon+1}, v{vt+1}
                v_or_b32 v{vt}, v{vt}, v{vt+1}""")
    else:
        k.e(f"""buffer_load_dwordx4 v[{vt}:{vt+3}], v{vt+8}, s[{srd}:{srd+3}], s{soff} offen sc1
                buffer_load_dwordx4 v[{vt+4}:{vt+7}], v{vt+8}, s[{srd}:{srd+3}], s{soff} offen offset:1024 sc1
                s_waitcnt vmcnt(0)""")
        for i in range(8):
            k.e(f"v_xor_b32 v{vt+i}, s{snon + (i & 1)}, v{vt+i}")
        k.e(f"""v_or3_b32 v{vt}, v{vt}, v{vt+1}, v{vt+2}
                v_or3_b32 v{vt+3}, v{vt+3}, v{vt+4}, v{vt+5}
                v_or3_b32 v{vt}, v{vt}, v{vt+6}, v{vt+7}
                v_or_b32 v{vt}, v{vt}, v{vt+3}""")
    k.e(f"""v_cmp_ne_u32 vcc, 0, v{vt}
            s_add_u32 s{st}, s{st}, 1
            s_cmp_gt_u32 s{st}, {SPIN_MAX}
            s_cbranch_scc1 {Ld}
            s_cbranch_vccz {Ld}
            s_sleep {slp}
            s_branch {L}""")
    k.lab(Ld)
    k.e(f"""s_mov_b64 exec, -1
            ds_write_b32 v{vz}, v{vone} offset:{SYNC + 4*word}
            s_branch {Le}""")
    k.lab(Lo)
    lds_wait(k, word, 1, vz, vt, st, sleep=1)
    k.lab(Le)

def publish_rep(k, word, srd, hop, vz, vone, vt, st, snon):
    L = k.newlab("pub")
    k.e(f"""s_waitcnt vmcnt(0)
            s_mov_b64 exec, 1
            ds_add_rtn_u32 v{vt}, v{vz}, v{vone} offset:{SYNC + 4*word}
            s_waitcnt lgkmcnt(0)
            v_readfirstlane_b32 s{st}, v{vt}
            s_mov_b64 exec, 0xff
            s_cmp_lg_u32 s{st}, 3
            s_cbranch_scc1 {L}
            s_lshl_b32 s{st}, s2, 3
            s_add_u32 s{st}, s{st}, {16384*hop}
            v_lshlrev_b32 v{vt}, 11, v1
            v_mov_b32 v{vt+2}, s{snon}
            v_mov_b32 v{vt+3}, s{snon+1}
            buffer_store_dwordx2 v[{vt+2}:{vt+3}], v{vt}, s[{srd}:{srd+3}], s{st} offen sc1""")
    k.lab(L)
    k.e("s_mov_b64 exec, -1")

def get_nonce(k, vz, vt, snon, st):
    L = k.newlab("gn")
    k.lab(L)
    k.e(f"""ds_read_b64 v[{vt}:{vt+1}], v{vz} offset:{NONCE_L}
            s_waitcnt lgkmcnt(0)
            v_readfirstlane_b32 s{snon}, v{vt}
            v_readfirstlane_b32 s{snon+1}, v{vt+1}
            s_cmp_eq_u32 s{snon}, 0
            s_cbranch_scc1 {L}""")

def publish_flag(k, word, val, srd, vz, vone, vt, st):
    L = k.newlab("pub")
    k.e(f"""s_waitcnt vmcnt(0)
            s_mov_b64 exec, 1
            ds_add_rtn_u32 v{vt}, v{vz}, v{vone} offset:{SYNC + 4*word}
            s_waitcnt lgkmcnt(0)
            v_readfirstlane_b32 s{st}, v{vt}
            s_cmp_lg_u32 s{st}, 3
            s_cbranch_scc1 {L}
            v_mov_b32 v{vt}, s2
            v_mov_b32 v{vt+1}, {val}
            buffer_store_byte v{vt+1}, v{vt}, s[{srd}:{srd+3}], 0 offen sc1""")
    k.lab(L)
    k.e("s_mov_b64 exec, -1")

def lds_wait(k, word, target, vz, vt, st, sleep=0):
    L = k.newlab("lw")
    k.lab(L)
    if sleep: k.e(f"s_sleep {sleep}")
    k.e(f"""ds_read_b32 v{vt}, v{vz} offset:{SYNC + 4*word}
            s_waitcnt lgkmcnt(0)
            v_readfirstlane_b32 s{st}, v{vt}
            s_cmp_lt_u32 s{st}, {target}
            s_cbranch_scc1 {L}""")

def team_a(k):
    k.ldptr(12, "x"); k.ldptr(14, "wq"); k.ldptr(16, "wuk"); k.ldptr(18, "dbg"); k.ldptr(68, "wg"); k.ldptr(70, "wu")
    k.e("""s_and_b32 s21, s2, 31
           s_lshr_b32 s22, s2, 5
           v_and_b32 v3, 15, v1
           v_lshrrev_b32 v4, 4, v1
           v_mov_b32 v224, 0
           v_mov_b32 v225, 1
           s_waitcnt lgkmcnt(0)""")
    k.srd(24, 12, SZ["x"]); k.srd(28, 14, SZ["wq"]); k.srd(32, 16, SZ["wuk"]); k.srd(36, 10, 262144, WS_QP)
    k.srd(52, 18, 256); k.srd(56, 10, 65536, WS_QA); k.srd(60, 10, 8388608, WS_OP); k.srd(64, 10, 65536, WS_ML)
    k.srd(72, 68, SZ["wg"]); k.srd(76, 70, SZ["wu"]); k.srd(80, 10, 32768, WS_FL); k.srd(88, 10, INIT_BYTES, WS_INIT)
    k.e("""v_lshlrev_b32 v252, 4, v1
           s_and_b32 s84, s2, 7
           s_lshl_b32 s84, s84, 11""")
    k.e("s_and_b32 s23, s20, 1\ns_mul_i32 s23, s23, 1152\nv_lshlrev_b32 v2, 1, v1")
    for i in range(9):
        k.e(f"buffer_load_ushort v{10+i}, v2, s[24:27], s23 offen offset:{128*i}")
    k.e(f"""v_lshlrev_b32 v6, 1, v4
            v_xor_b32 v6, v6, v3
            v_lshlrev_b32 v6, 4, v6
            v_lshl_add_u32 v6, v4, 13, v6
            s_and_b32 s40, s20, 2
            s_lshl_b32 s40, s40, 6
            v_xor_b32 v6, s40, v6
            s_mul_i32 s41, s22, 72
            s_lshl_b32 s42, s20, 2
            s_add_u32 s41, s41, s42
            s_lshl_b32 s41, s41, 13
            s_lshl_b32 s42, s21, 8
            s_add_u32 s41, s41, s42
            s_lshl_b32 s43, s20, 10
            s_add_u32 s43, s43, {WQ_L}""")
    Lq = k.newlab("wq4")
    for i in range(5):
        if i == 4: k.e(f"s_cmp_ge_u32 s20, 2\ns_cbranch_scc1 {Lq}")
        k.e(f"""s_mov_b32 m0, s43
                s_add_u32 s43, s43, 4096
                buffer_load_dwordx4 v6, s[28:31], s41 offen nt lds
                s_add_u32 s41, s41, {16*8192}""")
    k.lab(Lq)
    k.e("""s_lshl_b32 s40, s22, 6
           s_lshl_b32 s41, s20, 4
           s_add_u32 s40, s40, s41
           v_add_u32 v7, s40, v3
           v_lshlrev_b32 v7, 13, v7
           v_lshl_add_u32 v7, v4, 4, v7
           s_lshl_b32 s41, s21, 8""")
    for t in range(4):
        k.e(f"buffer_load_dwordx4 v[{232+4*t}:{235+4*t}], v7, s[32:35], s41 offen offset:{64*t} nt")
    Ln = k.newlab("non")
    k.e(f"""s_or_b32 s44, s20, s2
            s_cmp_lg_u32 s44, 0
            s_cbranch_scc1 {Ln}
            s_mov_b64 exec, 1
            s_memrealtime s[86:87]
            s_waitcnt lgkmcnt(0)
            s_or_b32 s86, s86, 1
            v_mov_b32 v226, s86
            v_mov_b32 v227, s87
            buffer_store_dwordx2 v[226:227], v224, s[52:55], 0 offen sc1
            s_mov_b64 exec, -1""")
    k.lab(Ln)
    k.e("""v_mov_b32 v28, -1
           v_mov_b32 v29, -1
           v_mov_b32 v30, -1
           v_mov_b32 v31, -1
           v_lshlrev_b32 v9, 4, v0
           s_mul_i32 s45, s2, 5120
           buffer_store_dwordx4 v[28:31], v9, s[88:91], s45 offen sc1
           s_add_u32 s45, s45, 4096
           v_cmp_gt_u32 vcc, 64, v0
           s_and_saveexec_b64 s[48:49], vcc
           buffer_store_dwordx4 v[28:31], v9, s[88:91], s45 offen sc1
           s_mov_b64 exec, s[48:49]
           s_lshl_b32 s45, s2, 8
           s_add_u32 s45, s45, 0x150000
           v_cmp_gt_u32 vcc, 16, v0
           s_and_saveexec_b64 s[48:49], vcc
           buffer_store_dwordx4 v[28:31], v9, s[88:91], s45 offen sc1
           s_mov_b64 exec, s[48:49]
           s_waitcnt vmcnt(9)
           buffer_load_dwordx2 v[226:227], v224, s[52:55], 0 offen sc1""")
    for i in range(9):
        k.e(f"v_lshlrev_b32 v{10+i}, 16, v{10+i}")
    k.e("v_add_f32 v20, v10, v11")
    for i in range(2, 9):
        k.e(f"v_add_f32 v20, v20, v{10+i}")
    k.allreduce("add", 20, 21)
    k.e(f"v_mul_f32 v20, {f2u(1.0/576)}, v20")
    for i in range(9):
        k.e(f"v_sub_f32 v{10+i}, v{10+i}, v20")
    k.e("v_mul_f32 v22, v10, v10")
    for i in range(1, 9):
        k.e(f"v_fmac_f32 v22, v{10+i}, v{10+i}")
    k.allreduce("add", 22, 21)
    k.e(f"""v_mov_b32 v23, {f2u(1e-5)}
            v_fmac_f32 v23, {f2u(1.0/576)}, v22
            v_rsq_f32 v23, v23
            v_add_u32 v24, s23, v2""")
    for i in range(9):
        k.e(f"v_mul_f32 v{10+i}, v{10+i}, v23")
        k.hilo(10+i, 25, 26, 27)
        k.e(f"""ds_write_b16 v24, v25 offset:{LN_L + 128*i}
                ds_write_b16 v24, v26 offset:{LN_L + 2304 + 128*i}""")
    k.e("s_waitcnt vmcnt(6)")
    lds_sync(k, 1, 4, 224, 225, 229, 44)
    k.stamp(6)
    k.e(f"""v_and_b32 v8, 3, v1
            v_mul_u32_u24 v8, 1152, v8
            v_lshl_add_u32 v8, v4, 4, v8
            s_mul_i32 s40, s22, 144
            v_add_u32 v8, s40, v8""")
    for t in range(3):
        k.e(f"ds_read_b128 v[{28+4*t}:{31+4*t}], v8 offset:{LN_L + 64*t}")
    k.e(f"""v_lshrrev_b32 v9, 2, v3
            v_lshl_add_u32 v10, v4, 3, v9
            v_lshlrev_b32 v10, 8, v10
            v_and_b32 v11, 1, v4
            v_lshlrev_b32 v11, 3, v11
            v_lshl_or_b32 v11, v9, 1, v11
            v_bfe_u32 v12, v3, 1, 1
            s_lshl_b32 s46, s20, 2
            v_add_u32 v12, s46, v12
            v_and_b32 v13, 1, v3
            v_lshlrev_b32 v13, 3, v13
            s_mov_b32 s47, {WQ_L}
            v_add3_u32 v10, v10, v13, s47
            v_lshlrev_b32 v19, 8, v9
            s_mov_b32 s47, {WQ_L + 16384}
            v_add3_u32 v19, v19, v13, s47
            v_lshlrev_b32 v18, 1, v9""")
    for nt in range(2):
        k.e(f"""v_add_u32 v14, {2*nt}, v12
                v_xor_b32 v15, v14, v11
                v_lshl_add_u32 v15, v15, 4, v10
                v_xor_b32 v16, v14, v18
                v_lshl_add_u32 v16, v16, 4, v19""")
        for t in range(2):
            d = 40 + 12*nt + 4*t
            k.e(f"""ds_read_b64_tr_b16 v[{d}:{d+1}], v15 offset:{8192*t}
                    ds_read_b64_tr_b16 v[{d+2}:{d+3}], v15 offset:{8192*t + 1024}""")
        d = 40 + 12*nt + 8
        k.e(f"""ds_read_b64_tr_b16 v[{d}:{d+1}], v16
                ds_read_b64_tr_b16 v[{d+2}:{d+3}], v16 offset:1024""")
    k.e("""v_cmp_gt_u32 vcc, 16, v1
           s_waitcnt lgkmcnt(0)
           v_cndmask_b32 v36, 0, v36, vcc
           v_cndmask_b32 v37, 0, v37, vcc
           v_cndmask_b32 v38, 0, v38, vcc
           v_cndmask_b32 v39, 0, v39, vcc
           s_nop 1""")
    for nt in range(2):
        acc = 64 + 4*nt
        for t in range(3):
            d = 40 + 12*nt + 4*t
            cin = "0" if t == 0 else f"v[{acc}:{acc+3}]"
            k.e(f"v_mfma_f32_16x16x32_bf16 v[{acc}:{acc+3}], v[{28+4*t}:{31+4*t}], v[{d}:{d+3}], {cin}")
    k.e(f"""s_lshl_b32 s46, s22, 15
            s_lshl_b32 s47, s21, 9
            s_add_u32 s46, s46, s47
            s_lshl_b32 s47, s20, 7
            s_add_u32 s46, s46, s47
            v_lshl_add_u32 v27, v3, 2, s46
            s_mov_b32 s47, 16384
            s_nop 4
            v_add_f32 v8, v64, v66
            v_add_f32 v9, v65, v67
            v_add_f32 v10, v68, v70
            v_add_f32 v11, v69, v71
            s_and_saveexec_b64 s[48:49], vcc
            buffer_store_dword v8, v27, s[36:39], 0 offen sc1
            buffer_store_dword v9, v27, s[36:39], s47 offen sc1
            buffer_store_dword v10, v27, s[36:39], 0 offen offset:64 sc1
            buffer_store_dword v11, v27, s[36:39], s47 offen offset:64 sc1
            s_mov_b64 exec, s[48:49]""")
    Lw, Lf = k.newlab("nw"), k.newlab("nf")
    k.e("s_mov_b32 s44, 0\ns_waitcnt vmcnt(4)")
    k.lab(Lw)
    k.e(f"""v_readfirstlane_b32 s86, v226
            v_readfirstlane_b32 s87, v227
            s_add_u32 s44, s44, 1
            s_cmp_gt_u32 s44, {SPIN_MAX}
            s_cbranch_scc1 {Lf}
            s_cmp_eq_u32 s86, 0
            s_cbranch_scc0 {Lf}
            s_sleep 2
            buffer_load_dwordx2 v[226:227], v224, s[52:55], 0 offen sc1
            s_waitcnt vmcnt(0)
            s_branch {Lw}""")
    k.lab(Lf)
    k.e("s_or_b32 s86, s86, 1")
    publish_rep(k, 2, 80, 0, 224, 225, 226, 44, 86)
    k.stamp(7)
    k.e("""s_lshl_b32 s46, s21, 3
           v_lshl_add_u32 v88, v1, 8, s46""")
    single_poll(k, "grp", 12, 224, 225, 80, 44, 80, 84, 86)
    k.e("""v_lshrrev_b32 v5, 7, v0
           v_and_b32 v6, 127, v0
           v_lshlrev_b32 v8, 14, v5
           v_lshl_add_u32 v8, v6, 2, v8
           s_lshl_b32 s46, s21, 9""")
    for j in range(8):
        k.e(f"buffer_load_dword v{10+j}, v8, s[36:39], s46 offen sc1\ns_add_u32 s46, s46, 32768")
    k.e("""v_lshlrev_b32 v24, 8, v5
           v_lshl_add_u32 v24, v6, 1, v24
           s_waitcnt vmcnt(0)""")
    for j in range(1, 8):
        k.e(f"v_add_f32 v10, v10, v{10+j}")
    k.hilo(10, 25, 26, 27)
    k.e(f"""ds_write_b16 v24, v25 offset:{QQ_L}
            ds_write_b16 v24, v26 offset:{QQ_L + 512}""")
    lds_sync(k, 3, 4, 224, 225, 226, 44)
    k.e(f"""v_and_b32 v8, 3, v1
            v_lshlrev_b32 v8, 8, v8
            v_lshl_add_u32 v8, v4, 4, v8""")
    for t in range(4):
        k.e(f"ds_read_b128 v[{28+4*t}:{31+4*t}], v8 offset:{QQ_L + 64*t}")
    k.e("s_waitcnt vmcnt(0) lgkmcnt(0)")
    k.stamp(8)
    for t in range(4):
        cin = "0" if t == 0 else "v[64:67]"
        k.e(f"v_mfma_f32_16x16x32_bf16 v[64:67], v[{28+4*t}:{31+4*t}], v[{232+4*t}:{235+4*t}], {cin}")
    sc = f2u((128 ** -0.5) * LOG2E)
    k.e(f"""s_lshl_b32 s46, s22, 2
            s_add_u32 s46, s46, s20
            s_lshl_b32 s46, s46, 10
            s_lshl_b32 s47, s21, 4
            s_add_u32 s46, s46, s47
            v_lshrrev_b32 v12, 1, v1
            v_lshlrev_b32 v12, 15, v12
            v_and_b32 v13, 1, v1
            v_lshl_add_u32 v12, v13, 9, v12
            s_lshl_b32 s47, s20, 6
            v_lshl_add_u32 v13, v3, 1, s47
            v_lshl_add_u32 v14, v1, 4, s47
            v_add_f32 v10, v64, v66
            v_add_f32 v11, v65, v67
            v_mul_f32 v10, {sc}, v10
            v_mul_f32 v11, {sc}, v11
            v_cvt_pk_bf16_f32 v10, v10, v11
            ds_write_b16 v13, v10 offset:{QQ_L + 1024}
            ds_write_b16_d16_hi v13, v10 offset:{QQ_L + 1024 + 32}
            s_mov_b64 exec, 0xf
            ds_read_b128 v[16:19], v14 offset:{QQ_L + 1024}
            s_waitcnt lgkmcnt(0)
            buffer_store_dwordx4 v[16:19], v12, s[56:59], s46 offen sc1
            s_mov_b64 exec, -1""")
    publish_rep(k, 4, 80, 1, 224, 225, 226, 44, 86)
    k.stamp(9)
    k.e(f"""v_and_b32 v2, 31, v1
            v_lshrrev_b32 v3, 5, v1
            s_lshr_b32 s21, s2, 7
            s_lshl_b32 s22, s21, 15
            v_lshlrev_b32 v5, 4, v1
            s_lshl_b32 s41, s20, 5
            v_and_b32 v6, 16, v2
            v_and_b32 v7, 3, v2
            v_lshl_add_u32 v6, v7, 2, v6
            v_bfe_u32 v7, v2, 2, 1
            v_lshl_add_u32 v6, v7, 1, v6
            v_bfe_u32 v7, v2, 3, 1
            v_add_u32 v6, v6, v7
            v_add_u32 v6, s41, v6
            v_mul_u32_u24 v6, {RS}, v6
            v_lshl_add_u32 v6, v3, 4, v6
            v_add_u32 v6, {CT}, v6
            """)
    k.e("s_add_u32 s84, s84, 16384")
    single_poll(k, "all", 13, 224, 225, 244, 44, 80, 84, 86, slp=int(os.environ.get('SLP1', '3')))
    k.stamp(1)
    QF = 96
    for t in range(32):
        if t % 4 == 0 and t: k.e("s_add_u32 s22, s22, 4096")
        k.e(f"buffer_load_dwordx4 v[{QF+4*t}:{QF+3+4*t}], v5, s[56:59], s22 offen offset:{1024*(t%4)} {os.environ.get('QSC', 'sc1')}")
    lds_wait(k, 0, 4, 224, 226, 44)
    k.e("s_waitcnt vmcnt(0)")
    k.stamp(2)
    ACC = 16
    bufs = [32, 64]
    for i in range(8):
        k.e(f"ds_read_b128 v[{bufs[0]+4*i}:{bufs[0]+3+4*i}], v6 offset:{32*i}")
    for ci in range(4):
        if ci < 3:
            for i in range(8):
                b = bufs[(ci+1) % 2] + 4*i
                if b + 3 >= QF: raise Exception("reg overlap")
                k.e(f"ds_read_b128 v[{b}:{b+3}], v6 offset:{32*(8*(ci+1)+i)}")
            k.e("s_waitcnt lgkmcnt(8)")
        else:
            k.e("s_waitcnt lgkmcnt(0)")
        for i in range(8):
            t = 8*ci + i
            b = bufs[ci % 2] + 4*i
            cin = "0" if t == 0 else f"v[{ACC}:{ACC+15}]"
            k.e(f"v_mfma_f32_32x32x16_bf16 v[{ACC}:{ACC+15}], v[{b}:{b+3}], v[{QF+4*t}:{QF+3+4*t}], {cin}")
    k.e("s_nop 15")
    k.e(f"v_max3_f32 v8, v{ACC}, v{ACC+1}, v{ACC+2}")
    for i in range(3, 15, 2):
        k.e(f"v_max3_f32 v8, v8, v{ACC+i}, v{ACC+i+1}")
    k.e(f"""v_max_f32 v8, v8, v{ACC+15}
            v_mov_b32 v9, v8
            s_nop 1
            v_permlane32_swap_b32 v8, v9
            s_nop 0
            v_max_f32 v8, v8, v9
            s_lshl_b32 s43, s20, 2
            v_lshl_add_u32 v10, v2, 4, s43
            v_lshlrev_b32 v11, 4, v2
            ds_write_b32 v10, v8 offset:{MX}""")
    lds_sync(k, 5, 4, 224, 225, 226, 44)
    k.e(f"""ds_read_b128 v[12:15], v11 offset:{MX}
            s_waitcnt lgkmcnt(0)
            v_max3_f32 v8, v12, v13, v14
            v_max_f32 v8, v8, v15""")
    for i in range(16):
        k.e(f"v_sub_f32 v{ACC+i}, v{ACC+i}, v8")
    for i in range(16):
        k.e(f"v_exp_f32 v{ACC+i}, v{ACC+i}")
    k.e(f"s_nop 0\nv_add_f32 v9, v{ACC}, v{ACC+1}")
    for i in range(2, 16):
        k.e(f"v_add_f32 v9, v9, v{ACC+i}")
    for i in range(8):
        k.e(f"v_cvt_pk_bf16_f32 v{32+i}, v{ACC+2*i}, v{ACC+2*i+1}")
    k.e(f"""v_mov_b32 v12, v9
            s_lshl_b32 s44, s20, 11
            v_lshl_add_u32 v13, v1, 4, s44
            v_permlane32_swap_b32 v9, v12
            s_nop 0
            v_add_f32 v9, v9, v12
            ds_write_b128 v13, v[32:35] offset:{PX}
            ds_write_b128 v13, v[36:39] offset:{PX+1024}
            ds_write_b32 v10, v9 offset:{SX}""")
    lds_sync(k, 6, 4, 224, 225, 226, 44)
    k.stamp(3)
    PF = 32
    for s in range(8):
        k.e(f"ds_read_b128 v[{PF+4*s}:{PF+3+4*s}], v5 offset:{PX + 1024*s}")
    k.e(f"ds_read_b128 v[12:15], v11 offset:{SX}")
    k.e(f"""v_bfe_u32 v66, v1, 2, 2
            v_lshlrev_b32 v66, 2, v66
            v_lshl_add_u32 v66, v3, 1, v66
            v_mul_u32_u24 v66, {RS}, v66
            v_bfe_u32 v67, v1, 4, 1
            v_lshlrev_b32 v67, 5, v67
            v_and_b32 v7, 3, v1
            v_lshl_add_u32 v67, v7, 3, v67
            s_lshl_b32 s45, s20, 8
            s_add_u32 s45, s45, {CT}
            v_add3_u32 v64, v66, v67, s45
            v_add_u32 v65, {64*RS}, v64""")
    OACC = 96
    VB = [160, 192]
    steps = [(T, s) for s in range(8) for T in range(4)]
    def trread(dst, T, s):
        wq, u = s >> 1, s & 1
        base = 64 if wq < 2 else 65
        off = (32*(wq & 1) + 16*u) * RS + 64*T
        k.e(f"ds_read_b64_tr_b16 v[{dst}:{dst+1}], v{base} offset:{off}")
        k.e(f"ds_read_b64_tr_b16 v[{dst+2}:{dst+3}], v{base} offset:{off+RS}")
    CH = 4
    chunks = [steps[i:i+CH] for i in range(0, 32, CH)]
    for i, (T, s) in enumerate(chunks[0]):
        trread(VB[0] + 4*i, T, s)
    for ci, ch in enumerate(chunks):
        if ci + 1 < len(chunks):
            for i, (T, s) in enumerate(chunks[ci+1]):
                trread(VB[(ci+1) % 2] + 4*i, T, s)
            k.e(f"s_waitcnt lgkmcnt({2*CH})")
        else:
            k.e("s_waitcnt lgkmcnt(0)")
        for i, (T, s) in enumerate(ch):
            a = VB[ci % 2] + 4*i
            o = OACC + 16*T
            cin = "0" if s == 0 else f"v[{o}:{o+15}]"
            k.e(f"v_mfma_f32_32x32x16_bf16 v[{o}:{o+15}], v[{a}:{a+3}], v[{PF+4*s}:{PF+3+4*s}], {cin}")
    k.stamp(4)
    Lk = k.newlab("skipml")
    k.e(f"""v_add_f32 v12, v12, v13
            v_add_f32 v14, v14, v15
            v_add_f32 v9, v12, v14
            s_and_b32 s46, s2, 127
            s_lshl_b32 s47, s21, 12
            s_add_u32 s46, s46, s47
            s_lshl_b32 s46, s46, 3
            v_lshl_add_u32 v10, v2, 10, s46
            v_mov_b32 v228, v10""")
    k.e(f"""s_lshl_b32 s46, s2, 15
            s_lshl_b32 s47, s20, 8
            s_add_u32 s46, s46, s47
            v_mul_u32_u24 v10, {RS}, v2
            v_lshl_add_u32 v10, v3, 3, v10
            v_add_u32 v10, s45, v10
            v_lshrrev_b32 v11, 4, v1
            v_and_b32 v12, 15, v1
            v_mul_u32_u24 v13, {RS}, v11
            v_lshl_add_u32 v13, v12, 4, v13
            v_add_u32 v13, s45, v13
            v_lshlrev_b32 v14, 10, v11
            v_lshl_add_u32 v14, v12, 4, v14""")
    for T in range(4):
        o = OACC + 16*T
        for a in range(4):
            d = 32 + 2*(4*T + a)
            k.e(f"""v_cvt_pk_bf16_f32 v{d}, v{o+4*a}, v{o+4*a+1}
                    v_cvt_pk_bf16_f32 v{d+1}, v{o+4*a+2}, v{o+4*a+3}
                    ds_write_b64 v10, v[{d}:{d+1}] offset:{64*T + 16*a}""")
    for n in range(8):
        k.e(f"ds_read_b128 v[{160+4*n}:{163+4*n}], v13 offset:{4*RS*n}")
    for n in range(8):
        k.e(f"""s_waitcnt lgkmcnt({7-n})
                buffer_store_dwordx4 v[{160+4*n}:{163+4*n}], v14, s[60:63], s46 offen sc1
                s_add_u32 s46, s46, 4096""")
    k.e("s_waitcnt vmcnt(0)")
    k.stamp(5)
    k.sanitize([8, 9], 229)
    Lp = k.newlab("pubml")
    k.e(f"""s_waitcnt vmcnt(0)
            s_mov_b64 exec, 1
            ds_add_rtn_u32 v226, v224, v225 offset:{SYNC + 28}
            s_waitcnt lgkmcnt(0)
            v_readfirstlane_b32 s44, v226
            s_mov_b32 exec_lo, -1
            s_cmp_lg_u32 s44, 3
            s_cbranch_scc1 {Lp}
            buffer_store_dwordx2 v[8:9], v228, s[64:67], 0 offen sc1""")
    k.lab(Lp)
    k.e("s_mov_b64 exec, -1")
    k.e(f"s_cmp_ge_u32 s2, 144\ns_cbranch_scc1 {k.name}_end")
    lds_wait(k, int(os.environ.get("GUW", "10")), 4, 224, 226, 44, sleep=2)
    dma64_off(k, 8, 1, 10, 11, 9, 9216)
    k.e(f"""s_and_b32 s85, s2, 7
            s_lshl_b32 s85, s85, 1
            s_bfe_u32 s45, s2, 0x10003
            s_add_u32 s85, s85, s45
            s_andn2_b32 s45, s2, 15
            s_add_u32 s85, s85, s45
            s_mul_i32 s41, s20, 9*16*9216
            s_lshl_b32 s42, s85, 6
            s_add_u32 s41, s41, s42
            s_mul_i32 s43, s20, 9216
            s_add_u32 s43, s43, {BIG_L}
            s_add_u32 s44, s43, 36864""")
    for mi in range(9):
        GT = int(os.environ.get("GUT", "3"))
        if GT and mi >= GT: k.e(f"s_waitcnt vmcnt({2*GT-2})")
        k.e(f"""s_mov_b32 m0, s43
                s_add_u32 s43, s43, 1024
                buffer_load_dwordx4 v8, s[72:75], s41 offen {GUNT} lds
                s_mov_b32 m0, s44
                s_add_u32 s44, s44, 1024
                buffer_load_dwordx4 v8, s[76:79], s41 offen {GUNT} lds
                s_add_u32 s41, s41, {16*9216}""")
    if os.environ.get("DNA", "0") == "1":
        lds_wait(k, 11, 4, 224, 226, 44, sleep=1)
        k.e(f"""v_lshlrev_b32 v9, 4, v1
                s_mul_i32 s41, s85, 36864
                s_mul_i32 s42, s20, 9216
                s_add_u32 s41, s41, s42
                s_add_u32 s43, s42, {OST_L}""")
        for mi in range(9):
            if mi >= 2: k.e("s_waitcnt vmcnt(4)")
            k.e(f"""s_mov_b32 m0, s43
                    s_add_u32 s43, s43, 1024
                    buffer_load_dwordx4 v9, s[88:91], s41 offen nt lds
                    s_add_u32 s41, s41, 1024""")
    k.e(f"s_waitcnt vmcnt(0)\ns_branch {k.name}_end")

def dma64_off(k, vA, lane, t1, t2, t3, rowstride):
    k.e(f"""v_lshrrev_b32 v{t1}, 2, v{lane}
            v_and_b32 v{t2}, 3, v{lane}
            v_bfe_u32 v{t3}, v{lane}, 5, 1
            v_lshlrev_b32 v{t3}, 1, v{t3}
            v_xor_b32 v{t2}, v{t2}, v{t3}
            v_mul_u32_u24 v{vA}, {rowstride}, v{t1}
            v_lshl_add_u32 v{vA}, v{t2}, 4, v{vA}""")

def tr64_base(k, dst, v3, v4, nt_sreg, t1, t2):
    k.e(f"""v_lshrrev_b32 v{t1}, 2, v{v3}
            v_lshl_add_u32 v{t1}, v{v4}, 3, v{t1}
            v_lshlrev_b32 v{t1}, 6, v{t1}
            v_bfe_u32 v{t2}, v{v3}, 1, 1
            v_add_u32 v{t2}, s{nt_sreg}, v{t2}
            v_and_b32 v{dst}, 1, v{v4}
            v_lshlrev_b32 v{dst}, 1, v{dst}
            v_xor_b32 v{t2}, v{t2}, v{dst}
            v_lshl_add_u32 v{t1}, v{t2}, 4, v{t1}
            v_and_b32 v{dst}, 1, v{v3}
            v_lshl_add_u32 v{dst}, v{dst}, 3, v{t1}""")

def poll_gather(k, loads, regs, scnt, mask_s=None):
    L = k.newlab("poll"); Ld = k.newlab("pdone")
    k.e(f"s_mov_b32 s{scnt}, 0")
    if len(loads) > 1 and os.environ.get("PRE", "1") == "1":
        L1, L1d = k.newlab("pre"), k.newlab("pred")
        n1 = len(regs) // len(loads)
        r1 = regs[-n1:]
        k.lab(L1)
        k.e(loads[-1])
        k.e(f"""s_waitcnt vmcnt(0)
                v_max_u32 v7, v{r1[0]}, v{r1[1]}
                v_max3_u32 v7, v7, v{r1[2]}, v{r1[3]}
                v_cmp_eq_u32 vcc, -1, v7
                s_add_u32 s{scnt}, s{scnt}, 1
                s_cmp_gt_u32 s{scnt}, {SPIN_MAX}
                s_cbranch_scc1 {L1d}
                s_cbranch_vccz {L1d}
                s_sleep {os.environ.get('PSLP', '4')}
                s_branch {L1}""")
        k.lab(L1d)
    k.lab(L)
    for l in loads: k.e(l)
    k.e("s_waitcnt vmcnt(0)")
    k.e(f"v_max_u32 v7, v{regs[0]}, v{regs[1]}")
    for i in range(2, len(regs) - 1, 2):
        k.e(f"v_max3_u32 v7, v7, v{regs[i]}, v{regs[i+1]}")
    if len(regs) % 2: k.e(f"v_max_u32 v7, v7, v{regs[-1]}")
    k.e(f"""v_cmp_eq_u32 vcc, -1, v7
            s_add_u32 s{scnt}, s{scnt}, 1
            s_cmp_gt_u32 s{scnt}, {SPIN_MAX}
            s_cbranch_scc1 {Ld}
            s_cbranch_vccz {Ld}
            s_sleep {os.environ.get('GSLP', '1')}
            s_branch {L}""")
    k.lab(Ld)

def team_b(k):
    k.e("""v_subrev_u32 v0, 0x100, v0
           s_sub_u32 s20, s20, 4
           v_and_b32 v3, 15, v1
           v_lshrrev_b32 v4, 4, v1
           s_and_b32 s21, s2, 31
           s_lshr_b32 s22, s2, 5
           v_mov_b32 v124, 0
           v_mov_b32 v125, 1""")
    k.ldptr(12, "wuv"); k.ldptr(14, "wo"); k.ldptr(64, "wd"); k.ldptr(66, "x"); k.ldptr(68, "out")
    k.e("s_waitcnt lgkmcnt(0)")
    k.srd(24, 12, SZ["wuv"]); k.srd(28, 10, 65536, WS_ML); k.srd(32, 10, 8388608, WS_OP); k.srd(36, 10, 262144, WS_CTX)
    k.srd(56, 10, 8*36864, WS_OUTP); k.srd(60, 10, 663552, WS_DNP)
    k.srd(72, 14, SZ["wo"]); k.srd(76, 4, SZ["ckv"]); k.srd(84, 64, SZ["wd"])
    k.srd(88, 66, SZ["x"]); k.srd(92, 68, SZ["out"])
    if os.environ.get("CPF"):
        Lc, Lh = k.newlab("cpf"), k.newlab("cpfpc")
        k.e(f"""s_cmp_lg_u32 s20, 3
                s_cbranch_scc1 {Lc}
                s_getpc_b64 s[98:99]""")
        k.lab(Lh)
        k.e(f"""s_sub_u32 s98, s98, {Lh}-{k.name}
                s_subb_u32 s99, s99, 0
                v_lshlrev_b32 v100, 7, v1
                global_load_dword v101, v100, s[98:99]
                v_add_u32 v100, 8192, v100
                global_load_dword v102, v100, s[98:99]
                v_add_u32 v100, 8192, v100
                s_mov_b64 exec, 0x3fff
                global_load_dword v103, v100, s[98:99]
                s_mov_b64 exec, -1""")
        k.lab(Lc)
    k.e("""s_sub_u32 s47, s2, 144
           s_mul_i32 s48, s47, 7282
           s_lshr_b32 s48, s48, 16
           s_mul_i32 s49, s48, 9
           s_sub_u32 s49, s47, s49""")
    k.e(f"""v_lshlrev_b32 v9, 4, v1
            s_lshl_b32 s40, s2, 7
            s_lshl_b32 s41, s20, 5
            s_add_u32 s40, s40, s41
            s_lshl_b32 s40, s40, 10
            s_mul_i32 s42, s41, {RS}
            s_add_u32 s42, s42, {CT}""")
    THR = int(os.environ.get("THR", "3")); DLY = int(os.environ.get("DLY", "0"))
    if DLY: lds_wait(k, 1, 1, 124, 126, 46, sleep=1)
    for r in range(32):
        R1 = int(os.environ.get("R1", "32")); THR2 = int(os.environ.get("THR2", "0"))
        th = THR if r < R1 else THR2
        if th and r >= th: k.e(f"s_waitcnt vmcnt({th-1})")
        k.e(f"""s_mov_b32 m0, s42
                s_add_u32 s42, s42, {RS}
                buffer_load_dwordx4 v9, s[76:79], s40 offen nt lds
                s_add_u32 s40, s40, 1024""")
    k.e(f"""v_lshlrev_b32 v13, 1, v4
            v_xor_b32 v13, v13, v3
            v_lshlrev_b32 v13, 4, v13
            v_lshl_add_u32 v13, v4, 13, v13
            v_xor_b32 v14, 0x80, v13
            s_lshl_b32 s44, s22, 6
            s_lshl_b32 s45, s20, 4
            s_add_u32 s44, s44, s45
            s_lshl_b32 s44, s44, 13
            s_lshl_b32 s45, s21, 8
            s_add_u32 s44, s44, s45
            s_waitcnt vmcnt(0)
            s_mov_b64 exec, 1
            ds_add_u32 v124, v125 offset:{SYNC}
            s_mov_b64 exec, -1""")
    k.stamp(1)
    for mi in range(4):
        k.e(f"""buffer_load_dwordx4 v[{128+4*mi}:{131+4*mi}], v{14 if mi & 2 else 13}, s[24:27], s44 offen nt
                s_add_u32 s44, s44, 32768""")
    LW = k.newlab("ldW")
    k.e(f"""s_cmp_lt_u32 s2, 144
            s_cbranch_scc1 {LW}
            s_cmp_ge_u32 s2, 216
            s_cbranch_scc1 {LW}""")
    k.e("""v_lshrrev_b32 v10, 3, v1
           v_and_b32 v11, 7, v1
           v_and_b32 v12, 2, v10
           v_xor_b32 v11, v11, v12
           v_mul_u32_u24 v8, 1152, v10
           v_lshl_add_u32 v8, v11, 4, v8
           v_xor_b32 v11, 4, v11
           v_mul_u32_u24 v7, 1152, v10
           v_lshl_add_u32 v7, v11, 4, v7
           s_lshl_b32 s41, s48, 9
           s_lshl_b32 s42, s20, 7
           s_add_u32 s41, s41, s42
           s_mul_i32 s41, s41, 1152
           s_lshl_b32 s42, s49, 7
           s_add_u32 s41, s41, s42""")
    for mi in range(16):
        k.e(f"""buffer_load_dwordx4 v[{144+4*mi}:{147+4*mi}], v{7 if mi & 1 else 8}, s[72:75], s41 offen nt
                s_add_u32 s41, s41, {8*1152}""")
    k.lab(LW)
    k.stamp(2)
    lds_wait(k, 7, 4, 124, 126, 46, sleep=2)
    k.stamp(3)
    k.e(f"""s_waitcnt vmcnt(0)
            s_lshl_b32 s41, s20, 12
            s_add_u32 s41, s41, {WUV_L}
            v_add_u32 v10, s41, v9""")
    for mi in range(4):
        k.e(f"ds_write_b128 v10, v[{128+4*mi}:{131+4*mi}] offset:{1024*mi}")
    LW2 = k.newlab("stW")
    k.e(f"""s_cmp_lt_u32 s2, 144
            s_cbranch_scc1 {LW2}
            s_cmp_ge_u32 s2, 216
            s_cbranch_scc1 {LW2}
            s_lshl_b32 s41, s20, 14
            s_add_u32 s41, s41, {BIG_L}
            v_add_u32 v10, s41, v9""")
    for mi in range(16):
        k.e(f"ds_write_b128 v10, v[{144+4*mi}:{147+4*mi}] offset:{1024*mi}")
    k.lab(LW2)
    k.stamp(5)
    k.e("""v_lshrrev_b32 v5, 7, v0
           v_and_b32 v6, 127, v0
           v_lshlrev_b32 v5, 12, v5
           v_add_u32 v5, v5, v6
           s_lshl_b32 s40, s21, 7
           v_add_u32 v5, s40, v5
           v_lshlrev_b32 v5, 3, v5""")
    poll_gather(k, ["buffer_load_dwordx2 v[8:9], v5, s[28:31], 0 offen sc1"], [8, 9], 46)
    k.stamp(6)
    k.e(f"""v_lshrrev_b32 v10, 3, v1
            v_and_b32 v11, 7, v1
            v_and_b32 v12, 2, v10
            v_xor_b32 v11, v11, v12
            v_lshlrev_b32 v11, 4, v11
            v_lshl_add_u32 v11, v10, 15, v11
            v_xor_b32 v12, 64, v11
            s_lshl_b32 s41, s21, 10
            s_lshl_b32 s42, s22, 7
            s_add_u32 s41, s41, s42
            s_lshl_b32 s42, s20, 21
            s_add_u32 s41, s41, s42
            s_lshl_b32 s43, s20, 13
            s_add_u32 s43, s43, {OST_L}""")
    for mi in range(8):
        k.e(f"""s_mov_b32 m0, s43
                s_add_u32 s43, s43, 1024
                buffer_load_dwordx4 v{12 if mi & 1 else 11}, s[32:35], s41 offen sc1 lds
                s_add_u32 s41, s41, 262144""")
    k.e("v_mov_b32 v15, v8")
    k.allreduce("max", 15, 16)
    k.e(f"""s_lshl_b32 s46, s20, 2
            v_mov_b32 v17, s46
            ds_write_b32 v17, v15 offset:{D_R}
            s_waitcnt lgkmcnt(0)
            """)
    lds_sync(k, 8, 4, 124, 125, 126, 46)
    k.e(f"""
            s_and_b32 s47, s20, 2
            s_lshl_b32 s47, s47, 2
            v_mov_b32 v18, s47
            ds_read_b64 v[20:21], v18 offset:{D_R}
            s_waitcnt lgkmcnt(0)
            v_max_f32 v15, v20, v21
            v_sub_f32 v8, v8, v15
            v_exp_f32 v8, v8
            s_nop 0
            v_mul_f32 v19, v8, v9""")
    k.allreduce("add", 19, 16)
    k.e(f"""ds_write_b32 v17, v19 offset:{D_R+16}
            s_waitcnt lgkmcnt(0)
            """)
    lds_sync(k, 9, 4, 124, 125, 126, 46)
    k.e(f"""
            ds_read_b64 v[20:21], v18 offset:{D_R+16}
            s_waitcnt lgkmcnt(0)
            v_add_f32 v19, v20, v21
            v_rcp_f32 v19, v19
            s_nop 0
            v_mul_f32 v8, v8, v19""")
    k.hilo(8, 22, 23, 24)
    k.e(f"""v_lshrrev_b32 v25, 7, v0
            v_lshlrev_b32 v25, 9, v25
            v_lshl_add_u32 v25, v6, 1, v25
            ds_write_b16 v25, v22 offset:{D_A}
            ds_write_b16 v25, v23 offset:{D_A+256}
            s_waitcnt vmcnt(0) lgkmcnt(0)
            """)
    lds_sync(k, 10, 4, 124, 125, 126, 46)
    k.e(f"""""")
    k.stamp(7)
    k.e(f"""v_and_b32 v26, 1, v1
            v_lshlrev_b32 v26, 8, v26
            v_lshl_add_u32 v26, v4, 4, v26
            s_lshr_b32 s46, s20, 1
            s_lshl_b32 s47, s46, 9
            v_add_u32 v26, s47, v26""")
    for t in range(4):
        k.e(f"ds_read_b128 v[{28+4*t}:{31+4*t}], v26 offset:{D_A + 64*t}")
    k.e(f"""v_lshrrev_b32 v9, 2, v3
            v_lshl_add_u32 v10, v4, 3, v9
            v_lshlrev_b32 v10, 7, v10
            v_and_b32 v11, 2, v9
            v_and_b32 v12, 1, v4
            v_lshl_or_b32 v11, v12, 2, v11
            v_bfe_u32 v12, v3, 1, 1
            s_and_b32 s47, s20, 1
            s_lshl_b32 s47, s47, 2
            v_add_u32 v12, s47, v12
            v_and_b32 v13, 1, v3
            v_lshl_add_u32 v10, v13, 3, v10
            s_lshl_b32 s47, s46, 14
            s_add_u32 s47, s47, {OST_L}
            v_add_u32 v10, s47, v10""")
    for nt in range(2):
        k.e(f"""v_add_u32 v14, {2*nt}, v12
                v_xor_b32 v14, v14, v11
                v_lshl_add_u32 v{15+nt}, v14, 4, v10""")
    for nt in range(2):
        for t in range(4):
            d = 44 + 16*nt + 4*t
            k.e(f"""ds_read_b64_tr_b16 v[{d}:{d+1}], v{15+nt} offset:{4096*t}
                    ds_read_b64_tr_b16 v[{d+2}:{d+3}], v{15+nt} offset:{4096*t + 512}""")
    k.e("s_waitcnt lgkmcnt(0)")
    for nt in range(2):
        for t in range(4):
            d = 44 + 16*nt + 4*t
            acc = 20 if nt == 0 else 76
            cin = "0" if t == 0 else f"v[{acc}:{acc+3}]"
            k.e(f"v_mfma_f32_16x16x32_bf16 v[{acc}:{acc+3}], v[{28+4*t}:{31+4*t}], v[{d}:{d+3}], {cin}")
    k.e(f"""s_and_b32 s47, s20, 1
            s_lshl_b32 s47, s47, 6
            s_lshl_b32 s50, s46, 7
            s_add_u32 s47, s47, s50
            v_lshl_add_u32 v27, v3, 1, s47
            s_nop 7""")
    for nt in range(2):
        acc = 20 if nt == 0 else 76
        k.e(f"v_add_f32 v8, v{acc}, v{acc+1}")
        k.hilo(8, 9, 24, 25)
        k.e(f"""ds_write_b16 v27, v9 offset:{D_A2 + 32*nt}
                ds_write_b16 v27, v24 offset:{D_A2 + 256 + 32*nt}""")
    k.e("s_waitcnt lgkmcnt(0)")
    lds_sync(k, 11, 4, 124, 125, 126, 46)
    k.e(f"""v_and_b32 v8, 3, v1
            v_lshlrev_b32 v8, 7, v8
            v_lshl_add_u32 v8, v4, 4, v8
            ds_read_b128 v[28:31], v8 offset:{D_A2}
            ds_read_b128 v[32:35], v8 offset:{D_A2+64}""")
    k.e(f"""v_lshrrev_b32 v9, 2, v3
            v_lshl_add_u32 v10, v4, 3, v9
            v_lshlrev_b32 v10, 8, v10
            v_and_b32 v11, 1, v4
            v_lshlrev_b32 v11, 3, v11
            v_lshl_or_b32 v11, v9, 1, v11
            v_bfe_u32 v12, v3, 1, 1
            s_lshl_b32 s47, s20, 2
            v_add_u32 v12, s47, v12
            v_and_b32 v13, 1, v3
            v_lshl_add_u32 v10, v13, 3, v10""")
    for nt in range(2):
        k.e(f"""v_add_u32 v14, {2*nt}, v12
                v_xor_b32 v14, v14, v11
                v_lshl_add_u32 v{15+nt}, v14, 4, v10""")
    for nt in range(2):
        for t in range(2):
            d = 44 + 8*nt + 4*t
            k.e(f"""ds_read_b64_tr_b16 v[{d}:{d+1}], v{15+nt} offset:{WUV_L + 8192*t}
                    ds_read_b64_tr_b16 v[{d+2}:{d+3}], v{15+nt} offset:{WUV_L + 8192*t + 1024}""")
    k.e("s_waitcnt lgkmcnt(0)")
    for nt in range(2):
        acc = 20 if nt == 0 else 76
        for t in range(2):
            d = 44 + 8*nt + 4*t
            cin = "0" if t == 0 else f"v[{acc}:{acc+3}]"
            k.e(f"v_mfma_f32_16x16x32_bf16 v[{acc}:{acc+3}], v[{28+4*t}:{31+4*t}], v[{d}:{d+3}], {cin}")
    k.e(f"""s_lshl_b32 s47, s22, 15
            s_lshl_b32 s50, s21, 9
            s_add_u32 s47, s47, s50
            s_lshl_b32 s50, s20, 7
            s_add_u32 s47, s47, s50
            v_lshl_add_u32 v27, v3, 2, s47
            s_nop 7
            v_add_f32 v8, v20, v22
            v_add_f32 v9, v21, v23
            v_add_f32 v10, v76, v78
            v_add_f32 v11, v77, v79""")
    k.sanitize([8, 9, 10, 11], 12)
    k.e(f"""s_mov_b32 s47, 16384
            v_cmp_gt_u32 vcc, 16, v1
            s_and_saveexec_b64 s[50:51], vcc
            buffer_store_dword v8, v27, s[36:39], 0 offen sc1
            buffer_store_dword v9, v27, s[36:39], s47 offen sc1
            buffer_store_dword v10, v27, s[36:39], 0 offen offset:64 sc1
            buffer_store_dword v11, v27, s[36:39], s47 offen offset:64 sc1
            s_mov_b64 exec, s[50:51]""")
    k.stamp(8)
    LPE, LPG = k.newlab("phE"), k.newlab("phG")
    k.e(f"s_cmp_ge_u32 s2, 144\ns_cbranch_scc1 {LPE}")
    phase_f(k)
    k.e(f"s_branch {k.name}_end")
    k.lab(LPE)
    k.e(f"s_cmp_ge_u32 s2, 216\ns_cbranch_scc1 {LPG}")
    phase_e(k)
    k.e(f"s_branch {k.name}_end")
    k.lab(LPG)
    k.e(f"s_cmp_ge_u32 s2, 234\ns_cbranch_scc1 {k.name}_end")
    phase_g(k)

def phase_e(k):
    A_LDS = T_A
    k.e("""v_lshrrev_b32 v5, 7, v0
           v_and_b32 v6, 127, v0
           v_lshlrev_b32 v8, 14, v5
           v_lshl_add_u32 v8, v6, 4, v8
           s_lshl_b32 s40, s48, 11""")
    loads = []
    for j in range(8):
        loads.append(f"s_add_u32 s41, s40, {32768*j}\nbuffer_load_dwordx4 v[{20+4*j}:{23+4*j}], v8, s[36:39], s41 offen sc1")
    poll_gather(k, loads, list(range(20, 52)), 46)
    k.stamp(9)
    for j in range(1, 8):
        for e in range(4):
            k.e(f"v_add_f32 v{20+e}, v{20+e}, v{20+4*j+e}")
    k.e("""v_cvt_pk_bf16_f32 v24, v20, v21
           v_cvt_pk_bf16_f32 v25, v22, v23
           v_lshlrev_b32 v26, 16, v24
           v_and_b32 v27, 0xffff0000, v24
           v_lshlrev_b32 v28, 16, v25
           v_and_b32 v29, 0xffff0000, v25
           v_sub_f32 v20, v20, v26
           v_sub_f32 v21, v21, v27
           v_sub_f32 v22, v22, v28
           v_sub_f32 v23, v23, v29
           v_cvt_pk_bf16_f32 v26, v20, v21
           v_cvt_pk_bf16_f32 v27, v22, v23
           v_lshlrev_b32 v12, 10, v5
           v_lshl_add_u32 v12, v6, 3, v12""")
    k.e(f"""ds_write_b64 v12, v[24:25] offset:{A_LDS}
            ds_write_b64 v12, v[26:27] offset:{A_LDS+2048}
            s_waitcnt lgkmcnt(0)
            s_barrier""")
    k.e("""v_and_b32 v8, 3, v1
           v_lshlrev_b32 v8, 10, v8
           v_lshl_add_u32 v8, v4, 4, v8""")
    for t in range(16):
        k.e(f"ds_read_b128 v[{20+4*t}:{23+4*t}], v8 offset:{A_LDS + 64*t}")
    k.e(f"""v_lshrrev_b32 v9, 2, v3
            v_lshl_add_u32 v10, v4, 3, v9
            v_lshlrev_b32 v10, 7, v10
            v_and_b32 v11, 2, v9
            v_and_b32 v12, 1, v4
            v_lshl_or_b32 v11, v12, 2, v11
            v_bfe_u32 v12, v3, 1, 1
            s_lshl_b32 s47, s20, 1
            v_add_u32 v12, s47, v12
            v_and_b32 v13, 1, v3
            v_lshl_add_u32 v10, v13, 3, v10
            v_xor_b32 v12, v12, v11
            v_lshl_add_u32 v15, v12, 4, v10
            v_add_u32 v15, {BIG_L}, v15""")
    for c in range(2):
        for i in range(8):
            t = 8*c + i
            d = 88 + 4*i
            k.e(f"""ds_read_b64_tr_b16 v[{d}:{d+1}], v15 offset:{4096*t}
                    ds_read_b64_tr_b16 v[{d+2}:{d+3}], v15 offset:{4096*t + 512}""")
        k.e("s_waitcnt lgkmcnt(0)")
        for i in range(8):
            t = 8*c + i
            d = 88 + 4*i
            cin = "0" if t == 0 else "v[120:123]"
            k.e(f"v_mfma_f32_16x16x32_bf16 v[120:123], v[{20+4*t}:{23+4*t}], v[{d}:{d+3}], {cin}")
        k.e("s_nop 3")
    k.e(f"""s_mul_i32 s45, s48, 4608
            s_lshl_b32 s46, s49, 8
            s_add_u32 s45, s45, s46
            s_lshl_b32 s46, s20, 6
            s_add_u32 s45, s45, s46
            v_lshl_add_u32 v12, v3, 2, s45
            s_nop 7
            v_add_f32 v8, v120, v122
            v_add_f32 v9, v121, v123""")
    k.sanitize([8, 9], 10)
    k.e(f"""v_cmp_gt_u32 vcc, 16, v1
            s_and_saveexec_b64 s[50:51], vcc
            s_mov_b32 s45, 0""")
    for r in range(8):
        k.e("""buffer_store_dword v8, v12, s[56:59], s45 offen sc1
               buffer_store_dword v9, v12, s[56:59], s45 offen offset:2304 sc1
               s_add_u32 s45, s45, 36864""")

def phase_f(k):
    A_LDS, R_LDS, GU_LDS, A2_LDS = T_A, T_A + 4608, T_A + 4672, T_A + 5184
    D_LDS = OST_L
    if os.environ.get("DNA", "0") != "1":
        k.e("s_barrier")
        k.e(f"""s_and_b32 s83, s2, 7
                s_lshl_b32 s83, s83, 1
                s_bfe_u32 s45, s2, 0x10003
                s_add_u32 s83, s83, s45
                s_andn2_b32 s45, s2, 15
                s_add_u32 s83, s83, s45
                v_lshlrev_b32 v9, 4, v1
                s_mul_i32 s41, s83, 36864
                s_mul_i32 s42, s20, 9216
                s_add_u32 s41, s41, s42
                s_add_u32 s43, s42, {D_LDS}""")
        for mi in range(9):
            k.e(f"""s_mov_b32 m0, s43
                    s_add_u32 s43, s43, 1024
                    buffer_load_dwordx4 v9, s[84:87], s41 offen nt lds
                    s_add_u32 s41, s41, 1024""")
    k.stamp(10)
    k.e("""v_lshlrev_b32 v5, 4, v0
           v_mov_b32 v6, 0x7fffffff
           v_cmp_gt_u32 vcc, 144, v0
           s_nop 1
           v_cndmask_b32 v5, v6, v5, vcc
           v_lshrrev_b32 v8, 1, v5
           v_cndmask_b32 v8, v6, v8, vcc
           s_mov_b64 s[64:65], vcc""")
    k.e("""buffer_load_dwordx2 v[84:85], v8, s[88:91], 0 offen
           buffer_load_dwordx2 v[86:87], v8, s[88:91], 0 offen offset:1152""")
    k.e("s_and_b32 s41, s2, 7\ns_mul_i32 s41, s41, 36864")
    loads = []
    for ks in range(8):
        for b in range(2):
            r = 20 + 8*ks + 4*b
            loads.append(f"s_add_u32 s40, s41, {4608*ks}\nbuffer_load_dwordx4 v[{r}:{r+3}], v5, s[56:59], s40 offen offset:{2304*b} sc1")
    poll_gather(k, loads, list(range(20, 84)), 46)
    k.stamp(9)
    for ks in range(1, 8):
        for e in range(8):
            k.e(f"v_add_f32 v{20+e}, v{20+e}, v{20+8*ks+e}")
    for b in range(2):
        k.e(f"""v_lshlrev_b32 v12, 16, v{84+2*b}
                v_and_b32 v13, 0xffff0000, v{84+2*b}
                v_lshlrev_b32 v14, 16, v{85+2*b}
                v_and_b32 v15, 0xffff0000, v{85+2*b}
                v_add_f32 v{20+4*b}, v{20+4*b}, v12
                v_add_f32 v{21+4*b}, v{21+4*b}, v13
                v_add_f32 v{22+4*b}, v{22+4*b}, v14
                v_add_f32 v{23+4*b}, v{23+4*b}, v15""")
    k.e(f"""v_add_u32 v16, {BIG_L + 73728}, v5
            s_mov_b64 s[66:67], exec
            s_mov_b64 exec, s[64:65]
            ds_write_b128 v16, v[20:23]
            ds_write_b128 v16, v[24:27] offset:2304
            s_mov_b64 exec, s[66:67]""")
    k.e("""v_add_f32 v28, v20, v21
           v_add_f32 v29, v22, v23
           v_add_f32 v28, v28, v29
           v_add_f32 v29, v24, v25
           v_add_f32 v30, v26, v27
           v_add_f32 v29, v29, v30""")
    k.allreduce("add", 28, 31)
    k.allreduce("add", 29, 31)
    k.e(f"""s_lshl_b32 s46, s20, 3
            v_mov_b32 v32, s46
            v_mov_b32 v33, 0
            ds_write_b64 v32, v[28:29] offset:{R_LDS}
            s_waitcnt lgkmcnt(0)
            s_barrier
            ds_read_b128 v[36:39], v33 offset:{R_LDS}
            ds_read_b64 v[40:41], v33 offset:{R_LDS+16}
            s_waitcnt lgkmcnt(0)
            v_add_f32 v28, v36, v38
            v_add_f32 v28, v28, v40
            v_add_f32 v29, v37, v39
            v_add_f32 v29, v29, v41
            v_mul_f32 v28, {f2u(1.0/576)}, v28
            v_mul_f32 v29, {f2u(1.0/576)}, v29""")
    for b in range(2):
        for e in range(4):
            k.e(f"v_sub_f32 v{20+4*b+e}, v{20+4*b+e}, v{28+b}")
    for b in range(2):
        k.e(f"""v_mul_f32 v{30+b}, v{20+4*b}, v{20+4*b}
                v_fmac_f32 v{30+b}, v{21+4*b}, v{21+4*b}
                v_fmac_f32 v{30+b}, v{22+4*b}, v{22+4*b}
                v_fmac_f32 v{30+b}, v{23+4*b}, v{23+4*b}
                v_cndmask_b32 v{30+b}, 0, v{30+b}, s[64:65]""")
    k.allreduce("add", 30, 34)
    k.allreduce("add", 31, 34)
    k.e(f"""ds_write_b64 v32, v[30:31] offset:{R_LDS+32}
            s_waitcnt lgkmcnt(0)
            s_barrier
            ds_read_b128 v[36:39], v33 offset:{R_LDS+32}
            ds_read_b64 v[40:41], v33 offset:{R_LDS+48}
            s_waitcnt lgkmcnt(0)
            v_add_f32 v30, v36, v38
            v_add_f32 v30, v30, v40
            v_add_f32 v31, v37, v39
            v_add_f32 v31, v31, v41
            v_mov_b32 v34, {f2u(1e-5)}
            v_mov_b32 v35, {f2u(1e-5)}
            v_fmac_f32 v34, {f2u(1.0/576)}, v30
            v_fmac_f32 v35, {f2u(1.0/576)}, v31
            v_rsq_f32 v34, v34
            v_rsq_f32 v35, v35
            v_lshlrev_b32 v12, 3, v0""")
    for b in range(2):
        o = 20 + 4*b
        for e in range(4):
            k.e(f"v_mul_f32 v{o+e}, v{o+e}, v{34+b}")
        k.e(f"""v_cvt_pk_bf16_f32 v36, v{o}, v{o+1}
                v_cvt_pk_bf16_f32 v37, v{o+2}, v{o+3}
                v_lshlrev_b32 v38, 16, v36
                v_and_b32 v39, 0xffff0000, v36
                v_lshlrev_b32 v40, 16, v37
                v_and_b32 v41, 0xffff0000, v37
                v_sub_f32 v{o}, v{o}, v38
                v_sub_f32 v{o+1}, v{o+1}, v39
                v_sub_f32 v{o+2}, v{o+2}, v40
                v_sub_f32 v{o+3}, v{o+3}, v41
                v_cvt_pk_bf16_f32 v38, v{o}, v{o+1}
                v_cvt_pk_bf16_f32 v39, v{o+2}, v{o+3}
                s_mov_b64 s[66:67], exec
                s_mov_b64 exec, s[64:65]
                ds_write_b64 v12, v[36:37] offset:{A_LDS + 1152*b}
                ds_write_b64 v12, v[38:39] offset:{A_LDS + 2304 + 1152*b}
                s_mov_b64 exec, s[66:67]""")
    k.e("s_waitcnt lgkmcnt(0)\ns_barrier")
    k.e(f"""v_and_b32 v8, 3, v1
            v_mul_u32_u24 v8, 1152, v8
            v_lshl_add_u32 v8, v4, 4, v8
            s_and_b32 s44, s20, 1
            s_lshl_b32 s44, s44, 1
            s_lshr_b32 s45, s20, 1
            s_mul_i32 s45, s45, 36864
            s_add_u32 s45, s45, {BIG_L}""")
    for t in range(18):
        k.e(f"ds_read_b128 v[{20+4*t}:{23+4*t}], v8 offset:{A_LDS + 64*t}")
    tr64_base(k, 15, 3, 4, 44, 10, 11)
    k.e("v_add_u32 v15, s45, v15")
    for c in range(3):
        for i in range(6):
            t = 6*c + i
            d = 96 + 4*i
            k.e(f"""ds_read_b64_tr_b16 v[{d}:{d+1}], v15 offset:{2048*t}
                    ds_read_b64_tr_b16 v[{d+2}:{d+3}], v15 offset:{2048*t + 256}""")
        k.e("s_waitcnt lgkmcnt(0)")
        for i in range(6):
            t = 6*c + i
            d = 96 + 4*i
            cin = "0" if t == 0 else "v[120:123]"
            k.e(f"v_mfma_f32_16x16x32_bf16 v[120:123], v[{20+4*t}:{23+4*t}], v[{d}:{d+3}], {cin}")
        k.e("s_nop 3")
    k.e("s_nop 7")
    k.e(f"""s_lshr_b32 s45, s20, 1
            s_lshl_b32 s45, s45, 8
            s_and_b32 s46, s20, 1
            s_lshl_b32 s46, s46, 6
            s_add_u32 s45, s45, s46
            v_lshl_add_u32 v12, v3, 2, s45
            v_add_f32 v8, v120, v122
            v_add_f32 v9, v121, v123
            ds_write_b32 v12, v8 offset:{GU_LDS}
            ds_write_b32 v12, v9 offset:{GU_LDS+128}
            s_waitcnt lgkmcnt(0)
            s_barrier
            v_lshlrev_b32 v12, 2, v1
            ds_read_b32 v8, v12 offset:{GU_LDS}
            ds_read_b32 v9, v12 offset:{GU_LDS+256}
            s_waitcnt lgkmcnt(0)
            v_mul_f32 v10, {f2u(-LOG2E)}, v8
            v_exp_f32 v10, v10
            s_nop 0
            v_add_f32 v10, 1.0, v10
            v_rcp_f32 v10, v10
            s_nop 0
            v_mul_f32 v8, v8, v10
            v_mul_f32 v8, v8, v9""")
    k.hilo(8, 9, 10, 11)
    k.e(f"""v_lshlrev_b32 v12, 1, v1
            ds_write_b16 v12, v9 offset:{A2_LDS}
            ds_write_b16 v12, v10 offset:{A2_LDS+128}
            s_waitcnt lgkmcnt(0)
            s_barrier
            v_and_b32 v8, 3, v1
            v_lshlrev_b32 v8, 6, v8
            v_lshl_add_u32 v8, v4, 4, v8
            ds_read_b128 v[20:23], v8 offset:{A2_LDS}""")
    k.e(f"""v_lshrrev_b32 v10, 2, v3
            v_lshl_add_u32 v10, v4, 3, v10
            v_mul_u32_u24 v10, 1152, v10
            v_and_b32 v11, 3, v3
            v_lshl_add_u32 v10, v11, 3, v10
            s_mul_i32 s45, s20, 288
            s_add_u32 s45, s45, {D_LDS}
            v_add_u32 v10, s45, v10""")
    for n in range(9):
        d = 24 + 4*n
        k.e(f"""ds_read_b64_tr_b16 v[{d}:{d+1}], v10 offset:{32*n}
                ds_read_b64_tr_b16 v[{d+2}:{d+3}], v10 offset:{32*n + 4608}""")
    k.e(f"""s_mul_i32 s46, s20, 576
            s_add_u32 s46, s46, {BIG_L + 73728}
            v_lshl_add_u32 v13, v3, 2, s46""")
    for n in range(9):
        k.e(f"""ds_read_b32 v{100+2*n}, v13 offset:{64*n}
                ds_read_b32 v{101+2*n}, v13 offset:{2304 + 64*n}""")
    k.e("s_waitcnt lgkmcnt(0)")
    for n in range(9):
        d = 24 + 4*n
        k.e(f"v_mfma_f32_16x16x32_bf16 v[{64+4*n}:{67+4*n}], v[20:23], v[{d}:{d+3}], 0")
    k.e(f"""s_mul_i32 s45, s2, 4608
            s_mul_i32 s46, s20, 576
            s_add_u32 s45, s45, s46
            v_lshl_add_u32 v12, v3, 2, s45
            s_cmp_eq_u32 s2, 0
            s_cselect_b32 s47, 1.0, 0
            v_mov_b32 v14, 0x7fc00000
            s_nop 4""")
    for n in range(9):
        a = 64 + 4*n
        k.e(f"""v_add_f32 v{a}, v{a}, v{a+2}
                v_add_f32 v{a+1}, v{a+1}, v{a+3}""")
    Lh = k.newlab("noh")
    k.e(f"s_cbranch_scc0 {Lh}")
    for n in range(9):
        a = 64 + 4*n
        k.e(f"""v_add_f32 v{a}, v{a}, v{100+2*n}
                v_add_f32 v{a+1}, v{a+1}, v{101+2*n}""")
    k.lab(Lh)
    for n in range(9):
        a = 64 + 4*n
        k.e(f"""v_cmp_eq_u32 vcc, -1, v{a}
                v_cmp_eq_u32 s[66:67], -1, v{a+1}
                s_nop 1
                v_cndmask_b32 v{a}, v{a}, v14, vcc
                v_cndmask_b32 v{a+1}, v{a+1}, v14, s[66:67]""")
    k.e("""v_cmp_gt_u32 vcc, 16, v1
           s_and_saveexec_b64 s[50:51], vcc""")
    for n in range(9):
        a = 64 + 4*n
        k.e(f"""buffer_store_dword v{a}, v12, s[60:63], 0 offen offset:{64*n} sc1
                buffer_store_dword v{a+1}, v12, s[60:63], 0 offen offset:{2304 + 64*n} sc1""")

def phase_g(k):
    k.e("""s_sub_u32 s48, s2, 216
           v_lshrrev_b32 v5, 4, v0
           v_and_b32 v6, 15, v0
           v_mul_u32_u24 v8, 4608, v5
           v_lshl_add_u32 v8, v6, 4, v8
           s_lshl_b32 s40, s48, 8""")
    loads = []
    for i in range(9):
        loads.append(f"s_add_u32 s41, s40, {16*4608*i}\nbuffer_load_dwordx4 v[{20+4*i}:{23+4*i}], v8, s[60:63], s41 offen sc1")
    poll_gather(k, loads, list(range(20, 56)), 46)
    k.stamp(9)
    for i in range(1, 9):
        for e in range(4):
            k.e(f"v_add_f32 v{20+e}, v{20+e}, v{20+4*i+e}")
    k.e(f"""v_lshlrev_b32 v9, 4, v0
            v_lshlrev_b32 v10, 2, v0
            ds_write_b128 v9, v[20:23] offset:{T_A}
            s_waitcnt lgkmcnt(0)
            s_barrier
            s_cmp_lg_u32 s20, 0
            s_cbranch_scc1 {k.name}_end""")
    for i in range(16):
        k.e(f"ds_read_b32 v{20+i}, v10 offset:{T_A + 256*i}")
    k.e("s_waitcnt lgkmcnt(0)")
    for i in range(1, 16):
        k.e(f"v_add_f32 v20, v20, v{20+i}")
    k.e("""v_cvt_pk_bf16_f32 v20, v20, v20
           v_lshlrev_b32 v10, 1, v0
           s_lshl_b32 s41, s48, 7
           buffer_store_short v20, v10, s[92:95], s41 offen""")

def k2_main():
    k = Kern("k_main_kernel", 256, 512, LDS_TOTAL, 256)
    guard(k, 256)
    k.ldptr(4, "ckv"); k.ldptr(10, "ws")
    wave_id(k, 20, 1)
    k.e(f"""v_and_b32 v1, 63, v0
            v_mov_b32 v2, 0
            v_lshlrev_b32 v3, 2, v1
            v_cmp_gt_u32 vcc, 20, v0
            s_and_saveexec_b64 s[48:49], vcc
            ds_write_b32 v3, v2 offset:{SYNC}
            s_mov_b64 exec, s[48:49]
            s_waitcnt lgkmcnt(0)
            s_barrier""")
    LB = k.newlab("teamB")
    if STAMP:
        k.sgpr = 102
        k.e("s_mov_b32 s101, s20\nv_mov_b32 v255, 0")
        k.stamp(0)
    k.e(f"s_cmp_ge_u32 s20, 4\ns_cbranch_scc1 {LB}")
    team_a(k)
    k.lab(LB)
    team_b(k)
    k.lab(f"{k.name}_end")
    if STAMP:
        k.e(f"s_cmp_ge_u32 s2, 256\ns_cbranch_scc1 {k.name}_end2")
        k.stamp_out()
        k.lab(f"{k.name}_end2")
    return k

def main():
    ks = [k2_main()]
    out = [HEADER.rstrip("\n")]
    for k in ks:
        out.append(f"; @launch kernel={k.name} grid=({k.grid},1,1) block=({k.block},1,1) lds={k.lds}")
    out.append('.amdgcn_target "amdgcn-amd-amdhsa--gfx950"\n.text')
    for k in ks:
        out.append(k.text())
    open(sys.argv[1] if len(sys.argv) > 1 else "u.s", "w").write("\n".join(out))
main()
```

```python
import sys, struct

HEADER = open("sequential_preLN__compressed_kv_cla__swiglu_ffn__decode.s.ref").read().split("; Override launch")[0]

WS_QA   = 0x000000
WS_ML   = 0x1D0000
WS_QP   = 0x020000
WS_INIT = 0x080000
WS_CTX  = 0x080000
WS_DNP  = 0x0C0000
WS_OUTP = 0x170000
WS_FL   = 0x1C0000
WS_OP   = 0x200000
INIT_BYTES = 0x180000
SENT = 0xFFFFFFFF
import os
GUNT = os.environ.get('GUNT', 'nt')
SPIN_MAX = 40000
import os
STAMP = bool(os.environ.get('STAMP'))

KA = dict(x=0, ckv=8, wq=16, wuk=24, wuv=32, wo=40, bx=48, wg=56, wu=64, wd=72, out=80, dbg=88, ws=96)
SZ = dict(x=2304, ckv=33554432, wq=4718592, wuk=4194304, wuv=4194304, wo=4718592, wg=5308416, wu=5308416,
          wd=5308416, out=2304)
LOG2E = 1.4426950408889634
def f2u(f): return struct.unpack("<I", struct.pack("<f", f))[0]

class Kern:
    def __init__(self, name, grid, block, lds, vgpr, sgpr=100):
        self.name, self.grid, self.block, self.lds, self.vgpr, self.sgpr = name, grid, block, lds, vgpr, sgpr
        self.lines = []
        self.nlab = 0
    def e(self, s):
        for l in s.strip("\n").split("\n"):
            if l.strip(): self.lines.append("    " + l.strip())
    def lab(self, s): self.lines.append(s + ":")
    def newlab(self, p):
        self.nlab += 1
        return f"{self.name}_{p}{self.nlab}"
    def ldptr(self, d, key): self.e(f"s_load_dwordx2 s[{d}:{d+1}], s[0:1], {KA[key]}")
    def srd(self, d, p, n, off=0):
        if off:
            self.e(f"s_add_u32 s{d}, s{p}, {off}\ns_addc_u32 s{d+1}, s{p+1}, 0")
        else:
            self.e(f"s_mov_b32 s{d}, s{p}\ns_mov_b32 s{d+1}, s{p+1}")
        self.e(f"s_mov_b32 s{d+2}, {n}\ns_mov_b32 s{d+3}, 0x00020000")
    def allreduce(self, op, x, t):
        for ctl in ("quad_perm:[1,0,3,2]", "quad_perm:[2,3,0,1]", "row_half_mirror", "row_mirror"):
            self.e(f"s_nop 1\nv_{op}_f32_dpp v{x}, v{x}, v{x} {ctl} row_mask:0xf bank_mask:0xf")
        for sw in ("v_permlane16_swap_b32", "v_permlane32_swap_b32"):
            self.e(f"v_mov_b32 v{t}, v{x}\ns_nop 1\n{sw} v{x}, v{t}\ns_nop 0\nv_{op}_f32 v{x}, v{x}, v{t}")
    def hilo(self, x, hi, lo, t):
        self.e(f"""v_cvt_pk_bf16_f32 v{hi}, v{x}, v{x}
                   v_lshlrev_b32 v{t}, 16, v{hi}
                   v_sub_f32 v{t}, v{x}, v{t}
                   v_cvt_pk_bf16_f32 v{lo}, v{t}, v{t}""")
    def sanitize(self, regs, tmp):
        self.e(f"v_mov_b32 v{tmp}, 0x7fc00000")
        for r in regs:
            self.e(f"v_cmp_eq_u32 vcc, -1, v{r}\ns_nop 1\nv_cndmask_b32 v{r}, v{r}, v{tmp}, vcc")
    def stamp(self, idx):
        if not STAMP: return
        self.e(f"s_memrealtime s[96:97]\ns_waitcnt lgkmcnt(0)\nv_writelane_b32 v255, s96, {idx}")
    def stamp_out(self):
        if not STAMP: return
        self.e(f"""s_mov_b64 exec, -1
                   s_waitcnt vmcnt(0)
                   s_memrealtime s[96:97]
                   s_waitcnt lgkmcnt(0)
                   v_writelane_b32 v255, s96, 15
                   s_add_u32 s96, s10, 0x1000000
                   s_addc_u32 s97, s11, 0
                   s_mov_b32 s98, 0x1000000
                   s_mov_b32 s99, 0x00020000
                   v_mbcnt_lo_u32_b32 v254, -1, 0
                   v_mbcnt_hi_u32_b32 v254, -1, v254
                   s_lshl_b32 s100, s2, 3
                   s_add_u32 s100, s100, s101
                   s_lshl_b32 s100, s100, 8
                   v_lshl_add_u32 v254, v254, 2, s100
                   buffer_store_dword v255, v254, s[96:99], 0 offen""")
    def text(self):
        acc = (self.vgpr + 3) // 4 * 4
        return "\n".join([
            f".globl {self.name}", ".p2align 8", f".type {self.name},@function", f"{self.name}:"] + self.lines + [
            "    s_endpgm",
            '.section .rodata,"a"', ".p2align 6", f".amdhsa_kernel {self.name}",
            f"  .amdhsa_next_free_vgpr {self.vgpr}", f"  .amdhsa_next_free_sgpr {self.sgpr}",
            f"  .amdhsa_accum_offset {acc}", "  .amdhsa_group_segment_fixed_size 0", "  .amdhsa_kernarg_size 104",
            "  .amdhsa_user_sgpr_count 2", "  .amdhsa_user_sgpr_kernarg_segment_ptr 1",
            "  .amdhsa_system_sgpr_workgroup_id_x 1", ".end_amdhsa_kernel", ".text", ""])

def guard(k, n):
    k.e(f"s_cmp_ge_u32 s2, {n}\ns_cbranch_scc1 {k.name}_end")

def wave_id(k, sdst, vt):
    k.e(f"v_lshrrev_b32 v{vt}, 6, v0\ns_nop 0\nv_readfirstlane_b32 s{sdst}, v{vt}")

RS = 1040
PX, MX, SX, SYNC, CT = 0, 8192, 8704, 9216, 9296
NONCE_L = SYNC + 64
WQ_L = CT + 128 * RS
LDS_TOTAL = WQ_L + 18432
LN_L, QQ_L = 0, 4608
D_A, D_A2, D_R = 0, 1024, 2048
T_A = 2304
WUV_L, OST_L, BIG_L = 9728, 26112, 63488

def lds_sync(k, word, target, vz, vone, vt, st):
    L = k.newlab("spin")
    k.e(f"""s_mov_b64 exec, 1
            ds_add_u32 v{vz}, v{vone} offset:{SYNC + 4*word}
            s_mov_b64 exec, -1""")
    k.lab(L)
    k.e(f"""ds_read_b32 v{vt}, v{vz} offset:{SYNC + 4*word}
            s_waitcnt lgkmcnt(0)
            v_readfirstlane_b32 s{st}, v{vt}
            s_cmp_lt_u32 s{st}, {target}
            s_cbranch_scc1 {L}""")

def poll_flags(k, vmask, vt, scnt, srd):
    L = k.newlab("pf"); Ld = k.newlab("pfd")
    k.e(f"s_mov_b32 s{scnt}, 0")
    k.lab(L)
    k.e(f"""buffer_load_dword v{vt}, v{vt+2}, s[{srd}:{srd+3}], 0 offen sc1
            s_waitcnt vmcnt(0)
            v_and_b32 v{vt}, v{vt}, v{vmask}
            v_cmp_ne_u32 vcc, v{vt}, v{vmask}
            s_add_u32 s{scnt}, s{scnt}, 1
            s_cmp_gt_u32 s{scnt}, {SPIN_MAX}
            s_cbranch_scc1 {Ld}
            s_cbranch_vccnz {L}""")
    k.lab(Ld)

def single_poll(k, kind, word, vz, vone, vt, st, srd, soff, snon, slp=3):
    L, Ld, Lo, Le = k.newlab("sp"), k.newlab("spd"), k.newlab("spo"), k.newlab("spe")
    k.e(f"s_cmp_lg_u32 s20, 0\ns_cbranch_scc1 {Lo}\ns_mov_b32 s{st}, 0")
    if kind == "grp": k.e("s_mov_b64 exec, 0xff")
    k.lab(L)
    if kind == "grp":
        k.e(f"""buffer_load_dwordx2 v[{vt}:{vt+1}], v{vt+8}, s[{srd}:{srd+3}], s{soff} offen sc1
                s_waitcnt vmcnt(0)
                v_xor_b32 v{vt}, s{snon}, v{vt}
                v_xor_b32 v{vt+1}, s{snon+1}, v{vt+1}
                v_or_b32 v{vt}, v{vt}, v{vt+1}""")
    else:
        k.e(f"""buffer_load_dwordx4 v[{vt}:{vt+3}], v{vt+8}, s[{srd}:{srd+3}], s{soff} offen sc1
                buffer_load_dwordx4 v[{vt+4}:{vt+7}], v{vt+8}, s[{srd}:{srd+3}], s{soff} offen offset:1024 sc1
                s_waitcnt vmcnt(0)""")
        for i in range(8):
            k.e(f"v_xor_b32 v{vt+i}, s{snon + (i & 1)}, v{vt+i}")
        k.e(f"""v_or3_b32 v{vt}, v{vt}, v{vt+1}, v{vt+2}
                v_or3_b32 v{vt+3}, v{vt+3}, v{vt+4}, v{vt+5}
                v_or3_b32 v{vt}, v{vt}, v{vt+6}, v{vt+7}
                v_or_b32 v{vt}, v{vt}, v{vt+3}""")
    k.e(f"""v_cmp_ne_u32 vcc, 0, v{vt}
            s_add_u32 s{st}, s{st}, 1
            s_cmp_gt_u32 s{st}, {SPIN_MAX}
            s_cbranch_scc1 {Ld}
            s_cbranch_vccz {Ld}
            s_sleep {slp}
            s_branch {L}""")
    k.lab(Ld)
    k.e(f"""s_mov_b64 exec, -1
            ds_write_b32 v{vz}, v{vone} offset:{SYNC + 4*word}
            s_branch {Le}""")
    k.lab(Lo)
    lds_wait(k, word, 1, vz, vt, st, sleep=1)
    k.lab(Le)

def publish_rep(k, word, srd, hop, vz, vone, vt, st, snon):
    L = k.newlab("pub")
    k.e(f"""s_waitcnt vmcnt(0)
            s_mov_b64 exec, 1
            ds_add_rtn_u32 v{vt}, v{vz}, v{vone} offset:{SYNC + 4*word}
            s_waitcnt lgkmcnt(0)
            v_readfirstlane_b32 s{st}, v{vt}
            s_mov_b64 exec, 0xff
            s_cmp_lg_u32 s{st}, 3
            s_cbranch_scc1 {L}
            s_lshl_b32 s{st}, s2, 3
            s_add_u32 s{st}, s{st}, {16384*hop}
            v_lshlrev_b32 v{vt}, 11, v1
            v_mov_b32 v{vt+2}, s{snon}
            v_mov_b32 v{vt+3}, s{snon+1}
            buffer_store_dwordx2 v[{vt+2}:{vt+3}], v{vt}, s[{srd}:{srd+3}], s{st} offen sc1""")
    k.lab(L)
    k.e("s_mov_b64 exec, -1")

def get_nonce(k, vz, vt, snon, st):
    L = k.newlab("gn")
    k.lab(L)
    k.e(f"""ds_read_b64 v[{vt}:{vt+1}], v{vz} offset:{NONCE_L}
            s_waitcnt lgkmcnt(0)
            v_readfirstlane_b32 s{snon}, v{vt}
            v_readfirstlane_b32 s{snon+1}, v{vt+1}
            s_cmp_eq_u32 s{snon}, 0
            s_cbranch_scc1 {L}""")

def publish_flag(k, word, val, srd, vz, vone, vt, st):
    L = k.newlab("pub")
    k.e(f"""s_waitcnt vmcnt(0)
            s_mov_b64 exec, 1
            ds_add_rtn_u32 v{vt}, v{vz}, v{vone} offset:{SYNC + 4*word}
            s_waitcnt lgkmcnt(0)
            v_readfirstlane_b32 s{st}, v{vt}
            s_cmp_lg_u32 s{st}, 3
            s_cbranch_scc1 {L}
            v_mov_b32 v{vt}, s2
            v_mov_b32 v{vt+1}, {val}
            buffer_store_byte v{vt+1}, v{vt}, s[{srd}:{srd+3}], 0 offen sc1""")
    k.lab(L)
    k.e("s_mov_b64 exec, -1")

def lds_wait(k, word, target, vz, vt, st, sleep=0):
    L = k.newlab("lw")
    k.lab(L)
    if sleep: k.e(f"s_sleep {sleep}")
    k.e(f"""ds_read_b32 v{vt}, v{vz} offset:{SYNC + 4*word}
            s_waitcnt lgkmcnt(0)
            v_readfirstlane_b32 s{st}, v{vt}
            s_cmp_lt_u32 s{st}, {target}
            s_cbranch_scc1 {L}""")

def team_a(k):
    k.ldptr(12, "x"); k.ldptr(14, "wq"); k.ldptr(16, "wuk"); k.ldptr(18, "dbg"); k.ldptr(68, "wg"); k.ldptr(70, "wu")
    k.e("""s_and_b32 s21, s2, 31
           s_lshr_b32 s22, s2, 5
           v_and_b32 v3, 15, v1
           v_lshrrev_b32 v4, 4, v1
           v_mov_b32 v224, 0
           v_mov_b32 v225, 1
           s_waitcnt lgkmcnt(0)""")
    k.srd(24, 12, SZ["x"]); k.srd(28, 14, SZ["wq"]); k.srd(32, 16, SZ["wuk"]); k.srd(36, 10, 262144, WS_QP)
    k.srd(52, 18, 256); k.srd(56, 10, 65536, WS_QA); k.srd(60, 10, 8388608, WS_OP); k.srd(64, 10, 65536, WS_ML)
    k.srd(72, 68, SZ["wg"]); k.srd(76, 70, SZ["wu"]); k.srd(80, 10, 32768, WS_FL); k.srd(88, 10, INIT_BYTES, WS_INIT)
    k.e("""v_lshlrev_b32 v252, 4, v1
           s_and_b32 s84, s2, 7
           s_lshl_b32 s84, s84, 11""")
    k.e("s_and_b32 s23, s20, 1\ns_mul_i32 s23, s23, 1152\nv_lshlrev_b32 v2, 1, v1")
    for i in range(9):
        k.e(f"buffer_load_ushort v{10+i}, v2, s[24:27], s23 offen offset:{128*i}")
    k.e(f"""v_lshlrev_b32 v6, 1, v4
            v_xor_b32 v6, v6, v3
            v_lshlrev_b32 v6, 4, v6
            v_lshl_add_u32 v6, v4, 13, v6
            s_and_b32 s40, s20, 2
            s_lshl_b32 s40, s40, 6
            v_xor_b32 v6, s40, v6
            s_mul_i32 s41, s22, 72
            s_lshl_b32 s42, s20, 2
            s_add_u32 s41, s41, s42
            s_lshl_b32 s41, s41, 13
            s_lshl_b32 s42, s21, 8
            s_add_u32 s41, s41, s42
            s_lshl_b32 s43, s20, 10
            s_add_u32 s43, s43, {WQ_L}""")
    Lq = k.newlab("wq4")
    for i in range(5):
        if i == 4: k.e(f"s_cmp_ge_u32 s20, 2\ns_cbranch_scc1 {Lq}")
        k.e(f"""s_mov_b32 m0, s43
                s_add_u32 s43, s43, 4096
                buffer_load_dwordx4 v6, s[28:31], s41 offen nt lds
                s_add_u32 s41, s41, {16*8192}""")
    k.lab(Lq)
    k.e("""s_lshl_b32 s40, s22, 6
           s_lshl_b32 s41, s20, 4
           s_add_u32 s40, s40, s41
           v_add_u32 v7, s40, v3
           v_lshlrev_b32 v7, 13, v7
           v_lshl_add_u32 v7, v4, 4, v7
           s_lshl_b32 s41, s21, 8""")
    for t in range(4):
        k.e(f"buffer_load_dwordx4 v[{232+4*t}:{235+4*t}], v7, s[32:35], s41 offen offset:{64*t} nt")
    Ln = k.newlab("non")
    k.e(f"""s_or_b32 s44, s20, s2
            s_cmp_lg_u32 s44, 0
            s_cbranch_scc1 {Ln}
            s_mov_b64 exec, 1
            s_memrealtime s[86:87]
            s_waitcnt lgkmcnt(0)
            s_or_b32 s86, s86, 1
            v_mov_b32 v226, s86
            v_mov_b32 v227, s87
            buffer_store_dwordx2 v[226:227], v224, s[52:55], 0 offen sc1
            s_mov_b64 exec, -1""")
    k.lab(Ln)
    k.e("""v_mov_b32 v28, -1
           v_mov_b32 v29, -1
           v_mov_b32 v30, -1
           v_mov_b32 v31, -1
           v_lshlrev_b32 v9, 4, v0
           s_mul_i32 s45, s2, 5120
           buffer_store_dwordx4 v[28:31], v9, s[88:91], s45 offen sc1
           s_add_u32 s45, s45, 4096
           v_cmp_gt_u32 vcc, 64, v0
           s_and_saveexec_b64 s[48:49], vcc
           buffer_store_dwordx4 v[28:31], v9, s[88:91], s45 offen sc1
           s_mov_b64 exec, s[48:49]
           s_lshl_b32 s45, s2, 8
           s_add_u32 s45, s45, 0x150000
           v_cmp_gt_u32 vcc, 16, v0
           s_and_saveexec_b64 s[48:49], vcc
           buffer_store_dwordx4 v[28:31], v9, s[88:91], s45 offen sc1
           s_mov_b64 exec, s[48:49]
           s_waitcnt vmcnt(9)
           buffer_load_dwordx2 v[226:227], v224, s[52:55], 0 offen sc1""")
    for i in range(9):
        k.e(f"v_lshlrev_b32 v{10+i}, 16, v{10+i}")
    k.e("v_add_f32 v20, v10, v11")
    for i in range(2, 9):
        k.e(f"v_add_f32 v20, v20, v{10+i}")
    k.allreduce("add", 20, 21)
    k.e(f"v_mul_f32 v20, {f2u(1.0/576)}, v20")
    for i in range(9):
        k.e(f"v_sub_f32 v{10+i}, v{10+i}, v20")
    k.e("v_mul_f32 v22, v10, v10")
    for i in range(1, 9):
        k.e(f"v_fmac_f32 v22, v{10+i}, v{10+i}")
    k.allreduce("add", 22, 21)
    k.e(f"""v_mov_b32 v23, {f2u(1e-5)}
            v_fmac_f32 v23, {f2u(1.0/576)}, v22
            v_rsq_f32 v23, v23
            v_add_u32 v24, s23, v2""")
    for i in range(9):
        k.e(f"v_mul_f32 v{10+i}, v{10+i}, v23")
        k.hilo(10+i, 25, 26, 27)
        k.e(f"""ds_write_b16 v24, v25 offset:{LN_L + 128*i}
                ds_write_b16 v24, v26 offset:{LN_L + 2304 + 128*i}""")
    k.e("s_waitcnt vmcnt(6)")
    lds_sync(k, 1, 4, 224, 225, 229, 44)
    k.stamp(6)
    k.e(f"""v_and_b32 v8, 3, v1
            v_mul_u32_u24 v8, 1152, v8
            v_lshl_add_u32 v8, v4, 4, v8
            s_mul_i32 s40, s22, 144
            v_add_u32 v8, s40, v8""")
    for t in range(3):
        k.e(f"ds_read_b128 v[{28+4*t}:{31+4*t}], v8 offset:{LN_L + 64*t}")
    k.e(f"""v_lshrrev_b32 v9, 2, v3
            v_lshl_add_u32 v10, v4, 3, v9
            v_lshlrev_b32 v10, 8, v10
            v_and_b32 v11, 1, v4
            v_lshlrev_b32 v11, 3, v11
            v_lshl_or_b32 v11, v9, 1, v11
            v_bfe_u32 v12, v3, 1, 1
            s_lshl_b32 s46, s20, 2
            v_add_u32 v12, s46, v12
            v_and_b32 v13, 1, v3
            v_lshlrev_b32 v13, 3, v13
            s_mov_b32 s47, {WQ_L}
            v_add3_u32 v10, v10, v13, s47
            v_lshlrev_b32 v19, 8, v9
            s_mov_b32 s47, {WQ_L + 16384}
            v_add3_u32 v19, v19, v13, s47
            v_lshlrev_b32 v18, 1, v9""")
    for nt in range(2):
        k.e(f"""v_add_u32 v14, {2*nt}, v12
                v_xor_b32 v15, v14, v11
                v_lshl_add_u32 v15, v15, 4, v10
                v_xor_b32 v16, v14, v18
                v_lshl_add_u32 v16, v16, 4, v19""")
        for t in range(2):
            d = 40 + 12*nt + 4*t
            k.e(f"""ds_read_b64_tr_b16 v[{d}:{d+1}], v15 offset:{8192*t}
                    ds_read_b64_tr_b16 v[{d+2}:{d+3}], v15 offset:{8192*t + 1024}""")
        d = 40 + 12*nt + 8
        k.e(f"""ds_read_b64_tr_b16 v[{d}:{d+1}], v16
                ds_read_b64_tr_b16 v[{d+2}:{d+3}], v16 offset:1024""")
    k.e("""v_cmp_gt_u32 vcc, 16, v1
           s_waitcnt lgkmcnt(0)
           v_cndmask_b32 v36, 0, v36, vcc
           v_cndmask_b32 v37, 0, v37, vcc
           v_cndmask_b32 v38, 0, v38, vcc
           v_cndmask_b32 v39, 0, v39, vcc
           s_nop 1""")
    for nt in range(2):
        acc = 64 + 4*nt
        for t in range(3):
            d = 40 + 12*nt + 4*t
            cin = "0" if t == 0 else f"v[{acc}:{acc+3}]"
            k.e(f"v_mfma_f32_16x16x32_bf16 v[{acc}:{acc+3}], v[{28+4*t}:{31+4*t}], v[{d}:{d+3}], {cin}")
    k.e(f"""s_lshl_b32 s46, s22, 15
            s_lshl_b32 s47, s21, 9
            s_add_u32 s46, s46, s47
            s_lshl_b32 s47, s20, 7
            s_add_u32 s46, s46, s47
            v_lshl_add_u32 v27, v3, 2, s46
            s_mov_b32 s47, 16384
            s_nop 4
            v_add_f32 v8, v64, v66
            v_add_f32 v9, v65, v67
            v_add_f32 v10, v68, v70
            v_add_f32 v11, v69, v71
            s_and_saveexec_b64 s[48:49], vcc
            buffer_store_dword v8, v27, s[36:39], 0 offen sc1
            buffer_store_dword v9, v27, s[36:39], s47 offen sc1
            buffer_store_dword v10, v27, s[36:39], 0 offen offset:64 sc1
            buffer_store_dword v11, v27, s[36:39], s47 offen offset:64 sc1
            s_mov_b64 exec, s[48:49]""")
    Lw, Lf = k.newlab("nw"), k.newlab("nf")
    k.e("s_mov_b32 s44, 0\ns_waitcnt vmcnt(4)")
    k.lab(Lw)
    k.e(f"""v_readfirstlane_b32 s86, v226
            v_readfirstlane_b32 s87, v227
            s_add_u32 s44, s44, 1
            s_cmp_gt_u32 s44, {SPIN_MAX}
            s_cbranch_scc1 {Lf}
            s_cmp_eq_u32 s86, 0
            s_cbranch_scc0 {Lf}
            s_sleep 2
            buffer_load_dwordx2 v[226:227], v224, s[52:55], 0 offen sc1
            s_waitcnt vmcnt(0)
            s_branch {Lw}""")
    k.lab(Lf)
    k.e("s_or_b32 s86, s86, 1")
    publish_rep(k, 2, 80, 0, 224, 225, 226, 44, 86)
    k.stamp(7)
    k.e("""s_lshl_b32 s46, s21, 3
           v_lshl_add_u32 v88, v1, 8, s46""")
    single_poll(k, "grp", 12, 224, 225, 80, 44, 80, 84, 86)
    k.e("""v_lshrrev_b32 v5, 7, v0
           v_and_b32 v6, 127, v0
           v_lshlrev_b32 v8, 14, v5
           v_lshl_add_u32 v8, v6, 2, v8
           s_lshl_b32 s46, s21, 9""")
    for j in range(8):
        k.e(f"buffer_load_dword v{10+j}, v8, s[36:39], s46 offen sc1\ns_add_u32 s46, s46, 32768")
    k.e("""v_lshlrev_b32 v24, 8, v5
           v_lshl_add_u32 v24, v6, 1, v24
           s_waitcnt vmcnt(0)""")
    for j in range(1, 8):
        k.e(f"v_add_f32 v10, v10, v{10+j}")
    k.hilo(10, 25, 26, 27)
    k.e(f"""ds_write_b16 v24, v25 offset:{QQ_L}
            ds_write_b16 v24, v26 offset:{QQ_L + 512}""")
    lds_sync(k, 3, 4, 224, 225, 226, 44)
    k.e(f"""v_and_b32 v8, 3, v1
            v_lshlrev_b32 v8, 8, v8
            v_lshl_add_u32 v8, v4, 4, v8""")
    for t in range(4):
        k.e(f"ds_read_b128 v[{28+4*t}:{31+4*t}], v8 offset:{QQ_L + 64*t}")
    k.e("s_waitcnt vmcnt(0) lgkmcnt(0)")
    k.stamp(8)
    for t in range(4):
        cin = "0" if t == 0 else "v[64:67]"
        k.e(f"v_mfma_f32_16x16x32_bf16 v[64:67], v[{28+4*t}:{31+4*t}], v[{232+4*t}:{235+4*t}], {cin}")
    sc = f2u((128 ** -0.5) * LOG2E)
    k.e(f"""s_lshl_b32 s46, s22, 2
            s_add_u32 s46, s46, s20
            s_lshl_b32 s46, s46, 10
            s_lshl_b32 s47, s21, 4
            s_add_u32 s46, s46, s47
            v_lshrrev_b32 v12, 1, v1
            v_lshlrev_b32 v12, 15, v12
            v_and_b32 v13, 1, v1
            v_lshl_add_u32 v12, v13, 9, v12
            s_lshl_b32 s47, s20, 6
            v_lshl_add_u32 v13, v3, 1, s47
            v_lshl_add_u32 v14, v1, 4, s47
            v_add_f32 v10, v64, v66
            v_add_f32 v11, v65, v67
            v_mul_f32 v10, {sc}, v10
            v_mul_f32 v11, {sc}, v11
            v_cvt_pk_bf16_f32 v10, v10, v11
            ds_write_b16 v13, v10 offset:{QQ_L + 1024}
            ds_write_b16_d16_hi v13, v10 offset:{QQ_L + 1024 + 32}
            s_mov_b64 exec, 0xf
            ds_read_b128 v[16:19], v14 offset:{QQ_L + 1024}
            s_waitcnt lgkmcnt(0)
            buffer_store_dwordx4 v[16:19], v12, s[56:59], s46 offen sc1
            s_mov_b64 exec, -1""")
    publish_rep(k, 4, 80, 1, 224, 225, 226, 44, 86)
    k.stamp(9)
    k.e(f"""v_and_b32 v2, 31, v1
            v_lshrrev_b32 v3, 5, v1
            s_lshr_b32 s21, s2, 7
            s_lshl_b32 s22, s21, 15
            v_lshlrev_b32 v5, 4, v1
            s_lshl_b32 s41, s20, 5
            v_and_b32 v6, 16, v2
            v_and_b32 v7, 3, v2
            v_lshl_add_u32 v6, v7, 2, v6
            v_bfe_u32 v7, v2, 2, 1
            v_lshl_add_u32 v6, v7, 1, v6
            v_bfe_u32 v7, v2, 3, 1
            v_add_u32 v6, v6, v7
            v_add_u32 v6, s41, v6
            v_mul_u32_u24 v6, {RS}, v6
            v_lshl_add_u32 v6, v3, 4, v6
            v_add_u32 v6, {CT}, v6
            """)
    k.e("s_add_u32 s84, s84, 16384")
    single_poll(k, "all", 13, 224, 225, 244, 44, 80, 84, 86, slp=int(os.environ.get('SLP1', '3')))
    k.stamp(1)
    QF = 96
    for t in range(32):
        if t % 4 == 0 and t: k.e("s_add_u32 s22, s22, 4096")
        k.e(f"buffer_load_dwordx4 v[{QF+4*t}:{QF+3+4*t}], v5, s[56:59], s22 offen offset:{1024*(t%4)} {os.environ.get('QSC', 'sc1')}")
    lds_wait(k, 0, 4, 224, 226, 44)
    k.e("s_waitcnt vmcnt(0)")
    k.stamp(2)
    ACC = 16
    bufs = [32, 64]
    for i in range(8):
        k.e(f"ds_read_b128 v[{bufs[0]+4*i}:{bufs[0]+3+4*i}], v6 offset:{32*i}")
    for ci in range(4):
        if ci < 3:
            for i in range(8):
                b = bufs[(ci+1) % 2] + 4*i
                if b + 3 >= QF: raise Exception("reg overlap")
                k.e(f"ds_read_b128 v[{b}:{b+3}], v6 offset:{32*(8*(ci+1)+i)}")
            k.e("s_waitcnt lgkmcnt(8)")
        else:
            k.e("s_waitcnt lgkmcnt(0)")
        for i in range(8):
            t = 8*ci + i
            b = bufs[ci % 2] + 4*i
            cin = "0" if t == 0 else f"v[{ACC}:{ACC+15}]"
            k.e(f"v_mfma_f32_32x32x16_bf16 v[{ACC}:{ACC+15}], v[{b}:{b+3}], v[{QF+4*t}:{QF+3+4*t}], {cin}")
    k.e("s_nop 15")
    k.e(f"v_max3_f32 v8, v{ACC}, v{ACC+1}, v{ACC+2}")
    for i in range(3, 15, 2):
        k.e(f"v_max3_f32 v8, v8, v{ACC+i}, v{ACC+i+1}")
    k.e(f"""v_max_f32 v8, v8, v{ACC+15}
            v_mov_b32 v9, v8
            s_nop 1
            v_permlane32_swap_b32 v8, v9
            s_nop 0
            v_max_f32 v8, v8, v9
            s_lshl_b32 s43, s20, 2
            v_lshl_add_u32 v10, v2, 4, s43
            v_lshlrev_b32 v11, 4, v2
            ds_write_b32 v10, v8 offset:{MX}""")
    lds_sync(k, 5, 4, 224, 225, 226, 44)
    k.e(f"""ds_read_b128 v[12:15], v11 offset:{MX}
            s_waitcnt lgkmcnt(0)
            v_max3_f32 v8, v12, v13, v14
            v_max_f32 v8, v8, v15""")
    for i in range(16):
        k.e(f"v_sub_f32 v{ACC+i}, v{ACC+i}, v8")
    for i in range(16):
        k.e(f"v_exp_f32 v{ACC+i}, v{ACC+i}")
    k.e(f"s_nop 0\nv_add_f32 v9, v{ACC}, v{ACC+1}")
    for i in range(2, 16):
        k.e(f"v_add_f32 v9, v9, v{ACC+i}")
    for i in range(8):
        k.e(f"v_cvt_pk_bf16_f32 v{32+i}, v{ACC+2*i}, v{ACC+2*i+1}")
    k.e(f"""v_mov_b32 v12, v9
            s_lshl_b32 s44, s20, 11
            v_lshl_add_u32 v13, v1, 4, s44
            v_permlane32_swap_b32 v9, v12
            s_nop 0
            v_add_f32 v9, v9, v12
            ds_write_b128 v13, v[32:35] offset:{PX}
            ds_write_b128 v13, v[36:39] offset:{PX+1024}
            ds_write_b32 v10, v9 offset:{SX}""")
    lds_sync(k, 6, 4, 224, 225, 226, 44)
    k.stamp(3)
    PF = 32
    for s in range(8):
        k.e(f"ds_read_b128 v[{PF+4*s}:{PF+3+4*s}], v5 offset:{PX + 1024*s}")
    k.e(f"ds_read_b128 v[12:15], v11 offset:{SX}")
    k.e(f"""v_bfe_u32 v66, v1, 2, 2
            v_lshlrev_b32 v66, 2, v66
            v_lshl_add_u32 v66, v3, 1, v66
            v_mul_u32_u24 v66, {RS}, v66
            v_bfe_u32 v67, v1, 4, 1
            v_lshlrev_b32 v67, 5, v67
            v_and_b32 v7, 3, v1
            v_lshl_add_u32 v67, v7, 3, v67
            s_lshl_b32 s45, s20, 8
            s_add_u32 s45, s45, {CT}
            v_add3_u32 v64, v66, v67, s45
            v_add_u32 v65, {64*RS}, v64""")
    OACC = 96
    VB = [160, 192]
    steps = [(T, s) for s in range(8) for T in range(4)]
    def trread(dst, T, s):
        wq, u = s >> 1, s & 1
        base = 64 if wq < 2 else 65
        off = (32*(wq & 1) + 16*u) * RS + 64*T
        k.e(f"ds_read_b64_tr_b16 v[{dst}:{dst+1}], v{base} offset:{off}")
        k.e(f"ds_read_b64_tr_b16 v[{dst+2}:{dst+3}], v{base} offset:{off+RS}")
    CH = 4
    chunks = [steps[i:i+CH] for i in range(0, 32, CH)]
    for i, (T, s) in enumerate(chunks[0]):
        trread(VB[0] + 4*i, T, s)
    for ci, ch in enumerate(chunks):
        if ci + 1 < len(chunks):
            for i, (T, s) in enumerate(chunks[ci+1]):
                trread(VB[(ci+1) % 2] + 4*i, T, s)
            k.e(f"s_waitcnt lgkmcnt({2*CH})")
        else:
            k.e("s_waitcnt lgkmcnt(0)")
        for i, (T, s) in enumerate(ch):
            a = VB[ci % 2] + 4*i
            o = OACC + 16*T
            cin = "0" if s == 0 else f"v[{o}:{o+15}]"
            k.e(f"v_mfma_f32_32x32x16_bf16 v[{o}:{o+15}], v[{a}:{a+3}], v[{PF+4*s}:{PF+3+4*s}], {cin}")
    k.stamp(4)
    Lk = k.newlab("skipml")
    k.e(f"""v_add_f32 v12, v12, v13
            v_add_f32 v14, v14, v15
            v_add_f32 v9, v12, v14
            s_and_b32 s46, s2, 127
            s_lshl_b32 s47, s21, 12
            s_add_u32 s46, s46, s47
            s_lshl_b32 s46, s46, 3
            v_lshl_add_u32 v10, v2, 10, s46
            v_mov_b32 v228, v10""")
    k.e(f"""s_lshl_b32 s46, s2, 15
            s_lshl_b32 s47, s20, 8
            s_add_u32 s46, s46, s47
            v_mul_u32_u24 v10, {RS}, v2
            v_lshl_add_u32 v10, v3, 3, v10
            v_add_u32 v10, s45, v10
            v_lshrrev_b32 v11, 4, v1
            v_and_b32 v12, 15, v1
            v_mul_u32_u24 v13, {RS}, v11
            v_lshl_add_u32 v13, v12, 4, v13
            v_add_u32 v13, s45, v13
            v_lshlrev_b32 v14, 10, v11
            v_lshl_add_u32 v14, v12, 4, v14""")
    for T in range(4):
        o = OACC + 16*T
        for a in range(4):
            d = 32 + 2*(4*T + a)
            k.e(f"""v_cvt_pk_bf16_f32 v{d}, v{o+4*a}, v{o+4*a+1}
                    v_cvt_pk_bf16_f32 v{d+1}, v{o+4*a+2}, v{o+4*a+3}
                    ds_write_b64 v10, v[{d}:{d+1}] offset:{64*T + 16*a}""")
    for n in range(8):
        k.e(f"ds_read_b128 v[{160+4*n}:{163+4*n}], v13 offset:{4*RS*n}")
    for n in range(8):
        k.e(f"""s_waitcnt lgkmcnt({7-n})
                buffer_store_dwordx4 v[{160+4*n}:{163+4*n}], v14, s[60:63], s46 offen sc1
                s_add_u32 s46, s46, 4096""")
    k.e("s_waitcnt vmcnt(0)")
    k.stamp(5)
    k.sanitize([8, 9], 229)
    Lp = k.newlab("pubml")
    k.e(f"""s_waitcnt vmcnt(0)
            s_mov_b64 exec, 1
            ds_add_rtn_u32 v226, v224, v225 offset:{SYNC + 28}
            s_waitcnt lgkmcnt(0)
            v_readfirstlane_b32 s44, v226
            s_mov_b32 exec_lo, -1
            s_cmp_lg_u32 s44, 3
            s_cbranch_scc1 {Lp}
            buffer_store_dwordx2 v[8:9], v228, s[64:67], 0 offen sc1""")
    k.lab(Lp)
    k.e("s_mov_b64 exec, -1")
    k.e(f"s_cmp_ge_u32 s2, 144\ns_cbranch_scc1 {k.name}_end")
    lds_wait(k, int(os.environ.get("GUW", "10")), 4, 224, 226, 44, sleep=2)
    dma64_off(k, 8, 1, 10, 11, 9, 9216)
    k.e(f"""s_and_b32 s85, s2, 7
            s_lshl_b32 s85, s85, 1
            s_bfe_u32 s45, s2, 0x10003
            s_add_u32 s85, s85, s45
            s_andn2_b32 s45, s2, 15
            s_add_u32 s85, s85, s45
            s_mul_i32 s41, s20, 9*16*9216
            s_lshl_b32 s42, s85, 6
            s_add_u32 s41, s41, s42
            s_mul_i32 s43, s20, 9216
            s_add_u32 s43, s43, {BIG_L}
            s_add_u32 s44, s43, 36864""")
    for mi in range(9):
        GT = int(os.environ.get("GUT", "3"))
        if GT and mi >= GT: k.e(f"s_waitcnt vmcnt({2*GT-2})")
        k.e(f"""s_mov_b32 m0, s43
                s_add_u32 s43, s43, 1024
                buffer_load_dwordx4 v8, s[72:75], s41 offen {GUNT} lds
                s_mov_b32 m0, s44
                s_add_u32 s44, s44, 1024
                buffer_load_dwordx4 v8, s[76:79], s41 offen {GUNT} lds
                s_add_u32 s41, s41, {16*9216}""")
    if os.environ.get("DNA", "0") == "1":
        lds_wait(k, 11, 4, 224, 226, 44, sleep=1)
        k.e(f"""v_lshlrev_b32 v9, 4, v1
                s_mul_i32 s41, s85, 36864
                s_mul_i32 s42, s20, 9216
                s_add_u32 s41, s41, s42
                s_add_u32 s43, s42, {OST_L}""")
        for mi in range(9):
            if mi >= 2: k.e("s_waitcnt vmcnt(4)")
            k.e(f"""s_mov_b32 m0, s43
                    s_add_u32 s43, s43, 1024
                    buffer_load_dwordx4 v9, s[88:91], s41 offen nt lds
                    s_add_u32 s41, s41, 1024""")
    k.e(f"s_waitcnt vmcnt(0)\ns_branch {k.name}_end")

def dma64_off(k, vA, lane, t1, t2, t3, rowstride):
    k.e(f"""v_lshrrev_b32 v{t1}, 2, v{lane}
            v_and_b32 v{t2}, 3, v{lane}
            v_bfe_u32 v{t3}, v{lane}, 5, 1
            v_lshlrev_b32 v{t3}, 1, v{t3}
            v_xor_b32 v{t2}, v{t2}, v{t3}
            v_mul_u32_u24 v{vA}, {rowstride}, v{t1}
            v_lshl_add_u32 v{vA}, v{t2}, 4, v{vA}""")

def tr64_base(k, dst, v3, v4, nt_sreg, t1, t2):
    k.e(f"""v_lshrrev_b32 v{t1}, 2, v{v3}
            v_lshl_add_u32 v{t1}, v{v4}, 3, v{t1}
            v_lshlrev_b32 v{t1}, 6, v{t1}
            v_bfe_u32 v{t2}, v{v3}, 1, 1
            v_add_u32 v{t2}, s{nt_sreg}, v{t2}
            v_and_b32 v{dst}, 1, v{v4}
            v_lshlrev_b32 v{dst}, 1, v{dst}
            v_xor_b32 v{t2}, v{t2}, v{dst}
            v_lshl_add_u32 v{t1}, v{t2}, 4, v{t1}
            v_and_b32 v{dst}, 1, v{v3}
            v_lshl_add_u32 v{dst}, v{dst}, 3, v{t1}""")

def poll_gather(k, loads, regs, scnt, mask_s=None):
    L = k.newlab("poll"); Ld = k.newlab("pdone")
    k.e(f"s_mov_b32 s{scnt}, 0")
    if len(loads) > 1 and os.environ.get("PRE", "1") == "1":
        L1, L1d = k.newlab("pre"), k.newlab("pred")
        n1 = len(regs) // len(loads)
        r1 = regs[-n1:]
        k.lab(L1)
        k.e(loads[-1])
        k.e(f"""s_waitcnt vmcnt(0)
                v_max_u32 v7, v{r1[0]}, v{r1[1]}
                v_max3_u32 v7, v7, v{r1[2]}, v{r1[3]}
                v_cmp_eq_u32 vcc, -1, v7
                s_add_u32 s{scnt}, s{scnt}, 1
                s_cmp_gt_u32 s{scnt}, {SPIN_MAX}
                s_cbranch_scc1 {L1d}
                s_cbranch_vccz {L1d}
                s_sleep {os.environ.get('PSLP', '4')}
                s_branch {L1}""")
        k.lab(L1d)
    k.lab(L)
    for l in loads: k.e(l)
    k.e("s_waitcnt vmcnt(0)")
    k.e(f"v_max_u32 v7, v{regs[0]}, v{regs[1]}")
    for i in range(2, len(regs) - 1, 2):
        k.e(f"v_max3_u32 v7, v7, v{regs[i]}, v{regs[i+1]}")
    if len(regs) % 2: k.e(f"v_max_u32 v7, v7, v{regs[-1]}")
    k.e(f"""v_cmp_eq_u32 vcc, -1, v7
            s_add_u32 s{scnt}, s{scnt}, 1
            s_cmp_gt_u32 s{scnt}, {SPIN_MAX}
            s_cbranch_scc1 {Ld}
            s_cbranch_vccz {Ld}
            s_sleep {os.environ.get('GSLP', '1')}
            s_branch {L}""")
    k.lab(Ld)

def team_b(k):
    k.e("""v_subrev_u32 v0, 0x100, v0
           s_sub_u32 s20, s20, 4
           v_and_b32 v3, 15, v1
           v_lshrrev_b32 v4, 4, v1
           s_and_b32 s21, s2, 31
           s_lshr_b32 s22, s2, 5
           v_mov_b32 v124, 0
           v_mov_b32 v125, 1""")
    k.ldptr(12, "wuv"); k.ldptr(14, "wo"); k.ldptr(64, "wd"); k.ldptr(66, "x"); k.ldptr(68, "out")
    k.e("s_waitcnt lgkmcnt(0)")
    k.srd(24, 12, SZ["wuv"]); k.srd(28, 10, 65536, WS_ML); k.srd(32, 10, 8388608, WS_OP); k.srd(36, 10, 262144, WS_CTX)
    k.srd(56, 10, 8*36864, WS_OUTP); k.srd(60, 10, 663552, WS_DNP)
    k.srd(72, 14, SZ["wo"]); k.srd(76, 4, SZ["ckv"]); k.srd(84, 64, SZ["wd"])
    k.srd(88, 66, SZ["x"]); k.srd(92, 68, SZ["out"])
    if os.environ.get("CPF"):
        Lc, Lh = k.newlab("cpf"), k.newlab("cpfpc")
        k.e(f"""s_cmp_lg_u32 s20, 3
                s_cbranch_scc1 {Lc}
                s_getpc_b64 s[98:99]""")
        k.lab(Lh)
        k.e(f"""s_sub_u32 s98, s98, {Lh}-{k.name}
                s_subb_u32 s99, s99, 0
                v_lshlrev_b32 v100, 7, v1
                global_load_dword v101, v100, s[98:99]
                v_add_u32 v100, 8192, v100
                global_load_dword v102, v100, s[98:99]
                v_add_u32 v100, 8192, v100
                s_mov_b64 exec, 0x3fff
                global_load_dword v103, v100, s[98:99]
                s_mov_b64 exec, -1""")
        k.lab(Lc)
    k.e("""s_sub_u32 s47, s2, 144
           s_mul_i32 s48, s47, 7282
           s_lshr_b32 s48, s48, 16
           s_mul_i32 s49, s48, 9
           s_sub_u32 s49, s47, s49""")
    k.e(f"""v_lshlrev_b32 v9, 4, v1
            s_lshl_b32 s40, s2, 7
            s_lshl_b32 s41, s20, 5
            s_add_u32 s40, s40, s41
            s_lshl_b32 s40, s40, 10
            s_mul_i32 s42, s41, {RS}
            s_add_u32 s42, s42, {CT}""")
    THR = int(os.environ.get("THR", "3")); DLY = int(os.environ.get("DLY", "0"))
    if DLY: lds_wait(k, 1, 1, 124, 126, 46, sleep=1)
    for r in range(32):
        R1 = int(os.environ.get("R1", "32")); THR2 = int(os.environ.get("THR2", "0"))
        th = THR if r < R1 else THR2
        if th and r >= th: k.e(f"s_waitcnt vmcnt({th-1})")
        k.e(f"""s_mov_b32 m0, s42
                s_add_u32 s42, s42, {RS}
                buffer_load_dwordx4 v9, s[76:79], s40 offen nt lds
                s_add_u32 s40, s40, 1024""")
    k.e(f"""v_lshlrev_b32 v13, 1, v4
            v_xor_b32 v13, v13, v3
            v_lshlrev_b32 v13, 4, v13
            v_lshl_add_u32 v13, v4, 13, v13
            v_xor_b32 v14, 0x80, v13
            s_lshl_b32 s44, s22, 6
            s_lshl_b32 s45, s20, 4
            s_add_u32 s44, s44, s45
            s_lshl_b32 s44, s44, 13
            s_lshl_b32 s45, s21, 8
            s_add_u32 s44, s44, s45
            s_waitcnt vmcnt(0)
            s_mov_b64 exec, 1
            ds_add_u32 v124, v125 offset:{SYNC}
            s_mov_b64 exec, -1""")
    k.stamp(1)
    for mi in range(4):
        k.e(f"""buffer_load_dwordx4 v[{128+4*mi}:{131+4*mi}], v{14 if mi & 2 else 13}, s[24:27], s44 offen nt
                s_add_u32 s44, s44, 32768""")
    LW = k.newlab("ldW")
    k.e(f"""s_cmp_lt_u32 s2, 144
            s_cbranch_scc1 {LW}
            s_cmp_ge_u32 s2, 216
            s_cbranch_scc1 {LW}""")
    k.e("""v_lshrrev_b32 v10, 3, v1
           v_and_b32 v11, 7, v1
           v_and_b32 v12, 2, v10
           v_xor_b32 v11, v11, v12
           v_mul_u32_u24 v8, 1152, v10
           v_lshl_add_u32 v8, v11, 4, v8
           v_xor_b32 v11, 4, v11
           v_mul_u32_u24 v7, 1152, v10
           v_lshl_add_u32 v7, v11, 4, v7
           s_lshl_b32 s41, s48, 9
           s_lshl_b32 s42, s20, 7
           s_add_u32 s41, s41, s42
           s_mul_i32 s41, s41, 1152
           s_lshl_b32 s42, s49, 7
           s_add_u32 s41, s41, s42""")
    for mi in range(16):
        k.e(f"""buffer_load_dwordx4 v[{144+4*mi}:{147+4*mi}], v{7 if mi & 1 else 8}, s[72:75], s41 offen nt
                s_add_u32 s41, s41, {8*1152}""")
    k.lab(LW)
    k.stamp(2)
    lds_wait(k, 7, 4, 124, 126, 46, sleep=2)
    k.stamp(3)
    k.e(f"""s_waitcnt vmcnt(0)
            s_lshl_b32 s41, s20, 12
            s_add_u32 s41, s41, {WUV_L}
            v_add_u32 v10, s41, v9""")
    for mi in range(4):
        k.e(f"ds_write_b128 v10, v[{128+4*mi}:{131+4*mi}] offset:{1024*mi}")
    LW2 = k.newlab("stW")
    k.e(f"""s_cmp_lt_u32 s2, 144
            s_cbranch_scc1 {LW2}
            s_cmp_ge_u32 s2, 216
            s_cbranch_scc1 {LW2}
            s_lshl_b32 s41, s20, 14
            s_add_u32 s41, s41, {BIG_L}
            v_add_u32 v10, s41, v9""")
    for mi in range(16):
        k.e(f"ds_write_b128 v10, v[{144+4*mi}:{147+4*mi}] offset:{1024*mi}")
    k.lab(LW2)
    k.stamp(5)
    k.e("""v_lshrrev_b32 v5, 7, v0
           v_and_b32 v6, 127, v0
           v_lshlrev_b32 v5, 12, v5
           v_add_u32 v5, v5, v6
           s_lshl_b32 s40, s21, 7
           v_add_u32 v5, s40, v5
           v_lshlrev_b32 v5, 3, v5""")
    poll_gather(k, ["buffer_load_dwordx2 v[8:9], v5, s[28:31], 0 offen sc1"], [8, 9], 46)
    k.stamp(6)
    k.e(f"""v_lshrrev_b32 v10, 3, v1
            v_and_b32 v11, 7, v1
            v_and_b32 v12, 2, v10
            v_xor_b32 v11, v11, v12
            v_lshlrev_b32 v11, 4, v11
            v_lshl_add_u32 v11, v10, 15, v11
            v_xor_b32 v12, 64, v11
            s_lshl_b32 s41, s21, 10
            s_lshl_b32 s42, s22, 7
            s_add_u32 s41, s41, s42
            s_lshl_b32 s42, s20, 21
            s_add_u32 s41, s41, s42
            s_lshl_b32 s43, s20, 13
            s_add_u32 s43, s43, {OST_L}""")
    for mi in range(8):
        k.e(f"""s_mov_b32 m0, s43
                s_add_u32 s43, s43, 1024
                buffer_load_dwordx4 v{12 if mi & 1 else 11}, s[32:35], s41 offen sc1 lds
                s_add_u32 s41, s41, 262144""")
    k.e("v_mov_b32 v15, v8")
    k.allreduce("max", 15, 16)
    k.e(f"""s_lshl_b32 s46, s20, 2
            v_mov_b32 v17, s46
            ds_write_b32 v17, v15 offset:{D_R}
            s_waitcnt lgkmcnt(0)
            """)
    lds_sync(k, 8, 4, 124, 125, 126, 46)
    k.e(f"""
            s_and_b32 s47, s20, 2
            s_lshl_b32 s47, s47, 2
            v_mov_b32 v18, s47
            ds_read_b64 v[20:21], v18 offset:{D_R}
            s_waitcnt lgkmcnt(0)
            v_max_f32 v15, v20, v21
            v_sub_f32 v8, v8, v15
            v_exp_f32 v8, v8
            s_nop 0
            v_mul_f32 v19, v8, v9""")
    k.allreduce("add", 19, 16)
    k.e(f"""ds_write_b32 v17, v19 offset:{D_R+16}
            s_waitcnt lgkmcnt(0)
            """)
    lds_sync(k, 9, 4, 124, 125, 126, 46)
    k.e(f"""
            ds_read_b64 v[20:21], v18 offset:{D_R+16}
            s_waitcnt lgkmcnt(0)
            v_add_f32 v19, v20, v21
            v_rcp_f32 v19, v19
            s_nop 0
            v_mul_f32 v8, v8, v19""")
    k.hilo(8, 22, 23, 24)
    k.e(f"""v_lshrrev_b32 v25, 7, v0
            v_lshlrev_b32 v25, 9, v25
            v_lshl_add_u32 v25, v6, 1, v25
            ds_write_b16 v25, v22 offset:{D_A}
            ds_write_b16 v25, v23 offset:{D_A+256}
            s_waitcnt vmcnt(0) lgkmcnt(0)
            """)
    lds_sync(k, 10, 4, 124, 125, 126, 46)
    k.e(f"""""")
    k.stamp(7)
    k.e(f"""v_and_b32 v26, 1, v1
            v_lshlrev_b32 v26, 8, v26
            v_lshl_add_u32 v26, v4, 4, v26
            s_lshr_b32 s46, s20, 1
            s_lshl_b32 s47, s46, 9
            v_add_u32 v26, s47, v26""")
    for t in range(4):
        k.e(f"ds_read_b128 v[{28+4*t}:{31+4*t}], v26 offset:{D_A + 64*t}")
    k.e(f"""v_lshrrev_b32 v9, 2, v3
            v_lshl_add_u32 v10, v4, 3, v9
            v_lshlrev_b32 v10, 7, v10
            v_and_b32 v11, 2, v9
            v_and_b32 v12, 1, v4
            v_lshl_or_b32 v11, v12, 2, v11
            v_bfe_u32 v12, v3, 1, 1
            s_and_b32 s47, s20, 1
            s_lshl_b32 s47, s47, 2
            v_add_u32 v12, s47, v12
            v_and_b32 v13, 1, v3
            v_lshl_add_u32 v10, v13, 3, v10
            s_lshl_b32 s47, s46, 14
            s_add_u32 s47, s47, {OST_L}
            v_add_u32 v10, s47, v10""")
    for nt in range(2):
        k.e(f"""v_add_u32 v14, {2*nt}, v12
                v_xor_b32 v14, v14, v11
                v_lshl_add_u32 v{15+nt}, v14, 4, v10""")
    for nt in range(2):
        for t in range(4):
            d = 44 + 16*nt + 4*t
            k.e(f"""ds_read_b64_tr_b16 v[{d}:{d+1}], v{15+nt} offset:{4096*t}
                    ds_read_b64_tr_b16 v[{d+2}:{d+3}], v{15+nt} offset:{4096*t + 512}""")
    k.e("s_waitcnt lgkmcnt(0)")
    for nt in range(2):
        for t in range(4):
            d = 44 + 16*nt + 4*t
            acc = 20 if nt == 0 else 76
            cin = "0" if t == 0 else f"v[{acc}:{acc+3}]"
            k.e(f"v_mfma_f32_16x16x32_bf16 v[{acc}:{acc+3}], v[{28+4*t}:{31+4*t}], v[{d}:{d+3}], {cin}")
    k.e(f"""s_and_b32 s47, s20, 1
            s_lshl_b32 s47, s47, 6
            s_lshl_b32 s50, s46, 7
            s_add_u32 s47, s47, s50
            v_lshl_add_u32 v27, v3, 1, s47
            s_nop 7""")
    for nt in range(2):
        acc = 20 if nt == 0 else 76
        k.e(f"v_add_f32 v8, v{acc}, v{acc+1}")
        k.hilo(8, 9, 24, 25)
        k.e(f"""ds_write_b16 v27, v9 offset:{D_A2 + 32*nt}
                ds_write_b16 v27, v24 offset:{D_A2 + 256 + 32*nt}""")
    k.e("s_waitcnt lgkmcnt(0)")
    lds_sync(k, 11, 4, 124, 125, 126, 46)
    k.e(f"""v_and_b32 v8, 3, v1
            v_lshlrev_b32 v8, 7, v8
            v_lshl_add_u32 v8, v4, 4, v8
            ds_read_b128 v[28:31], v8 offset:{D_A2}
            ds_read_b128 v[32:35], v8 offset:{D_A2+64}""")
    k.e(f"""v_lshrrev_b32 v9, 2, v3
            v_lshl_add_u32 v10, v4, 3, v9
            v_lshlrev_b32 v10, 8, v10
            v_and_b32 v11, 1, v4
            v_lshlrev_b32 v11, 3, v11
            v_lshl_or_b32 v11, v9, 1, v11
            v_bfe_u32 v12, v3, 1, 1
            s_lshl_b32 s47, s20, 2
            v_add_u32 v12, s47, v12
            v_and_b32 v13, 1, v3
            v_lshl_add_u32 v10, v13, 3, v10""")
    for nt in range(2):
        k.e(f"""v_add_u32 v14, {2*nt}, v12
                v_xor_b32 v14, v14, v11
                v_lshl_add_u32 v{15+nt}, v14, 4, v10""")
    for nt in range(2):
        for t in range(2):
            d = 44 + 8*nt + 4*t
            k.e(f"""ds_read_b64_tr_b16 v[{d}:{d+1}], v{15+nt} offset:{WUV_L + 8192*t}
                    ds_read_b64_tr_b16 v[{d+2}:{d+3}], v{15+nt} offset:{WUV_L + 8192*t + 1024}""")
    k.e("s_waitcnt lgkmcnt(0)")
    for nt in range(2):
        acc = 20 if nt == 0 else 76
        for t in range(2):
            d = 44 + 8*nt + 4*t
            cin = "0" if t == 0 else f"v[{acc}:{acc+3}]"
            k.e(f"v_mfma_f32_16x16x32_bf16 v[{acc}:{acc+3}], v[{28+4*t}:{31+4*t}], v[{d}:{d+3}], {cin}")
    k.e(f"""s_lshl_b32 s47, s22, 15
            s_lshl_b32 s50, s21, 9
            s_add_u32 s47, s47, s50
            s_lshl_b32 s50, s20, 7
            s_add_u32 s47, s47, s50
            v_lshl_add_u32 v27, v3, 2, s47
            s_nop 7
            v_add_f32 v8, v20, v22
            v_add_f32 v9, v21, v23
            v_add_f32 v10, v76, v78
            v_add_f32 v11, v77, v79""")
    k.sanitize([8, 9, 10, 11], 12)
    k.e(f"""s_mov_b32 s47, 16384
            v_cmp_gt_u32 vcc, 16, v1
            s_and_saveexec_b64 s[50:51], vcc
            buffer_store_dword v8, v27, s[36:39], 0 offen sc1
            buffer_store_dword v9, v27, s[36:39], s47 offen sc1
            buffer_store_dword v10, v27, s[36:39], 0 offen offset:64 sc1
            buffer_store_dword v11, v27, s[36:39], s47 offen offset:64 sc1
            s_mov_b64 exec, s[50:51]""")
    k.stamp(8)
    LPE, LPG = k.newlab("phE"), k.newlab("phG")
    k.e(f"s_cmp_ge_u32 s2, 144\ns_cbranch_scc1 {LPE}")
    phase_f(k)
    k.e(f"s_branch {k.name}_end")
    k.lab(LPE)
    k.e(f"s_cmp_ge_u32 s2, 216\ns_cbranch_scc1 {LPG}")
    phase_e(k)
    k.e(f"s_branch {k.name}_end")
    k.lab(LPG)
    k.e(f"s_cmp_ge_u32 s2, 234\ns_cbranch_scc1 {k.name}_end")
    phase_g(k)

def phase_e(k):
    A_LDS = T_A
    k.e("""v_lshrrev_b32 v5, 7, v0
           v_and_b32 v6, 127, v0
           v_lshlrev_b32 v8, 14, v5
           v_lshl_add_u32 v8, v6, 4, v8
           s_lshl_b32 s40, s48, 11""")
    loads = []
    for j in range(8):
        loads.append(f"s_add_u32 s41, s40, {32768*j}\nbuffer_load_dwordx4 v[{20+4*j}:{23+4*j}], v8, s[36:39], s41 offen sc1")
    poll_gather(k, loads, list(range(20, 52)), 46)
    k.stamp(9)
    for j in range(1, 8):
        for e in range(4):
            k.e(f"v_add_f32 v{20+e}, v{20+e}, v{20+4*j+e}")
    k.e("""v_cvt_pk_bf16_f32 v24, v20, v21
           v_cvt_pk_bf16_f32 v25, v22, v23
           v_lshlrev_b32 v26, 16, v24
           v_and_b32 v27, 0xffff0000, v24
           v_lshlrev_b32 v28, 16, v25
           v_and_b32 v29, 0xffff0000, v25
           v_sub_f32 v20, v20, v26
           v_sub_f32 v21, v21, v27
           v_sub_f32 v22, v22, v28
           v_sub_f32 v23, v23, v29
           v_cvt_pk_bf16_f32 v26, v20, v21
           v_cvt_pk_bf16_f32 v27, v22, v23
           v_lshlrev_b32 v12, 10, v5
           v_lshl_add_u32 v12, v6, 3, v12""")
    k.e(f"""ds_write_b64 v12, v[24:25] offset:{A_LDS}
            ds_write_b64 v12, v[26:27] offset:{A_LDS+2048}
            s_waitcnt lgkmcnt(0)
            s_barrier""")
    k.e("""v_and_b32 v8, 3, v1
           v_lshlrev_b32 v8, 10, v8
           v_lshl_add_u32 v8, v4, 4, v8""")
    for t in range(16):
        k.e(f"ds_read_b128 v[{20+4*t}:{23+4*t}], v8 offset:{A_LDS + 64*t}")
    k.e(f"""v_lshrrev_b32 v9, 2, v3
            v_lshl_add_u32 v10, v4, 3, v9
            v_lshlrev_b32 v10, 7, v10
            v_and_b32 v11, 2, v9
            v_and_b32 v12, 1, v4
            v_lshl_or_b32 v11, v12, 2, v11
            v_bfe_u32 v12, v3, 1, 1
            s_lshl_b32 s47, s20, 1
            v_add_u32 v12, s47, v12
            v_and_b32 v13, 1, v3
            v_lshl_add_u32 v10, v13, 3, v10
            v_xor_b32 v12, v12, v11
            v_lshl_add_u32 v15, v12, 4, v10
            v_add_u32 v15, {BIG_L}, v15""")
    for c in range(2):
        for i in range(8):
            t = 8*c + i
            d = 88 + 4*i
            k.e(f"""ds_read_b64_tr_b16 v[{d}:{d+1}], v15 offset:{4096*t}
                    ds_read_b64_tr_b16 v[{d+2}:{d+3}], v15 offset:{4096*t + 512}""")
        k.e("s_waitcnt lgkmcnt(0)")
        for i in range(8):
            t = 8*c + i
            d = 88 + 4*i
            cin = "0" if t == 0 else "v[120:123]"
            k.e(f"v_mfma_f32_16x16x32_bf16 v[120:123], v[{20+4*t}:{23+4*t}], v[{d}:{d+3}], {cin}")
        k.e("s_nop 3")
    k.e(f"""s_mul_i32 s45, s48, 4608
            s_lshl_b32 s46, s49, 8
            s_add_u32 s45, s45, s46
            s_lshl_b32 s46, s20, 6
            s_add_u32 s45, s45, s46
            v_lshl_add_u32 v12, v3, 2, s45
            s_nop 7
            v_add_f32 v8, v120, v122
            v_add_f32 v9, v121, v123""")
    k.sanitize([8, 9], 10)
    k.e(f"""v_cmp_gt_u32 vcc, 16, v1
            s_and_saveexec_b64 s[50:51], vcc
            s_mov_b32 s45, 0""")
    for r in range(8):
        k.e("""buffer_store_dword v8, v12, s[56:59], s45 offen sc1
               buffer_store_dword v9, v12, s[56:59], s45 offen offset:2304 sc1
               s_add_u32 s45, s45, 36864""")

def phase_f(k):
    A_LDS, R_LDS, GU_LDS, A2_LDS = T_A, T_A + 4608, T_A + 4672, T_A + 5184
    D_LDS = OST_L
    if os.environ.get("DNA", "0") != "1":
        k.e("s_barrier")
        k.e(f"""s_and_b32 s83, s2, 7
                s_lshl_b32 s83, s83, 1
                s_bfe_u32 s45, s2, 0x10003
                s_add_u32 s83, s83, s45
                s_andn2_b32 s45, s2, 15
                s_add_u32 s83, s83, s45
                v_lshlrev_b32 v9, 4, v1
                s_mul_i32 s41, s83, 36864
                s_mul_i32 s42, s20, 9216
                s_add_u32 s41, s41, s42
                s_add_u32 s43, s42, {D_LDS}""")
        for mi in range(9):
            k.e(f"""s_mov_b32 m0, s43
                    s_add_u32 s43, s43, 1024
                    buffer_load_dwordx4 v9, s[84:87], s41 offen nt lds
                    s_add_u32 s41, s41, 1024""")
    k.stamp(10)
    k.e("""v_lshlrev_b32 v5, 4, v0
           v_mov_b32 v6, 0x7fffffff
           v_cmp_gt_u32 vcc, 144, v0
           s_nop 1
           v_cndmask_b32 v5, v6, v5, vcc
           v_lshrrev_b32 v8, 1, v5
           v_cndmask_b32 v8, v6, v8, vcc
           s_mov_b64 s[64:65], vcc""")
    k.e("""buffer_load_dwordx2 v[84:85], v8, s[88:91], 0 offen
           buffer_load_dwordx2 v[86:87], v8, s[88:91], 0 offen offset:1152""")
    k.e("s_and_b32 s41, s2, 7\ns_mul_i32 s41, s41, 36864")
    loads = []
    for ks in range(8):
        for b in range(2):
            r = 20 + 8*ks + 4*b
            loads.append(f"s_add_u32 s40, s41, {4608*ks}\nbuffer_load_dwordx4 v[{r}:{r+3}], v5, s[56:59], s40 offen offset:{2304*b} sc1")
    poll_gather(k, loads, list(range(20, 84)), 46)
    k.stamp(9)
    for ks in range(1, 8):
        for e in range(8):
            k.e(f"v_add_f32 v{20+e}, v{20+e}, v{20+8*ks+e}")
    for b in range(2):
        k.e(f"""v_lshlrev_b32 v12, 16, v{84+2*b}
                v_and_b32 v13, 0xffff0000, v{84+2*b}
                v_lshlrev_b32 v14, 16, v{85+2*b}
                v_and_b32 v15, 0xffff0000, v{85+2*b}
                v_add_f32 v{20+4*b}, v{20+4*b}, v12
                v_add_f32 v{21+4*b}, v{21+4*b}, v13
                v_add_f32 v{22+4*b}, v{22+4*b}, v14
                v_add_f32 v{23+4*b}, v{23+4*b}, v15""")
    k.e(f"""v_add_u32 v16, {BIG_L + 73728}, v5
            s_mov_b64 s[66:67], exec
            s_mov_b64 exec, s[64:65]
            ds_write_b128 v16, v[20:23]
            ds_write_b128 v16, v[24:27] offset:2304
            s_mov_b64 exec, s[66:67]""")
    k.e("""v_add_f32 v28, v20, v21
           v_add_f32 v29, v22, v23
           v_add_f32 v28, v28, v29
           v_add_f32 v29, v24, v25
           v_add_f32 v30, v26, v27
           v_add_f32 v29, v29, v30""")
    k.allreduce("add", 28, 31)
    k.allreduce("add", 29, 31)
    k.e(f"""s_lshl_b32 s46, s20, 3
            v_mov_b32 v32, s46
            v_mov_b32 v33, 0
            ds_write_b64 v32, v[28:29] offset:{R_LDS}
            s_waitcnt lgkmcnt(0)
            s_barrier
            ds_read_b128 v[36:39], v33 offset:{R_LDS}
            ds_read_b64 v[40:41], v33 offset:{R_LDS+16}
            s_waitcnt lgkmcnt(0)
            v_add_f32 v28, v36, v38
            v_add_f32 v28, v28, v40
            v_add_f32 v29, v37, v39
            v_add_f32 v29, v29, v41
            v_mul_f32 v28, {f2u(1.0/576)}, v28
            v_mul_f32 v29, {f2u(1.0/576)}, v29""")
    for b in range(2):
        for e in range(4):
            k.e(f"v_sub_f32 v{20+4*b+e}, v{20+4*b+e}, v{28+b}")
    for b in range(2):
        k.e(f"""v_mul_f32 v{30+b}, v{20+4*b}, v{20+4*b}
                v_fmac_f32 v{30+b}, v{21+4*b}, v{21+4*b}
                v_fmac_f32 v{30+b}, v{22+4*b}, v{22+4*b}
                v_fmac_f32 v{30+b}, v{23+4*b}, v{23+4*b}
                v_cndmask_b32 v{30+b}, 0, v{30+b}, s[64:65]""")
    k.allreduce("add", 30, 34)
    k.allreduce("add", 31, 34)
    k.e(f"""ds_write_b64 v32, v[30:31] offset:{R_LDS+32}
            s_waitcnt lgkmcnt(0)
            s_barrier
            ds_read_b128 v[36:39], v33 offset:{R_LDS+32}
            ds_read_b64 v[40:41], v33 offset:{R_LDS+48}
            s_waitcnt lgkmcnt(0)
            v_add_f32 v30, v36, v38
            v_add_f32 v30, v30, v40
            v_add_f32 v31, v37, v39
            v_add_f32 v31, v31, v41
            v_mov_b32 v34, {f2u(1e-5)}
            v_mov_b32 v35, {f2u(1e-5)}
            v_fmac_f32 v34, {f2u(1.0/576)}, v30
            v_fmac_f32 v35, {f2u(1.0/576)}, v31
            v_rsq_f32 v34, v34
            v_rsq_f32 v35, v35
            v_lshlrev_b32 v12, 3, v0""")
    for b in range(2):
        o = 20 + 4*b
        for e in range(4):
            k.e(f"v_mul_f32 v{o+e}, v{o+e}, v{34+b}")
        k.e(f"""v_cvt_pk_bf16_f32 v36, v{o}, v{o+1}
                v_cvt_pk_bf16_f32 v37, v{o+2}, v{o+3}
                v_lshlrev_b32 v38, 16, v36
                v_and_b32 v39, 0xffff0000, v36
                v_lshlrev_b32 v40, 16, v37
                v_and_b32 v41, 0xffff0000, v37
                v_sub_f32 v{o}, v{o}, v38
                v_sub_f32 v{o+1}, v{o+1}, v39
                v_sub_f32 v{o+2}, v{o+2}, v40
                v_sub_f32 v{o+3}, v{o+3}, v41
                v_cvt_pk_bf16_f32 v38, v{o}, v{o+1}
                v_cvt_pk_bf16_f32 v39, v{o+2}, v{o+3}
                s_mov_b64 s[66:67], exec
                s_mov_b64 exec, s[64:65]
                ds_write_b64 v12, v[36:37] offset:{A_LDS + 1152*b}
                ds_write_b64 v12, v[38:39] offset:{A_LDS + 2304 + 1152*b}
                s_mov_b64 exec, s[66:67]""")
    k.e("s_waitcnt lgkmcnt(0)\ns_barrier")
    k.e(f"""v_and_b32 v8, 3, v1
            v_mul_u32_u24 v8, 1152, v8
            v_lshl_add_u32 v8, v4, 4, v8
            s_and_b32 s44, s20, 1
            s_lshl_b32 s44, s44, 1
            s_lshr_b32 s45, s20, 1
            s_mul_i32 s45, s45, 36864
            s_add_u32 s45, s45, {BIG_L}""")
    for t in range(18):
        k.e(f"ds_read_b128 v[{20+4*t}:{23+4*t}], v8 offset:{A_LDS + 64*t}")
    tr64_base(k, 15, 3, 4, 44, 10, 11)
    k.e("v_add_u32 v15, s45, v15")
    for c in range(3):
        for i in range(6):
            t = 6*c + i
            d = 96 + 4*i
            k.e(f"""ds_read_b64_tr_b16 v[{d}:{d+1}], v15 offset:{2048*t}
                    ds_read_b64_tr_b16 v[{d+2}:{d+3}], v15 offset:{2048*t + 256}""")
        k.e("s_waitcnt lgkmcnt(0)")
        for i in range(6):
            t = 6*c + i
            d = 96 + 4*i
            cin = "0" if t == 0 else "v[120:123]"
            k.e(f"v_mfma_f32_16x16x32_bf16 v[120:123], v[{20+4*t}:{23+4*t}], v[{d}:{d+3}], {cin}")
        k.e("s_nop 3")
    k.e("s_nop 7")
    k.e(f"""s_lshr_b32 s45, s20, 1
            s_lshl_b32 s45, s45, 8
            s_and_b32 s46, s20, 1
            s_lshl_b32 s46, s46, 6
            s_add_u32 s45, s45, s46
            v_lshl_add_u32 v12, v3, 2, s45
            v_add_f32 v8, v120, v122
            v_add_f32 v9, v121, v123
            ds_write_b32 v12, v8 offset:{GU_LDS}
            ds_write_b32 v12, v9 offset:{GU_LDS+128}
            s_waitcnt lgkmcnt(0)
            s_barrier
            v_lshlrev_b32 v12, 2, v1
            ds_read_b32 v8, v12 offset:{GU_LDS}
            ds_read_b32 v9, v12 offset:{GU_LDS+256}
            s_waitcnt lgkmcnt(0)
            v_mul_f32 v10, {f2u(-LOG2E)}, v8
            v_exp_f32 v10, v10
            s_nop 0
            v_add_f32 v10, 1.0, v10
            v_rcp_f32 v10, v10
            s_nop 0
            v_mul_f32 v8, v8, v10
            v_mul_f32 v8, v8, v9""")
    k.hilo(8, 9, 10, 11)
    k.e(f"""v_lshlrev_b32 v12, 1, v1
            ds_write_b16 v12, v9 offset:{A2_LDS}
            ds_write_b16 v12, v10 offset:{A2_LDS+128}
            s_waitcnt lgkmcnt(0)
            s_barrier
            v_and_b32 v8, 3, v1
            v_lshlrev_b32 v8, 6, v8
            v_lshl_add_u32 v8, v4, 4, v8
            ds_read_b128 v[20:23], v8 offset:{A2_LDS}""")
    k.e(f"""v_lshrrev_b32 v10, 2, v3
            v_lshl_add_u32 v10, v4, 3, v10
            v_mul_u32_u24 v10, 1152, v10
            v_and_b32 v11, 3, v3
            v_lshl_add_u32 v10, v11, 3, v10
            s_mul_i32 s45, s20, 288
            s_add_u32 s45, s45, {D_LDS}
            v_add_u32 v10, s45, v10""")
    for n in range(9):
        d = 24 + 4*n
        k.e(f"""ds_read_b64_tr_b16 v[{d}:{d+1}], v10 offset:{32*n}
                ds_read_b64_tr_b16 v[{d+2}:{d+3}], v10 offset:{32*n + 4608}""")
    k.e(f"""s_mul_i32 s46, s20, 576
            s_add_u32 s46, s46, {BIG_L + 73728}
            v_lshl_add_u32 v13, v3, 2, s46""")
    for n in range(9):
        k.e(f"""ds_read_b32 v{100+2*n}, v13 offset:{64*n}
                ds_read_b32 v{101+2*n}, v13 offset:{2304 + 64*n}""")
    k.e("s_waitcnt lgkmcnt(0)")
    for n in range(9):
        d = 24 + 4*n
        k.e(f"v_mfma_f32_16x16x32_bf16 v[{64+4*n}:{67+4*n}], v[20:23], v[{d}:{d+3}], 0")
    k.e(f"""s_mul_i32 s45, s2, 4608
            s_mul_i32 s46, s20, 576
            s_add_u32 s45, s45, s46
            v_lshl_add_u32 v12, v3, 2, s45
            s_cmp_eq_u32 s2, 0
            s_cselect_b32 s47, 1.0, 0
            v_mov_b32 v14, 0x7fc00000
            s_nop 4""")
    for n in range(9):
        a = 64 + 4*n
        k.e(f"""v_add_f32 v{a}, v{a}, v{a+2}
                v_add_f32 v{a+1}, v{a+1}, v{a+3}""")
    Lh = k.newlab("noh")
    k.e(f"s_cbranch_scc0 {Lh}")
    for n in range(9):
        a = 64 + 4*n
        k.e(f"""v_add_f32 v{a}, v{a}, v{100+2*n}
                v_add_f32 v{a+1}, v{a+1}, v{101+2*n}""")
    k.lab(Lh)
    for n in range(9):
        a = 64 + 4*n
        k.e(f"""v_cmp_eq_u32 vcc, -1, v{a}
                v_cmp_eq_u32 s[66:67], -1, v{a+1}
                s_nop 1
                v_cndmask_b32 v{a}, v{a}, v14, vcc
                v_cndmask_b32 v{a+1}, v{a+1}, v14, s[66:67]""")
    k.e("""v_cmp_gt_u32 vcc, 16, v1
           s_and_saveexec_b64 s[50:51], vcc""")
    for n in range(9):
        a = 64 + 4*n
        k.e(f"""buffer_store_dword v{a}, v12, s[60:63], 0 offen offset:{64*n} sc1
                buffer_store_dword v{a+1}, v12, s[60:63], 0 offen offset:{2304 + 64*n} sc1""")

def phase_g(k):
    k.e("""s_sub_u32 s48, s2, 216
           v_lshrrev_b32 v5, 4, v0
           v_and_b32 v6, 15, v0
           v_mul_u32_u24 v8, 4608, v5
           v_lshl_add_u32 v8, v6, 4, v8
           s_lshl_b32 s40, s48, 8""")
    loads = []
    for i in range(9):
        loads.append(f"s_add_u32 s41, s40, {16*4608*i}\nbuffer_load_dwordx4 v[{20+4*i}:{23+4*i}], v8, s[60:63], s41 offen sc1")
    poll_gather(k, loads, list(range(20, 56)), 46)
    k.stamp(9)
    for i in range(1, 9):
        for e in range(4):
            k.e(f"v_add_f32 v{20+e}, v{20+e}, v{20+4*i+e}")
    k.e(f"""v_lshlrev_b32 v9, 4, v0
            v_lshlrev_b32 v10, 2, v0
            ds_write_b128 v9, v[20:23] offset:{T_A}
            s_waitcnt lgkmcnt(0)
            s_barrier
            s_cmp_lg_u32 s20, 0
            s_cbranch_scc1 {k.name}_end""")
    for i in range(16):
        k.e(f"ds_read_b32 v{20+i}, v10 offset:{T_A + 256*i}")
    k.e("s_waitcnt lgkmcnt(0)")
    for i in range(1, 16):
        k.e(f"v_add_f32 v20, v20, v{20+i}")
    k.e("""v_cvt_pk_bf16_f32 v20, v20, v20
           v_lshlrev_b32 v10, 1, v0
           s_lshl_b32 s41, s48, 7
           buffer_store_short v20, v10, s[92:95], s41 offen""")
    if os.environ.get("DBGT"):
        k.ldptr(12, "dbg")
        k.e("""s_memrealtime s[14:15]
               s_waitcnt lgkmcnt(0)""")
        k.srd(24, 12, 256)
        k.e("""s_lshl_b32 s41, s48, 2
               s_add_u32 s41, s41, 8
               s_mov_b64 exec, 1
               v_mov_b32 v21, s14
               v_mov_b32 v22, 0
               buffer_store_dword v21, v22, s[24:27], s41 offen""")

def k2_main():
    k = Kern("k_main_kernel", 256, 512, LDS_TOTAL, 256)
    guard(k, 256)
    k.ldptr(4, "ckv"); k.ldptr(10, "ws")
    wave_id(k, 20, 1)
    k.e(f"""v_and_b32 v1, 63, v0
            v_mov_b32 v2, 0
            v_lshlrev_b32 v3, 2, v1
            v_cmp_gt_u32 vcc, 20, v0
            s_and_saveexec_b64 s[48:49], vcc
            ds_write_b32 v3, v2 offset:{SYNC}
            s_mov_b64 exec, s[48:49]
            s_waitcnt lgkmcnt(0)
            s_barrier""")
    LB = k.newlab("teamB")
    if STAMP:
        k.sgpr = 102
        k.e("s_mov_b32 s101, s20\nv_mov_b32 v255, 0")
        k.stamp(0)
    k.e(f"s_cmp_ge_u32 s20, 4\ns_cbranch_scc1 {LB}")
    team_a(k)
    k.lab(LB)
    team_b(k)
    k.lab(f"{k.name}_end")
    if STAMP:
        k.e(f"s_cmp_ge_u32 s2, 256\ns_cbranch_scc1 {k.name}_end2")
        k.stamp_out()
        k.lab(f"{k.name}_end2")
    return k

def main():
    ks = [k2_main()]
    out = [HEADER.rstrip("\n")]
    for k in ks:
        out.append(f"; @launch kernel={k.name} grid=({k.grid},1,1) block=({k.block},1,1) lds={k.lds}")
    out.append('.amdgcn_target "amdgcn-amd-amdhsa--gfx950"\n.text')
    for k in ks:
        out.append(k.text())
    open(sys.argv[1] if len(sys.argv) > 1 else "u.s", "w").write("\n".join(out))
main()
```

```python
import sys, struct

HEADER = open("sequential_preLN__compressed_kv_cla__swiglu_ffn__decode.s.ref").read().split("; Override launch")[0]

WS_QA   = 0x000000
WS_ML   = 0x1D0000
WS_QP   = 0x020000
WS_INIT = 0x080000
WS_CTX  = 0x080000
WS_DNP  = 0x0C0000
WS_OUTP = 0x170000
WS_FL   = 0x1C0000
WS_OP   = 0x200000
INIT_BYTES = 0x180000
SENT = 0xFFFFFFFF
import os
GUNT = os.environ.get('GUNT', 'nt')
SPIN_MAX = 40000
import os
STAMP = bool(os.environ.get('STAMP'))

KA = dict(x=0, ckv=8, wq=16, wuk=24, wuv=32, wo=40, bx=48, wg=56, wu=64, wd=72, out=80, dbg=88, ws=96)
SZ = dict(x=2304, ckv=33554432, wq=4718592, wuk=4194304, wuv=4194304, wo=4718592, wg=5308416, wu=5308416,
          wd=5308416, out=2304)
LOG2E = 1.4426950408889634
def f2u(f): return struct.unpack("<I", struct.pack("<f", f))[0]

class Kern:
    def __init__(self, name, grid, block, lds, vgpr, sgpr=100):
        self.name, self.grid, self.block, self.lds, self.vgpr, self.sgpr = name, grid, block, lds, vgpr, sgpr
        self.lines = []
        self.nlab = 0
    def e(self, s):
        for l in s.strip("\n").split("\n"):
            if l.strip(): self.lines.append("    " + l.strip())
    def lab(self, s): self.lines.append(s + ":")
    def newlab(self, p):
        self.nlab += 1
        return f"{self.name}_{p}{self.nlab}"
    def ldptr(self, d, key): self.e(f"s_load_dwordx2 s[{d}:{d+1}], s[0:1], {KA[key]}")
    def srd(self, d, p, n, off=0):
        if off:
            self.e(f"s_add_u32 s{d}, s{p}, {off}\ns_addc_u32 s{d+1}, s{p+1}, 0")
        else:
            self.e(f"s_mov_b32 s{d}, s{p}\ns_mov_b32 s{d+1}, s{p+1}")
        self.e(f"s_mov_b32 s{d+2}, {n}\ns_mov_b32 s{d+3}, 0x00020000")
    def allreduce(self, op, x, t):
        for ctl in ("quad_perm:[1,0,3,2]", "quad_perm:[2,3,0,1]", "row_half_mirror", "row_mirror"):
            self.e(f"s_nop 1\nv_{op}_f32_dpp v{x}, v{x}, v{x} {ctl} row_mask:0xf bank_mask:0xf")
        for sw in ("v_permlane16_swap_b32", "v_permlane32_swap_b32"):
            self.e(f"v_mov_b32 v{t}, v{x}\ns_nop 1\n{sw} v{x}, v{t}\ns_nop 0\nv_{op}_f32 v{x}, v{x}, v{t}")
    def hilo(self, x, hi, lo, t):
        self.e(f"""v_cvt_pk_bf16_f32 v{hi}, v{x}, v{x}
                   v_lshlrev_b32 v{t}, 16, v{hi}
                   v_sub_f32 v{t}, v{x}, v{t}
                   v_cvt_pk_bf16_f32 v{lo}, v{t}, v{t}""")
    def sanitize(self, regs, tmp):
        self.e(f"v_mov_b32 v{tmp}, 0x7fc00000")
        for r in regs:
            self.e(f"v_cmp_eq_u32 vcc, -1, v{r}\ns_nop 1\nv_cndmask_b32 v{r}, v{r}, v{tmp}, vcc")
    def stamp(self, idx):
        if not STAMP: return
        self.e(f"s_memrealtime s[96:97]\ns_waitcnt lgkmcnt(0)\nv_writelane_b32 v255, s96, {idx}")
    def stamp_out(self):
        if not STAMP: return
        self.e(f"""s_mov_b64 exec, -1
                   s_waitcnt vmcnt(0)
                   s_memrealtime s[96:97]
                   s_waitcnt lgkmcnt(0)
                   v_writelane_b32 v255, s96, 15
                   s_add_u32 s96, s10, 0x1000000
                   s_addc_u32 s97, s11, 0
                   s_mov_b32 s98, 0x1000000
                   s_mov_b32 s99, 0x00020000
                   v_mbcnt_lo_u32_b32 v254, -1, 0
                   v_mbcnt_hi_u32_b32 v254, -1, v254
                   s_lshl_b32 s100, s2, 3
                   s_add_u32 s100, s100, s101
                   s_lshl_b32 s100, s100, 8
                   v_lshl_add_u32 v254, v254, 2, s100
                   buffer_store_dword v255, v254, s[96:99], 0 offen""")
    def text(self):
        acc = (self.vgpr + 3) // 4 * 4
        return "\n".join([
            f".globl {self.name}", ".p2align 8", f".type {self.name},@function", f"{self.name}:"] + self.lines + [
            "    s_endpgm",
            '.section .rodata,"a"', ".p2align 6", f".amdhsa_kernel {self.name}",
            f"  .amdhsa_next_free_vgpr {self.vgpr}", f"  .amdhsa_next_free_sgpr {self.sgpr}",
            f"  .amdhsa_accum_offset {acc}", "  .amdhsa_group_segment_fixed_size 0", "  .amdhsa_kernarg_size 104",
            "  .amdhsa_user_sgpr_count 2", "  .amdhsa_user_sgpr_kernarg_segment_ptr 1",
            "  .amdhsa_system_sgpr_workgroup_id_x 1", ".end_amdhsa_kernel", ".text", ""])

def guard(k, n):
    k.e(f"s_cmp_ge_u32 s2, {n}\ns_cbranch_scc1 {k.name}_end")

def wave_id(k, sdst, vt):
    k.e(f"v_lshrrev_b32 v{vt}, 6, v0\ns_nop 0\nv_readfirstlane_b32 s{sdst}, v{vt}")

RS = 1040
PX, MX, SX, SYNC, CT = 0, 8192, 8704, 9216, 9296
NONCE_L = SYNC + 64
WQ_L = CT + 128 * RS
LDS_TOTAL = WQ_L + 18432
LN_L, QQ_L = 0, 4608
D_A, D_A2, D_R = 0, 1024, 2048
T_A = 2304
WUV_L, OST_L, BIG_L = 9728, 26112, 63488

def lds_sync(k, word, target, vz, vone, vt, st):
    L = k.newlab("spin")
    k.e(f"""s_mov_b64 exec, 1
            ds_add_u32 v{vz}, v{vone} offset:{SYNC + 4*word}
            s_mov_b64 exec, -1""")
    k.lab(L)
    k.e(f"""ds_read_b32 v{vt}, v{vz} offset:{SYNC + 4*word}
            s_waitcnt lgkmcnt(0)
            v_readfirstlane_b32 s{st}, v{vt}
            s_cmp_lt_u32 s{st}, {target}
            s_cbranch_scc1 {L}""")

def poll_flags(k, vmask, vt, scnt, srd):
    L = k.newlab("pf"); Ld = k.newlab("pfd")
    k.e(f"s_mov_b32 s{scnt}, 0")
    k.lab(L)
    k.e(f"""buffer_load_dword v{vt}, v{vt+2}, s[{srd}:{srd+3}], 0 offen sc1
            s_waitcnt vmcnt(0)
            v_and_b32 v{vt}, v{vt}, v{vmask}
            v_cmp_ne_u32 vcc, v{vt}, v{vmask}
            s_add_u32 s{scnt}, s{scnt}, 1
            s_cmp_gt_u32 s{scnt}, {SPIN_MAX}
            s_cbranch_scc1 {Ld}
            s_cbranch_vccnz {L}""")
    k.lab(Ld)

def single_poll(k, kind, word, vz, vone, vt, st, srd, soff, snon, slp=3):
    L, Ld, Lo, Le = k.newlab("sp"), k.newlab("spd"), k.newlab("spo"), k.newlab("spe")
    k.e(f"s_cmp_lg_u32 s20, 0\ns_cbranch_scc1 {Lo}\ns_mov_b32 s{st}, 0")
    if kind == "grp": k.e("s_mov_b64 exec, 0xff")
    k.lab(L)
    if kind == "grp":
        k.e(f"""buffer_load_dwordx2 v[{vt}:{vt+1}], v{vt+8}, s[{srd}:{srd+3}], s{soff} offen sc1
                s_waitcnt vmcnt(0)
                v_xor_b32 v{vt}, s{snon}, v{vt}
                v_xor_b32 v{vt+1}, s{snon+1}, v{vt+1}
                v_or_b32 v{vt}, v{vt}, v{vt+1}""")
    else:
        k.e(f"""buffer_load_dwordx4 v[{vt}:{vt+3}], v{vt+8}, s[{srd}:{srd+3}], s{soff} offen sc1
                buffer_load_dwordx4 v[{vt+4}:{vt+7}], v{vt+8}, s[{srd}:{srd+3}], s{soff} offen offset:1024 sc1
                s_waitcnt vmcnt(0)""")
        for i in range(8):
            k.e(f"v_xor_b32 v{vt+i}, s{snon + (i & 1)}, v{vt+i}")
        k.e(f"""v_or3_b32 v{vt}, v{vt}, v{vt+1}, v{vt+2}
                v_or3_b32 v{vt+3}, v{vt+3}, v{vt+4}, v{vt+5}
                v_or3_b32 v{vt}, v{vt}, v{vt+6}, v{vt+7}
                v_or_b32 v{vt}, v{vt}, v{vt+3}""")
    k.e(f"""v_cmp_ne_u32 vcc, 0, v{vt}
            s_add_u32 s{st}, s{st}, 1
            s_cmp_gt_u32 s{st}, {SPIN_MAX}
            s_cbranch_scc1 {Ld}
            s_cbranch_vccz {Ld}
            s_sleep {slp}
            s_branch {L}""")
    k.lab(Ld)
    k.e(f"""s_mov_b64 exec, -1
            ds_write_b32 v{vz}, v{vone} offset:{SYNC + 4*word}
            s_branch {Le}""")
    k.lab(Lo)
    lds_wait(k, word, 1, vz, vt, st, sleep=1)
    k.lab(Le)

def publish_rep(k, word, srd, hop, vz, vone, vt, st, snon):
    L = k.newlab("pub")
    k.e(f"""s_waitcnt vmcnt(0)
            s_mov_b64 exec, 1
            ds_add_rtn_u32 v{vt}, v{vz}, v{vone} offset:{SYNC + 4*word}
            s_waitcnt lgkmcnt(0)
            v_readfirstlane_b32 s{st}, v{vt}
            s_mov_b64 exec, 0xff
            s_cmp_lg_u32 s{st}, 3
            s_cbranch_scc1 {L}
            s_lshl_b32 s{st}, s2, 3
            s_add_u32 s{st}, s{st}, {16384*hop}
            v_lshlrev_b32 v{vt}, 11, v1
            v_mov_b32 v{vt+2}, s{snon}
            v_mov_b32 v{vt+3}, s{snon+1}
            buffer_store_dwordx2 v[{vt+2}:{vt+3}], v{vt}, s[{srd}:{srd+3}], s{st} offen sc1""")
    k.lab(L)
    k.e("s_mov_b64 exec, -1")

def get_nonce(k, vz, vt, snon, st):
    L = k.newlab("gn")
    k.lab(L)
    k.e(f"""ds_read_b64 v[{vt}:{vt+1}], v{vz} offset:{NONCE_L}
            s_waitcnt lgkmcnt(0)
            v_readfirstlane_b32 s{snon}, v{vt}
            v_readfirstlane_b32 s{snon+1}, v{vt+1}
            s_cmp_eq_u32 s{snon}, 0
            s_cbranch_scc1 {L}""")

def publish_flag(k, word, val, srd, vz, vone, vt, st):
    L = k.newlab("pub")
    k.e(f"""s_waitcnt vmcnt(0)
            s_mov_b64 exec, 1
            ds_add_rtn_u32 v{vt}, v{vz}, v{vone} offset:{SYNC + 4*word}
            s_waitcnt lgkmcnt(0)
            v_readfirstlane_b32 s{st}, v{vt}
            s_cmp_lg_u32 s{st}, 3
            s_cbranch_scc1 {L}
            v_mov_b32 v{vt}, s2
            v_mov_b32 v{vt+1}, {val}
            buffer_store_byte v{vt+1}, v{vt}, s[{srd}:{srd+3}], 0 offen sc1""")
    k.lab(L)
    k.e("s_mov_b64 exec, -1")

def lds_wait(k, word, target, vz, vt, st, sleep=0):
    L = k.newlab("lw")
    k.lab(L)
    if sleep: k.e(f"s_sleep {sleep}")
    k.e(f"""ds_read_b32 v{vt}, v{vz} offset:{SYNC + 4*word}
            s_waitcnt lgkmcnt(0)
            v_readfirstlane_b32 s{st}, v{vt}
            s_cmp_lt_u32 s{st}, {target}
            s_cbranch_scc1 {L}""")

def team_a(k):
    if os.environ.get("PRIO"): k.e(f"s_setprio {os.environ['PRIO']}")
    k.ldptr(12, "x"); k.ldptr(14, "wq"); k.ldptr(16, "wuk"); k.ldptr(18, "dbg"); k.ldptr(68, "wg"); k.ldptr(70, "wu")
    k.e("""s_and_b32 s21, s2, 31
           s_lshr_b32 s22, s2, 5
           v_and_b32 v3, 15, v1
           v_lshrrev_b32 v4, 4, v1
           v_mov_b32 v224, 0
           v_mov_b32 v225, 1
           s_waitcnt lgkmcnt(0)""")
    k.srd(24, 12, SZ["x"]); k.srd(28, 14, SZ["wq"]); k.srd(32, 16, SZ["wuk"]); k.srd(36, 10, 262144, WS_QP)
    k.srd(52, 18, 256); k.srd(56, 10, 65536, WS_QA); k.srd(60, 10, 8388608, WS_OP); k.srd(64, 10, 65536, WS_ML)
    k.srd(72, 68, SZ["wg"]); k.srd(76, 70, SZ["wu"]); k.srd(80, 10, 32768, WS_FL); k.srd(88, 10, INIT_BYTES, WS_INIT)
    k.e("""v_lshlrev_b32 v252, 4, v1
           s_and_b32 s84, s2, 7
           s_lshl_b32 s84, s84, 11""")
    k.e("s_and_b32 s23, s20, 1\ns_mul_i32 s23, s23, 1152\nv_lshlrev_b32 v2, 1, v1")
    for i in range(9):
        k.e(f"buffer_load_ushort v{10+i}, v2, s[24:27], s23 offen offset:{128*i}")
    k.e(f"""v_lshlrev_b32 v6, 1, v4
            v_xor_b32 v6, v6, v3
            v_lshlrev_b32 v6, 4, v6
            v_lshl_add_u32 v6, v4, 13, v6
            s_and_b32 s40, s20, 2
            s_lshl_b32 s40, s40, 6
            v_xor_b32 v6, s40, v6
            s_mul_i32 s41, s22, 72
            s_lshl_b32 s42, s20, 2
            s_add_u32 s41, s41, s42
            s_lshl_b32 s41, s41, 13
            s_lshl_b32 s42, s21, 8
            s_add_u32 s41, s41, s42
            s_lshl_b32 s43, s20, 10
            s_add_u32 s43, s43, {WQ_L}""")
    Lq = k.newlab("wq4")
    for i in range(5):
        if i == 4: k.e(f"s_cmp_ge_u32 s20, 2\ns_cbranch_scc1 {Lq}")
        k.e(f"""s_mov_b32 m0, s43
                s_add_u32 s43, s43, 4096
                buffer_load_dwordx4 v6, s[28:31], s41 offen nt lds
                s_add_u32 s41, s41, {16*8192}""")
    k.lab(Lq)
    k.e("""s_lshl_b32 s40, s22, 6
           s_lshl_b32 s41, s20, 4
           s_add_u32 s40, s40, s41
           v_add_u32 v7, s40, v3
           v_lshlrev_b32 v7, 13, v7
           v_lshl_add_u32 v7, v4, 4, v7
           s_lshl_b32 s41, s21, 8""")
    for t in range(4):
        k.e(f"buffer_load_dwordx4 v[{232+4*t}:{235+4*t}], v7, s[32:35], s41 offen offset:{64*t} nt")
    Ln = k.newlab("non")
    k.e(f"""s_or_b32 s44, s20, s2
            s_cmp_lg_u32 s44, 0
            s_cbranch_scc1 {Ln}
            s_mov_b64 exec, 1
            s_memrealtime s[86:87]
            s_waitcnt lgkmcnt(0)
            s_or_b32 s86, s86, 1
            v_mov_b32 v226, s86
            v_mov_b32 v227, s87
            buffer_store_dwordx2 v[226:227], v224, s[52:55], 0 offen sc1
            s_mov_b64 exec, -1""")
    k.lab(Ln)
    k.e("""v_mov_b32 v28, -1
           v_mov_b32 v29, -1
           v_mov_b32 v30, -1
           v_mov_b32 v31, -1
           v_lshlrev_b32 v9, 4, v0
           s_mul_i32 s45, s2, 5120
           buffer_store_dwordx4 v[28:31], v9, s[88:91], s45 offen sc1
           s_add_u32 s45, s45, 4096
           v_cmp_gt_u32 vcc, 64, v0
           s_and_saveexec_b64 s[48:49], vcc
           buffer_store_dwordx4 v[28:31], v9, s[88:91], s45 offen sc1
           s_mov_b64 exec, s[48:49]
           s_lshl_b32 s45, s2, 8
           s_add_u32 s45, s45, 0x150000
           v_cmp_gt_u32 vcc, 16, v0
           s_and_saveexec_b64 s[48:49], vcc
           buffer_store_dwordx4 v[28:31], v9, s[88:91], s45 offen sc1
           s_mov_b64 exec, s[48:49]
           s_waitcnt vmcnt(9)
           buffer_load_dwordx2 v[226:227], v224, s[52:55], 0 offen sc1""")
    for i in range(9):
        k.e(f"v_lshlrev_b32 v{10+i}, 16, v{10+i}")
    k.e("v_add_f32 v20, v10, v11")
    for i in range(2, 9):
        k.e(f"v_add_f32 v20, v20, v{10+i}")
    k.allreduce("add", 20, 21)
    k.e(f"v_mul_f32 v20, {f2u(1.0/576)}, v20")
    for i in range(9):
        k.e(f"v_sub_f32 v{10+i}, v{10+i}, v20")
    k.e("v_mul_f32 v22, v10, v10")
    for i in range(1, 9):
        k.e(f"v_fmac_f32 v22, v{10+i}, v{10+i}")
    k.allreduce("add", 22, 21)
    k.e(f"""v_mov_b32 v23, {f2u(1e-5)}
            v_fmac_f32 v23, {f2u(1.0/576)}, v22
            v_rsq_f32 v23, v23
            v_add_u32 v24, s23, v2""")
    for i in range(9):
        k.e(f"v_mul_f32 v{10+i}, v{10+i}, v23")
        k.hilo(10+i, 25, 26, 27)
        k.e(f"""ds_write_b16 v24, v25 offset:{LN_L + 128*i}
                ds_write_b16 v24, v26 offset:{LN_L + 2304 + 128*i}""")
    k.e("s_waitcnt vmcnt(6)")
    lds_sync(k, 1, 4, 224, 225, 229, 44)
    k.stamp(6)
    k.e(f"""v_and_b32 v8, 3, v1
            v_mul_u32_u24 v8, 1152, v8
            v_lshl_add_u32 v8, v4, 4, v8
            s_mul_i32 s40, s22, 144
            v_add_u32 v8, s40, v8""")
    for t in range(3):
        k.e(f"ds_read_b128 v[{28+4*t}:{31+4*t}], v8 offset:{LN_L + 64*t}")
    k.e(f"""v_lshrrev_b32 v9, 2, v3
            v_lshl_add_u32 v10, v4, 3, v9
            v_lshlrev_b32 v10, 8, v10
            v_and_b32 v11, 1, v4
            v_lshlrev_b32 v11, 3, v11
            v_lshl_or_b32 v11, v9, 1, v11
            v_bfe_u32 v12, v3, 1, 1
            s_lshl_b32 s46, s20, 2
            v_add_u32 v12, s46, v12
            v_and_b32 v13, 1, v3
            v_lshlrev_b32 v13, 3, v13
            s_mov_b32 s47, {WQ_L}
            v_add3_u32 v10, v10, v13, s47
            v_lshlrev_b32 v19, 8, v9
            s_mov_b32 s47, {WQ_L + 16384}
            v_add3_u32 v19, v19, v13, s47
            v_lshlrev_b32 v18, 1, v9""")
    for nt in range(2):
        k.e(f"""v_add_u32 v14, {2*nt}, v12
                v_xor_b32 v15, v14, v11
                v_lshl_add_u32 v15, v15, 4, v10
                v_xor_b32 v16, v14, v18
                v_lshl_add_u32 v16, v16, 4, v19""")
        for t in range(2):
            d = 40 + 12*nt + 4*t
            k.e(f"""ds_read_b64_tr_b16 v[{d}:{d+1}], v15 offset:{8192*t}
                    ds_read_b64_tr_b16 v[{d+2}:{d+3}], v15 offset:{8192*t + 1024}""")
        d = 40 + 12*nt + 8
        k.e(f"""ds_read_b64_tr_b16 v[{d}:{d+1}], v16
                ds_read_b64_tr_b16 v[{d+2}:{d+3}], v16 offset:1024""")
    k.e("""v_cmp_gt_u32 vcc, 16, v1
           s_waitcnt lgkmcnt(0)
           v_cndmask_b32 v36, 0, v36, vcc
           v_cndmask_b32 v37, 0, v37, vcc
           v_cndmask_b32 v38, 0, v38, vcc
           v_cndmask_b32 v39, 0, v39, vcc
           s_nop 1""")
    for nt in range(2):
        acc = 64 + 4*nt
        for t in range(3):
            d = 40 + 12*nt + 4*t
            cin = "0" if t == 0 else f"v[{acc}:{acc+3}]"
            k.e(f"v_mfma_f32_16x16x32_bf16 v[{acc}:{acc+3}], v[{28+4*t}:{31+4*t}], v[{d}:{d+3}], {cin}")
    k.e(f"""s_lshl_b32 s46, s22, 15
            s_lshl_b32 s47, s21, 9
            s_add_u32 s46, s46, s47
            s_lshl_b32 s47, s20, 7
            s_add_u32 s46, s46, s47
            v_lshl_add_u32 v27, v3, 2, s46
            s_mov_b32 s47, 16384
            s_nop 4
            v_add_f32 v8, v64, v66
            v_add_f32 v9, v65, v67
            v_add_f32 v10, v68, v70
            v_add_f32 v11, v69, v71
            s_and_saveexec_b64 s[48:49], vcc
            buffer_store_dword v8, v27, s[36:39], 0 offen sc1
            buffer_store_dword v9, v27, s[36:39], s47 offen sc1
            buffer_store_dword v10, v27, s[36:39], 0 offen offset:64 sc1
            buffer_store_dword v11, v27, s[36:39], s47 offen offset:64 sc1
            s_mov_b64 exec, s[48:49]""")
    Lw, Lf = k.newlab("nw"), k.newlab("nf")
    k.e("s_mov_b32 s44, 0\ns_waitcnt vmcnt(4)")
    k.lab(Lw)
    k.e(f"""v_readfirstlane_b32 s86, v226
            v_readfirstlane_b32 s87, v227
            s_add_u32 s44, s44, 1
            s_cmp_gt_u32 s44, {SPIN_MAX}
            s_cbranch_scc1 {Lf}
            s_cmp_eq_u32 s86, 0
            s_cbranch_scc0 {Lf}
            s_sleep 2
            buffer_load_dwordx2 v[226:227], v224, s[52:55], 0 offen sc1
            s_waitcnt vmcnt(0)
            s_branch {Lw}""")
    k.lab(Lf)
    k.e("s_or_b32 s86, s86, 1")
    publish_rep(k, 2, 80, 0, 224, 225, 226, 44, 86)
    k.stamp(7)
    k.e("""s_lshl_b32 s46, s21, 3
           v_lshl_add_u32 v88, v1, 8, s46""")
    single_poll(k, "grp", 12, 224, 225, 80, 44, 80, 84, 86)
    k.e("""v_lshrrev_b32 v5, 7, v0
           v_and_b32 v6, 127, v0
           v_lshlrev_b32 v8, 14, v5
           v_lshl_add_u32 v8, v6, 2, v8
           s_lshl_b32 s46, s21, 9""")
    for j in range(8):
        k.e(f"buffer_load_dword v{10+j}, v8, s[36:39], s46 offen sc1\ns_add_u32 s46, s46, 32768")
    k.e("""v_lshlrev_b32 v24, 8, v5
           v_lshl_add_u32 v24, v6, 1, v24
           s_waitcnt vmcnt(0)""")
    for j in range(1, 8):
        k.e(f"v_add_f32 v10, v10, v{10+j}")
    k.hilo(10, 25, 26, 27)
    k.e(f"""ds_write_b16 v24, v25 offset:{QQ_L}
            ds_write_b16 v24, v26 offset:{QQ_L + 512}""")
    lds_sync(k, 3, 4, 224, 225, 226, 44)
    k.e(f"""v_and_b32 v8, 3, v1
            v_lshlrev_b32 v8, 8, v8
            v_lshl_add_u32 v8, v4, 4, v8""")
    for t in range(4):
        k.e(f"ds_read_b128 v[{28+4*t}:{31+4*t}], v8 offset:{QQ_L + 64*t}")
    k.e("s_waitcnt vmcnt(0) lgkmcnt(0)")
    k.stamp(8)
    for t in range(4):
        cin = "0" if t == 0 else "v[64:67]"
        k.e(f"v_mfma_f32_16x16x32_bf16 v[64:67], v[{28+4*t}:{31+4*t}], v[{232+4*t}:{235+4*t}], {cin}")
    sc = f2u((128 ** -0.5) * LOG2E)
    k.e(f"""s_lshl_b32 s46, s22, 2
            s_add_u32 s46, s46, s20
            s_lshl_b32 s46, s46, 10
            s_lshl_b32 s47, s21, 4
            s_add_u32 s46, s46, s47
            v_lshrrev_b32 v12, 1, v1
            v_lshlrev_b32 v12, 15, v12
            v_and_b32 v13, 1, v1
            v_lshl_add_u32 v12, v13, 9, v12
            s_lshl_b32 s47, s20, 6
            v_lshl_add_u32 v13, v3, 1, s47
            v_lshl_add_u32 v14, v1, 4, s47
            v_add_f32 v10, v64, v66
            v_add_f32 v11, v65, v67
            v_mul_f32 v10, {sc}, v10
            v_mul_f32 v11, {sc}, v11
            v_cvt_pk_bf16_f32 v10, v10, v11
            ds_write_b16 v13, v10 offset:{QQ_L + 1024}
            ds_write_b16_d16_hi v13, v10 offset:{QQ_L + 1024 + 32}
            s_mov_b64 exec, 0xf
            ds_read_b128 v[16:19], v14 offset:{QQ_L + 1024}
            s_waitcnt lgkmcnt(0)
            buffer_store_dwordx4 v[16:19], v12, s[56:59], s46 offen sc1
            s_mov_b64 exec, -1""")
    publish_rep(k, 4, 80, 1, 224, 225, 226, 44, 86)
    k.stamp(9)
    k.e(f"""v_and_b32 v2, 31, v1
            v_lshrrev_b32 v3, 5, v1
            s_lshr_b32 s21, s2, 7
            s_lshl_b32 s22, s21, 15
            v_lshlrev_b32 v5, 4, v1
            s_lshl_b32 s41, s20, 5
            v_and_b32 v6, 16, v2
            v_and_b32 v7, 3, v2
            v_lshl_add_u32 v6, v7, 2, v6
            v_bfe_u32 v7, v2, 2, 1
            v_lshl_add_u32 v6, v7, 1, v6
            v_bfe_u32 v7, v2, 3, 1
            v_add_u32 v6, v6, v7
            v_add_u32 v6, s41, v6
            v_mul_u32_u24 v6, {RS}, v6
            v_lshl_add_u32 v6, v3, 4, v6
            v_add_u32 v6, {CT}, v6
            """)
    k.e("s_add_u32 s84, s84, 16384")
    single_poll(k, "all", 13, 224, 225, 244, 44, 80, 84, 86, slp=int(os.environ.get('SLP1', '3')))
    k.stamp(1)
    QF = 96
    for t in range(32):
        if t % 4 == 0 and t: k.e("s_add_u32 s22, s22, 4096")
        k.e(f"buffer_load_dwordx4 v[{QF+4*t}:{QF+3+4*t}], v5, s[56:59], s22 offen offset:{1024*(t%4)} {os.environ.get('QSC', 'sc1')}")
    lds_wait(k, 0, 4, 224, 226, 44)
    QOV = os.environ.get("QOV", "1") == "1"
    if not QOV: k.e("s_waitcnt vmcnt(0)")
    k.stamp(2)
    ACC = 16
    bufs = [32, 64]
    for i in range(8):
        k.e(f"ds_read_b128 v[{bufs[0]+4*i}:{bufs[0]+3+4*i}], v6 offset:{32*i}")
    for ci in range(4):
        if ci < 3:
            for i in range(8):
                b = bufs[(ci+1) % 2] + 4*i
                if b + 3 >= QF: raise Exception("reg overlap")
                k.e(f"ds_read_b128 v[{b}:{b+3}], v6 offset:{32*(8*(ci+1)+i)}")
            k.e("s_waitcnt lgkmcnt(8)")
        else:
            k.e("s_waitcnt lgkmcnt(0)")
        for i in range(8):
            t = 8*ci + i
            if QOV and t % 4 == 0: k.e(f"s_waitcnt vmcnt({28 - t})")
            b = bufs[ci % 2] + 4*i
            cin = "0" if t == 0 else f"v[{ACC}:{ACC+15}]"
            k.e(f"v_mfma_f32_32x32x16_bf16 v[{ACC}:{ACC+15}], v[{b}:{b+3}], v[{QF+4*t}:{QF+3+4*t}], {cin}")
    k.e("s_nop 15")
    k.e(f"v_max3_f32 v8, v{ACC}, v{ACC+1}, v{ACC+2}")
    for i in range(3, 15, 2):
        k.e(f"v_max3_f32 v8, v8, v{ACC+i}, v{ACC+i+1}")
    k.e(f"""v_max_f32 v8, v8, v{ACC+15}
            v_mov_b32 v9, v8
            s_nop 1
            v_permlane32_swap_b32 v8, v9
            s_nop 0
            v_max_f32 v8, v8, v9
            s_lshl_b32 s43, s20, 2
            v_lshl_add_u32 v10, v2, 4, s43
            v_lshlrev_b32 v11, 4, v2
            ds_write_b32 v10, v8 offset:{MX}""")
    lds_sync(k, 5, 4, 224, 225, 226, 44)
    k.e(f"""ds_read_b128 v[12:15], v11 offset:{MX}
            s_waitcnt lgkmcnt(0)
            v_max3_f32 v8, v12, v13, v14
            v_max_f32 v8, v8, v15""")
    for i in range(16):
        k.e(f"v_sub_f32 v{ACC+i}, v{ACC+i}, v8")
    for i in range(16):
        k.e(f"v_exp_f32 v{ACC+i}, v{ACC+i}")
    k.e(f"s_nop 0\nv_add_f32 v9, v{ACC}, v{ACC+1}")
    for i in range(2, 16):
        k.e(f"v_add_f32 v9, v9, v{ACC+i}")
    for i in range(8):
        k.e(f"v_cvt_pk_bf16_f32 v{32+i}, v{ACC+2*i}, v{ACC+2*i+1}")
    k.e(f"""v_mov_b32 v12, v9
            s_lshl_b32 s44, s20, 11
            v_lshl_add_u32 v13, v1, 4, s44
            v_permlane32_swap_b32 v9, v12
            s_nop 0
            v_add_f32 v9, v9, v12
            ds_write_b128 v13, v[32:35] offset:{PX}
            ds_write_b128 v13, v[36:39] offset:{PX+1024}
            ds_write_b32 v10, v9 offset:{SX}""")
    lds_sync(k, 6, 4, 224, 225, 226, 44)
    k.stamp(3)
    PF = 32
    for s in range(8):
        k.e(f"ds_read_b128 v[{PF+4*s}:{PF+3+4*s}], v5 offset:{PX + 1024*s}")
    k.e(f"ds_read_b128 v[12:15], v11 offset:{SX}")
    k.e(f"""v_bfe_u32 v66, v1, 2, 2
            v_lshlrev_b32 v66, 2, v66
            v_lshl_add_u32 v66, v3, 1, v66
            v_mul_u32_u24 v66, {RS}, v66
            v_bfe_u32 v67, v1, 4, 1
            v_lshlrev_b32 v67, 5, v67
            v_and_b32 v7, 3, v1
            v_lshl_add_u32 v67, v7, 3, v67
            s_lshl_b32 s45, s20, 8
            s_add_u32 s45, s45, {CT}
            v_add3_u32 v64, v66, v67, s45
            v_add_u32 v65, {64*RS}, v64""")
    OACC = 96
    VB = [160, 192]
    steps = [(T, s) for s in range(8) for T in range(4)]
    def trread(dst, T, s):
        wq, u = s >> 1, s & 1
        base = 64 if wq < 2 else 65
        off = (32*(wq & 1) + 16*u) * RS + 64*T
        k.e(f"ds_read_b64_tr_b16 v[{dst}:{dst+1}], v{base} offset:{off}")
        k.e(f"ds_read_b64_tr_b16 v[{dst+2}:{dst+3}], v{base} offset:{off+RS}")
    CH = 4
    chunks = [steps[i:i+CH] for i in range(0, 32, CH)]
    for i, (T, s) in enumerate(chunks[0]):
        trread(VB[0] + 4*i, T, s)
    for ci, ch in enumerate(chunks):
        if ci + 1 < len(chunks):
            for i, (T, s) in enumerate(chunks[ci+1]):
                trread(VB[(ci+1) % 2] + 4*i, T, s)
            k.e(f"s_waitcnt lgkmcnt({2*CH})")
        else:
            k.e("s_waitcnt lgkmcnt(0)")
        for i, (T, s) in enumerate(ch):
            a = VB[ci % 2] + 4*i
            o = OACC + 16*T
            cin = "0" if s == 0 else f"v[{o}:{o+15}]"
            k.e(f"v_mfma_f32_32x32x16_bf16 v[{o}:{o+15}], v[{a}:{a+3}], v[{PF+4*s}:{PF+3+4*s}], {cin}")
    k.stamp(4)
    Lk = k.newlab("skipml")
    k.e(f"""v_add_f32 v12, v12, v13
            v_add_f32 v14, v14, v15
            v_add_f32 v9, v12, v14
            s_and_b32 s46, s2, 127
            s_lshl_b32 s47, s21, 12
            s_add_u32 s46, s46, s47
            s_lshl_b32 s46, s46, 3
            v_lshl_add_u32 v10, v2, 10, s46
            v_mov_b32 v228, v10""")
    k.e(f"""s_lshl_b32 s46, s2, 15
            s_lshl_b32 s47, s20, 8
            s_add_u32 s46, s46, s47
            v_mul_u32_u24 v10, {RS}, v2
            v_lshl_add_u32 v10, v3, 3, v10
            v_add_u32 v10, s45, v10
            v_lshrrev_b32 v11, 4, v1
            v_and_b32 v12, 15, v1
            v_mul_u32_u24 v13, {RS}, v11
            v_lshl_add_u32 v13, v12, 4, v13
            v_add_u32 v13, s45, v13
            v_lshlrev_b32 v14, 10, v11
            v_lshl_add_u32 v14, v12, 4, v14""")
    for T in range(4):
        o = OACC + 16*T
        for a in range(4):
            d = 32 + 2*(4*T + a)
            k.e(f"""v_cvt_pk_bf16_f32 v{d}, v{o+4*a}, v{o+4*a+1}
                    v_cvt_pk_bf16_f32 v{d+1}, v{o+4*a+2}, v{o+4*a+3}
                    ds_write_b64 v10, v[{d}:{d+1}] offset:{64*T + 16*a}""")
    for n in range(8):
        k.e(f"ds_read_b128 v[{160+4*n}:{163+4*n}], v13 offset:{4*RS*n}")
    for n in range(8):
        k.e(f"""s_waitcnt lgkmcnt({7-n})
                buffer_store_dwordx4 v[{160+4*n}:{163+4*n}], v14, s[60:63], s46 offen sc1
                s_add_u32 s46, s46, 4096""")
    k.e("s_waitcnt vmcnt(0)")
    k.stamp(5)
    k.sanitize([8, 9], 229)
    Lp = k.newlab("pubml")
    k.e(f"""s_waitcnt vmcnt(0)
            s_mov_b64 exec, 1
            ds_add_rtn_u32 v226, v224, v225 offset:{SYNC + 28}
            s_waitcnt lgkmcnt(0)
            v_readfirstlane_b32 s44, v226
            s_mov_b32 exec_lo, -1
            s_cmp_lg_u32 s44, 3
            s_cbranch_scc1 {Lp}
            buffer_store_dwordx2 v[8:9], v228, s[64:67], 0 offen sc1""")
    k.lab(Lp)
    k.e("s_mov_b64 exec, -1")
    k.e(f"s_cmp_ge_u32 s2, 144\ns_cbranch_scc1 {k.name}_end")
    lds_wait(k, int(os.environ.get("GUW", "10")), 4, 224, 226, 44, sleep=2)
    dma64_off(k, 8, 1, 10, 11, 9, 9216)
    k.e(f"""s_and_b32 s85, s2, 7
            s_lshl_b32 s85, s85, 1
            s_bfe_u32 s45, s2, 0x10003
            s_add_u32 s85, s85, s45
            s_andn2_b32 s45, s2, 15
            s_add_u32 s85, s85, s45
            s_mul_i32 s41, s20, 9*16*9216
            s_lshl_b32 s42, s85, 6
            s_add_u32 s41, s41, s42
            s_mul_i32 s43, s20, 9216
            s_add_u32 s43, s43, {BIG_L}
            s_add_u32 s44, s43, 36864""")
    for mi in range(9):
        GT = int(os.environ.get("GUT", "3"))
        if GT and mi >= GT: k.e(f"s_waitcnt vmcnt({2*GT-2})")
        k.e(f"""s_mov_b32 m0, s43
                s_add_u32 s43, s43, 1024
                buffer_load_dwordx4 v8, s[72:75], s41 offen {GUNT} lds
                s_mov_b32 m0, s44
                s_add_u32 s44, s44, 1024
                buffer_load_dwordx4 v8, s[76:79], s41 offen {GUNT} lds
                s_add_u32 s41, s41, {16*9216}""")
    if os.environ.get("DNA", "0") == "1":
        lds_wait(k, 11, 4, 224, 226, 44, sleep=1)
        k.e(f"""v_lshlrev_b32 v9, 4, v1
                s_mul_i32 s41, s85, 36864
                s_mul_i32 s42, s20, 9216
                s_add_u32 s41, s41, s42
                s_add_u32 s43, s42, {OST_L}""")
        for mi in range(9):
            if mi >= 2: k.e("s_waitcnt vmcnt(4)")
            k.e(f"""s_mov_b32 m0, s43
                    s_add_u32 s43, s43, 1024
                    buffer_load_dwordx4 v9, s[88:91], s41 offen nt lds
                    s_add_u32 s41, s41, 1024""")
    k.e(f"s_waitcnt vmcnt(0)\ns_branch {k.name}_end")

def dma64_off(k, vA, lane, t1, t2, t3, rowstride):
    k.e(f"""v_lshrrev_b32 v{t1}, 2, v{lane}
            v_and_b32 v{t2}, 3, v{lane}
            v_bfe_u32 v{t3}, v{lane}, 5, 1
            v_lshlrev_b32 v{t3}, 1, v{t3}
            v_xor_b32 v{t2}, v{t2}, v{t3}
            v_mul_u32_u24 v{vA}, {rowstride}, v{t1}
            v_lshl_add_u32 v{vA}, v{t2}, 4, v{vA}""")

def tr64_base(k, dst, v3, v4, nt_sreg, t1, t2):
    k.e(f"""v_lshrrev_b32 v{t1}, 2, v{v3}
            v_lshl_add_u32 v{t1}, v{v4}, 3, v{t1}
            v_lshlrev_b32 v{t1}, 6, v{t1}
            v_bfe_u32 v{t2}, v{v3}, 1, 1
            v_add_u32 v{t2}, s{nt_sreg}, v{t2}
            v_and_b32 v{dst}, 1, v{v4}
            v_lshlrev_b32 v{dst}, 1, v{dst}
            v_xor_b32 v{t2}, v{t2}, v{dst}
            v_lshl_add_u32 v{t1}, v{t2}, 4, v{t1}
            v_and_b32 v{dst}, 1, v{v3}
            v_lshl_add_u32 v{dst}, v{dst}, 3, v{t1}""")

def poll_gather(k, loads, regs, scnt, mask_s=None):
    L = k.newlab("poll"); Ld = k.newlab("pdone")
    k.e(f"s_mov_b32 s{scnt}, 0")
    if len(loads) > 1 and os.environ.get("PRE", "1") == "1":
        L1, L1d = k.newlab("pre"), k.newlab("pred")
        n1 = len(regs) // len(loads)
        r1 = regs[-n1:]
        k.lab(L1)
        k.e(loads[-1])
        k.e(f"""s_waitcnt vmcnt(0)
                v_max_u32 v7, v{r1[0]}, v{r1[1]}
                v_max3_u32 v7, v7, v{r1[2]}, v{r1[3]}
                v_cmp_eq_u32 vcc, -1, v7
                s_add_u32 s{scnt}, s{scnt}, 1
                s_cmp_gt_u32 s{scnt}, {SPIN_MAX}
                s_cbranch_scc1 {L1d}
                s_cbranch_vccz {L1d}
                s_sleep {os.environ.get('PSLP', '4')}
                s_branch {L1}""")
        k.lab(L1d)
    k.lab(L)
    for l in loads: k.e(l)
    k.e("s_waitcnt vmcnt(0)")
    k.e(f"v_max_u32 v7, v{regs[0]}, v{regs[1]}")
    for i in range(2, len(regs) - 1, 2):
        k.e(f"v_max3_u32 v7, v7, v{regs[i]}, v{regs[i+1]}")
    if len(regs) % 2: k.e(f"v_max_u32 v7, v7, v{regs[-1]}")
    k.e(f"""v_cmp_eq_u32 vcc, -1, v7
            s_add_u32 s{scnt}, s{scnt}, 1
            s_cmp_gt_u32 s{scnt}, {SPIN_MAX}
            s_cbranch_scc1 {Ld}
            s_cbranch_vccz {Ld}
            s_sleep {os.environ.get('GSLP', '1')}
            s_branch {L}""")
    k.lab(Ld)

def team_b(k):
    k.e("""v_subrev_u32 v0, 0x100, v0
           s_sub_u32 s20, s20, 4
           v_and_b32 v3, 15, v1
           v_lshrrev_b32 v4, 4, v1
           s_and_b32 s21, s2, 31
           s_lshr_b32 s22, s2, 5
           v_mov_b32 v124, 0
           v_mov_b32 v125, 1""")
    k.ldptr(12, "wuv"); k.ldptr(14, "wo"); k.ldptr(64, "wd"); k.ldptr(66, "x"); k.ldptr(68, "out")
    k.e("s_waitcnt lgkmcnt(0)")
    k.srd(24, 12, SZ["wuv"]); k.srd(28, 10, 65536, WS_ML); k.srd(32, 10, 8388608, WS_OP); k.srd(36, 10, 262144, WS_CTX)
    k.srd(56, 10, 8*36864, WS_OUTP); k.srd(60, 10, 663552, WS_DNP)
    k.srd(72, 14, SZ["wo"]); k.srd(76, 4, SZ["ckv"]); k.srd(84, 64, SZ["wd"])
    k.srd(88, 66, SZ["x"]); k.srd(92, 68, SZ["out"])
    if os.environ.get("CPF"):
        Lc, Lh = k.newlab("cpf"), k.newlab("cpfpc")
        k.e(f"""s_cmp_lg_u32 s20, 3
                s_cbranch_scc1 {Lc}
                s_getpc_b64 s[98:99]""")
        k.lab(Lh)
        k.e(f"""s_sub_u32 s98, s98, {Lh}-{k.name}
                s_subb_u32 s99, s99, 0
                v_lshlrev_b32 v100, 7, v1
                global_load_dword v101, v100, s[98:99]
                v_add_u32 v100, 8192, v100
                global_load_dword v102, v100, s[98:99]
                v_add_u32 v100, 8192, v100
                s_mov_b64 exec, 0x3fff
                global_load_dword v103, v100, s[98:99]
                s_mov_b64 exec, -1""")
        k.lab(Lc)
    k.e("""s_sub_u32 s47, s2, 144
           s_mul_i32 s48, s47, 7282
           s_lshr_b32 s48, s48, 16
           s_mul_i32 s49, s48, 9
           s_sub_u32 s49, s47, s49""")
    k.e(f"""v_lshlrev_b32 v9, 4, v1
            s_lshl_b32 s40, s2, 7
            s_lshl_b32 s41, s20, 5
            s_add_u32 s40, s40, s41
            s_lshl_b32 s40, s40, 10
            s_mul_i32 s42, s41, {RS}
            s_add_u32 s42, s42, {CT}""")
    THR = int(os.environ.get("THR", "3")); DLY = int(os.environ.get("DLY", "0"))
    if DLY: lds_wait(k, 1, 1, 124, 126, 46, sleep=1)
    for r in range(32):
        R1 = int(os.environ.get("R1", "32")); THR2 = int(os.environ.get("THR2", "0"))
        th = THR if r < R1 else THR2
        if th and r >= th: k.e(f"s_waitcnt vmcnt({th-1})")
        k.e(f"""s_mov_b32 m0, s42
                s_add_u32 s42, s42, {RS}
                buffer_load_dwordx4 v9, s[76:79], s40 offen nt lds
                s_add_u32 s40, s40, 1024""")
    k.e(f"""v_lshlrev_b32 v13, 1, v4
            v_xor_b32 v13, v13, v3
            v_lshlrev_b32 v13, 4, v13
            v_lshl_add_u32 v13, v4, 13, v13
            v_xor_b32 v14, 0x80, v13
            s_lshl_b32 s44, s22, 6
            s_lshl_b32 s45, s20, 4
            s_add_u32 s44, s44, s45
            s_lshl_b32 s44, s44, 13
            s_lshl_b32 s45, s21, 8
            s_add_u32 s44, s44, s45
            s_waitcnt vmcnt(0)
            s_mov_b64 exec, 1
            ds_add_u32 v124, v125 offset:{SYNC}
            s_mov_b64 exec, -1""")
    k.stamp(1)
    for mi in range(4):
        k.e(f"""buffer_load_dwordx4 v[{128+4*mi}:{131+4*mi}], v{14 if mi & 2 else 13}, s[24:27], s44 offen nt
                s_add_u32 s44, s44, 32768""")
    LW = k.newlab("ldW")
    k.e(f"""s_cmp_lt_u32 s2, 144
            s_cbranch_scc1 {LW}
            s_cmp_ge_u32 s2, 216
            s_cbranch_scc1 {LW}""")
    k.e("""v_lshrrev_b32 v10, 3, v1
           v_and_b32 v11, 7, v1
           v_and_b32 v12, 2, v10
           v_xor_b32 v11, v11, v12
           v_mul_u32_u24 v8, 1152, v10
           v_lshl_add_u32 v8, v11, 4, v8
           v_xor_b32 v11, 4, v11
           v_mul_u32_u24 v7, 1152, v10
           v_lshl_add_u32 v7, v11, 4, v7
           s_lshl_b32 s41, s48, 9
           s_lshl_b32 s42, s20, 7
           s_add_u32 s41, s41, s42
           s_mul_i32 s41, s41, 1152
           s_lshl_b32 s42, s49, 7
           s_add_u32 s41, s41, s42""")
    for mi in range(16):
        k.e(f"""buffer_load_dwordx4 v[{144+4*mi}:{147+4*mi}], v{7 if mi & 1 else 8}, s[72:75], s41 offen nt
                s_add_u32 s41, s41, {8*1152}""")
    k.lab(LW)
    k.stamp(2)
    lds_wait(k, 7, 4, 124, 126, 46, sleep=2)
    k.stamp(3)
    k.e(f"""s_waitcnt vmcnt(0)
            s_lshl_b32 s41, s20, 12
            s_add_u32 s41, s41, {WUV_L}
            v_add_u32 v10, s41, v9""")
    for mi in range(4):
        k.e(f"ds_write_b128 v10, v[{128+4*mi}:{131+4*mi}] offset:{1024*mi}")
    LW2 = k.newlab("stW")
    k.e(f"""s_cmp_lt_u32 s2, 144
            s_cbranch_scc1 {LW2}
            s_cmp_ge_u32 s2, 216
            s_cbranch_scc1 {LW2}
            s_lshl_b32 s41, s20, 14
            s_add_u32 s41, s41, {BIG_L}
            v_add_u32 v10, s41, v9""")
    for mi in range(16):
        k.e(f"ds_write_b128 v10, v[{144+4*mi}:{147+4*mi}] offset:{1024*mi}")
    k.lab(LW2)
    k.stamp(5)
    k.e("""v_lshrrev_b32 v5, 7, v0
           v_and_b32 v6, 127, v0
           v_lshlrev_b32 v5, 12, v5
           v_add_u32 v5, v5, v6
           s_lshl_b32 s40, s21, 7
           v_add_u32 v5, s40, v5
           v_lshlrev_b32 v5, 3, v5""")
    poll_gather(k, ["buffer_load_dwordx2 v[8:9], v5, s[28:31], 0 offen sc1"], [8, 9], 46)
    k.stamp(6)
    k.e(f"""v_lshrrev_b32 v10, 3, v1
            v_and_b32 v11, 7, v1
            v_and_b32 v12, 2, v10
            v_xor_b32 v11, v11, v12
            v_lshlrev_b32 v11, 4, v11
            v_lshl_add_u32 v11, v10, 15, v11
            v_xor_b32 v12, 64, v11
            s_lshl_b32 s41, s21, 10
            s_lshl_b32 s42, s22, 7
            s_add_u32 s41, s41, s42
            s_lshl_b32 s42, s20, 21
            s_add_u32 s41, s41, s42
            s_lshl_b32 s43, s20, 13
            s_add_u32 s43, s43, {OST_L}""")
    for mi in range(8):
        k.e(f"""s_mov_b32 m0, s43
                s_add_u32 s43, s43, 1024
                buffer_load_dwordx4 v{12 if mi & 1 else 11}, s[32:35], s41 offen sc1 lds
                s_add_u32 s41, s41, 262144""")
    k.e("v_mov_b32 v15, v8")
    k.allreduce("max", 15, 16)
    k.e(f"""s_lshl_b32 s46, s20, 2
            v_mov_b32 v17, s46
            ds_write_b32 v17, v15 offset:{D_R}
            s_waitcnt lgkmcnt(0)
            """)
    lds_sync(k, 8, 4, 124, 125, 126, 46)
    k.e(f"""
            s_and_b32 s47, s20, 2
            s_lshl_b32 s47, s47, 2
            v_mov_b32 v18, s47
            ds_read_b64 v[20:21], v18 offset:{D_R}
            s_waitcnt lgkmcnt(0)
            v_max_f32 v15, v20, v21
            v_sub_f32 v8, v8, v15
            v_exp_f32 v8, v8
            s_nop 0
            v_mul_f32 v19, v8, v9""")
    k.allreduce("add", 19, 16)
    k.e(f"""ds_write_b32 v17, v19 offset:{D_R+16}
            s_waitcnt lgkmcnt(0)
            """)
    lds_sync(k, 9, 4, 124, 125, 126, 46)
    k.e(f"""
            ds_read_b64 v[20:21], v18 offset:{D_R+16}
            s_waitcnt lgkmcnt(0)
            v_add_f32 v19, v20, v21
            v_rcp_f32 v19, v19
            s_nop 0
            v_mul_f32 v8, v8, v19""")
    k.hilo(8, 22, 23, 24)
    k.e(f"""v_lshrrev_b32 v25, 7, v0
            v_lshlrev_b32 v25, 9, v25
            v_lshl_add_u32 v25, v6, 1, v25
            ds_write_b16 v25, v22 offset:{D_A}
            ds_write_b16 v25, v23 offset:{D_A+256}
            s_waitcnt vmcnt(0) lgkmcnt(0)
            """)
    lds_sync(k, 10, 4, 124, 125, 126, 46)
    k.e(f"""""")
    k.stamp(7)
    k.e(f"""v_and_b32 v26, 1, v1
            v_lshlrev_b32 v26, 8, v26
            v_lshl_add_u32 v26, v4, 4, v26
            s_lshr_b32 s46, s20, 1
            s_lshl_b32 s47, s46, 9
            v_add_u32 v26, s47, v26""")
    for t in range(4):
        k.e(f"ds_read_b128 v[{28+4*t}:{31+4*t}], v26 offset:{D_A + 64*t}")
    k.e(f"""v_lshrrev_b32 v9, 2, v3
            v_lshl_add_u32 v10, v4, 3, v9
            v_lshlrev_b32 v10, 7, v10
            v_and_b32 v11, 2, v9
            v_and_b32 v12, 1, v4
            v_lshl_or_b32 v11, v12, 2, v11
            v_bfe_u32 v12, v3, 1, 1
            s_and_b32 s47, s20, 1
            s_lshl_b32 s47, s47, 2
            v_add_u32 v12, s47, v12
            v_and_b32 v13, 1, v3
            v_lshl_add_u32 v10, v13, 3, v10
            s_lshl_b32 s47, s46, 14
            s_add_u32 s47, s47, {OST_L}
            v_add_u32 v10, s47, v10""")
    for nt in range(2):
        k.e(f"""v_add_u32 v14, {2*nt}, v12
                v_xor_b32 v14, v14, v11
                v_lshl_add_u32 v{15+nt}, v14, 4, v10""")
    for nt in range(2):
        for t in range(4):
            d = 44 + 16*nt + 4*t
            k.e(f"""ds_read_b64_tr_b16 v[{d}:{d+1}], v{15+nt} offset:{4096*t}
                    ds_read_b64_tr_b16 v[{d+2}:{d+3}], v{15+nt} offset:{4096*t + 512}""")
    k.e("s_waitcnt lgkmcnt(0)")
    for nt in range(2):
        for t in range(4):
            d = 44 + 16*nt + 4*t
            acc = 20 if nt == 0 else 76
            cin = "0" if t == 0 else f"v[{acc}:{acc+3}]"
            k.e(f"v_mfma_f32_16x16x32_bf16 v[{acc}:{acc+3}], v[{28+4*t}:{31+4*t}], v[{d}:{d+3}], {cin}")
    k.e(f"""s_and_b32 s47, s20, 1
            s_lshl_b32 s47, s47, 6
            s_lshl_b32 s50, s46, 7
            s_add_u32 s47, s47, s50
            v_lshl_add_u32 v27, v3, 1, s47
            s_nop 7""")
    for nt in range(2):
        acc = 20 if nt == 0 else 76
        k.e(f"v_add_f32 v8, v{acc}, v{acc+1}")
        k.hilo(8, 9, 24, 25)
        k.e(f"""ds_write_b16 v27, v9 offset:{D_A2 + 32*nt}
                ds_write_b16 v27, v24 offset:{D_A2 + 256 + 32*nt}""")
    k.e("s_waitcnt lgkmcnt(0)")
    lds_sync(k, 11, 4, 124, 125, 126, 46)
    k.e(f"""v_and_b32 v8, 3, v1
            v_lshlrev_b32 v8, 7, v8
            v_lshl_add_u32 v8, v4, 4, v8
            ds_read_b128 v[28:31], v8 offset:{D_A2}
            ds_read_b128 v[32:35], v8 offset:{D_A2+64}""")
    k.e(f"""v_lshrrev_b32 v9, 2, v3
            v_lshl_add_u32 v10, v4, 3, v9
            v_lshlrev_b32 v10, 8, v10
            v_and_b32 v11, 1, v4
            v_lshlrev_b32 v11, 3, v11
            v_lshl_or_b32 v11, v9, 1, v11
            v_bfe_u32 v12, v3, 1, 1
            s_lshl_b32 s47, s20, 2
            v_add_u32 v12, s47, v12
            v_and_b32 v13, 1, v3
            v_lshl_add_u32 v10, v13, 3, v10""")
    for nt in range(2):
        k.e(f"""v_add_u32 v14, {2*nt}, v12
                v_xor_b32 v14, v14, v11
                v_lshl_add_u32 v{15+nt}, v14, 4, v10""")
    for nt in range(2):
        for t in range(2):
            d = 44 + 8*nt + 4*t
            k.e(f"""ds_read_b64_tr_b16 v[{d}:{d+1}], v{15+nt} offset:{WUV_L + 8192*t}
                    ds_read_b64_tr_b16 v[{d+2}:{d+3}], v{15+nt} offset:{WUV_L + 8192*t + 1024}""")
    k.e("s_waitcnt lgkmcnt(0)")
    for nt in range(2):
        acc = 20 if nt == 0 else 76
        for t in range(2):
            d = 44 + 8*nt + 4*t
            cin = "0" if t == 0 else f"v[{acc}:{acc+3}]"
            k.e(f"v_mfma_f32_16x16x32_bf16 v[{acc}:{acc+3}], v[{28+4*t}:{31+4*t}], v[{d}:{d+3}], {cin}")
    k.e(f"""s_lshl_b32 s47, s22, 15
            s_lshl_b32 s50, s21, 9
            s_add_u32 s47, s47, s50
            s_lshl_b32 s50, s20, 7
            s_add_u32 s47, s47, s50
            v_lshl_add_u32 v27, v3, 2, s47
            s_nop 7
            v_add_f32 v8, v20, v22
            v_add_f32 v9, v21, v23
            v_add_f32 v10, v76, v78
            v_add_f32 v11, v77, v79""")
    k.sanitize([8, 9, 10, 11], 12)
    k.e(f"""s_mov_b32 s47, 16384
            v_cmp_gt_u32 vcc, 16, v1
            s_and_saveexec_b64 s[50:51], vcc
            buffer_store_dword v8, v27, s[36:39], 0 offen sc1
            buffer_store_dword v9, v27, s[36:39], s47 offen sc1
            buffer_store_dword v10, v27, s[36:39], 0 offen offset:64 sc1
            buffer_store_dword v11, v27, s[36:39], s47 offen offset:64 sc1
            s_mov_b64 exec, s[50:51]""")
    k.stamp(8)
    LPE, LPG = k.newlab("phE"), k.newlab("phG")
    k.e(f"s_cmp_ge_u32 s2, 144\ns_cbranch_scc1 {LPE}")
    phase_f(k)
    k.e(f"s_branch {k.name}_end")
    k.lab(LPE)
    k.e(f"s_cmp_ge_u32 s2, 216\ns_cbranch_scc1 {LPG}")
    phase_e(k)
    k.e(f"s_branch {k.name}_end")
    k.lab(LPG)
    k.e(f"s_cmp_ge_u32 s2, 234\ns_cbranch_scc1 {k.name}_end")
    phase_g(k)

def phase_e(k):
    A_LDS = T_A
    k.e("""v_lshrrev_b32 v5, 7, v0
           v_and_b32 v6, 127, v0
           v_lshlrev_b32 v8, 14, v5
           v_lshl_add_u32 v8, v6, 4, v8
           s_lshl_b32 s40, s48, 11""")
    loads = []
    for j in range(8):
        loads.append(f"s_add_u32 s41, s40, {32768*j}\nbuffer_load_dwordx4 v[{20+4*j}:{23+4*j}], v8, s[36:39], s41 offen sc1")
    poll_gather(k, loads, list(range(20, 52)), 46)
    k.stamp(9)
    for j in range(1, 8):
        for e in range(4):
            k.e(f"v_add_f32 v{20+e}, v{20+e}, v{20+4*j+e}")
    k.e("""v_cvt_pk_bf16_f32 v24, v20, v21
           v_cvt_pk_bf16_f32 v25, v22, v23
           v_lshlrev_b32 v26, 16, v24
           v_and_b32 v27, 0xffff0000, v24
           v_lshlrev_b32 v28, 16, v25
           v_and_b32 v29, 0xffff0000, v25
           v_sub_f32 v20, v20, v26
           v_sub_f32 v21, v21, v27
           v_sub_f32 v22, v22, v28
           v_sub_f32 v23, v23, v29
           v_cvt_pk_bf16_f32 v26, v20, v21
           v_cvt_pk_bf16_f32 v27, v22, v23
           v_lshlrev_b32 v12, 10, v5
           v_lshl_add_u32 v12, v6, 3, v12""")
    k.e(f"""ds_write_b64 v12, v[24:25] offset:{A_LDS}
            ds_write_b64 v12, v[26:27] offset:{A_LDS+2048}
            s_waitcnt lgkmcnt(0)
            s_barrier""")
    k.e("""v_and_b32 v8, 3, v1
           v_lshlrev_b32 v8, 10, v8
           v_lshl_add_u32 v8, v4, 4, v8""")
    for t in range(16):
        k.e(f"ds_read_b128 v[{20+4*t}:{23+4*t}], v8 offset:{A_LDS + 64*t}")
    k.e(f"""v_lshrrev_b32 v9, 2, v3
            v_lshl_add_u32 v10, v4, 3, v9
            v_lshlrev_b32 v10, 7, v10
            v_and_b32 v11, 2, v9
            v_and_b32 v12, 1, v4
            v_lshl_or_b32 v11, v12, 2, v11
            v_bfe_u32 v12, v3, 1, 1
            s_lshl_b32 s47, s20, 1
            v_add_u32 v12, s47, v12
            v_and_b32 v13, 1, v3
            v_lshl_add_u32 v10, v13, 3, v10
            v_xor_b32 v12, v12, v11
            v_lshl_add_u32 v15, v12, 4, v10
            v_add_u32 v15, {BIG_L}, v15""")
    for c in range(2):
        for i in range(8):
            t = 8*c + i
            d = 88 + 4*i
            k.e(f"""ds_read_b64_tr_b16 v[{d}:{d+1}], v15 offset:{4096*t}
                    ds_read_b64_tr_b16 v[{d+2}:{d+3}], v15 offset:{4096*t + 512}""")
        k.e("s_waitcnt lgkmcnt(0)")
        for i in range(8):
            t = 8*c + i
            d = 88 + 4*i
            cin = "0" if t == 0 else "v[120:123]"
            k.e(f"v_mfma_f32_16x16x32_bf16 v[120:123], v[{20+4*t}:{23+4*t}], v[{d}:{d+3}], {cin}")
        k.e("s_nop 3")
    k.e(f"""s_mul_i32 s45, s48, 4608
            s_lshl_b32 s46, s49, 8
            s_add_u32 s45, s45, s46
            s_lshl_b32 s46, s20, 6
            s_add_u32 s45, s45, s46
            v_lshl_add_u32 v12, v3, 2, s45
            s_nop 7
            v_add_f32 v8, v120, v122
            v_add_f32 v9, v121, v123""")
    k.sanitize([8, 9], 10)
    k.e(f"""v_cmp_gt_u32 vcc, 16, v1
            s_and_saveexec_b64 s[50:51], vcc
            s_mov_b32 s45, 0""")
    for r in range(8):
        k.e("""buffer_store_dword v8, v12, s[56:59], s45 offen sc1
               buffer_store_dword v9, v12, s[56:59], s45 offen offset:2304 sc1
               s_add_u32 s45, s45, 36864""")

def phase_f(k):
    A_LDS, R_LDS, GU_LDS, A2_LDS = T_A, T_A + 4608, T_A + 4672, T_A + 5184
    D_LDS = OST_L
    if os.environ.get("DNA", "0") != "1":
        k.e("s_barrier")
        k.e(f"""s_and_b32 s83, s2, 7
                s_lshl_b32 s83, s83, 1
                s_bfe_u32 s45, s2, 0x10003
                s_add_u32 s83, s83, s45
                s_andn2_b32 s45, s2, 15
                s_add_u32 s83, s83, s45
                v_lshlrev_b32 v9, 4, v1
                s_mul_i32 s41, s83, 36864
                s_mul_i32 s42, s20, 9216
                s_add_u32 s41, s41, s42
                s_add_u32 s43, s42, {D_LDS}""")
        for mi in range(9):
            k.e(f"""s_mov_b32 m0, s43
                    s_add_u32 s43, s43, 1024
                    buffer_load_dwordx4 v9, s[84:87], s41 offen nt lds
                    s_add_u32 s41, s41, 1024""")
    k.stamp(10)
    k.e("""v_lshlrev_b32 v5, 4, v0
           v_mov_b32 v6, 0x7fffffff
           v_cmp_gt_u32 vcc, 144, v0
           s_nop 1
           v_cndmask_b32 v5, v6, v5, vcc
           v_lshrrev_b32 v8, 1, v5
           v_cndmask_b32 v8, v6, v8, vcc
           s_mov_b64 s[64:65], vcc""")
    k.e("""buffer_load_dwordx2 v[84:85], v8, s[88:91], 0 offen
           buffer_load_dwordx2 v[86:87], v8, s[88:91], 0 offen offset:1152""")
    k.e("s_and_b32 s41, s2, 7\ns_mul_i32 s41, s41, 36864")
    loads = []
    for ks in range(8):
        for b in range(2):
            r = 20 + 8*ks + 4*b
            loads.append(f"s_add_u32 s40, s41, {4608*ks}\nbuffer_load_dwordx4 v[{r}:{r+3}], v5, s[56:59], s40 offen offset:{2304*b} sc1")
    poll_gather(k, loads, list(range(20, 84)), 46)
    k.stamp(9)
    for ks in range(1, 8):
        for e in range(8):
            k.e(f"v_add_f32 v{20+e}, v{20+e}, v{20+8*ks+e}")
    for b in range(2):
        k.e(f"""v_lshlrev_b32 v12, 16, v{84+2*b}
                v_and_b32 v13, 0xffff0000, v{84+2*b}
                v_lshlrev_b32 v14, 16, v{85+2*b}
                v_and_b32 v15, 0xffff0000, v{85+2*b}
                v_add_f32 v{20+4*b}, v{20+4*b}, v12
                v_add_f32 v{21+4*b}, v{21+4*b}, v13
                v_add_f32 v{22+4*b}, v{22+4*b}, v14
                v_add_f32 v{23+4*b}, v{23+4*b}, v15""")
    k.e(f"""v_add_u32 v16, {BIG_L + 73728}, v5
            s_mov_b64 s[66:67], exec
            s_mov_b64 exec, s[64:65]
            ds_write_b128 v16, v[20:23]
            ds_write_b128 v16, v[24:27] offset:2304
            s_mov_b64 exec, s[66:67]""")
    k.e("""v_add_f32 v28, v20, v21
           v_add_f32 v29, v22, v23
           v_add_f32 v28, v28, v29
           v_add_f32 v29, v24, v25
           v_add_f32 v30, v26, v27
           v_add_f32 v29, v29, v30""")
    k.allreduce("add", 28, 31)
    k.allreduce("add", 29, 31)
    k.e(f"""s_lshl_b32 s46, s20, 3
            v_mov_b32 v32, s46
            v_mov_b32 v33, 0
            ds_write_b64 v32, v[28:29] offset:{R_LDS}
            s_waitcnt lgkmcnt(0)
            s_barrier
            ds_read_b128 v[36:39], v33 offset:{R_LDS}
            ds_read_b64 v[40:41], v33 offset:{R_LDS+16}
            s_waitcnt lgkmcnt(0)
            v_add_f32 v28, v36, v38
            v_add_f32 v28, v28, v40
            v_add_f32 v29, v37, v39
            v_add_f32 v29, v29, v41
            v_mul_f32 v28, {f2u(1.0/576)}, v28
            v_mul_f32 v29, {f2u(1.0/576)}, v29""")
    for b in range(2):
        for e in range(4):
            k.e(f"v_sub_f32 v{20+4*b+e}, v{20+4*b+e}, v{28+b}")
    for b in range(2):
        k.e(f"""v_mul_f32 v{30+b}, v{20+4*b}, v{20+4*b}
                v_fmac_f32 v{30+b}, v{21+4*b}, v{21+4*b}
                v_fmac_f32 v{30+b}, v{22+4*b}, v{22+4*b}
                v_fmac_f32 v{30+b}, v{23+4*b}, v{23+4*b}
                v_cndmask_b32 v{30+b}, 0, v{30+b}, s[64:65]""")
    k.allreduce("add", 30, 34)
    k.allreduce("add", 31, 34)
    k.e(f"""ds_write_b64 v32, v[30:31] offset:{R_LDS+32}
            s_waitcnt lgkmcnt(0)
            s_barrier
            ds_read_b128 v[36:39], v33 offset:{R_LDS+32}
            ds_read_b64 v[40:41], v33 offset:{R_LDS+48}
            s_waitcnt lgkmcnt(0)
            v_add_f32 v30, v36, v38
            v_add_f32 v30, v30, v40
            v_add_f32 v31, v37, v39
            v_add_f32 v31, v31, v41
            v_mov_b32 v34, {f2u(1e-5)}
            v_mov_b32 v35, {f2u(1e-5)}
            v_fmac_f32 v34, {f2u(1.0/576)}, v30
            v_fmac_f32 v35, {f2u(1.0/576)}, v31
            v_rsq_f32 v34, v34
            v_rsq_f32 v35, v35
            v_lshlrev_b32 v12, 3, v0""")
    for b in range(2):
        o = 20 + 4*b
        for e in range(4):
            k.e(f"v_mul_f32 v{o+e}, v{o+e}, v{34+b}")
        k.e(f"""v_cvt_pk_bf16_f32 v36, v{o}, v{o+1}
                v_cvt_pk_bf16_f32 v37, v{o+2}, v{o+3}
                v_lshlrev_b32 v38, 16, v36
                v_and_b32 v39, 0xffff0000, v36
                v_lshlrev_b32 v40, 16, v37
                v_and_b32 v41, 0xffff0000, v37
                v_sub_f32 v{o}, v{o}, v38
                v_sub_f32 v{o+1}, v{o+1}, v39
                v_sub_f32 v{o+2}, v{o+2}, v40
                v_sub_f32 v{o+3}, v{o+3}, v41
                v_cvt_pk_bf16_f32 v38, v{o}, v{o+1}
                v_cvt_pk_bf16_f32 v39, v{o+2}, v{o+3}
                s_mov_b64 s[66:67], exec
                s_mov_b64 exec, s[64:65]
                ds_write_b64 v12, v[36:37] offset:{A_LDS + 1152*b}
                ds_write_b64 v12, v[38:39] offset:{A_LDS + 2304 + 1152*b}
                s_mov_b64 exec, s[66:67]""")
    k.e("s_waitcnt lgkmcnt(0)\ns_barrier")
    k.e(f"""v_and_b32 v8, 3, v1
            v_mul_u32_u24 v8, 1152, v8
            v_lshl_add_u32 v8, v4, 4, v8
            s_and_b32 s44, s20, 1
            s_lshl_b32 s44, s44, 1
            s_lshr_b32 s45, s20, 1
            s_mul_i32 s45, s45, 36864
            s_add_u32 s45, s45, {BIG_L}""")
    for t in range(18):
        k.e(f"ds_read_b128 v[{20+4*t}:{23+4*t}], v8 offset:{A_LDS + 64*t}")
    tr64_base(k, 15, 3, 4, 44, 10, 11)
    k.e("v_add_u32 v15, s45, v15")
    for c in range(3):
        for i in range(6):
            t = 6*c + i
            d = 96 + 4*i
            k.e(f"""ds_read_b64_tr_b16 v[{d}:{d+1}], v15 offset:{2048*t}
                    ds_read_b64_tr_b16 v[{d+2}:{d+3}], v15 offset:{2048*t + 256}""")
        k.e("s_waitcnt lgkmcnt(0)")
        for i in range(6):
            t = 6*c + i
            d = 96 + 4*i
            cin = "0" if t == 0 else "v[120:123]"
            k.e(f"v_mfma_f32_16x16x32_bf16 v[120:123], v[{20+4*t}:{23+4*t}], v[{d}:{d+3}], {cin}")
        k.e("s_nop 3")
    k.e("s_nop 7")
    k.e(f"""s_lshr_b32 s45, s20, 1
            s_lshl_b32 s45, s45, 8
            s_and_b32 s46, s20, 1
            s_lshl_b32 s46, s46, 6
            s_add_u32 s45, s45, s46
            v_lshl_add_u32 v12, v3, 2, s45
            v_add_f32 v8, v120, v122
            v_add_f32 v9, v121, v123
            ds_write_b32 v12, v8 offset:{GU_LDS}
            ds_write_b32 v12, v9 offset:{GU_LDS+128}
            s_waitcnt lgkmcnt(0)
            s_barrier
            v_lshlrev_b32 v12, 2, v1
            ds_read_b32 v8, v12 offset:{GU_LDS}
            ds_read_b32 v9, v12 offset:{GU_LDS+256}
            s_waitcnt lgkmcnt(0)
            v_mul_f32 v10, {f2u(-LOG2E)}, v8
            v_exp_f32 v10, v10
            s_nop 0
            v_add_f32 v10, 1.0, v10
            v_rcp_f32 v10, v10
            s_nop 0
            v_mul_f32 v8, v8, v10
            v_mul_f32 v8, v8, v9""")
    k.hilo(8, 9, 10, 11)
    k.e(f"""v_lshlrev_b32 v12, 1, v1
            ds_write_b16 v12, v9 offset:{A2_LDS}
            ds_write_b16 v12, v10 offset:{A2_LDS+128}
            s_waitcnt lgkmcnt(0)
            s_barrier
            v_and_b32 v8, 3, v1
            v_lshlrev_b32 v8, 6, v8
            v_lshl_add_u32 v8, v4, 4, v8
            ds_read_b128 v[20:23], v8 offset:{A2_LDS}""")
    k.e(f"""v_lshrrev_b32 v10, 2, v3
            v_lshl_add_u32 v10, v4, 3, v10
            v_mul_u32_u24 v10, 1152, v10
            v_and_b32 v11, 3, v3
            v_lshl_add_u32 v10, v11, 3, v10
            s_mul_i32 s45, s20, 288
            s_add_u32 s45, s45, {D_LDS}
            v_add_u32 v10, s45, v10""")
    for n in range(9):
        d = 24 + 4*n
        k.e(f"""ds_read_b64_tr_b16 v[{d}:{d+1}], v10 offset:{32*n}
                ds_read_b64_tr_b16 v[{d+2}:{d+3}], v10 offset:{32*n + 4608}""")
    k.e(f"""s_mul_i32 s46, s20, 576
            s_add_u32 s46, s46, {BIG_L + 73728}
            v_lshl_add_u32 v13, v3, 2, s46""")
    for n in range(9):
        k.e(f"""ds_read_b32 v{100+2*n}, v13 offset:{64*n}
                ds_read_b32 v{101+2*n}, v13 offset:{2304 + 64*n}""")
    k.e("s_waitcnt lgkmcnt(0)")
    for n in range(9):
        d = 24 + 4*n
        k.e(f"v_mfma_f32_16x16x32_bf16 v[{64+4*n}:{67+4*n}], v[20:23], v[{d}:{d+3}], 0")
    k.e(f"""s_mul_i32 s45, s2, 4608
            s_mul_i32 s46, s20, 576
            s_add_u32 s45, s45, s46
            v_lshl_add_u32 v12, v3, 2, s45
            s_cmp_eq_u32 s2, 0
            s_cselect_b32 s47, 1.0, 0
            v_mov_b32 v14, 0x7fc00000
            s_nop 4""")
    for n in range(9):
        a = 64 + 4*n
        k.e(f"""v_add_f32 v{a}, v{a}, v{a+2}
                v_add_f32 v{a+1}, v{a+1}, v{a+3}""")
    Lh = k.newlab("noh")
    k.e(f"s_cbranch_scc0 {Lh}")
    for n in range(9):
        a = 64 + 4*n
        k.e(f"""v_add_f32 v{a}, v{a}, v{100+2*n}
                v_add_f32 v{a+1}, v{a+1}, v{101+2*n}""")
    k.lab(Lh)
    for n in range(9):
        a = 64 + 4*n
        k.e(f"""v_cmp_eq_u32 vcc, -1, v{a}
                v_cmp_eq_u32 s[66:67], -1, v{a+1}
                s_nop 1
                v_cndmask_b32 v{a}, v{a}, v14, vcc
                v_cndmask_b32 v{a+1}, v{a+1}, v14, s[66:67]""")
    k.e("""v_cmp_gt_u32 vcc, 16, v1
           s_and_saveexec_b64 s[50:51], vcc""")
    for n in range(9):
        a = 64 + 4*n
        k.e(f"""buffer_store_dword v{a}, v12, s[60:63], 0 offen offset:{64*n} sc1
                buffer_store_dword v{a+1}, v12, s[60:63], 0 offen offset:{2304 + 64*n} sc1""")

def phase_g(k):
    k.e("""s_sub_u32 s48, s2, 216
           v_lshrrev_b32 v5, 4, v0
           v_and_b32 v6, 15, v0
           v_mul_u32_u24 v8, 4608, v5
           v_lshl_add_u32 v8, v6, 4, v8
           s_lshl_b32 s40, s48, 8""")
    loads = []
    for i in range(9):
        loads.append(f"s_add_u32 s41, s40, {16*4608*i}\nbuffer_load_dwordx4 v[{20+4*i}:{23+4*i}], v8, s[60:63], s41 offen sc1")
    poll_gather(k, loads, list(range(20, 56)), 46)
    k.stamp(9)
    for i in range(1, 9):
        for e in range(4):
            k.e(f"v_add_f32 v{20+e}, v{20+e}, v{20+4*i+e}")
    k.e(f"""v_lshlrev_b32 v9, 4, v0
            v_lshlrev_b32 v10, 2, v0
            ds_write_b128 v9, v[20:23] offset:{T_A}
            s_waitcnt lgkmcnt(0)
            s_barrier
            s_cmp_lg_u32 s20, 0
            s_cbranch_scc1 {k.name}_end""")
    for i in range(16):
        k.e(f"ds_read_b32 v{20+i}, v10 offset:{T_A + 256*i}")
    k.e("s_waitcnt lgkmcnt(0)")
    for i in range(1, 16):
        k.e(f"v_add_f32 v20, v20, v{20+i}")
    k.e("""v_cvt_pk_bf16_f32 v20, v20, v20
           v_lshlrev_b32 v10, 1, v0
           s_lshl_b32 s41, s48, 7
           buffer_store_short v20, v10, s[92:95], s41 offen""")

def k2_main():
    k = Kern("k_main_kernel", 256, 512, LDS_TOTAL, 256)
    guard(k, 256)
    k.ldptr(4, "ckv"); k.ldptr(10, "ws")
    wave_id(k, 20, 1)
    k.e(f"""v_and_b32 v1, 63, v0
            v_mov_b32 v2, 0
            v_lshlrev_b32 v3, 2, v1
            v_cmp_gt_u32 vcc, 20, v0
            s_and_saveexec_b64 s[48:49], vcc
            ds_write_b32 v3, v2 offset:{SYNC}
            s_mov_b64 exec, s[48:49]
            s_waitcnt lgkmcnt(0)
            s_barrier""")
    LB = k.newlab("teamB")
    if STAMP:
        k.sgpr = 102
        k.e("s_mov_b32 s101, s20\nv_mov_b32 v255, 0")
        k.stamp(0)
    k.e(f"s_cmp_ge_u32 s20, 4\ns_cbranch_scc1 {LB}")
    team_a(k)
    k.lab(LB)
    team_b(k)
    k.lab(f"{k.name}_end")
    if STAMP:
        k.e(f"s_cmp_ge_u32 s2, 256\ns_cbranch_scc1 {k.name}_end2")
        k.stamp_out()
        k.lab(f"{k.name}_end2")
    return k

def main():
    ks = [k2_main()]
    out = [HEADER.rstrip("\n")]
    for k in ks:
        out.append(f"; @launch kernel={k.name} grid=({k.grid},1,1) block=({k.block},1,1) lds={k.lds}")
    out.append('.amdgcn_target "amdgcn-amd-amdhsa--gfx950"\n.text')
    for k in ks:
        out.append(k.text())
    open(sys.argv[1] if len(sys.argv) > 1 else "u.s", "w").write("\n".join(out))
main()
```
